```python
import torch

def _softmax(x, axis=-1):
    return torch.softmax(x, dim=axis)
def _gelu(x):
    return torch.nn.functional.gelu(x, approximate="tanh")
def _silu(x):
    return torch.nn.functional.silu(x)
def _sigmoid(x):
    return torch.sigmoid(x)
def _layernorm(x, axis=-1, eps=1e-5):
    m = x.mean(dim=axis, keepdim=True)
    v = x.var(dim=axis, keepdim=True, unbiased=False)
    return (x - m) / torch.sqrt(v + eps)
def _scatter_add(tgt, idx, src, axis=0):
    return tgt.clone().index_add_(axis, idx, src)
def _segment_sum(src, seg, n):
    out = torch.zeros((n,) + src.shape[1:], dtype=src.dtype)
    return out.index_add_(0, seg, src)
def _pad(x, pw):
    flat = tuple(v for pair in reversed(pw) for v in pair)
    return torch.nn.functional.pad(x, flat)

kernel_name = 'parallel_sum__sliding_block_cached__swiglu_ffn__decode'

def setup_inputs():

    _w = (lambda a: (lambda t: t.to(torch.bfloat16) if t.is_floating_point() else t)(torch.as_tensor(a)))
    def _A_setup():
        B, Sq, D = 1, 1, 1024
        Hq, Hkv, Sk, Dh = 32, 4, 32768, 128
        assert Hq % Hkv == 0, (Hq, Hkv)
        return {
            "x": _w((lambda *s: torch.randn(*s, dtype=torch.bfloat16) * 0.05)(B, Sq, D)),
            "k_cache": _w((lambda *s: torch.randn(*s, dtype=torch.bfloat16) * 3.2)(B, Hkv, Sk, Dh)),
            "v_cache": _w((lambda *s: torch.randn(*s, dtype=torch.bfloat16) * 1.6)(B, Hkv, Sk, Dh)),
            "wq": _w((lambda *s: torch.randn(*s, dtype=torch.bfloat16) * 3.2)(D, Hq * Dh) * (D ** -0.5)),
            "wo": _w((lambda *s: torch.randn(*s, dtype=torch.bfloat16) * 1.6)(Hq * Dh, D) * ((Hq * Dh) ** -0.5)),
        }
    _A_in = _A_setup()

    def _B_setup():
        B, S, D, F = 1, 1, 1024, 3584
        return {
            "x": _w((lambda *s: torch.randn(*s, dtype=torch.bfloat16) * 0.05)(B, S, D)),
            "w_gate": _w((lambda *s: torch.randn(*s, dtype=torch.bfloat16) * 0.05)(D, F)),
            "w_up": _w((lambda *s: torch.randn(*s, dtype=torch.bfloat16) * 0.05)(D, F)),
            "w_down": _w((lambda *s: torch.randn(*s, dtype=torch.bfloat16) * 0.05)(F, D)),
        }
    _B_in = _B_setup()

    return {
        "A_x": _A_in["x"],
        "A_k_cache": _A_in["k_cache"],
        "A_v_cache": _A_in["v_cache"],
        "A_wq": _A_in["wq"],
        "A_wo": _A_in["wo"],
        "B_x": _B_in["x"],
        "B_w_gate": _B_in["w_gate"],
        "B_w_up": _B_in["w_up"],
        "B_w_down": _B_in["w_down"],
    }

def reference(A_x, A_k_cache, A_v_cache, A_wq, A_wo, B_x, B_w_gate, B_w_up, B_w_down):
    def _A_ref(x, k_cache, v_cache, wq, wo):
        B, Sq, D = x.shape
        Hq, Dh = 32, 128
        Hkv, Sk = k_cache.shape[1], k_cache.shape[2]
        W = min(4096, max(256, Sk // 4))
        rep = Hq // Hkv
        q = (lambda x, *d: x.permute(*d))((x @ wq).reshape(B, Sq, Hq, Dh), 0, 2, 1, 3)
        k = (lambda x, n, axis: torch.repeat_interleave(x, n, dim=axis))(k_cache[:, :, Sk - W:, :], rep, axis=1)
        v = (lambda x, n, axis: torch.repeat_interleave(x, n, dim=axis))(v_cache[:, :, Sk - W:, :], rep, axis=1)
        scores = torch.einsum("bhqd,bhkd->bhqk", q, k) * (Dh ** -0.5)
        p = _softmax(scores, axis=-1)
        o = torch.einsum("bhqk,bhkd->bhqd", p, v)
        return (lambda x, *d: x.permute(*d))(o, 0, 2, 1, 3).reshape(B, Sq, Hq * Dh) @ wo

    def _B_ref(x, w_gate, w_up, w_down):
        g = _silu(x @ w_gate)
        u = x @ w_up
        return (g * u) @ w_down

    x = A_x
    xn = _layernorm(x, axis=-1)
    return x + _A_ref(xn, A_k_cache, A_v_cache, A_wq, A_wo) + _B_ref(xn, B_w_gate, B_w_up, B_w_down)
```

```python
KNAME = "parallel_sum__sliding_block_cached__swiglu_ffn__decode_kernel"
HEADER_COMMENT = open("parallel_sum__sliding_block_cached__swiglu_ffn__decode.s.ref").read().split("; Override launch")[0]

class Asm:
    def __init__(self):
        self.lines = []
        self.nlabel = 0
    def __call__(self, s):
        for l in s.strip("\n").split("\n"):
            self.lines.append(l.rstrip())
    def label(self, base="L"):
        self.nlabel += 1
        return f"{base}_{self.nlabel}"
    def text(self):
        return "\n".join(self.lines) + "\n"

def wrap(body, grid, block, lds, vgpr=256, sgpr=102, accum=None, name=KNAME):
    if accum is None:
        accum = min(256, (vgpr + 3) // 4 * 4)
    return f"""{HEADER_COMMENT}; @launch grid=({grid},1,1) block=({block},1,1) lds={lds}
.amdgcn_target "amdgcn-amd-amdhsa--gfx950"
.text
.globl {name}
.p2align 8
.type {name},@function
{name}:
{body}
.section .rodata,"a"
.p2align 6
.amdhsa_kernel {name}
  .amdhsa_next_free_vgpr {vgpr}
  .amdhsa_next_free_sgpr {sgpr}
  .amdhsa_accum_offset {accum}
  .amdhsa_group_segment_fixed_size 0
  .amdhsa_kernarg_size 96
  .amdhsa_user_sgpr_count 2
  .amdhsa_user_sgpr_kernarg_segment_ptr 1
  .amdhsa_system_sgpr_workgroup_id_x 1
.end_amdhsa_kernel
"""
```

```python
import sys
from asmgen import *

STAMP_OFF = 128 << 20
NST = 12
EPOCH = 0
QP = 0x1000
OP = 0x40000
GU = 0x180000
PA = 0x200000
PB = 0x240000
WS_SIZE = 256 << 20

L_RED = 0
L_TRASH = 2048
L_Q = 3072
L_S = 5376
L_OUT = 8192
L_FIN = 12288
L_V = 14336
LDS_BYTES = L_V + 16384

LOG2E = 0x3FB8AA3B
SCALE = 0x3DB504F3

class R:
    def __init__(self, start): self.n = start
    def a(self, k=1, al=1):
        self.n = (self.n + al - 1) // al * al
        r = self.n; self.n += k
        return r
def vr(b, n): return f"v[{b}:{b+n-1}]"

def gen(out, stamps=True, nt=True, depths=None, Df=4, Dwd=5, spin_max=1 << 20, warm=True,
        wo_sched=(0, 4, 4), tauq=8, tauo=8, preq=0, preo=0, ffn_off=False, k_early=True, v_when="ln", ffn_pre=0, cyc=False):
    a = Asm()
    NT = " nt" if nt else ""
    def stamp(i):
        if stamps and not cyc: a(f"    s_memrealtime s[{72+2*i}:{73+2*i}]")
    tk = [1]
    def tick(why):
        if cyc:
            a(f"    s_memtime s[{72+2*tk[0]}:{73+2*tk[0]}]"); print(tk[0], why); tk[0] += 1
    def store_stamps():
        if not stamps: return
        lab = a.label("nost")
        a(f"""
    s_waitcnt lgkmcnt(0)
    s_cmp_lg_u32 s3, 0
    s_cbranch_scc1 {lab}
    s_mul_i32 s64, s2, {NST*8}
    s_add_u32 s64, s64, {STAMP_OFF}
    v_mov_b32 v20, 0
    s_mov_b64 exec, 1
    """)
        for i in range(NST):
            a(f"""
    v_mov_b32 v22, s{72+2*i}
    v_mov_b32 v23, s{73+2*i}
    buffer_store_dwordx2 v[22:23], v20, s[40:43], s64 offen offset:{8*i}
    s_nop 1
    """)
        a(f"{lab}:")
    def srd(base, lo, size):
        a(f"""
    s_mov_b32 s{base}, s{lo}
    s_mov_b32 s{base+1}, s{lo+1}
    s_mov_b32 s{base+2}, {size}
    s_mov_b32 s{base+3}, 0x20000
    """)
    def lgk(n): a(f"    s_waitcnt lgkmcnt({0 if cyc else n})")
    class guard:
        def __enter__(self):
            self.l = a.label("G")
            if warm: a(f"    s_cbranch_execz {self.l}")
        def __exit__(self, *x):
            if warm: a(f"{self.l}:")
    def barrier():
        with guard(): a("    s_barrier")
    def seg_end():
        if warm: a("    s_cbranch_execz W_ret")

    r = R(10)
    vtagP, vaddP, vOT, vtid4, vPF, vG4 = [r.a() for _ in range(6)]
    XA = r.a(8, 4); XS = r.a(4, 4); T = r.a(24, 4); A = r.a(32, 4)
    misc = r.a(16, 4)
    big = r.n

    a(f"""
    s_cmp_ge_u32 s2, 512
    s_cbranch_scc1 L_end
    s_load_dwordx16 s[4:19], s[0:1], 0
    s_load_dwordx8 s[20:27], s[0:1], 64
    """)
    if stamps:
        for i in range(1, NST): a(f"    s_mov_b64 s[{72+2*i}:{73+2*i}], 0")
        a("    s_memrealtime s[72:73]")
    a(f"""
    v_lshrrev_b32 v6, 6, v0
    v_and_b32 v1, 63, v0
    s_and_b32 s33, s2, 7            ; xcd
    v_readfirstlane_b32 s3, v6
    s_bfe_u32 s34, s2, 0x50003      ; idx
    v_lshlrev_b32 v6, 4, v1         ; lane*16
    s_mov_b32 s38, 2048
    s_mov_b32 s39, 0x20000
    s_cmp_ge_u32 s2, 256
    s_cbranch_scc1 L_chain
    s_getpc_b64 s[96:97]
L_pc:
    s_lshl_b32 s64, s34, 2
    s_add_u32 s64, s64, s3
    s_lshl_b32 s64, s64, 7
    s_min_u32 s64, s64, L_code_end - L_pc - 4
    v_mov_b32 v9, s64
    global_load_dword v{vPF}, v9, s[96:97]
    s_cmp_ge_u32 s34, {0 if ffn_off else 28}
    s_cbranch_scc1 W_only
    """)

    def xloads(nsel):
        ld = "dwordx4" if nsel == 8 else "dwordx2"
        a(f"""
    s_mov_b32 s36, s4
    s_mov_b32 s37, s5
    buffer_load_dwordx4 {vr(XA,4)}, v6, s[36:39], 0 offen
    buffer_load_dwordx4 {vr(XA+4,4)}, v6, s[36:39], 0 offen offset:1024
    buffer_load_{ld} {vr(XS,nsel//2)}, v9, s[36:39], s97 offen
    s_load_dword s28, s[26:27], {EPOCH}
    """)
    def masks():
        a(f"""
    v_bfe_u32 v{T}, v0, 1, 2
    v_and_b32 v{T+1}, 1, v0
    v_lshlrev_b32 v{T+1}, 4, v{T+1}
    v_mov_b32 v9, 0xffff
    v_lshlrev_b32 v9, v{T+1}, v9
    v_cmp_eq_u32 vcc, 0, v{T}
    v_cmp_eq_u32 s[96:97], 1, v{T}
    v_cmp_eq_u32 s[98:99], 2, v{T}
    v_cmp_eq_u32 s[100:101], 3, v{T}
    v_cndmask_b32 v2, 0, v9, vcc
    v_cndmask_b32 v3, 0, v9, s[96:97]
    v_cndmask_b32 v4, 0, v9, s[98:99]
    v_cndmask_b32 v5, 0, v9, s[100:101]
    """)
    def consts2():
        a(f"""
    v_bfe_u32 v9, v1, 4, 1
    v_and_b32 v{vOT}, 15, v1
    v_lshlrev_b32 v{vOT}, 5, v{vOT}
    v_lshl_add_u32 v{vOT}, v9, 4, v{vOT}
    s_lshl_b32 s64, s3, 10
    v_add_u32 v{vOT}, s64, v{vOT}
    v_lshlrev_b32 v{vtid4}, 2, v0
    v_and_b32 v{vG4}, 3, v1
    v_lshlrev_b32 v{vG4}, 4, v{vG4}
    """)
    def tags():
        a(f"""
    s_waitcnt lgkmcnt(0)
    s_and_b32 s28, s28, 0x7f
    s_cmp_eq_u32 s28, 127
    s_cselect_b32 s28, 0, s28
    s_add_u32 s35, s28, 1
    s_add_u32 s29, s28, 33
    s_sub_u32 s64, s29, 127
    s_cmp_gt_u32 s29, 127
    s_cselect_b32 s29, s64, s29
    s_add_u32 s30, s28, 65
    s_sub_u32 s64, s30, 127
    s_cmp_gt_u32 s30, 127
    s_cselect_b32 s30, s64, s30
    s_add_u32 s31, s28, 97
    s_sub_u32 s64, s31, 127
    s_cmp_gt_u32 s31, 127
    s_cselect_b32 s31, s64, s31
    s_add_u32 s28, s28, 1
    s_lshl_b32 s32, s29, 8
    s_or_b32 s32, s32, s28
    s_lshl_b32 s64, s30, 16
    s_or_b32 s32, s32, s64
    s_lshl_b32 s64, s31, 24
    s_or_b32 s32, s32, s64
    s_movk_i32 s70, 0xff
    v_and_b32 v{vtagP}, 3, v1
    v_lshlrev_b32 v{vtagP}, 3, v{vtagP}
    v_bfe_u32 v{vtagP}, s32, v{vtagP}, 8
    v_sub_u32 v{vaddP}, 0x80, v{vtagP}
    """)
    def allreduce2(x, y, t1, t2):
        for s_ in (8, 4, 2, 1):
            a(f"""
    s_nop 0
    v_add_f32_dpp v{x}, v{x}, v{x} row_ror:{s_} row_mask:0xf bank_mask:0xf
    v_add_f32_dpp v{y}, v{y}, v{y} row_ror:{s_} row_mask:0xf bank_mask:0xf
    """)
        for sw in ("v_permlane16_swap_b32", "v_permlane32_swap_b32"):
            a(f"""
    v_mov_b32 v{t1}, v{x}
    v_mov_b32 v{t2}, v{y}
    s_nop 0
    {sw} v{t1}, v{x}
    {sw} v{t2}, v{y}
    v_add_f32 v{x}, v{x}, v{t1}
    v_add_f32 v{y}, v{y}, v{t2}
    """)
    def allreduce1(x, t1, op="v_add_f32", steps=(8, 4, 2, 1)):
        for s_ in steps:
            a(f"""
    s_nop 1
    {op}_dpp v{x}, v{x}, v{x} row_ror:{s_} row_mask:0xf bank_mask:0xf
    """)
        for sw in ("v_permlane16_swap_b32", "v_permlane32_swap_b32"):
            a(f"""
    v_mov_b32 v{t1}, v{x}
    s_nop 1
    {sw} v{t1}, v{x}
    {op} v{x}, v{x}, v{t1}
    """)
    def rbf16(d, s_):
        a(f"""
    v_cvt_pk_bf16_f32 v{d}, v{s_}, v{s_}
    v_and_b32 v{d}, 0xffff0000, v{d}
    """)
    def layernorm(nwait, nsel):
        a(f"    s_waitcnt vmcnt({nwait+1})")
        stamp(1)
        for k in range(8):
            a(f"""
    v_lshlrev_b32 v{T+2*k}, 16, v{XA+k}
    v_and_b32 v{T+2*k+1}, 0xffff0000, v{XA+k}
    """)
        a(f"""
    v_readfirstlane_b32 s64, v{T}
    s_nop 1
    """)
        for k in range(16): a(f"    v_subrev_f32 v{T+k}, s64, v{T+k}")
        a(f"""
    v_pk_add_f32 {vr(T+16,2)}, {vr(T,2)}, {vr(T+2,2)}
    v_pk_mul_f32 {vr(T+18,2)}, {vr(T,2)}, {vr(T,2)}
    """)
        for k in range(1, 8):
            a(f"    v_pk_fma_f32 {vr(T+18,2)}, {vr(T+2*k,2)}, {vr(T+2*k,2)}, {vr(T+18,2)}")
            if k >= 2: a(f"    v_pk_add_f32 {vr(T+16,2)}, {vr(T+16,2)}, {vr(T+2*k,2)}")
        S1, S2, t1, t2 = T + 16, T + 18, T + 17, T + 19
        a(f"""
    v_add_f32 v{S1}, v{S1}, v{t1}
    v_add_f32 v{S2}, v{S2}, v{t2}
    s_nop 0
    """)
        allreduce2(S1, S2, t1, t2)
        mean, var, rs, sd = T, T + 1, T + 2, T + 3
        a(f"""
    v_mul_f32 v{S1}, 0x3a800000, v{S1}
    v_mul_f32 v{S2}, 0x3a800000, v{S2}
    v_add_f32 v{mean}, s64, v{S1}
    v_fma_f32 v{var}, -v{S1}, v{S1}, v{S2}
    v_max_f32 v{var}, 0, v{var}
    """)
        rbf16(mean, mean); rbf16(var, var)
        a(f"    v_add_f32 v{var}, 0x3727c5ac, v{var}")
        rbf16(var, var)
        a(f"""
    v_sqrt_f32 v{sd}, v{var}
    s_waitcnt vmcnt({nwait})
    """)
        rbf16(sd, sd)
        a(f"    v_rcp_f32 v{rs}, v{sd}")
        Dd = T + 4; h = nsel // 2
        for k in range(h):
            a(f"""
    v_lshlrev_b32 v{Dd+2*k}, 16, v{XS+k}
    v_and_b32 v{Dd+2*k+1}, 0xffff0000, v{XS+k}
    """)
        for k in range(nsel): a(f"    v_sub_f32 v{Dd+k}, v{Dd+k}, v{mean}")
        for k in range(h): a(f"    v_cvt_pk_bf16_f32 v{XS+k}, v{Dd+2*k}, v{Dd+2*k+1}")
        for k in range(h):
            a(f"""
    v_lshlrev_b32 v{Dd+2*k}, 16, v{XS+k}
    v_and_b32 v{Dd+2*k+1}, 0xffff0000, v{XS+k}
    """)
        Q = T + 12
        for k in range(nsel): a(f"    v_mul_f32 v{Q+k}, v{Dd+k}, v{rs}")
        for k in range(nsel): a(f"    v_fma_f32 v{Dd+k}, -v{Q+k}, v{sd}, v{Dd+k}")
        for k in range(nsel): a(f"    v_fmac_f32 v{Q+k}, v{Dd+k}, v{rs}")
        for k in range(nsel): a(f"    v_cvt_pk_bf16_f32 v{Q+k}, v{Q+k}, v{Q+k}")
        for k in range(nsel):
            for m_ in range(4): a(f"    v_and_b32 v{A+4*k+m_}, v{Q+k}, v{2+m_}")
        stamp(2)
    def abuild(H, AA):
        a("    s_nop 1")
        for u in range(4):
            for m_ in range(4):
                a(f"    v_and_b32_dpp v{AA+4*u+m_}, v{H}, v{2+m_} quad_perm:[{u},{u},{u},{u}] row_mask:0xf bank_mask:0xf")
    def out_tail(Dx, Tt, out_off_s):
        lds = L_OUT
        a(f"""
    s_nop 6
    ds_write_b128 v{vOT}, {vr(Dx,4)} offset:{lds}
    ds_write_b128 v{vOT}, {vr(Dx+4,4)} offset:{lds+512}
    s_waitcnt lgkmcnt(0)
    """)
        barrier()
        a(f"""
    ds_read2st64_b32 {vr(Tt+2,2)}, v{vtid4} offset0:{lds//256} offset1:{lds//256+4}
    ds_read2st64_b32 {vr(Tt+4,2)}, v{vtid4} offset0:{lds//256+8} offset1:{lds//256+12}
    s_waitcnt lgkmcnt(0)
    v_add_f32 v{Tt+2}, v{Tt+2}, v{Tt+3}
    v_add_f32 v{Tt+4}, v{Tt+4}, v{Tt+5}
    v_add_f32 v{Tt+2}, v{Tt+2}, v{Tt+4}
    v_add_u32 v{Tt+2}, v{Tt+2}, v{vaddP}
    v_bfi_b32 v{Tt+2}, s70, v{vtagP}, v{Tt+2}
    """)
        seg_end()
        a(f"    buffer_store_dword v{Tt+2}, v{vtid4}, s[40:43], s{out_off_s} offen sc1")
    def spin(lab):
        a(f"""
    s_sub_u32 s71, s71, 1
    s_cmp_eq_u32 s71, 0
    s_cbranch_scc1 {lab}_ok
    s_cbranch_vccnz {lab}
{lab}_ok:
    """)
    def merge2(X, Y, full_y):
        if full_y:
            a(f"""
    s_nop 0
    v_permlane32_swap_b32 v{X}, v{X+2}
    v_permlane32_swap_b32 v{X+1}, v{X+3}
    v_permlane32_swap_b32 v{Y}, v{Y+2}
    v_permlane32_swap_b32 v{Y+1}, v{Y+3}
    v_add_f32 v{X}, v{X}, v{X+2}
    v_add_f32 v{X+1}, v{X+1}, v{X+3}
    v_add_f32 v{Y}, v{Y}, v{Y+2}
    v_add_f32 v{Y+1}, v{Y+1}, v{Y+3}
    s_nop 0
    v_permlane16_swap_b32 v{X}, v{X+1}
    v_permlane16_swap_b32 v{Y}, v{Y+1}
    v_add_f32 v{X}, v{X}, v{X+1}
    v_add_f32 v{Y}, v{Y}, v{Y+1}
    """)
        else:
            a(f"""
    v_mov_b32 v{Y+1}, v{Y}
    s_nop 0
    v_permlane32_swap_b32 v{X}, v{X+2}
    v_permlane32_swap_b32 v{X+1}, v{X+3}
    v_permlane32_swap_b32 v{Y+1}, v{Y}
    v_add_f32 v{X}, v{X}, v{X+2}
    v_add_f32 v{X+1}, v{X+1}, v{X+3}
    v_add_f32 v{Y}, v{Y}, v{Y+1}
    s_nop 0
    v_mov_b32 v{Y+1}, v{Y}
    v_permlane16_swap_b32 v{X}, v{X+1}
    s_nop 0
    v_permlane16_swap_b32 v{Y+1}, v{Y}
    v_add_f32 v{X}, v{X}, v{X+1}
    v_add_f32 v{Y}, v{Y}, v{Y+1}
    """)
        for s_ in (8, 4):
            a(f"""
    s_nop 0
    v_add_f32_dpp v{X}, v{X}, v{X} row_ror:{s_} row_mask:0xf bank_mask:0xf
    v_add_f32_dpp v{Y}, v{Y}, v{Y} row_ror:{s_} row_mask:0xf bank_mask:0xf
    """)

    vGU, vWD, vPH = misc, misc + 1, misc + 2
    r = R(big)
    GW = r.a(64, 4); WD = r.a(32, 4); DG = r.a(16, 4); HG = r.a(8, 4)
    A2 = A + 16
    nv_ffn = r.n
    a(f"""
    s_mul_i32 s60, s33, 28
    s_add_u32 s60, s60, s34          ; n
    s_and_b32 s61, s60, 15           ; rho
    s_lshr_b32 s60, s60, 4           ; cg
    s_lshl_b32 s69, s61, 6
    s_lshl_b32 s64, s3, 4
    s_add_u32 s69, s69, s64          ; R0 = 64rho + 16w
    s_lshl_b32 s97, s69, 1
    v_lshrrev_b32 v7, 4, v1          ; G
    v_and_b32 v8, 15, v1             ; j
    v_lshlrev_b32 v9, 3, v7
    s_waitcnt lgkmcnt(0)
    """)
    xloads(4)
    masks()
    srd(40, 26, WS_SIZE)
    srd(44, 16, 7 << 20)
    srd(48, 18, 7 << 20)
    srd(52, 20, 7 << 20)
    consts2()
    a(f"""
    s_mul_i32 s64, s69, 7168
    s_lshl_b32 s96, s60, 9
    s_add_u32 s64, s64, s96
    v_mul_u32_u24 v{vGU}, {4*7168}, v7
    v_lshl_add_u32 v{vGU}, v8, 4, v{vGU}
    v_add_u32 v{vGU}, s64, v{vGU}
    s_lshr_b32 s66, s61, 2
    s_lshl_b32 s65, s60, 2
    s_add_u32 s65, s65, s66          ; fb
    s_and_b32 s68, s61, 3
    s_lshl_b32 s64, s65, 6
    s_lshl_b32 s96, s3, 4
    s_add_u32 s64, s64, s96
    s_lshl_b32 s64, s64, 11
    s_lshl_b32 s96, s68, 9
    s_add_u32 s64, s64, s96
    v_lshlrev_b32 v{vWD}, 11, v7
    v_lshl_add_u32 v{vWD}, v8, 4, v{vWD}
    v_add_u32 v{vWD}, s64, v{vWD}
    v_lshrrev_b32 v{vPH}, 2, v1
    v_lshl_add_u32 v{vPH}, v{vPH}, 10, v{vG4}
    ; s56 GU pub gate, s57 GU pub up, s58/s59 HF gather gate/up, s62 PB pub
    s_lshl_b32 s58, s60, 15
    s_add_u32 s58, s58, {GU}
    s_lshl_b32 s64, s61, 10
    s_add_u32 s56, s58, s64
    s_add_u32 s57, s56, 16384
    s_lshl_b32 s64, s66, 8
    s_add_u32 s58, s58, s64
    s_lshl_b32 s64, s3, 6
    s_add_u32 s58, s58, s64
    s_add_u32 s59, s58, 16384
    s_lshl_b32 s62, s65, 12
    s_lshl_b32 s64, s68, 10
    s_add_u32 s62, s62, s64
    s_add_u32 s62, s62, {PB}
    s_movk_i32 s5, 7168
    s_movk_i32 s6, {2*7168}
    s_movk_i32 s7, {3*7168}
    s_movk_i32 s9, 8192
    s_movk_i32 s10, 16384
    s_movk_i32 s11, 24576
    """)
    def ffn_load(i):
        if i < 16:
            u, mat, c = i // 4, (i // 2) % 2, i % 2
            so = "0" if u == 0 else f"s{4+u}"
            a(f"    buffer_load_dwordx4 {vr(GW+4*i,4)}, v{vGU}, s[{44+4*mat}:{47+4*mat}], {so} offen offset:{256*c}{NT}")
        else:
            k = i - 16; u, c = k // 2, k % 2
            so = "0" if u == 0 else f"s{8+u}"
            a(f"    buffer_load_dwordx4 {vr(WD+4*k,4)}, v{vWD}, s[52:55], {so} offen offset:{c*256}{NT}")
    layernorm(0, 4)
    tags()
    issued = 0
    if warm:
        a(f"""
    s_branch W_go
W_only:
    s_waitcnt vmcnt(0) lgkmcnt(0)
W_go:
    s_mov_b64 exec, 0
    s_cmp_eq_u32 s3, 0
    s_cbranch_scc1 SEG0
    s_cmp_eq_u32 s3, 1
    s_cbranch_scc1 SEG1
    s_cmp_eq_u32 s3, 2
    s_cbranch_scc1 SEG2
    s_branch SEG3
W_ret:
    s_mov_b64 exec, -1
    s_cmp_ge_u32 s34, {0 if ffn_off else 28}
    s_cbranch_scc1 L_end
    """)
    stamp(3)
    def depth_at(i): return depths[i] if depths else Df
    for i in range(16):
        while issued < 24 and issued < i + depth_at(i):
            ffn_load(issued); issued += 1
        a(f"    s_waitcnt vmcnt({issued - i - 1})")
        u, dd = i // 4, i % 4
        src = "0" if u == 0 else vr(DG + 4 * dd, 4)
        a(f"    v_mfma_f32_16x16x32_bf16 {vr(DG+4*dd,4)}, {vr(A+4*u,4)}, {vr(GW+4*i,4)}, {src}")
    while issued < 24 and issued < 16 + Dwd:
        ffn_load(issued); issued += 1
    a(f"""
    s_nop 4
SEG3:
    ds_write_b128 v{vOT}, {vr(DG,4)} offset:{L_RED}
    ds_write_b128 v{vOT}, {vr(DG+4,4)} offset:{L_RED+512}
    ds_write_b128 v{vOT}, {vr(DG+8,4)} offset:{L_RED+4096}
    ds_write_b128 v{vOT}, {vr(DG+12,4)} offset:{L_RED+4096+512}
    s_waitcnt lgkmcnt(0)
    """)
    barrier()
    a(f"""
    ds_read2st64_b32 {vr(T,2)}, v{vtid4} offset0:0 offset1:4
    ds_read2st64_b32 {vr(T+2,2)}, v{vtid4} offset0:8 offset1:12
    ds_read2st64_b32 {vr(T+4,2)}, v{vtid4} offset0:16 offset1:20
    ds_read2st64_b32 {vr(T+6,2)}, v{vtid4} offset0:24 offset1:28
    s_waitcnt lgkmcnt(0)
    v_add_f32 v{T}, v{T}, v{T+1}
    v_add_f32 v{T+2}, v{T+2}, v{T+3}
    v_add_f32 v{T+4}, v{T+4}, v{T+5}
    v_add_f32 v{T+6}, v{T+6}, v{T+7}
    v_add_f32 v{T}, v{T}, v{T+2}
    v_add_f32 v{T+4}, v{T+4}, v{T+6}
    v_add_u32 v{T}, v{T}, v{vaddP}
    v_add_u32 v{T+4}, v{T+4}, v{vaddP}
    v_bfi_b32 v{T}, s70, v{vtagP}, v{T}
    v_bfi_b32 v{T+4}, s70, v{vtagP}, v{T+4}
    """)
    with guard():
        a(f"""
    buffer_store_dword v{T}, v{vtid4}, s[40:43], s56 offen sc1
    buffer_store_dword v{T+4}, v{vtid4}, s[40:43], s57 offen sc1
    """)
        stamp(4)
        while issued < 24:
            a(f"    s_waitcnt vmcnt({Dwd-1})")
            ffn_load(issued); issued += 1
    a(f"""
    s_mov_b32 s71, {spin_max}
F_poll:
    """)
    with guard():
        a(f"""
    buffer_load_dwordx4 {vr(HG,4)}, v{vPH}, s[40:43], s58 offen sc1
    buffer_load_dwordx4 {vr(HG+4,4)}, v{vPH}, s[40:43], s59 offen sc1
    """)
    a(f"""
    v_mov_b32 v{T+8}, 0
    v_mov_b32 v{T+9}, 0
    s_waitcnt vmcnt(0)
    """)
    for k in range(8): a(f"    v_msad_u8 v{T+8+(k&1)}, v{HG+k}, s{28+(k&3)}, v{T+8+(k&1)}")
    a(f"""
    v_or_b32 v{T+8}, v{T+8}, v{T+9}
    v_cmp_ne_u32 vcc, 0, v{T+8}
    """)
    spin("F_poll")
    with guard(): stamp(5)
    G_, U_ = HG, HG + 4
    merge2(G_, U_, True)
    rbf16(G_, G_); rbf16(U_, U_)
    a(f"""
    v_mul_f32 v{T+4}, {0x80000000 | LOG2E}, v{G_}
    v_exp_f32 v{T+4}, v{T+4}
    s_nop 0
    v_add_f32 v{T+4}, 1.0, v{T+4}
    v_rcp_f32 v{T+4}, v{T+4}
    s_nop 0
    v_mul_f32 v{G_}, v{G_}, v{T+4}
    """)
    rbf16(G_, G_)
    a(f"""
    v_mul_f32 v{G_}, v{G_}, v{U_}
    v_cvt_pk_bf16_f32 v{G_}, v{G_}, v{G_}
    """)
    abuild(G_, A2)
    a("    s_nop 1")
    for k in range(8):
        u, c = k // 2, k % 2
        src = "0" if u == 0 else vr(DG + 4 * c, 4)
        a(f"    v_mfma_f32_16x16x32_bf16 {vr(DG+4*c,4)}, {vr(A2+4*u,4)}, {vr(WD+4*k,4)}, {src}")
    out_tail(DG, T, 62)
    stamp(6)
    store_stamps()
    a("    s_endpgm")
    if not warm: a("W_only:\n    s_endpgm")

    vWQ, vK, vV, vWO, vPO, vQW, vQR, vSW, vSR, vTR, vred, vtag0 = [misc + i for i in range(12)]
    r = R(big)
    D1 = r.a(4, 4); PD = r.a(16, 4); WQ = r.a(32, 4); KK = r.a(16, 4); VO = r.a(16, 4); G0 = r.a(16, 4); G1 = r.a(16, 4)
    QB = A; WO = WQ; A3 = A + 16
    GS = (G0, G1)
    nv_chain = r.n
    a(f"""
L_chain:
    v_lshrrev_b32 v7, 3, v1          ; l>>3
    v_and_b32 v8, 7, v1              ; l&7
    s_lshr_b32 s65, s33, 1           ; g
    s_and_b32 s66, s33, 1
    s_lshl_b32 s66, s66, 5
    s_add_u32 s66, s66, s34          ; m
    s_and_b32 s67, s66, 15           ; cb
    s_lshr_b32 s68, s66, 4           ; rq
    s_lshl_b32 s69, s68, 8
    s_lshl_b32 s64, s3, 6
    s_add_u32 s69, s69, s64          ; R0
    s_lshl_b32 s97, s69, 1
    v_lshlrev_b32 v9, 4, v7
    s_lshl_b32 s64, s69, 13
    s_lshl_b32 s96, s65, 11
    s_add_u32 s64, s64, s96
    s_lshl_b32 s96, s67, 7
    s_add_u32 s64, s64, s96
    v_lshlrev_b32 v{vWQ}, 16, v7
    v_lshl_add_u32 v{vWQ}, v8, 4, v{vWQ}
    v_add_u32 v{vWQ}, s64, v{vWQ}
    s_lshl_b32 s63, s65, 23
    s_lshl_b32 s96, s66, 14
    s_add_u32 s63, s63, s96
    s_lshl_b32 s96, s3, 12
    s_add_u32 s63, s63, s96
    s_add_u32 s63, s63, {28672*256}
    v_and_b32 v{vPO}, 15, v1           ; j
    v_lshrrev_b32 v{vWO}, 4, v1        ; G
    v_lshlrev_b32 v{vK}, 8, v{vPO}
    v_lshl_add_u32 v{vK}, v{vWO}, 4, v{vK}
    s_mov_b32 s46, {8<<20}
    s_mov_b32 s47, 0x20000
    s_mov_b32 s50, {32<<20}
    s_mov_b32 s51, 0x20000
    s_mov_b32 s64, 0
    s_waitcnt lgkmcnt(0)
    """)
    xloads(8)
    a(f"""
    s_mov_b32 s44, s10
    s_mov_b32 s45, s11
    s_mov_b32 s48, s6
    s_mov_b32 s49, s7
    s_barrier
    """)
    for t in range(8):
        a(f"    buffer_load_dwordx4 {vr(WQ+4*t,4)}, v{vWQ}, s[44:47], s64 offen{NT}")
        if t < 7: a(f"    s_add_u32 s64, s64, 8192")
    masks()
    srd(52, 8, 32 << 20)
    a(f"""
    s_lshl_b32 s96, s3, 12
    s_add_u32 s96, s96, {L_V}
    s_mov_b32 m0, s96
    """)
    def k_loads():
        for i in range(4): a(f"    buffer_load_dwordx4 {vr(KK+4*i,4)}, v{vK}, s[48:51], s63 offen offset:{64*i}{NT}")
    def v_loads():
        for i in range(4): a(f"    buffer_load_dwordx4 v6, s[52:55], s63 offen offset:{1024*i}{NT} lds")
    nafter = 0
    if k_early:
        a("    s_barrier")
        k_loads(); nafter += 4
        if v_when == "early": v_loads(); nafter += 4
    layernorm(8 + nafter, 8)
    if not k_early: k_loads(); nafter += 4
    if v_when == "ln": v_loads(); nafter += 4
    srd(40, 26, WS_SIZE)
    a(f"""
    v_lshrrev_b32 v{vred}, 2, v1
    v_xor_b32 v{vred}, v{vred}, v1
    v_and_b32 v{vred}, 8, v{vred}
    v_cmp_eq_u32 vcc, 0, v{vred}
    v_lshlrev_b32 v{vred}, 5, v8
    v_bfe_u32 v9, v1, 4, 1
    v_lshl_add_u32 v{vred}, v9, 4, v{vred}
    v_lshrrev_b32 v9, 5, v1
    v_lshl_add_u32 v{vred}, v9, 8, v{vred}
    s_lshl_b32 s64, s3, 9
    v_add_u32 v{vred}, s64, v{vred}
    v_add_u32 v9, {L_TRASH}, v6
    v_cndmask_b32 v{vred}, v9, v{vred}, vcc
    s_lshl_b32 s8, s65, 2
    s_add_u32 s8, s8, s68
    s_lshl_b32 s8, s8, 12
    s_lshl_b32 s96, s67, 8
    s_add_u32 s8, s8, s96
    s_add_u32 s8, s8, {QP}
    """)
    consts2()
    tags()
    for t in range(8):
        a(f"    s_waitcnt vmcnt({7 - t + nafter})")
        src = "0" if t == 0 else vr(D1, 4)
        a(f"    v_mfma_f32_16x16x32_bf16 {vr(D1,4)}, {vr(A+4*t,4)}, {vr(WQ+4*t,4)}, {src}")
    a(f"""
    s_nop 7
    ds_write_b128 v{vred}, {vr(D1,4)} offset:{L_RED}
    s_waitcnt lgkmcnt(0)
    s_barrier
    s_cmp_lg_u32 s3, 0
    s_cbranch_scc1 C_nored
    ds_read2st64_b32 {vr(T,2)}, v{vtid4} offset0:0 offset1:1
    ds_read2st64_b32 {vr(T+2,2)}, v{vtid4} offset0:2 offset1:3
    ds_read2st64_b32 {vr(T+4,2)}, v{vtid4} offset0:4 offset1:5
    ds_read2st64_b32 {vr(T+6,2)}, v{vtid4} offset0:6 offset1:7
    s_waitcnt lgkmcnt(0)
    v_add_f32 v{T}, v{T}, v{T+1}
    v_add_f32 v{T+2}, v{T+2}, v{T+3}
    v_add_f32 v{T+4}, v{T+4}, v{T+5}
    v_add_f32 v{T+6}, v{T+6}, v{T+7}
    v_add_f32 v{T}, v{T}, v{T+2}
    v_add_f32 v{T+4}, v{T+4}, v{T+6}
    v_add_f32 v{T}, v{T}, v{T+4}
    v_add_u32 v{T}, v{T}, v{vaddP}
    v_bfi_b32 v{T}, s70, v{vtagP}, v{T}
    buffer_store_dword v{T}, v{vtid4}, s[40:43], s8 offen sc1
C_nored:
    """)
    stamp(3)
    if v_when == "pub":
        a("    s_barrier"); v_loads()
    srd(56, 12, 8 << 20)
    srd(16, 22, 2048)
    a(f"""
    s_lshl_b32 s64, s65, 10
    s_and_b32 s96, s3, 1
    s_lshl_b32 s96, s96, 9
    s_add_u32 s64, s64, s96
    s_lshr_b32 s96, s67, 2
    s_lshl_b32 s96, s96, 5
    s_add_u32 s64, s64, s96
    s_lshr_b32 s96, s3, 1
    s_lshl_b32 s96, s96, 4
    s_add_u32 s64, s64, s96
    s_and_b32 s96, s67, 3
    s_lshl_b32 s96, s96, 2
    s_add_u32 s64, s64, s96
    s_lshl_b32 s64, s64, 11
    s_lshl_b32 s96, s68, 9
    s_add_u32 s64, s64, s96
    v_mul_u32_u24 v{vQR}, 272, v8
    v_lshl_add_u32 v{vQR}, v{vWO}, 4, v{vQR}
    v_mul_u32_u24 v{vSW}, 144, v8
    v_lshl_add_u32 v{vSR}, v{vWO}, 4, v{vSW}
    v_bfe_u32 v9, v1, 3, 1
    v_lshl_add_u32 v{vSR}, v9, 6, v{vSR}
    v_lshl_add_u32 v{vSW}, v{vWO}, 3, v{vSW}
    s_lshl_b32 s96, s3, 5
    v_add_u32 v{vSW}, s96, v{vSW}
    v_bfe_u32 v9, v1, 2, 2
    v_lshl_add_u32 v{vTR}, v{vWO}, 3, v9
    v_lshlrev_b32 v{vTR}, 8, v{vTR}
    v_lshrrev_b32 v9, 1, v{vG4}
    s_lshl_b32 s96, s3, 6
    v_add3_u32 v{vTR}, v{vTR}, v9, s96
    v_lshlrev_b32 v{vWO}, 11, v{vWO}
    v_lshl_add_u32 v{vWO}, v{vPO}, 4, v{vWO}
    v_add_u32 v{vWO}, s64, v{vWO}
    v_lshrrev_b32 v{vQW}, 5, v0
    v_and_b32 v9, 31, v0
    v_mul_u32_u24 v{vQW}, 272, v{vQW}
    v_lshl_add_u32 v{vQW}, v9, 3, v{vQW}
    v_lshrrev_b32 v{vPO}, 2, v1
    v_lshl_add_u32 v{vPO}, v{vPO}, 12, v{vG4}
    v_mov_b32 v{vtag0}, s28
    s_lshl_b32 s20, s65, 14
    s_lshl_b32 s96, s3, 10
    s_add_u32 s20, s20, s96
    s_add_u32 s20, s20, {QP}
    s_add_u32 s21, s20, 4096
    s_add_u32 s22, s20, 8192
    s_add_u32 s23, s20, 12288
    s_lshl_b32 s9, s65, 18
    s_add_u32 s9, s9, {OP}
    s_lshl_b32 s64, s67, 8
    s_add_u32 s4, s9, s64
    s_lshl_b32 s64, s3, 6
    s_add_u32 s4, s4, s64
    s_add_u32 s5, s4, 0x10000
    s_add_u32 s6, s4, 0x20000
    s_add_u32 s7, s4, 0x30000
    s_lshl_b32 s64, s66, 12
    s_add_u32 s9, s9, s64
    s_add_u32 s9, s9, s96              ; OP pub = OP + g*256K + m*4096 + w*1024
    s_lshl_b32 s11, s65, 4
    s_add_u32 s11, s11, s67
    s_lshl_b32 s11, s11, 12
    s_lshl_b32 s96, s68, 10
    s_add_u32 s11, s11, s96
    s_add_u32 s11, s11, {PA}
    s_mov_b32 s14, 0x07060500
    s_mov_b32 s15, 0x07060501
    s_mov_b32 s10, 0x07060502
    s_mov_b32 s61, 0x07060503
    s_mov_b32 s62, 0x0c04000c
    s_mov_b32 s24, {SCALE}
    s_mov_b32 s25, {LOG2E}
    s_mov_b32 s12, 0x40000
    s_mov_b32 s13, 0x80000
    s_mov_b32 s60, 0xc0000
    s_waitcnt vmcnt(0)
    s_barrier
    """)
    for s_ in range(2):
        for c in range(2):
            for h in range(2):
                a(f"    ds_read_b64_tr_b16 {vr(VO+(s_*2+c)*4+2*h,2)}, v{vTR} offset:{L_V + s_*8192 + h*1024 + c*32}")
    stamp(10)
    wo_i = [0]
    def wo_loads(n):
        for _ in range(n):
            k = wo_i[0]
            if k >= 8: return
            u, c = k // 2, k % 2
            so = ("0", "s12", "s13", "s60")[u]
            a(f"    buffer_load_dwordx4 {vr(WO+4*k,4)}, v{vWO}, s[56:59], {so} offen offset:{c*256}{NT}")
            wo_i[0] += 1
    wo_loads(wo_sched[0])
    acc = T
    def poll2(lab, issue, check, tau, pre):
        if pre: a(f"    s_sleep {pre}")
        issue(0)
        a(f"""
    s_mov_b32 s71, {spin_max}
    s_sleep {tau}
    """)
        issue(1)
        a(f"{lab}:")
        check(0)
        a(f"""
    s_nop 1
    s_cbranch_vccz {lab}_ok0
    """)
        issue(0)
        check(1)
        a(f"""
    s_sub_u32 s71, s71, 1
    s_cmp_eq_u32 s71, 0
    s_cbranch_scc1 {lab}_ok1
    s_cbranch_vccz {lab}_ok1
    """)
        issue(1)
        a(f"    s_branch {lab}")
    def issq(b):
        with guard():
            for k in range(4): a(f"    buffer_load_dwordx4 {vr(GS[b]+4*k,4)}, v6, s[40:43], s{20+k} offen sc1")
    def chkq(b):
        a(f"""
    v_mov_b32 v{acc}, 0
    v_mov_b32 v{acc+1}, 0
    """)
        for k in range(4):
            a(f"    s_waitcnt vmcnt({7-k})")
            for e in range(4): a(f"    v_msad_u8 v{acc+(e&1)}, v{GS[b]+4*k+e}, s{28+e}, v{acc+(e&1)}")
        a(f"""
    v_or_b32 v{acc}, v{acc}, v{acc+1}
    v_cmp_ne_u32 vcc, 0, v{acc}
    """)
    a("SEG0:")
    poll2("C_q", issq, chkq, tauq, preq)
    QS = T + 4
    for b in (1, 0):
        a(f"C_q_ok{b}:")
        g_ = GS[b]
        a(f"""
    v_pk_add_f32 {vr(QS,2)}, {vr(g_,2)}, {vr(g_+4,2)}
    v_pk_add_f32 {vr(QS+2,2)}, {vr(g_+2,2)}, {vr(g_+6,2)}
    v_pk_add_f32 {vr(QS+4,2)}, {vr(g_+8,2)}, {vr(g_+12,2)}
    v_pk_add_f32 {vr(QS+6,2)}, {vr(g_+10,2)}, {vr(g_+14,2)}
    """)
        if b == 1: a("    s_branch C_t2")
    a("C_t2:")
    with guard():
        stamp(4); tick("t2 start")
    a(f"""
    v_pk_add_f32 {vr(QS,2)}, {vr(QS,2)}, {vr(QS+4,2)}
    v_pk_add_f32 {vr(QS+2,2)}, {vr(QS+2,2)}, {vr(QS+6,2)}
    v_cvt_pk_bf16_f32 v{QS}, v{QS}, v{QS+1}
    v_cvt_pk_bf16_f32 v{QS+1}, v{QS+2}, v{QS+3}
    ds_write_b64 v{vQW}, {vr(QS,2)} offset:{L_Q}
    """)
    with guard(): wo_loads(wo_sched[1])
    a("    s_waitcnt lgkmcnt(0)")
    tick("bar1")
    barrier()
    tick("after bar1")
    a(f"""
    ds_read_b128 {vr(QB,4)}, v{vQR} offset:{L_Q}
    ds_read_b128 {vr(QB+4,4)}, v{vQR} offset:{L_Q+64}
    ds_read_b128 {vr(QB+8,4)}, v{vQR} offset:{L_Q+128}
    ds_read_b128 {vr(QB+12,4)}, v{vQR} offset:{L_Q+192}
    """)
    for t in range(4):
        src = "0" if t == 0 else vr(D1, 4)
        lgk(3 - t)
        a(f"    v_mfma_f32_16x16x32_bf16 {vr(D1,4)}, {vr(KK+4*t,4)}, {vr(QB+4*t,4)}, {src}")
    Sx = T + 4
    tick("score mfma issued")
    a(f"""
    s_nop 7
    v_cvt_pk_bf16_f32 v{T}, v{D1}, v{D1+1}
    v_cvt_pk_bf16_f32 v{T+1}, v{D1+2}, v{D1+3}
    v_lshlrev_b32 v{Sx}, 16, v{T}
    v_and_b32 v{Sx+1}, 0xffff0000, v{T}
    v_lshlrev_b32 v{Sx+2}, 16, v{T+1}
    v_and_b32 v{Sx+3}, 0xffff0000, v{T+1}
    v_mul_f32 v{Sx}, s24, v{Sx}
    v_mul_f32 v{Sx+1}, s24, v{Sx+1}
    v_mul_f32 v{Sx+2}, s24, v{Sx+2}
    v_mul_f32 v{Sx+3}, s24, v{Sx+3}
    v_cvt_pk_bf16_f32 v{T}, v{Sx}, v{Sx+1}
    v_cvt_pk_bf16_f32 v{T+1}, v{Sx+2}, v{Sx+3}
    ds_write_b64 v{vSW}, {vr(T,2)} offset:{L_S}
    s_waitcnt lgkmcnt(0)
    """)
    seg_end()
    tick("bar2")
    a("    s_barrier")
    tick("after bar2")
    mx, tmp, lsum, wv, rl = T + 12, T + 13, T + 14, T + 15, T + 16
    Pp = T + 20
    a(f"""
SEG1:
    ds_read_b128 {vr(T,4)}, v{vSR} offset:{L_S}
    s_waitcnt lgkmcnt(0)
    """)
    for k in range(4):
        a(f"""
    v_lshlrev_b32 v{Sx+2*k}, 16, v{T+k}
    v_and_b32 v{Sx+2*k+1}, 0xffff0000, v{T+k}
    """)
    a(f"""
    v_max3_f32 v{mx}, v{Sx}, v{Sx+1}, v{Sx+2}
    v_max3_f32 v{tmp}, v{Sx+3}, v{Sx+4}, v{Sx+5}
    v_max3_f32 v{mx}, v{Sx+6}, v{Sx+7}, v{mx}
    v_max_f32 v{mx}, v{mx}, v{tmp}
    """)
    allreduce1(mx, tmp, op="v_max_f32", steps=(8,))
    a(f"    v_mul_f32 v{mx}, s25, v{mx}")
    for k in range(8): a(f"    v_fma_f32 v{Sx+k}, v{Sx+k}, s25, -v{mx}")
    for k in range(8): a(f"    v_exp_f32 v{Sx+k}, v{Sx+k}")
    for k in range(4): a(f"    v_cvt_pk_bf16_f32 v{Pp+k}, v{Sx+2*k}, v{Sx+2*k+1}")
    a(f"""
    v_pk_add_f32 {vr(T,2)}, {vr(Sx,2)}, {vr(Sx+2,2)}
    v_pk_add_f32 {vr(T+2,2)}, {vr(Sx+4,2)}, {vr(Sx+6,2)}
    """)
    tick("before PV")
    for sc in (0, 2, 1, 3):
        a(f"    v_mfma_f32_16x16x32_bf16 {vr(PD+4*sc,4)}, {vr(VO+4*sc,4)}, {vr(Pp,4)}, 0")
    a(f"""
    v_pk_add_f32 {vr(T,2)}, {vr(T,2)}, {vr(T+2,2)}
    v_add_f32 v{lsum}, v{T}, v{T+1}
    """)
    allreduce1(lsum, tmp, steps=(8,))
    X = D1
    a(f"""
    v_log_f32 v{wv}, v{lsum}
    v_rcp_f32 v{rl}, v{lsum}
    """)
    for e in range(4):
        a(f"    v_add_f32_dpp v{X+e}, v{PD+8+e}, v{PD+e} row_ror:8 row_mask:0xf bank_mask:0x3")
    a(f"    v_add_f32 v{wv}, v{wv}, v{mx}")
    for e in range(4):
        a(f"    v_add_f32_dpp v{X+e}, v{PD+4+e}, v{PD+12+e} row_ror:8 row_mask:0xf bank_mask:0xc")
    a(f"""
    v_add_u32 v{wv}, 0x80, v{wv}
    v_bfi_b32 v{wv}, s70, v{vtag0}, v{wv}
    """)
    for e in range(4): a(f"    v_mul_f32 v{X+e}, v{X+e}, v{rl}")
    for e in range(4): a(f"    v_perm_b32 v{X+e}, v{X+e}, v{wv}, s{(14,15,10,61)[e]}")
    seg_end()
    tick("before store")
    a(f"    buffer_store_dwordx4 {vr(X,4)}, v6, s[40:43], s9 offen sc1")
    stamp(5)
    wo_loads(8)
    F = T + 8
    def isso(b):
        with guard():
            for k in range(4): a(f"    buffer_load_dwordx4 {vr(GS[b]+4*k,4)}, v{vPO}, s[40:43], s{4+k} offen sc1")
    def chko(b):
        g_ = GS[b]
        a(f"    v_mov_b32 v{T+3}, 0")
        for k in range(4):
            a(f"""
    s_waitcnt vmcnt({7-k})
    v_msad_u8 v{T+3}, v{g_+4*k}, s28, v{T+3}
    v_perm_b32 v{F+k}, v{g_+4*k+2}, v{g_+4*k+1}, s62
    v_lshl_or_b32 v{F+k}, v{g_+4*k+3}, 24, v{F+k}
    """)
        a(f"    v_cmp_ne_u32 vcc, 0, v{T+3}")
    a("SEG2:")
    poll2("C_o", isso, chko, tauo, preo)
    a("""
C_o_ok1:
    s_mov_b32 s64, 1
    s_branch C_t3
C_o_ok0:
    s_mov_b32 s64, 0
C_t3:
    """)
    with guard(): stamp(6)
    a(f"""
    v_max_f32 v{T+4}, v{F}, v{F+1}
    v_max3_f32 v{T+4}, v{F+2}, v{F+3}, v{T+4}
    """)
    allreduce1(T + 4, T + 5, op="v_max_f32", steps=(8, 4))
    for k in range(4): a(f"    v_sub_f32 v{F+k}, v{F+k}, v{T+4}")
    for k in range(4): a(f"    v_exp_f32 v{F+k}, v{F+k}")
    OGc = T + 12
    a("""
    s_cmp_lg_u32 s64, 0
    s_cbranch_scc1 C_w1
    """)
    for b in (0, 1):
        g_ = GS[b]
        if b == 1: a("C_w1:")
        for e in range(4): a(f"    v_mul_f32 v{OGc+e}, v{g_+e}, v{F}")
        for t in range(1, 4):
            for e in range(4): a(f"    v_fmac_f32 v{OGc+e}, v{g_+4*t+e}, v{F+t}")
        if b == 0: a("    s_cbranch_execnz C_w2" if warm else "    s_branch C_w2")
    L_ = T + 6
    a(f"""
C_w2:
    v_add_f32 v{L_}, v{F}, v{F+1}
    v_add_f32 v{L_+1}, v{F+2}, v{F+3}
    v_add_f32 v{L_}, v{L_}, v{L_+1}
    """)
    merge2(OGc, L_, False)
    a(f"""
    v_rcp_f32 v{L_}, v{L_}
    s_nop 0
    v_mul_f32 v{OGc}, v{OGc}, v{L_}
    v_cvt_pk_bf16_f32 v{OGc}, v{OGc}, v{OGc}
    """)
    abuild(OGc, A3)
    a("    s_nop 1")
    for k in range(8):
        u, c = k // 2, k % 2
        src = "0" if u == 0 else vr(PD + 4 * c, 4)
        a(f"    v_mfma_f32_16x16x32_bf16 {vr(PD+4*c,4)}, {vr(A3+4*u,4)}, {vr(WO+4*k,4)}, {src}")
    out_tail(PD, T, 11)
    stamp(7)
    a(f"""
    s_cmp_ge_u32 s34, 28
    s_cbranch_scc1 L_reducer
    """)
    store_stamps()
    a("    s_endpgm")
    vA, vB1, vkeep, vX, vO, vF = T + 8, T + 9, T + 10, T + 11, T + 12, T + 13
    RA = KK; RB = KK + 8; ac = T + 6
    a(f"""
L_reducer:
    s_lshl_b32 s65, s33, 2
    s_add_u32 s65, s65, s34
    s_sub_u32 s65, s65, 28            ; c
    s_lshl_b32 s66, s65, 6
    v_lshlrev_b32 v{vO}, 1, v1
    v_add_u32 v{vO}, s66, v{vO}
    buffer_load_ushort v{vX}, v{vO}, s[36:39], 0 offen
    v_lshlrev_b32 v{vA}, 12, v7
    v_lshl_add_u32 v{vA}, v8, 4, v{vA}
    v_cmp_gt_u32 vcc, 48, v1
    v_add_u32 v{vB1}, {8*4096}, v{vA}
    v_lshrrev_b32 v{vF}, 4, v1
    v_cndmask_b32 v{vB1}, v{vA}, v{vB1}, vcc
    v_cndmask_b32 v{vkeep}, 0, 1.0, vcc
    v_lshlrev_b32 v{vF}, 2, v{vF}
    v_lshl_add_u32 v{vF}, v8, 4, v{vF}
    s_lshl_b32 s64, s3, 8
    v_add_u32 v{vF}, s64, v{vF}
    s_lshl_b32 s67, s65, 7
    s_lshl_b32 s64, s3, 16
    s_add_u32 s68, s67, s64
    s_add_u32 s68, s68, {PA}
    s_add_u32 s69, s68, {8*4096}
    s_mul_i32 s64, s3, {14*4096}
    s_add_u32 s67, s67, s64
    s_add_u32 s67, s67, {PB}
    s_mov_b32 s71, {spin_max}
    s_waitcnt vmcnt(0)
    v_lshlrev_b32 v{vX}, 16, v{vX}
    s_mov_b32 s63, 1
    s_branch R_body
R_poll:
    buffer_load_dwordx4 {vr(RA,4)}, v{vA}, s[40:43], s68 offen sc1
    buffer_load_dwordx4 {vr(RA+4,4)}, v{vA}, s[40:43], s69 offen sc1
    buffer_load_dwordx4 {vr(RB,4)}, v{vA}, s[40:43], s67 offen sc1
    buffer_load_dwordx4 {vr(RB+4,4)}, v{vB1}, s[40:43], s67 offen sc1
    v_mov_b32 v{ac}, 0
    v_mov_b32 v{ac+1}, 0
    """)
    for k in range(2 if ffn_off else 4):
        a(f"    s_waitcnt vmcnt({3-k})")
        for e in range(4): a(f"    v_msad_u8 v{ac+(e&1)}, v{RA+4*k+e}, s{28+e}, v{ac+(e&1)}")
    a(f"""
    v_or_b32 v{ac}, v{ac}, v{ac+1}
    v_cmp_ne_u32 vcc, 0, v{ac}
    """)
    spin("R_poll")
    stamp(8)
    a("R_body:")
    for e in range(4): a(f"    v_add_f32 v{RA+e}, v{RA+e}, v{RA+4+e}")
    for e in range(4): a(f"    v_fmac_f32 v{RB+e}, v{RB+4+e}, v{vkeep}")
    a(f"""
    v_permlane32_swap_b32 v{RA}, v{RA+2}
    v_permlane32_swap_b32 v{RA+1}, v{RA+3}
    v_permlane32_swap_b32 v{RB}, v{RB+2}
    v_permlane32_swap_b32 v{RB+1}, v{RB+3}
    v_add_f32 v{RA}, v{RA}, v{RA+2}
    v_add_f32 v{RA+1}, v{RA+1}, v{RA+3}
    v_add_f32 v{RB}, v{RB}, v{RB+2}
    v_add_f32 v{RB+1}, v{RB+1}, v{RB+3}
    s_nop 0
    v_permlane16_swap_b32 v{RA}, v{RA+1}
    v_permlane16_swap_b32 v{RB}, v{RB+1}
    v_add_f32 v{RA}, v{RA}, v{RA+1}
    v_add_f32 v{RB}, v{RB}, v{RB+1}
    s_nop 0
    v_add_f32_dpp v{RA}, v{RA}, v{RA} row_ror:8 row_mask:0xf bank_mask:0xf
    v_add_f32_dpp v{RB}, v{RB}, v{RB} row_ror:8 row_mask:0xf bank_mask:0xf
    ds_write_b32 v{vF}, v{RA} offset:{L_FIN}
    ds_write_b32 v{vF}, v{RB} offset:{L_FIN+128}
    s_waitcnt lgkmcnt(0)
    s_barrier
    ds_read2st64_b32 {vr(RA,2)}, v{vtid4} offset0:{L_FIN//256} offset1:{L_FIN//256+1}
    ds_read2st64_b32 {vr(RA+2,2)}, v{vtid4} offset0:{L_FIN//256+2} offset1:{L_FIN//256+3}
    s_waitcnt lgkmcnt(0)
    v_add_f32 v{RA}, v{RA}, v{RA+1}
    v_add_f32 v{RA+2}, v{RA+2}, v{RA+3}
    v_add_f32 v{RA}, v{RA}, v{RA+2}
    """)
    rbf16(RA, RA)
    a(f"""
    v_mov_b32 v{RB}, v{RA}
    v_add_f32 v{RA+1}, v{RA}, v{vX}
    s_nop 0
    v_permlane32_swap_b32 v{RA}, v{RB}
    """)
    rbf16(RA + 1, RA + 1)
    a(f"""
    v_add_f32 v{RA}, v{RA+1}, v{RB}
    v_cvt_pk_bf16_f32 v{RA}, v{RA}, v{RA}
    s_cmp_lg_u32 s63, 0
    s_mov_b32 s63, 0
    s_cbranch_scc1 R_poll
    s_cmp_lg_u32 s3, 0
    s_cbranch_scc1 R_done
    s_mov_b32 exec_hi, 0
    buffer_store_short v{RA}, v{vO}, s[16:19], 0 offen
    s_cmp_lg_u32 s65, 0
    s_cbranch_scc1 R_done
    v_mov_b32 v{RB}, s35
    v_mov_b32 v{RB+1}, 0
    s_mov_b64 exec, 1
    buffer_store_dword v{RB}, v{RB+1}, s[40:43], 0 offen offset:{EPOCH} sc1
R_done:
    s_mov_b64 exec, -1
    """)
    stamp(9)
    store_stamps()
    a("""
L_end:
    s_endpgm
L_code_end:
    """)
    nv = max(nv_chain, nv_ffn)
    print(out, "vgprs chain", nv_chain, "ffn", nv_ffn, "lds", LDS_BYTES)
    open(out, "w").write(wrap(a.text(), 512, 256, LDS_BYTES, vgpr=nv))

if __name__ == "__main__":
    gen("k5.s", stamps=True)
    gen("k5_ns.s", stamps=False)
    gen("k5_c.s", stamps=True, ffn_off=True)
    gen("k5_cy.s", stamps=True, ffn_off=True, cyc=True)
```

```python
import sys
from asmgen import *

STAMP_OFF = 128 << 20
NST = 12
EPOCH = 0
QP = 0x1000
OP = 0x40000
GU = 0x180000
PA = 0x200000
PB = 0x240000
WS_SIZE = 256 << 20

L_RED = 0
L_TRASH = 2048
L_Q = 3072
L_S = 5376
L_OUT = 8192
L_OUT2 = 12288
L_FIN = 16384
L_G = 18432
L_V = 26624
LDS_BYTES = L_V + 16384

LOG2E = 0x3FB8AA3B
SCALE = 0x3DB504F3

class R:
    def __init__(self, start): self.n = start
    def a(self, k=1, al=1):
        self.n = (self.n + al - 1) // al * al
        r = self.n; self.n += k
        return r
def vr(b, n): return f"v[{b}:{b+n-1}]"
def ar(b, n): return f"a[{b}:{b+n-1}]"

class Sched:
    def __init__(self, a): self.a = a; self.items = []; self.issued = 0; self.nops = 0; self.pos = {}; self.blocked = set()
    def add(self, name, fn, n=1): self.items.append((name, fn, n))
    def issue(self):
        name, fn, n = self.items[self.issued]
        fn(); self.nops += n; self.pos[name] = self.nops; self.issued += 1
    def can(self): return self.issued < len(self.items) and self.items[self.issued][0] not in self.blocked
    def extra(self, n=1): self.nops += n
    def wait(self, name, sub=0):
        while name not in self.pos:
            assert self.can(), (name, self.items[self.issued][0])
            self.issue()
        cnt = self.nops - self.pos[name] + sub
        assert cnt <= 63
        self.a(f"    s_waitcnt vmcnt({cnt})")
    def index(self, name): return [i for i, it in enumerate(self.items) if it[0] == name][0]
    def topup(self, name, depth):
        i = self.index(name)
        while self.can() and self.issued - (i + 1) < depth: self.issue()
    def sprk(self, n):
        for _ in range(n):
            if self.can(): self.issue()

def gen(out, stamps=True, nt=True, D=5, Dl=5, pq=20, po=37, ph=44, lq=20, lo_sleep=40, lq_sleep=0, spin_max=1 << 20, warm=True,
        k0=2, k1=0, k2=2, Dt=8, sprinkle=(1, 1, 1, 1), spr3=1, dmap=None, warm_extra=3, noretry=False, nogather=False, cnt=False):
    a = Asm()
    NT = " nt" if nt else ""
    def stamp(i):
        if stamps: a(f"    s_memrealtime s[{72+2*i}:{73+2*i}]")
    def store_stamps():
        if not stamps: return
        lab = a.label("nost")
        a(f"""
    s_waitcnt lgkmcnt(0)
    s_cmp_lg_u32 s3, 0
    s_cbranch_scc1 {lab}
    s_mul_i32 s64, s2, {NST*8}
    s_add_u32 s64, s64, {STAMP_OFF}
    v_mov_b32 v20, 0
    s_mov_b64 exec, 1
    """)
        for i in range(NST):
            a(f"""
    v_mov_b32 v22, s{72+2*i}
    v_mov_b32 v23, s{73+2*i}
    buffer_store_dwordx2 v[22:23], v20, s[40:43], s64 offen offset:{8*i}
    s_nop 1
    """)
        a(f"{lab}:")
    def srd(base, lo, size):
        a(f"""
    s_mov_b32 s{base}, s{lo}
    s_mov_b32 s{base+1}, s{lo+1}
    s_mov_b32 s{base+2}, {size}
    s_mov_b32 s{base+3}, 0x20000
    """)
    class guard:
        def __enter__(self):
            self.l = a.label("G"); self.n = len(a.lines)
            if warm: a(f"    s_cbranch_execz {self.l}")
        def __exit__(self, *x):
            if warm:
                if len(a.lines) == self.n + 1: a.lines.pop()
                else: a(f"{self.l}:")
    def barrier():
        with guard(): a("    s_barrier")

    r = R(10)
    (vtagP, vaddP, vOT, vtid4, vPF, vG4, vWQ, vK, vWO, vPO, vQW, vQR, vSW, vSR, vTR, vred, vtag0, vGU, vWD, vPH, vJ, vG) = [r.a() for _ in range(22)]
    XA = r.a(8, 4); XS = r.a(4, 4); XF = r.a(2, 2); T = r.a(28, 4); A = r.a(32, 4); AF = r.a(16, 4)
    D1 = r.a(4, 4); PD = r.a(16, 4); DG = r.a(16, 4); WQ = r.a(32, 4); KK = r.a(16, 4); VO = r.a(16, 4); G0 = r.a(16, 4); HG = r.a(8, 4)
    nv = r.n
    assert nv <= 256, nv
    accum = (nv + 3) // 4 * 4
    GW = 0; WD = 64; nagpr = 96
    QB = A; A3 = A + 16; A2 = A; WO = WQ

    a(f"""
    s_cmp_ge_u32 s2, 256
    s_cbranch_scc1 L_end
    s_load_dwordx16 s[4:19], s[0:1], 0
    s_load_dwordx8 s[20:27], s[0:1], 64
    """)
    if stamps:
        for i in range(1, NST): a(f"    s_mov_b64 s[{72+2*i}:{73+2*i}], 0")
    stamp(0)
    a(f"""
    v_lshrrev_b32 v6, 6, v0
    v_and_b32 v1, 63, v0
    s_and_b32 s33, s2, 7            ; xcd
    v_readfirstlane_b32 s3, v6
    s_lshr_b32 s34, s2, 3           ; idx
    s_getpc_b64 s[96:97]
L_pc:
    s_lshl_b32 s64, s34, 2
    s_add_u32 s64, s64, s3
    s_lshl_b32 s64, s64, 7
    s_min_u32 s64, s64, L_code_end - L_pc - 4
    v_mov_b32 v9, s64
    global_load_dword v{vPF}, v9, s[96:97]
    v_lshlrev_b32 v6, 4, v1         ; lane*16
    v_lshrrev_b32 v7, 3, v1          ; l>>3
    v_and_b32 v8, 7, v1              ; l&7
    s_lshr_b32 s65, s33, 1           ; g
    s_and_b32 s66, s33, 1
    s_lshl_b32 s66, s66, 5
    s_add_u32 s66, s66, s34          ; m
    s_and_b32 s67, s66, 15           ; cb
    s_lshr_b32 s68, s66, 4           ; rq
    s_lshl_b32 s69, s68, 8
    s_lshl_b32 s64, s3, 6
    s_add_u32 s69, s69, s64          ; R0
    s_lshl_b32 s97, s69, 1
    v_lshlrev_b32 v9, 4, v7
    s_lshl_b32 s64, s69, 13
    s_lshl_b32 s96, s65, 11
    s_add_u32 s64, s64, s96
    s_lshl_b32 s96, s67, 7
    s_add_u32 s64, s64, s96
    v_lshlrev_b32 v{vWQ}, 16, v7
    v_lshl_add_u32 v{vWQ}, v8, 4, v{vWQ}
    v_add_u32 v{vWQ}, s64, v{vWQ}
    s_mul_i32 s60, s33, 28
    s_add_u32 s60, s60, s34
    s_and_b32 s61, s60, 15
    s_lshr_b32 s60, s60, 4
    s_lshl_b32 s62, s61, 6
    s_lshl_b32 s64, s3, 4
    s_add_u32 s62, s62, s64
    s_lshl_b32 s98, s62, 1
    v_lshrrev_b32 v{vG}, 4, v1
    v_and_b32 v{vJ}, 15, v1
    v_lshlrev_b32 v{vPH}, 3, v{vG}
    s_mov_b32 s38, 2048
    s_mov_b32 s39, 0x20000
    s_mov_b32 s46, {8<<20}
    s_mov_b32 s47, 0x20000
    s_mov_b32 s64, 0
    s_waitcnt lgkmcnt(0)
    s_mov_b32 s36, s4
    s_mov_b32 s37, s5
    buffer_load_dwordx4 {vr(XA,4)}, v6, s[36:39], 0 offen
    buffer_load_dwordx4 {vr(XA+4,4)}, v6, s[36:39], 0 offen offset:1024
    buffer_load_dwordx4 {vr(XS,4)}, v9, s[36:39], s97 offen
    buffer_load_dwordx2 {vr(XF,2)}, v{vPH}, s[36:39], s98 offen
    s_load_dword s28, s[26:27], {EPOCH}
    s_mov_b32 s44, s10
    s_mov_b32 s45, s11
    s_barrier
    """)
    for t in range(8):
        a(f"    buffer_load_dwordx4 {vr(WQ+4*t,4)}, v{vWQ}, s[44:47], s64 offen{NT}")
        if t < 7: a(f"    s_add_u32 s64, s64, 8192")
    a(f"""
    v_bfe_u32 v{T}, v0, 1, 2
    v_and_b32 v{T+1}, 1, v0
    v_lshlrev_b32 v{T+1}, 4, v{T+1}
    v_mov_b32 v9, 0xffff
    v_lshlrev_b32 v9, v{T+1}, v9
    v_cmp_eq_u32 vcc, 0, v{T}
    v_cmp_eq_u32 s[96:97], 1, v{T}
    v_cmp_eq_u32 s[98:99], 2, v{T}
    v_cmp_eq_u32 s[100:101], 3, v{T}
    v_cndmask_b32 v2, 0, v9, vcc
    v_cndmask_b32 v3, 0, v9, s[96:97]
    v_cndmask_b32 v4, 0, v9, s[98:99]
    v_cndmask_b32 v5, 0, v9, s[100:101]
    s_lshl_b32 s63, s65, 23
    s_lshl_b32 s96, s66, 14
    s_add_u32 s63, s63, s96
    s_lshl_b32 s96, s3, 12
    s_add_u32 s63, s63, s96
    s_add_u32 s63, s63, {28672*256}
    s_add_u32 s96, s96, {L_V}
    s_mov_b32 m0, s96
    v_lshlrev_b32 v{vK}, 8, v{vJ}
    v_lshl_add_u32 v{vK}, v{vG}, 4, v{vK}
    """)
    srd(48, 6, 32 << 20)
    srd(52, 8, 32 << 20)
    srd(40, 26, WS_SIZE)

    def allreduce2(x, y, t1, t2):
        for s_ in (8, 4, 2, 1):
            a(f"""
    s_nop 0
    v_add_f32_dpp v{x}, v{x}, v{x} row_ror:{s_} row_mask:0xf bank_mask:0xf
    v_add_f32_dpp v{y}, v{y}, v{y} row_ror:{s_} row_mask:0xf bank_mask:0xf
    """)
        for sw in ("v_permlane16_swap_b32", "v_permlane32_swap_b32"):
            a(f"""
    v_mov_b32 v{t1}, v{x}
    v_mov_b32 v{t2}, v{y}
    s_nop 0
    {sw} v{t1}, v{x}
    {sw} v{t2}, v{y}
    v_add_f32 v{x}, v{x}, v{t1}
    v_add_f32 v{y}, v{y}, v{t2}
    """)
    def allreduce1(x, t1, op="v_add_f32", steps=(8, 4, 2, 1)):
        for s_ in steps:
            a(f"""
    s_nop 1
    {op}_dpp v{x}, v{x}, v{x} row_ror:{s_} row_mask:0xf bank_mask:0xf
    """)
        for sw in ("v_permlane16_swap_b32", "v_permlane32_swap_b32"):
            a(f"""
    v_mov_b32 v{t1}, v{x}
    s_nop 1
    {sw} v{t1}, v{x}
    {op} v{x}, v{x}, v{t1}
    """)
    def rbf16(d, s_):
        a(f"""
    v_cvt_pk_bf16_f32 v{d}, v{s_}, v{s_}
    v_and_b32 v{d}, 0xffff0000, v{d}
    """)
    a(f"""
    v_lshrrev_b32 v{vred}, 2, v1
    v_xor_b32 v{vred}, v{vred}, v1
    v_and_b32 v{vred}, 8, v{vred}
    v_cmp_eq_u32 vcc, 0, v{vred}
    v_lshlrev_b32 v{vred}, 5, v8
    v_bfe_u32 v9, v1, 4, 1
    v_lshl_add_u32 v{vred}, v9, 4, v{vred}
    v_lshrrev_b32 v9, 5, v1
    v_lshl_add_u32 v{vred}, v9, 8, v{vred}
    s_lshl_b32 s64, s3, 9
    v_add_u32 v{vred}, s64, v{vred}
    v_add_u32 v9, {L_TRASH}, v6
    v_cndmask_b32 v{vred}, v9, v{vred}, vcc
    v_lshlrev_b32 v{vtid4}, 2, v0
    v_and_b32 v{vG4}, 3, v1
    v_lshlrev_b32 v{vtagP}, 3, v{vG4}
    s_lshl_b32 s44, s65, 14
    s_add_u32 s44, s44, {QP}
    s_lshl_b32 s45, s68, 12
    s_add_u32 s45, s45, s44
    s_lshl_b32 s96, s67, 8
    s_add_u32 s45, s45, s96
    s_waitcnt lgkmcnt(0)
    s_and_b32 s28, s28, 0x7f
    s_cmp_eq_u32 s28, 127
    s_cselect_b32 s28, 0, s28
    s_add_u32 s35, s28, 1
    s_add_u32 s29, s28, 33
    s_sub_u32 s64, s29, 127
    s_cmp_gt_u32 s29, 127
    s_cselect_b32 s29, s64, s29
    s_add_u32 s30, s28, 65
    s_sub_u32 s64, s30, 127
    s_cmp_gt_u32 s30, 127
    s_cselect_b32 s30, s64, s30
    s_add_u32 s31, s28, 97
    s_sub_u32 s64, s31, 127
    s_cmp_gt_u32 s31, 127
    s_cselect_b32 s31, s64, s31
    s_add_u32 s28, s28, 1
    s_lshl_b32 s32, s29, 8
    s_or_b32 s32, s32, s28
    s_lshl_b32 s64, s30, 16
    s_or_b32 s32, s32, s64
    s_lshl_b32 s64, s31, 24
    s_or_b32 s32, s32, s64
    s_movk_i32 s70, 0xff
    v_bfe_u32 v{vtagP}, s32, v{vtagP}, 8
    v_sub_u32 v{vaddP}, 0x80, v{vtagP}
    """)
    def kv_issue(i):
        if i < 4: a(f"    buffer_load_dwordx4 {vr(KK+4*i,4)}, v{vK}, s[48:51], s63 offen offset:{64*i}{NT}")
        else: a(f"    buffer_load_dwordx4 v6, s[52:55], s63 offen offset:{1024*(i-4)}{NT} lds")
    a(f"    s_waitcnt vmcnt(10)")
    stamp(1)
    for i in range(k0): kv_issue(i)
    for k in range(8):
        a(f"""
    v_lshlrev_b32 v{T+2*k}, 16, v{XA+k}
    v_and_b32 v{T+2*k+1}, 0xffff0000, v{XA+k}
    """)
    a(f"""
    v_readfirstlane_b32 s64, v{T}
    s_nop 1
    """)
    for k in range(16): a(f"    v_subrev_f32 v{T+k}, s64, v{T+k}")
    a(f"""
    v_pk_add_f32 {vr(T+16,2)}, {vr(T,2)}, {vr(T+2,2)}
    v_pk_mul_f32 {vr(T+18,2)}, {vr(T,2)}, {vr(T,2)}
    """)
    for k in range(1, 8):
        a(f"    v_pk_fma_f32 {vr(T+18,2)}, {vr(T+2*k,2)}, {vr(T+2*k,2)}, {vr(T+18,2)}")
        if k >= 2: a(f"    v_pk_add_f32 {vr(T+16,2)}, {vr(T+16,2)}, {vr(T+2*k,2)}")
    S1, S2, t1, t2 = T + 16, T + 18, T + 17, T + 19
    a(f"""
    v_add_f32 v{S1}, v{S1}, v{t1}
    v_add_f32 v{S2}, v{S2}, v{t2}
    s_nop 0
    """)
    allreduce2(S1, S2, t1, t2)
    mean, var, rs, sd = T, T + 1, T + 2, T + 3
    a(f"""
    v_mul_f32 v{S1}, 0x3a800000, v{S1}
    v_mul_f32 v{S2}, 0x3a800000, v{S2}
    v_add_f32 v{mean}, s64, v{S1}
    v_fma_f32 v{var}, -v{S1}, v{S1}, v{S2}
    v_max_f32 v{var}, 0, v{var}
    """)
    rbf16(mean, mean); rbf16(var, var)
    a(f"    v_add_f32 v{var}, 0x3727c5ac, v{var}")
    rbf16(var, var)
    a(f"""
    v_sqrt_f32 v{sd}, v{var}
    s_waitcnt vmcnt({8+k0})
    """)
    for i in range(k0, k0 + k1): kv_issue(i)
    rbf16(sd, sd)
    a(f"    v_rcp_f32 v{rs}, v{sd}")
    Dd = T + 4; Q = T + 16
    def norm(src, dst):
        n = len(src)
        for k in range(n):
            a(f"""
    v_lshlrev_b32 v{Dd+2*k}, 16, v{src[k]}
    v_and_b32 v{Dd+2*k+1}, 0xffff0000, v{src[k]}
    """)
        for k in range(2*n): a(f"    v_sub_f32 v{Dd+k}, v{Dd+k}, v{mean}")
        for k in range(n): a(f"    v_cvt_pk_bf16_f32 v{src[k]}, v{Dd+2*k}, v{Dd+2*k+1}")
        for k in range(n):
            a(f"""
    v_lshlrev_b32 v{Dd+2*k}, 16, v{src[k]}
    v_and_b32 v{Dd+2*k+1}, 0xffff0000, v{src[k]}
    """)
        for k in range(2*n): a(f"    v_mul_f32 v{Q+k}, v{Dd+k}, v{rs}")
        for k in range(2*n): a(f"    v_fma_f32 v{Dd+k}, -v{Q+k}, v{sd}, v{Dd+k}")
        for k in range(2*n): a(f"    v_fmac_f32 v{Q+k}, v{Dd+k}, v{rs}")
        for k in range(2*n): a(f"    v_cvt_pk_bf16_f32 v{Q+k}, v{Q+k}, v{Q+k}")
        for k in range(2*n):
            for m_ in range(4): a(f"    v_and_b32 v{dst+4*k+m_}, v{Q+k}, v{2+m_}")
    norm([XS, XS + 1, XS + 2, XS + 3], A)
    stamp(2)
    for i in range(k0 + k1, k0 + k1 + k2): kv_issue(i)
    norm([XF, XF + 1], AF)
    srd(56, 12, 8 << 20)
    srd(4, 16, 7 << 20)
    srd(8, 18, 7 << 20)
    srd(12, 20, 7 << 20)
    srd(16, 22, 2048)
    a(f"""
    v_bfe_u32 v9, v1, 4, 1
    v_lshlrev_b32 v{vOT}, 5, v{vJ}
    v_lshl_add_u32 v{vOT}, v9, 4, v{vOT}
    s_lshl_b32 s64, s3, 10
    v_add_u32 v{vOT}, s64, v{vOT}
    v_lshlrev_b32 v{vG4}, 4, v{vG4}
    ; wo voffset
    s_lshl_b32 s64, s65, 10
    s_and_b32 s96, s3, 1
    s_lshl_b32 s96, s96, 9
    s_add_u32 s64, s64, s96
    s_lshr_b32 s96, s67, 2
    s_lshl_b32 s96, s96, 5
    s_add_u32 s64, s64, s96
    s_lshr_b32 s96, s3, 1
    s_lshl_b32 s96, s96, 4
    s_add_u32 s64, s64, s96
    s_and_b32 s96, s67, 3
    s_lshl_b32 s96, s96, 2
    s_add_u32 s64, s64, s96
    s_lshl_b32 s64, s64, 11
    s_lshl_b32 s96, s68, 9
    s_add_u32 s64, s64, s96
    v_lshlrev_b32 v{vWD}, 11, v{vG}
    v_lshl_add_u32 v{vWD}, v{vJ}, 4, v{vWD}
    v_add_u32 v{vWO}, s64, v{vWD}
    v_mul_u32_u24 v{vQR}, 272, v8
    v_lshl_add_u32 v{vQR}, v{vG}, 4, v{vQR}
    v_mul_u32_u24 v{vSW}, 144, v8
    v_lshl_add_u32 v{vSR}, v{vG}, 4, v{vSW}
    v_bfe_u32 v9, v1, 3, 1
    v_lshl_add_u32 v{vSR}, v9, 6, v{vSR}
    v_lshl_add_u32 v{vSW}, v{vG}, 3, v{vSW}
    s_lshl_b32 s96, s3, 5
    v_add_u32 v{vSW}, s96, v{vSW}
    v_bfe_u32 v9, v1, 2, 2
    v_lshl_add_u32 v{vTR}, v{vG}, 3, v9
    v_lshlrev_b32 v{vTR}, 8, v{vTR}
    v_lshrrev_b32 v9, 1, v{vG4}
    s_lshl_b32 s96, s3, 6
    v_add3_u32 v{vTR}, v{vTR}, v9, s96
    v_lshrrev_b32 v{vQW}, 5, v0
    v_and_b32 v9, 31, v0
    v_mul_u32_u24 v{vQW}, 272, v{vQW}
    v_lshl_add_u32 v{vQW}, v9, 3, v{vQW}
    v_lshrrev_b32 v9, 2, v1
    v_lshl_add_u32 v{vPO}, v9, 12, v{vG4}
    v_lshl_add_u32 v{vPH}, v9, 10, v{vG4}
    s_mul_i32 s64, s62, 7168
    s_lshl_b32 s96, s60, 9
    s_add_u32 s64, s64, s96
    v_mul_u32_u24 v{vGU}, {4*7168}, v{vG}
    v_lshl_add_u32 v{vGU}, v{vJ}, 4, v{vGU}
    v_add_u32 v{vGU}, s64, v{vGU}
    s_lshr_b32 s98, s61, 2
    s_lshl_b32 s62, s60, 2
    s_add_u32 s62, s62, s98
    s_and_b32 s69, s61, 3
    s_lshl_b32 s64, s62, 6
    s_lshl_b32 s96, s3, 4
    s_add_u32 s64, s64, s96
    s_lshl_b32 s64, s64, 11
    s_lshl_b32 s96, s69, 9
    s_add_u32 s64, s64, s96
    v_add_u32 v{vWD}, s64, v{vWD}
    s_lshl_b32 s62, s62, 12
    s_lshl_b32 s64, s69, 10
    s_add_u32 s62, s62, s64
    s_add_u32 s62, s62, {PB}
    s_lshl_b32 s60, s60, 15
    s_add_u32 s60, s60, {GU}
    s_lshl_b32 s61, s61, 10
    s_add_u32 s61, s61, s60
    s_lshl_b32 s64, s98, 8
    s_add_u32 s60, s60, s64
    s_lshl_b32 s64, s3, 6
    s_add_u32 s60, s60, s64
    s_lshl_b32 s96, s67, 8
    s_lshl_b32 s97, s3, 10
    s_add_u32 s20, s44, s97
    s_lshl_b32 s23, s65, 18
    s_add_u32 s23, s23, {OP}
    s_add_u32 s22, s23, s96
    s_add_u32 s22, s22, s64
    s_lshl_b32 s96, s66, 12
    s_add_u32 s23, s23, s96
    s_add_u32 s23, s23, s97
    s_lshl_b32 s69, s65, 4
    s_add_u32 s69, s69, s67
    s_lshl_b32 s69, s69, 12
    s_lshl_b32 s96, s68, 10
    s_add_u32 s69, s69, s96
    s_add_u32 s69, s69, {PA}
    s_mov_b32 s24, {SCALE}
    s_mov_b32 s25, {LOG2E}
    v_mov_b32 v{vtag0}, s28
    s_mov_b32 s26, 0x07060500
    s_mov_b32 s27, 0x07060501
    s_mov_b32 s66, 0x07060502
    s_mov_b32 s67, 0x07060503
    s_mov_b32 s68, 0x0c04000c
    """)
    R_ = T + 8
    nk = k0 + k1 + k2
    for t in range(8):
        a(f"    s_waitcnt vmcnt({7 - t + nk})")
        srcc = "0" if t == 0 else vr(D1, 4)
        a(f"    v_mfma_f32_16x16x32_bf16 {vr(D1,4)}, {vr(A+4*t,4)}, {vr(WQ+4*t,4)}, {srcc}")
        while nk < 8 and t < 7 and (7 - t) + nk < Dt:
            kv_issue(nk); nk += 1
    kpre = nk
    a(f"""
    s_nop 7
    ds_write_b128 v{vred}, {vr(D1,4)} offset:{L_RED}
    s_waitcnt lgkmcnt(0)
    s_barrier
    s_cmp_lg_u32 s3, 0
    s_cbranch_scc1 L_nored
    ds_read2st64_b32 {vr(R_,2)}, v{vtid4} offset0:0 offset1:1
    ds_read2st64_b32 {vr(R_+2,2)}, v{vtid4} offset0:2 offset1:3
    ds_read2st64_b32 {vr(R_+4,2)}, v{vtid4} offset0:4 offset1:5
    ds_read2st64_b32 {vr(R_+6,2)}, v{vtid4} offset0:6 offset1:7
    s_waitcnt lgkmcnt(0)
    v_add_f32 v{R_}, v{R_}, v{R_+1}
    v_add_f32 v{R_+2}, v{R_+2}, v{R_+3}
    v_add_f32 v{R_+4}, v{R_+4}, v{R_+5}
    v_add_f32 v{R_+6}, v{R_+6}, v{R_+7}
    v_add_f32 v{R_}, v{R_}, v{R_+2}
    v_add_f32 v{R_+4}, v{R_+4}, v{R_+6}
    v_add_f32 v{R_}, v{R_}, v{R_+4}
    v_add_u32 v{R_}, v{R_}, v{vaddP}
    v_bfi_b32 v{R_}, s70, v{vtagP}, v{R_}
    buffer_store_dword v{R_}, v{vtid4}, s[40:43], s45 offen sc1
L_nored:
    """)
    stamp(3)
    a("""
    s_cmp_ge_u32 s34, 28
    s_cbranch_scc1 L_light
    """)
    PSEL = (26, 27, 66, 67)

    def abuild(H, AA):
        a("    s_nop 1")
        for u in range(4):
            for m_ in range(4):
                a(f"    v_and_b32_dpp v{AA+4*u+m_}, v{H}, v{2+m_} quad_perm:[{u},{u},{u},{u}] row_mask:0xf bank_mask:0xf")
    def merge2(X, Y, full_y):
        if full_y:
            a(f"""
    s_nop 0
    v_permlane32_swap_b32 v{X}, v{X+2}
    v_permlane32_swap_b32 v{X+1}, v{X+3}
    v_permlane32_swap_b32 v{Y}, v{Y+2}
    v_permlane32_swap_b32 v{Y+1}, v{Y+3}
    v_add_f32 v{X}, v{X}, v{X+2}
    v_add_f32 v{X+1}, v{X+1}, v{X+3}
    v_add_f32 v{Y}, v{Y}, v{Y+2}
    v_add_f32 v{Y+1}, v{Y+1}, v{Y+3}
    s_nop 0
    v_permlane16_swap_b32 v{X}, v{X+1}
    v_permlane16_swap_b32 v{Y}, v{Y+1}
    v_add_f32 v{X}, v{X}, v{X+1}
    v_add_f32 v{Y}, v{Y}, v{Y+1}
    """)
        else:
            a(f"""
    v_mov_b32 v{Y+1}, v{Y}
    s_nop 0
    v_permlane32_swap_b32 v{X}, v{X+2}
    v_permlane32_swap_b32 v{X+1}, v{X+3}
    v_permlane32_swap_b32 v{Y+1}, v{Y}
    v_add_f32 v{X}, v{X}, v{X+2}
    v_add_f32 v{X+1}, v{X+1}, v{X+3}
    v_add_f32 v{Y}, v{Y}, v{Y+1}
    s_nop 0
    v_mov_b32 v{Y+1}, v{Y}
    v_permlane16_swap_b32 v{X}, v{X+1}
    s_nop 0
    v_permlane16_swap_b32 v{Y+1}, v{Y}
    v_add_f32 v{X}, v{X}, v{X+1}
    v_add_f32 v{Y}, v{Y}, v{Y+1}
    """)
        for s_ in (8, 4):
            a(f"""
    s_nop 0
    v_add_f32_dpp v{X}, v{X}, v{X} row_ror:{s_} row_mask:0xf bank_mask:0xf
    v_add_f32_dpp v{Y}, v{Y}, v{Y} row_ror:{s_} row_mask:0xf bank_mask:0xf
    """)

    def path(ffn, P):
        S = Sched(a)
        def seg_end():
            if warm: a(f"    s_cbranch_execz {P}W_ret")
        def gsprk(n):
            with guard(): S.sprk(n)
        def gwait(name, sub=0):
            with guard(): S.wait(name, sub)
        def out_tail(Dx, Tt, lds, out_off_s):
            a(f"""
    s_nop 6
    ds_write_b128 v{vOT}, {vr(Dx,4)} offset:{lds}
    ds_write_b128 v{vOT}, {vr(Dx+4,4)} offset:{lds+512}
    s_waitcnt lgkmcnt(0)
    """)
            barrier()
            a(f"""
    ds_read2st64_b32 {vr(Tt+2,2)}, v{vtid4} offset0:{lds//256} offset1:{lds//256+4}
    ds_read2st64_b32 {vr(Tt+4,2)}, v{vtid4} offset0:{lds//256+8} offset1:{lds//256+12}
    s_waitcnt lgkmcnt(0)
    v_add_f32 v{Tt+2}, v{Tt+2}, v{Tt+3}
    v_add_f32 v{Tt+4}, v{Tt+4}, v{Tt+5}
    v_add_f32 v{Tt+2}, v{Tt+2}, v{Tt+4}
    v_add_u32 v{Tt+2}, v{Tt+2}, v{vaddP}
    v_bfi_b32 v{Tt+2}, s70, v{vtagP}, v{Tt+2}
    """)
            seg_end()
            a(f"    buffer_store_dword v{Tt+2}, v{vtid4}, s[40:43], s{out_off_s} offen sc1")
            S.extra(1)
        for t in range(8):
            S.items.append((f"wq{t}", None, 1)); S.nops += 1; S.pos[f"wq{t}"] = S.nops; S.issued += 1
        base = []
        for i in range(8): base.append((f"kv{i}", (lambda i=i: kv_issue(i)), 1))
        def mk_gu(i):
            u, mat, c = i // 4, (i // 2) % 2, i % 2
            def f():
                so = "0"
                if u: a(f"    s_movk_i32 s99, {u*7168}"); so = "s99"
                a(f"    buffer_load_dwordx4 {ar(GW+4*i,4)}, v{vGU}, s[{4+4*mat}:{7+4*mat}], {so} offen offset:{256*c}{NT}")
            return f
        def mk_wo(k):
            u, c = k // 2, k % 2
            def f():
                so = "0"
                if u: a(f"    s_mov_b32 s99, {u*0x40000}"); so = "s99"
                a(f"    buffer_load_dwordx4 {vr(WO+4*k,4)}, v{vWO}, s[56:59], {so} offen offset:{c*256}{NT}")
            return f
        def mk_wd(k):
            u, c = k // 2, k % 2
            def f():
                so = "0"
                if u: a(f"    s_movk_i32 s99, {u*8192}"); so = "s99"
                a(f"    buffer_load_dwordx4 {ar(WD+4*k,4)}, v{vWD}, s[12:15], {so} offen offset:{c*256}{NT}")
            return f
        def pollq():
            if not ffn and lq_sleep: a(f"    s_sleep {lq_sleep}")
            pollq2()
        def pollq2():
            if nogather:
                for k in range(4): a(f"    buffer_load_dwordx4 {vr(G0+4*k,4)}, v6, s[36:39], 0 offen")
                return
            a(f"    buffer_load_dwordx4 {vr(G0,4)}, v6, s[40:43], s20 offen sc1")
            for k in range(1, 4):
                a(f"    s_add_u32 s99, s20, {4096*k}")
                a(f"    buffer_load_dwordx4 {vr(G0+4*k,4)}, v6, s[40:43], s99 offen sc1")
        def pollo():
            if not ffn and lo_sleep: a(f"    s_waitcnt vmcnt(0)\n    s_sleep {lo_sleep}")
            pollo2()
        def pollo2():
            if nogather:
                for k in range(4): a(f"    buffer_load_dwordx4 {vr(G0+4*k,4)}, v6, s[36:39], 0 offen")
                return
            a(f"    buffer_load_dwordx4 {vr(G0,4)}, v{vPO}, s[40:43], s22 offen sc1")
            for k in range(1, 4):
                a(f"    s_add_u32 s99, s22, {0x10000*k}")
                a(f"    buffer_load_dwordx4 {vr(G0+4*k,4)}, v{vPO}, s[40:43], s99 offen sc1")
        def pollh():
            if nogather:
                for k in range(2): a(f"    buffer_load_dwordx4 {vr(HG+4*k,4)}, v6, s[36:39], 0 offen")
                return
            a(f"""
    buffer_load_dwordx4 {vr(HG,4)}, v{vPH}, s[40:43], s60 offen sc1
    s_add_u32 s99, s60, 16384
    buffer_load_dwordx4 {vr(HG+4,4)}, v{vPH}, s[40:43], s99 offen sc1
    """)
        if ffn:
            for i in range(16): base.append((f"gu{i}", mk_gu(i), 1))
        for k in range(8): base.append((f"wo{k}", mk_wo(k), 1))
        if ffn:
            for k in range(8): base.append((f"wd{k}", mk_wd(k), 1))
        Pl = [(pq, ("pq", pollq, 4)), (po, ("po", pollo, 4)), (ph, ("ph", pollh, 2))] if ffn else [(lq, ("pq", pollq, 4)), (99, ("po", pollo, 4))]
        for i, it in enumerate(base):
            for p, pit in Pl:
                if p == i + 8: S.add(*pit)
            S.add(*it)
        for p, pit in Pl:
            if p >= len(base) + 8: S.add(*pit)
        for i in range(kpre):
            name = S.items[S.issued][0]; assert name == f"kv{i}"
            S.nops += 1; S.pos[name] = S.nops; S.issued += 1
        names = [it[0] for it in S.items]
        S.blocked |= {"po", "ph"}
        def retry(lab, fn, check):
            if noretry: return
            if cnt:
                bit = {"rq": 100, "ro": 1000, "rh": 10000}[lab[-2:]]
                a(f"""
    s_nop 1
    s_cbranch_vccz {lab}_c
    s_add_u32 s94, s94, {bit}
    s_addc_u32 s95, s95, 0
{lab}_c:
    """)
            a(f"""
    s_nop 1
    s_cbranch_vccz {lab}_ok
    s_mov_b32 s71, {spin_max}
{lab}:
    """)
            fn()
            a("    s_waitcnt vmcnt(0)")
            check(True)
            a(f"""
    s_sub_u32 s71, s71, 1
    s_cmp_eq_u32 s71, 0
    s_cbranch_scc1 {lab}_ok
    s_cbranch_vccnz {lab}
{lab}_ok:
    """)
        S.blocked.add("pq"); S.sprk(warm_extra); S.blocked.discard("pq")
        if warm:
            a(f"""
    s_mov_b64 exec, 0
    s_cmp_eq_u32 s3, 0
    s_cbranch_scc1 {P}SEG0
    s_cmp_eq_u32 s3, 1
    s_cbranch_scc1 {P}SEG1
    s_cmp_eq_u32 s3, 2
    s_cbranch_scc1 {P}SEG2
    s_branch {P}SEG3
{P}W_ret:
    s_mov_b64 exec, -1
    """)
        if cnt: a('    s_waitcnt lgkmcnt(0)\n    s_mov_b64 s[94:95], s[72:73]')
        else: stamp(11)
        t3_done = False; have_o = False; have_h = False
        DD = D if ffn else Dl
        for name in names:
            depth = DD
            if dmap and ffn:
                for k_, v_ in dmap:
                    if names.index(name) >= k_: depth = v_
            def std():
                with guard():
                    S.wait(name); S.topup(name, depth)
            if name.startswith("wq"):
                pass
            elif name.startswith("kv"):
                std()
                if name == "kv7":
                    a("    s_barrier")
                    for s_ in range(2):
                        for c in range(2):
                            for h in range(2):
                                a(f"    ds_read_b64_tr_b16 {vr(VO+(s_*2+c)*4+2*h,2)}, v{vTR} offset:{L_V + s_*8192 + h*1024 + c*32}")
            elif name.startswith("gu"):
                i = int(name[2:]); u, dd = i // 4, i % 4
                with guard(): S.wait(name)
                srcc = "0" if u == 0 else vr(DG + 4 * dd, 4)
                a(f"    v_mfma_f32_16x16x32_bf16 {vr(DG+4*dd,4)}, {vr(AF+4*u,4)}, {ar(GW+4*i,4)}, {srcc}")
                with guard(): S.topup(name, depth)
                if i == 15:
                    a(f"""
    s_nop 4
{P}SEG3:
    ds_write_b128 v{vOT}, {vr(DG,4)} offset:{L_G}
    ds_write_b128 v{vOT}, {vr(DG+4,4)} offset:{L_G+512}
    ds_write_b128 v{vOT}, {vr(DG+8,4)} offset:{L_G+4096}
    ds_write_b128 v{vOT}, {vr(DG+12,4)} offset:{L_G+4096+512}
    s_waitcnt lgkmcnt(0)
    """)
                    barrier()
                    o = L_G // 256
                    a(f"""
    ds_read2st64_b32 {vr(T,2)}, v{vtid4} offset0:{o} offset1:{o+4}
    ds_read2st64_b32 {vr(T+2,2)}, v{vtid4} offset0:{o+8} offset1:{o+12}
    ds_read2st64_b32 {vr(T+4,2)}, v{vtid4} offset0:{o+16} offset1:{o+20}
    ds_read2st64_b32 {vr(T+6,2)}, v{vtid4} offset0:{o+24} offset1:{o+28}
    s_add_u32 s99, s61, 16384
    s_waitcnt lgkmcnt(0)
    v_add_f32 v{T}, v{T}, v{T+1}
    v_add_f32 v{T+2}, v{T+2}, v{T+3}
    v_add_f32 v{T+4}, v{T+4}, v{T+5}
    v_add_f32 v{T+6}, v{T+6}, v{T+7}
    v_add_f32 v{T}, v{T}, v{T+2}
    v_add_f32 v{T+4}, v{T+4}, v{T+6}
    v_add_u32 v{T}, v{T}, v{vaddP}
    v_add_u32 v{T+4}, v{T+4}, v{vaddP}
    v_bfi_b32 v{T}, s70, v{vtagP}, v{T}
    v_bfi_b32 v{T+4}, s70, v{vtagP}, v{T+4}
    """)
                    if warm: a(f"    s_cbranch_execz {P}SEG3b")
                    a(f"""
    buffer_store_dword v{T}, v{vtid4}, s[40:43], s61 offen sc1
    buffer_store_dword v{T+4}, v{vtid4}, s[40:43], s99 offen sc1
    """)
                    S.extra(2)
                    stamp(8)
                    S.blocked -= {"ph"}
                    S.sprk(1)
            elif name == "pq":
                acc = T
                def chk(re):
                    a(f"""
    v_mov_b32 v{acc}, 0
    v_mov_b32 v{acc+1}, 0
    """)
                    for k in range(4):
                        if not re: gwait("pq", 3 - k)
                        for e in range(4): a(f"    v_msad_u8 v{acc+(e&1)}, v{G0+4*k+e}, s{28+e}, v{acc+(e&1)}")
                    a(f"""
    v_or_b32 v{acc}, v{acc}, v{acc+1}
    v_cmp_ne_u32 vcc, 0, v{acc}
    """)
                while "pq" not in S.pos: S.issue()
                a(f"{P}SEG0:")
                chk(False)
                retry(f"{P}rq", pollq2, chk)
                with guard(): stamp(4)
                QS = T + 4
                a(f"""
    v_pk_add_f32 {vr(QS,2)}, {vr(G0,2)}, {vr(G0+4,2)}
    v_pk_add_f32 {vr(QS+2,2)}, {vr(G0+2,2)}, {vr(G0+6,2)}
    v_pk_add_f32 {vr(QS+4,2)}, {vr(G0+8,2)}, {vr(G0+12,2)}
    v_pk_add_f32 {vr(QS+6,2)}, {vr(G0+10,2)}, {vr(G0+14,2)}
    v_pk_add_f32 {vr(QS,2)}, {vr(QS,2)}, {vr(QS+4,2)}
    v_pk_add_f32 {vr(QS+2,2)}, {vr(QS+2,2)}, {vr(QS+6,2)}
    v_cvt_pk_bf16_f32 v{QS}, v{QS}, v{QS+1}
    v_cvt_pk_bf16_f32 v{QS+1}, v{QS+2}, v{QS+3}
    ds_write_b64 v{vQW}, {vr(QS,2)} offset:{L_Q}
    """)
                with guard(): S.topup(name, depth)
                a("    s_waitcnt lgkmcnt(0)")
                barrier()
                a(f"""
    ds_read_b128 {vr(QB,4)}, v{vQR} offset:{L_Q}
    ds_read_b128 {vr(QB+4,4)}, v{vQR} offset:{L_Q+64}
    ds_read_b128 {vr(QB+8,4)}, v{vQR} offset:{L_Q+128}
    ds_read_b128 {vr(QB+12,4)}, v{vQR} offset:{L_Q+192}
    """)
                gsprk(sprinkle[0])
                for t in range(4):
                    srcc = "0" if t == 0 else vr(D1, 4)
                    a(f"    s_waitcnt lgkmcnt({3-t})")
                    a(f"    v_mfma_f32_16x16x32_bf16 {vr(D1,4)}, {vr(KK+4*t,4)}, {vr(QB+4*t,4)}, {srcc}")
                Sx = T + 4
                a(f"""
    s_nop 7
    v_cvt_pk_bf16_f32 v{T}, v{D1}, v{D1+1}
    v_cvt_pk_bf16_f32 v{T+1}, v{D1+2}, v{D1+3}
    v_lshlrev_b32 v{Sx}, 16, v{T}
    v_and_b32 v{Sx+1}, 0xffff0000, v{T}
    v_lshlrev_b32 v{Sx+2}, 16, v{T+1}
    v_and_b32 v{Sx+3}, 0xffff0000, v{T+1}
    v_mul_f32 v{Sx}, s24, v{Sx}
    v_mul_f32 v{Sx+1}, s24, v{Sx+1}
    v_mul_f32 v{Sx+2}, s24, v{Sx+2}
    v_mul_f32 v{Sx+3}, s24, v{Sx+3}
    v_cvt_pk_bf16_f32 v{T}, v{Sx}, v{Sx+1}
    v_cvt_pk_bf16_f32 v{T+1}, v{Sx+2}, v{Sx+3}
    ds_write_b64 v{vSW}, {vr(T,2)} offset:{L_S}
    s_waitcnt lgkmcnt(0)
    """)
                seg_end()
                mx, tmp, lsum, wv, rl = T + 12, T + 13, T + 14, T + 15, T + 16
                Pp = T + 20
                a(f"""
    s_barrier
{P}SEG1:
    ds_read_b128 {vr(T,4)}, v{vSR} offset:{L_S}
    """)
                gsprk(sprinkle[1])
                a("    s_waitcnt lgkmcnt(0)")
                for k in range(4):
                    a(f"""
    v_lshlrev_b32 v{Sx+2*k}, 16, v{T+k}
    v_and_b32 v{Sx+2*k+1}, 0xffff0000, v{T+k}
    """)
                a(f"""
    v_max3_f32 v{mx}, v{Sx}, v{Sx+1}, v{Sx+2}
    v_max3_f32 v{tmp}, v{Sx+3}, v{Sx+4}, v{Sx+5}
    v_max3_f32 v{mx}, v{Sx+6}, v{Sx+7}, v{mx}
    v_max_f32 v{mx}, v{mx}, v{tmp}
    """)
                allreduce1(mx, tmp, op="v_max_f32", steps=(8,))
                a(f"    v_mul_f32 v{mx}, s25, v{mx}")
                for k in range(8): a(f"    v_fma_f32 v{Sx+k}, v{Sx+k}, s25, -v{mx}")
                for k in range(8): a(f"    v_exp_f32 v{Sx+k}, v{Sx+k}")
                for k in range(4): a(f"    v_cvt_pk_bf16_f32 v{Pp+k}, v{Sx+2*k}, v{Sx+2*k+1}")
                a(f"""
    v_pk_add_f32 {vr(T,2)}, {vr(Sx,2)}, {vr(Sx+2,2)}
    v_pk_add_f32 {vr(T+2,2)}, {vr(Sx+4,2)}, {vr(Sx+6,2)}
    """)
                for sc in (0, 2, 1, 3):
                    a(f"    v_mfma_f32_16x16x32_bf16 {vr(PD+4*sc,4)}, {vr(VO+4*sc,4)}, {vr(Pp,4)}, 0")
                gsprk(sprinkle[2])
                a(f"""
    v_pk_add_f32 {vr(T,2)}, {vr(T,2)}, {vr(T+2,2)}
    v_add_f32 v{lsum}, v{T}, v{T+1}
    """)
                allreduce1(lsum, tmp, steps=(8,))
                X = D1
                a(f"""
    v_log_f32 v{wv}, v{lsum}
    v_rcp_f32 v{rl}, v{lsum}
    """)
                for e in range(4): a(f"    v_add_f32_dpp v{X+e}, v{PD+8+e}, v{PD+e} row_ror:8 row_mask:0xf bank_mask:0x3")
                a(f"    v_add_f32 v{wv}, v{wv}, v{mx}")
                for e in range(4): a(f"    v_add_f32_dpp v{X+e}, v{PD+4+e}, v{PD+12+e} row_ror:8 row_mask:0xf bank_mask:0xc")
                a(f"""
    v_add_u32 v{wv}, 0x80, v{wv}
    v_bfi_b32 v{wv}, s70, v{vtag0}, v{wv}
    """)
                for e in range(4): a(f"    v_mul_f32 v{X+e}, v{X+e}, v{rl}")
                for e in range(4): a(f"    v_perm_b32 v{X+e}, v{X+e}, v{wv}, s{PSEL[e]}")
                seg_end()
                a(f"    buffer_store_dwordx4 {vr(X,4)}, v6, s[40:43], s23 offen sc1")
                S.extra(1)
                stamp(5)
                S.blocked -= {"po"}
                S.sprk(sprinkle[3])
            elif name == "po":
                F = T + 8
                def chk(re):
                    a(f"    v_mov_b32 v{T+3}, 0")
                    for k in range(4):
                        if not re: gwait("po", 3 - k)
                        a(f"""
    v_msad_u8 v{T+3}, v{G0+4*k}, s28, v{T+3}
    v_perm_b32 v{F+k}, v{G0+4*k+2}, v{G0+4*k+1}, s68
    v_lshl_or_b32 v{F+k}, v{G0+4*k+3}, 24, v{F+k}
    """)
                    a(f"    v_cmp_ne_u32 vcc, 0, v{T+3}")
                while "po" not in S.pos: S.issue()
                a(f"{P}SEG2:")
                chk(False)
                retry(f"{P}ro", pollo2, chk)
                with guard():
                    stamp(6); S.topup(name, depth + spr3)
                a(f"""
    v_max_f32 v{T+4}, v{F}, v{F+1}
    v_max3_f32 v{T+4}, v{F+2}, v{F+3}, v{T+4}
    """)
                allreduce1(T + 4, T + 5, op="v_max_f32", steps=(8, 4))
                for k in range(4): a(f"    v_sub_f32 v{F+k}, v{F+k}, v{T+4}")
                for k in range(4): a(f"    v_exp_f32 v{F+k}, v{F+k}")
                L_ = T + 6
                for e in range(4): a(f"    v_mul_f32 v{G0+e}, v{G0+e}, v{F}")
                a(f"""
    v_add_f32 v{L_}, v{F}, v{F+1}
    v_add_f32 v{L_+1}, v{F+2}, v{F+3}
    """)
                for t in range(1, 4):
                    for e in range(4): a(f"    v_fmac_f32 v{G0+e}, v{G0+4*t+e}, v{F+t}")
                    if t == 1: a(f"    v_add_f32 v{L_}, v{L_}, v{L_+1}")
                merge2(G0, L_, False)
                a(f"""
    v_rcp_f32 v{L_}, v{L_}
    s_nop 0
    v_mul_f32 v{G0}, v{G0}, v{L_}
    v_cvt_pk_bf16_f32 v{G0}, v{G0}, v{G0}
    """)
                abuild(G0, A3)
                a("    s_nop 1")
                have_o = True
                for k in range(8):
                    if names.index(f"wo{k}") < names.index("po"):
                        u, c = k // 2, k % 2
                        srcc = "0" if u == 0 else vr(PD + 4 * c, 4)
                        a(f"    v_mfma_f32_16x16x32_bf16 {vr(PD+4*c,4)}, {vr(A3+4*u,4)}, {vr(WO+4*k,4)}, {srcc}")
            elif name.startswith("wo"):
                k = int(name[2:])
                std()
                if have_o:
                    u, c = k // 2, k % 2
                    srcc = "0" if u == 0 else vr(PD + 4 * c, 4)
                    a(f"    v_mfma_f32_16x16x32_bf16 {vr(PD+4*c,4)}, {vr(A3+4*u,4)}, {vr(WO+4*k,4)}, {srcc}")
            elif name == "ph":
                def chk(re):
                    a(f"""
    v_mov_b32 v{T+8}, 0
    v_mov_b32 v{T+9}, 0
    """)
                    if not re: gwait("ph")
                    for k in range(8): a(f"    v_msad_u8 v{T+8+(k&1)}, v{HG+k}, s{28+(k&3)}, v{T+8+(k&1)}")
                    a(f"""
    v_or_b32 v{T+8}, v{T+8}, v{T+9}
    v_cmp_ne_u32 vcc, 0, v{T+8}
    """)
                while "ph" not in S.pos: S.issue()
                a(f"{P}SEG3b:")
                chk(False)
                retry(f"{P}rh", pollh, chk)
                with guard():
                    stamp(9); S.topup(name, depth + 1)
                G_, U_ = HG, HG + 4
                merge2(G_, U_, True)
                rbf16(G_, G_); rbf16(U_, U_)
                a(f"""
    v_mul_f32 v{T+4}, {0x80000000 | LOG2E}, v{G_}
    v_exp_f32 v{T+4}, v{T+4}
    s_nop 0
    v_add_f32 v{T+4}, 1.0, v{T+4}
    v_rcp_f32 v{T+4}, v{T+4}
    s_nop 0
    v_mul_f32 v{G_}, v{G_}, v{T+4}
    """)
                rbf16(G_, G_)
                a(f"""
    v_mul_f32 v{G_}, v{G_}, v{U_}
    v_cvt_pk_bf16_f32 v{G_}, v{G_}, v{G_}
    """)
                abuild(G_, A2)
                a("    s_nop 1")
                have_h = True
                for k in range(8):
                    if names.index(f"wd{k}") < names.index("ph"):
                        u, c = k // 2, k % 2
                        srcc = "0" if u == 0 else vr(DG + 4 * c, 4)
                        a(f"    v_mfma_f32_16x16x32_bf16 {vr(DG+4*c,4)}, {vr(A2+4*u,4)}, {ar(WD+4*k,4)}, {srcc}")
            elif name.startswith("wd"):
                k = int(name[2:])
                std()
                if have_h:
                    u, c = k // 2, k % 2
                    srcc = "0" if u == 0 else vr(DG + 4 * c, 4)
                    a(f"    v_mfma_f32_16x16x32_bf16 {vr(DG+4*c,4)}, {vr(A2+4*u,4)}, {ar(WD+4*k,4)}, {srcc}")
            if not t3_done and have_o and names.index(name) >= max(names.index("wo7"), names.index("po")):
                out_tail(PD, T, L_OUT, 69)
                stamp(7)
                t3_done = True
                S.sprk(1)
        if ffn:
            assert names.index("ph") > max(names.index("wo7"), names.index("po"))
            out_tail(DG, T, L_OUT2, 62)
            stamp(10)

    path(True, "H")
    store_stamps()
    a("    s_endpgm")
    a("L_light:")
    path(False, "Lt")
    vA, vB1, vkeep, vX, vO, vF = T + 8, T + 9, T + 10, T + 11, T + 12, T + 13
    RA = G0; RB = G0 + 8; ac = T + 6
    a(f"""
    s_lshl_b32 s65, s33, 2
    s_add_u32 s65, s65, s34
    s_sub_u32 s65, s65, 28            ; c
    s_lshl_b32 s66, s65, 6
    v_lshlrev_b32 v{vO}, 1, v1
    v_add_u32 v{vO}, s66, v{vO}
    buffer_load_ushort v{vX}, v{vO}, s[36:39], 0 offen
    v_lshlrev_b32 v{vA}, 12, v7
    v_lshl_add_u32 v{vA}, v8, 4, v{vA}
    v_cmp_gt_u32 vcc, 48, v1
    v_add_u32 v{vB1}, {8*4096}, v{vA}
    v_lshlrev_b32 v{vF}, 2, v{vG}
    v_cndmask_b32 v{vB1}, v{vA}, v{vB1}, vcc
    v_cndmask_b32 v{vkeep}, 0, 1.0, vcc
    v_lshl_add_u32 v{vF}, v8, 4, v{vF}
    s_lshl_b32 s64, s3, 8
    v_add_u32 v{vF}, s64, v{vF}
    s_lshl_b32 s67, s65, 7
    s_lshl_b32 s64, s3, 16
    s_add_u32 s68, s67, s64
    s_add_u32 s68, s68, {PA}
    s_add_u32 s69, s68, {8*4096}
    s_mul_i32 s64, s3, {14*4096}
    s_add_u32 s67, s67, s64
    s_add_u32 s67, s67, {PB}
    s_mov_b32 s71, {spin_max}
    s_waitcnt vmcnt(0)
    v_lshlrev_b32 v{vX}, 16, v{vX}
R_poll:
    buffer_load_dwordx4 {vr(RA,4)}, v{vA}, s[40:43], s68 offen sc1
    buffer_load_dwordx4 {vr(RA+4,4)}, v{vA}, s[40:43], s69 offen sc1
    buffer_load_dwordx4 {vr(RB,4)}, v{vA}, s[40:43], s67 offen sc1
    buffer_load_dwordx4 {vr(RB+4,4)}, v{vB1}, s[40:43], s67 offen sc1
    v_mov_b32 v{ac}, 0
    v_mov_b32 v{ac+1}, 0
    """)
    for k in range(4):
        a(f"    s_waitcnt vmcnt({3-k})")
        for e in range(4): a(f"    v_msad_u8 v{ac+(e&1)}, v{RA+4*k+e}, s{28+e}, v{ac+(e&1)}")
    a(f"""
    v_or_b32 v{ac}, v{ac}, v{ac+1}
    v_cmp_ne_u32 vcc, 0, v{ac}
    s_sub_u32 s71, s71, 1
    s_cmp_eq_u32 s71, 0
    s_cbranch_scc1 R_ok
    s_cbranch_vccnz R_poll
R_ok:
    """)
    stamp(8)
    a("LtSEG3:")
    for e in range(4): a(f"    v_add_f32 v{RA+e}, v{RA+e}, v{RA+4+e}")
    for e in range(4): a(f"    v_fmac_f32 v{RB+e}, v{RB+4+e}, v{vkeep}")
    a(f"""
    v_permlane32_swap_b32 v{RA}, v{RA+2}
    v_permlane32_swap_b32 v{RA+1}, v{RA+3}
    v_permlane32_swap_b32 v{RB}, v{RB+2}
    v_permlane32_swap_b32 v{RB+1}, v{RB+3}
    v_add_f32 v{RA}, v{RA}, v{RA+2}
    v_add_f32 v{RA+1}, v{RA+1}, v{RA+3}
    v_add_f32 v{RB}, v{RB}, v{RB+2}
    v_add_f32 v{RB+1}, v{RB+1}, v{RB+3}
    s_nop 0
    v_permlane16_swap_b32 v{RA}, v{RA+1}
    v_permlane16_swap_b32 v{RB}, v{RB+1}
    v_add_f32 v{RA}, v{RA}, v{RA+1}
    v_add_f32 v{RB}, v{RB}, v{RB+1}
    s_nop 0
    v_add_f32_dpp v{RA}, v{RA}, v{RA} row_ror:8 row_mask:0xf bank_mask:0xf
    v_add_f32_dpp v{RB}, v{RB}, v{RB} row_ror:8 row_mask:0xf bank_mask:0xf
    ds_write_b32 v{vF}, v{RA} offset:{L_FIN}
    ds_write_b32 v{vF}, v{RB} offset:{L_FIN+128}
    s_waitcnt lgkmcnt(0)
    """)
    barrier()
    a(f"""
    ds_read2st64_b32 {vr(RA,2)}, v{vtid4} offset0:{L_FIN//256} offset1:{L_FIN//256+1}
    ds_read2st64_b32 {vr(RA+2,2)}, v{vtid4} offset0:{L_FIN//256+2} offset1:{L_FIN//256+3}
    s_waitcnt lgkmcnt(0)
    v_add_f32 v{RA}, v{RA}, v{RA+1}
    v_add_f32 v{RA+2}, v{RA+2}, v{RA+3}
    v_add_f32 v{RA}, v{RA}, v{RA+2}
    """)
    rbf16(RA, RA)
    a(f"""
    v_mov_b32 v{RB}, v{RA}
    v_add_f32 v{RA+1}, v{RA}, v{vX}
    s_nop 0
    v_permlane32_swap_b32 v{RA}, v{RB}
    """)
    rbf16(RA + 1, RA + 1)
    a(f"""
    v_add_f32 v{RA}, v{RA+1}, v{RB}
    v_cvt_pk_bf16_f32 v{RA}, v{RA}, v{RA}
    """)
    if warm: a("    s_cbranch_execz LtW_ret")
    a(f"""
    s_cmp_lg_u32 s3, 0
    s_cbranch_scc1 R_done
    s_mov_b32 exec_hi, 0
    buffer_store_short v{RA}, v{vO}, s[16:19], 0 offen
    s_cmp_lg_u32 s65, 0
    s_cbranch_scc1 R_done
    v_mov_b32 v{RB}, s35
    v_mov_b32 v{RB+1}, 0
    s_mov_b64 exec, 1
    buffer_store_dword v{RB}, v{RB+1}, s[40:43], 0 offen offset:{EPOCH} sc1
R_done:
    s_mov_b64 exec, -1
    """)
    stamp(9)
    store_stamps()
    a("""
L_end:
    s_endpgm
L_code_end:
    """)
    print(out, "vgprs", nv, "agprs", nagpr, "lds", LDS_BYTES)
    open(out, "w").write(wrap(a.text(), 256, 256, LDS_BYTES, vgpr=accum + nagpr, accum=accum))

if __name__ == "__main__":
    gen("k8.s", stamps=True)
    gen("k8_ns.s", stamps=False)
```

```python
from gen8 import *
gen("o_a.s", stamps=False, pq=23, lq=23, po=41, ph=46, D=5, Dl=5, lo_sleep=56)
gen("o_b.s", stamps=False, pq=23, lq=23, po=42, ph=47, D=5, Dl=5, lo_sleep=56, dmap=[(26, 6)], Dt=7)
gen("o_c.s", stamps=False, pq=25, lq=24, po=43, ph=48, D=5, Dl=5, lo_sleep=64)
gen("o_d.s", stamps=False, pq=23, lq=23, po=41, ph=46, D=5, Dl=5, lo_sleep=56, warm=False)
gen("o_e.s", stamps=False, pq=23, lq=23, po=41, ph=46, D=5, Dl=5, lo_sleep=56, nt=False)
```

```python
import sys
from asmgen import *

STAMP_OFF = 128 << 20
NST = 12
EPOCH = 0
QP = 0x1000
OP = 0x40000
GU = 0x180000
PA = 0x200000
PB = 0x240000
WS_SIZE = 256 << 20

L_RED = 0
L_TRASH = 2048
L_Q = 3072
L_S = 5376
L_OUT = 8192
L_OUT2 = 12288
L_FIN = 16384
L_G = 18432
L_V = 26624
LDS_BYTES = L_V + 16384

LOG2E = 0x3FB8AA3B
SCALE = 0x3DB504F3

class R:
    def __init__(self, start): self.n = start
    def a(self, k=1, al=1):
        self.n = (self.n + al - 1) // al * al
        r = self.n; self.n += k
        return r
def vr(b, n): return f"v[{b}:{b+n-1}]"
def ar(b, n): return f"a[{b}:{b+n-1}]"

class Sched:
    def __init__(self, a): self.a = a; self.items = []; self.issued = 0; self.nops = 0; self.pos = {}; self.blocked = set()
    def add(self, name, fn, n=1): self.items.append((name, fn, n))
    def issue(self):
        name, fn, n = self.items[self.issued]
        fn(); self.nops += n; self.pos[name] = self.nops; self.issued += 1
    def can(self): return self.issued < len(self.items) and self.items[self.issued][0] not in self.blocked
    def extra(self, n=1): self.nops += n
    def wait(self, name, sub=0):
        while name not in self.pos:
            assert self.can(), (name, self.items[self.issued][0])
            self.issue()
        cnt = self.nops - self.pos[name] + sub
        assert cnt <= 63
        self.a(f"    s_waitcnt vmcnt({cnt})")
    def index(self, name): return [i for i, it in enumerate(self.items) if it[0] == name][0]
    def topup(self, name, depth):
        i = self.index(name)
        while self.can() and self.issued - (i + 1) < depth: self.issue()
    def sprk(self, n):
        for _ in range(n):
            if self.can(): self.issue()

def gen(out, stamps=True, nt=True, D=5, Dl=5, pq=20, po=37, ph=44, lq=20, lo_sleep=40, lq_sleep=0, spin_max=1 << 20, warm=True,
        k0=2, k1=0, k2=2, Dt=8, sprinkle=(1, 1, 1, 1), spr3=1, dmap=None, warm_extra=3, noretry=False, nogather=False, cnt=False, pure=False, lightmap=False, fuse=True, t3local=True, ostep=None, tlb=0):
    a = Asm()
    NT = " nt" if nt else ""
    def stamp(i):
        if stamps: a(f"    s_memrealtime s[{72+2*i}:{73+2*i}]")
    def store_stamps():
        if not stamps: return
        lab = a.label("nost")
        a(f"""
    s_waitcnt lgkmcnt(0)
    s_cmp_lg_u32 s3, 0
    s_cbranch_scc1 {lab}
    s_mul_i32 s64, s2, {NST*8}
    s_add_u32 s64, s64, {STAMP_OFF}
    v_mov_b32 v20, 0
    s_mov_b64 exec, 1
    """)
        for i in range(NST):
            a(f"""
    v_mov_b32 v22, s{72+2*i}
    v_mov_b32 v23, s{73+2*i}
    buffer_store_dwordx2 v[22:23], v20, s[40:43], s64 offen offset:{8*i}
    s_nop 1
    """)
        a(f"{lab}:")
    def srd(base, lo, size):
        a(f"""
    s_mov_b32 s{base}, s{lo}
    s_mov_b32 s{base+1}, s{lo+1}
    s_mov_b32 s{base+2}, {size}
    s_mov_b32 s{base+3}, 0x20000
    """)
    class guard:
        def __enter__(self):
            self.l = a.label("G"); self.n = len(a.lines)
            if warm: a(f"    s_cbranch_execz {self.l}")
        def __exit__(self, *x):
            if warm:
                if len(a.lines) == self.n + 1: a.lines.pop()
                else: a(f"{self.l}:")
    def barrier():
        with guard(): a("    s_barrier")

    r = R(10)
    (vtagP, vaddP, vOT, vtid4, vPF, vG4, vWQ, vK, vWO, vPO, vQW, vQR, vSW, vSR, vTR, vred, vtag0, vGU, vWD, vPH, vJ, vG) = [r.a() for _ in range(22)]
    XA = r.a(8, 4); XS = r.a(4, 4); XF = r.a(2, 2); T = r.a(28, 4); A = r.a(32, 4); AF = r.a(16, 4)
    D1 = r.a(4, 4); PD = r.a(16, 4); DG = r.a(16, 4); WQ = r.a(32, 4); KK = r.a(16, 4); VO = r.a(16, 4); G0 = r.a(16, 4); HG = r.a(8, 4)
    nv = r.n
    assert nv <= 256, nv
    accum = (nv + 3) // 4 * 4
    GW = 0; WD = 64; nagpr = 96
    QB = A; A3 = A + 16; A2 = A; WO = WQ

    a(f"""
    s_cmp_ge_u32 s2, 256
    s_cbranch_scc1 L_end
    s_load_dwordx16 s[4:19], s[0:1], 0
    s_load_dwordx8 s[20:27], s[0:1], 64
    """)
    if stamps:
        for i in range(1, NST): a(f"    s_mov_b64 s[{72+2*i}:{73+2*i}], 0")
    stamp(0)
    if lightmap:
        LM = """s_sub_u32 s64, s34, 28
    s_lshl_b32 s64, s64, 3
    s_add_u32 s64, s64, 3             ; 8(idx-28)+3
    s_lshr_b32 s96, s34, 3
    s_add_u32 s96, s96, 28            ; 28 + idx>>3
    s_and_b32 s97, s34, 7
    s_cmp_eq_u32 s97, 3
    s_cselect_b32 s67, s96, s34
    s_cmp_ge_u32 s34, 28
    s_cselect_b32 s67, s64, s67
    s_lshr_b32 s68, s67, 4
    s_and_b32 s64, s33, 1
    s_lshl_b32 s64, s64, 1
    s_add_u32 s68, s68, s64           ; rq
    s_and_b32 s67, s67, 15            ; cb"""
    else:
        LM = """s_and_b32 s67, s66, 15           ; cb
    s_lshr_b32 s68, s66, 4           ; rq"""
    a(f"""
    v_lshrrev_b32 v6, 6, v0
    v_and_b32 v1, 63, v0
    s_and_b32 s33, s2, 7            ; xcd
    v_readfirstlane_b32 s3, v6
    s_lshr_b32 s34, s2, 3           ; idx
    s_getpc_b64 s[96:97]
L_pc:
    s_lshl_b32 s64, s34, 2
    s_add_u32 s64, s64, s3
    s_lshl_b32 s64, s64, 7
    s_min_u32 s64, s64, L_code_end - L_pc - 4
    v_mov_b32 v9, s64
    global_load_dword v{vPF}, v9, s[96:97]
    v_lshlrev_b32 v6, 4, v1         ; lane*16
    v_lshrrev_b32 v7, 3, v1          ; l>>3
    v_and_b32 v8, 7, v1              ; l&7
    s_lshr_b32 s65, s33, 1           ; g
    s_and_b32 s66, s33, 1
    s_lshl_b32 s66, s66, 5
    s_add_u32 s66, s66, s34          ; m
    {LM}
    s_lshl_b32 s69, s68, 8
    s_lshl_b32 s64, s3, 6
    s_add_u32 s69, s69, s64          ; R0
    s_lshl_b32 s97, s69, 1
    v_lshlrev_b32 v9, 4, v7
    s_lshl_b32 s64, s69, 13
    s_lshl_b32 s96, s65, 11
    s_add_u32 s64, s64, s96
    s_lshl_b32 s96, s67, 7
    s_add_u32 s64, s64, s96
    v_lshlrev_b32 v{vWQ}, 16, v7
    v_lshl_add_u32 v{vWQ}, v8, 4, v{vWQ}
    v_add_u32 v{vWQ}, s64, v{vWQ}
    s_mul_i32 s60, s33, 28
    s_add_u32 s60, s60, s34
    s_and_b32 s61, s60, 15
    s_lshr_b32 s60, s60, 4
    s_lshl_b32 s62, s61, 6
    s_lshl_b32 s64, s3, 4
    s_add_u32 s62, s62, s64
    s_lshl_b32 s98, s62, 1
    v_lshrrev_b32 v{vG}, 4, v1
    v_and_b32 v{vJ}, 15, v1
    v_lshlrev_b32 v{vPH}, 3, v{vG}
    s_mov_b32 s38, 2048
    s_mov_b32 s39, 0x20000
    s_mov_b32 s46, {8<<20}
    s_mov_b32 s47, 0x20000
    s_mov_b32 s64, 0
    s_waitcnt lgkmcnt(0)
    s_mov_b32 s36, s4
    s_mov_b32 s37, s5
    buffer_load_dwordx4 {vr(XA,4)}, v6, s[36:39], 0 offen
    buffer_load_dwordx4 {vr(XA+4,4)}, v6, s[36:39], 0 offen offset:1024
    buffer_load_dwordx4 {vr(XS,4)}, v9, s[36:39], s97 offen
    buffer_load_dwordx2 {vr(XF,2)}, v{vPH}, s[36:39], s98 offen
    s_load_dword s28, s[26:27], {EPOCH}
    s_mov_b32 s44, s10
    s_mov_b32 s45, s11
    s_barrier
    """)
    for t in range(8):
        a(f"    buffer_load_dwordx4 {vr(WQ+4*t,4)}, v{vWQ}, s[44:47], s64 offen{NT}")
        if t < 7: a(f"    s_add_u32 s64, s64, 8192")
    a(f"""
    v_bfe_u32 v{T}, v0, 1, 2
    v_and_b32 v{T+1}, 1, v0
    v_lshlrev_b32 v{T+1}, 4, v{T+1}
    v_mov_b32 v9, 0xffff
    v_lshlrev_b32 v9, v{T+1}, v9
    v_cmp_eq_u32 vcc, 0, v{T}
    v_cmp_eq_u32 s[96:97], 1, v{T}
    v_cmp_eq_u32 s[98:99], 2, v{T}
    v_cmp_eq_u32 s[100:101], 3, v{T}
    v_cndmask_b32 v2, 0, v9, vcc
    v_cndmask_b32 v3, 0, v9, s[96:97]
    v_cndmask_b32 v4, 0, v9, s[98:99]
    v_cndmask_b32 v5, 0, v9, s[100:101]
    s_lshl_b32 s63, s65, 23
    s_lshl_b32 s96, s66, 14
    s_add_u32 s63, s63, s96
    s_lshl_b32 s96, s3, 12
    s_add_u32 s63, s63, s96
    s_add_u32 s63, s63, {28672*256}
    s_add_u32 s96, s96, {L_V}
    s_mov_b32 m0, s96
    v_lshlrev_b32 v{vK}, 8, v{vJ}
    v_lshl_add_u32 v{vK}, v{vG}, 4, v{vK}
    """)
    srd(48, 6, 32 << 20)
    srd(52, 8, 32 << 20)
    srd(40, 26, WS_SIZE)
    if tlb:
        a(f"""
    s_lshl_b32 s64, s34, 2
    s_add_u32 s64, s64, s3
    s_and_b32 s64, s64, 7
    v_lshlrev_b32 v9, {tlb}, v1
    s_mov_b32 s98, {7<<20}
    s_mov_b32 s99, 0x20000
    s_mov_b64 s[96:97], s[16:17]
    s_cmp_eq_u32 s64, 1
    s_cselect_b64 s[96:97], s[18:19], s[96:97]
    s_cmp_eq_u32 s64, 2
    s_cselect_b64 s[96:97], s[20:21], s[96:97]
    s_cmp_eq_u32 s64, 3
    s_cselect_b64 s[96:97], s[12:13], s[96:97]
    s_cselect_b32 s98, {8<<20}, s98
    s_cmp_eq_u32 s64, 4
    s_cselect_b64 s[96:97], s[26:27], s[96:97]
    s_cselect_b32 s98, {3<<20}, s98
    s_cmp_gt_u32 s64, 4
    s_cbranch_scc1 L_notlb
    buffer_load_dword v{vPF}, v9, s[96:99], 0 offen offset:2048
L_notlb:
    """)

    def allreduce2(x, y, t1, t2):
        for s_ in (8, 4, 2, 1):
            a(f"""
    s_nop 0
    v_add_f32_dpp v{x}, v{x}, v{x} row_ror:{s_} row_mask:0xf bank_mask:0xf
    v_add_f32_dpp v{y}, v{y}, v{y} row_ror:{s_} row_mask:0xf bank_mask:0xf
    """)
        for sw in ("v_permlane16_swap_b32", "v_permlane32_swap_b32"):
            a(f"""
    v_mov_b32 v{t1}, v{x}
    v_mov_b32 v{t2}, v{y}
    s_nop 0
    {sw} v{t1}, v{x}
    {sw} v{t2}, v{y}
    v_add_f32 v{x}, v{x}, v{t1}
    v_add_f32 v{y}, v{y}, v{t2}
    """)
    def allreduce1(x, t1, op="v_add_f32", steps=(8, 4, 2, 1)):
        for s_ in steps:
            a(f"""
    s_nop 1
    {op}_dpp v{x}, v{x}, v{x} row_ror:{s_} row_mask:0xf bank_mask:0xf
    """)
        for sw in ("v_permlane16_swap_b32", "v_permlane32_swap_b32"):
            a(f"""
    v_mov_b32 v{t1}, v{x}
    s_nop 1
    {sw} v{t1}, v{x}
    {op} v{x}, v{x}, v{t1}
    """)
    def rbf16(d, s_):
        a(f"""
    v_cvt_pk_bf16_f32 v{d}, v{s_}, v{s_}
    v_and_b32 v{d}, 0xffff0000, v{d}
    """)
    a(f"""
    v_lshrrev_b32 v{vred}, 2, v1
    v_xor_b32 v{vred}, v{vred}, v1
    v_and_b32 v{vred}, 8, v{vred}
    v_cmp_eq_u32 vcc, 0, v{vred}
    v_lshlrev_b32 v{vred}, 5, v8
    v_bfe_u32 v9, v1, 4, 1
    v_lshl_add_u32 v{vred}, v9, 4, v{vred}
    v_lshrrev_b32 v9, 5, v1
    v_lshl_add_u32 v{vred}, v9, 8, v{vred}
    s_lshl_b32 s64, s3, 9
    v_add_u32 v{vred}, s64, v{vred}
    v_add_u32 v9, {L_TRASH}, v6
    v_cndmask_b32 v{vred}, v9, v{vred}, vcc
    v_lshlrev_b32 v{vtid4}, 2, v0
    v_and_b32 v{vG4}, 3, v1
    v_lshlrev_b32 v{vtagP}, 3, v{vG4}
    s_lshl_b32 s44, s65, 14
    s_add_u32 s44, s44, {QP}
    s_lshl_b32 s45, s68, 12
    s_add_u32 s45, s45, s44
    s_lshl_b32 s96, s67, 8
    s_add_u32 s45, s45, s96
    s_waitcnt lgkmcnt(0)
    s_and_b32 s28, s28, 0x7f
    s_cmp_eq_u32 s28, 127
    s_cselect_b32 s28, 0, s28
    s_add_u32 s35, s28, 1
    s_add_u32 s29, s28, 33
    s_sub_u32 s64, s29, 127
    s_cmp_gt_u32 s29, 127
    s_cselect_b32 s29, s64, s29
    s_add_u32 s30, s28, 65
    s_sub_u32 s64, s30, 127
    s_cmp_gt_u32 s30, 127
    s_cselect_b32 s30, s64, s30
    s_add_u32 s31, s28, 97
    s_sub_u32 s64, s31, 127
    s_cmp_gt_u32 s31, 127
    s_cselect_b32 s31, s64, s31
    s_add_u32 s28, s28, 1
    s_lshl_b32 s32, s29, 8
    s_or_b32 s32, s32, s28
    s_lshl_b32 s64, s30, 16
    s_or_b32 s32, s32, s64
    s_lshl_b32 s64, s31, 24
    s_or_b32 s32, s32, s64
    s_movk_i32 s70, 0xff
    v_bfe_u32 v{vtagP}, s32, v{vtagP}, 8
    v_sub_u32 v{vaddP}, 0x80, v{vtagP}
    """)
    def kv_issue(i):
        if i < 4: a(f"    buffer_load_dwordx4 {vr(KK+4*i,4)}, v{vK}, s[48:51], s63 offen offset:{64*i}{NT}")
        else: a(f"    buffer_load_dwordx4 v6, s[52:55], s63 offen offset:{1024*(i-4)}{NT} lds")
    a(f"    s_waitcnt vmcnt(10)")
    stamp(1)
    for i in range(k0): kv_issue(i)
    for k in range(8):
        a(f"""
    v_lshlrev_b32 v{T+2*k}, 16, v{XA+k}
    v_and_b32 v{T+2*k+1}, 0xffff0000, v{XA+k}
    """)
    a(f"""
    v_readfirstlane_b32 s64, v{T}
    s_nop 1
    """)
    for k in range(16): a(f"    v_subrev_f32 v{T+k}, s64, v{T+k}")
    a(f"""
    v_pk_add_f32 {vr(T+16,2)}, {vr(T,2)}, {vr(T+2,2)}
    v_pk_mul_f32 {vr(T+18,2)}, {vr(T,2)}, {vr(T,2)}
    """)
    for k in range(1, 8):
        a(f"    v_pk_fma_f32 {vr(T+18,2)}, {vr(T+2*k,2)}, {vr(T+2*k,2)}, {vr(T+18,2)}")
        if k >= 2: a(f"    v_pk_add_f32 {vr(T+16,2)}, {vr(T+16,2)}, {vr(T+2*k,2)}")
    S1, S2, t1, t2 = T + 16, T + 18, T + 17, T + 19
    a(f"""
    v_add_f32 v{S1}, v{S1}, v{t1}
    v_add_f32 v{S2}, v{S2}, v{t2}
    s_nop 0
    """)
    allreduce2(S1, S2, t1, t2)
    mean, var, rs, sd = T, T + 1, T + 2, T + 3
    a(f"""
    v_mul_f32 v{S1}, 0x3a800000, v{S1}
    v_mul_f32 v{S2}, 0x3a800000, v{S2}
    v_add_f32 v{mean}, s64, v{S1}
    v_fma_f32 v{var}, -v{S1}, v{S1}, v{S2}
    v_max_f32 v{var}, 0, v{var}
    """)
    rbf16(mean, mean); rbf16(var, var)
    a(f"    v_add_f32 v{var}, 0x3727c5ac, v{var}")
    rbf16(var, var)
    a(f"""
    v_sqrt_f32 v{sd}, v{var}
    s_waitcnt vmcnt({8+k0})
    """)
    for i in range(k0, k0 + k1): kv_issue(i)
    rbf16(sd, sd)
    a(f"    v_rcp_f32 v{rs}, v{sd}")
    Dd = T + 4; Q = T + 16
    def norm(src, dst):
        n = len(src)
        for k in range(n):
            a(f"""
    v_lshlrev_b32 v{Dd+2*k}, 16, v{src[k]}
    v_and_b32 v{Dd+2*k+1}, 0xffff0000, v{src[k]}
    """)
        for k in range(2*n): a(f"    v_sub_f32 v{Dd+k}, v{Dd+k}, v{mean}")
        for k in range(n): a(f"    v_cvt_pk_bf16_f32 v{src[k]}, v{Dd+2*k}, v{Dd+2*k+1}")
        for k in range(n):
            a(f"""
    v_lshlrev_b32 v{Dd+2*k}, 16, v{src[k]}
    v_and_b32 v{Dd+2*k+1}, 0xffff0000, v{src[k]}
    """)
        for k in range(2*n): a(f"    v_mul_f32 v{Q+k}, v{Dd+k}, v{rs}")
        for k in range(2*n): a(f"    v_fma_f32 v{Dd+k}, -v{Q+k}, v{sd}, v{Dd+k}")
        for k in range(2*n): a(f"    v_fmac_f32 v{Q+k}, v{Dd+k}, v{rs}")
        for k in range(2*n): a(f"    v_cvt_pk_bf16_f32 v{Q+k}, v{Q+k}, v{Q+k}")
        for k in range(2*n):
            for m_ in range(4): a(f"    v_and_b32 v{dst+4*k+m_}, v{Q+k}, v{2+m_}")
    norm([XS, XS + 1, XS + 2, XS + 3], A)
    stamp(2)
    for i in range(k0 + k1, k0 + k1 + k2): kv_issue(i)
    norm([XF, XF + 1], AF)
    srd(56, 12, 8 << 20)
    srd(4, 16, 7 << 20)
    srd(8, 18, 7 << 20)
    srd(12, 20, 7 << 20)
    srd(16, 22, 2048)
    a(f"""
    v_bfe_u32 v9, v1, 4, 1
    v_lshlrev_b32 v{vOT}, 5, v{vJ}
    v_lshl_add_u32 v{vOT}, v9, 4, v{vOT}
    s_lshl_b32 s64, s3, 10
    v_add_u32 v{vOT}, s64, v{vOT}
    v_lshlrev_b32 v{vG4}, 4, v{vG4}
    {"s_lshr_b32 s67, s66, 2" if t3local else ""}
    {"s_and_b32 s68, s66, 3" if t3local else ""}
    ; wo voffset
    s_lshl_b32 s64, s65, 10
    s_and_b32 s96, s3, 1
    s_lshl_b32 s96, s96, 9
    s_add_u32 s64, s64, s96
    s_lshr_b32 s96, s67, 2
    s_lshl_b32 s96, s96, 5
    s_add_u32 s64, s64, s96
    s_lshr_b32 s96, s3, 1
    s_lshl_b32 s96, s96, 4
    s_add_u32 s64, s64, s96
    s_and_b32 s96, s67, 3
    s_lshl_b32 s96, s96, 2
    s_add_u32 s64, s64, s96
    s_lshl_b32 s64, s64, 11
    s_lshl_b32 s96, s68, 9
    s_add_u32 s64, s64, s96
    v_lshlrev_b32 v{vWD}, 11, v{vG}
    v_lshl_add_u32 v{vWD}, v{vJ}, 4, v{vWD}
    v_add_u32 v{vWO}, s64, v{vWD}
    v_mul_u32_u24 v{vQR}, 272, v8
    v_lshl_add_u32 v{vQR}, v{vG}, 4, v{vQR}
    v_mul_u32_u24 v{vSW}, 144, v8
    v_lshl_add_u32 v{vSR}, v{vG}, 4, v{vSW}
    v_bfe_u32 v9, v1, 3, 1
    v_lshl_add_u32 v{vSR}, v9, 6, v{vSR}
    v_lshl_add_u32 v{vSW}, v{vG}, 3, v{vSW}
    s_lshl_b32 s96, s3, 5
    v_add_u32 v{vSW}, s96, v{vSW}
    v_bfe_u32 v9, v1, 2, 2
    v_lshl_add_u32 v{vTR}, v{vG}, 3, v9
    v_lshlrev_b32 v{vTR}, 8, v{vTR}
    v_lshrrev_b32 v9, 1, v{vG4}
    s_lshl_b32 s96, s3, 6
    v_add3_u32 v{vTR}, v{vTR}, v9, s96
    v_lshrrev_b32 v{vQW}, 5, v0
    v_and_b32 v9, 31, v0
    v_mul_u32_u24 v{vQW}, 272, v{vQW}
    v_lshl_add_u32 v{vQW}, v9, 3, v{vQW}
    v_lshrrev_b32 v9, 2, v1
    v_lshl_add_u32 v{vPO}, v9, 12, v{vG4}
    v_lshl_add_u32 v{vPH}, v9, 10, v{vG4}
    s_mul_i32 s64, s62, 7168
    s_lshl_b32 s96, s60, 9
    s_add_u32 s64, s64, s96
    v_mul_u32_u24 v{vGU}, {4*7168}, v{vG}
    v_lshl_add_u32 v{vGU}, v{vJ}, 4, v{vGU}
    v_add_u32 v{vGU}, s64, v{vGU}
    s_lshr_b32 s98, s61, 2
    s_lshl_b32 s62, s60, 2
    s_add_u32 s62, s62, s98
    s_and_b32 s69, s61, 3
    s_lshl_b32 s64, s62, 6
    s_lshl_b32 s96, s3, 4
    s_add_u32 s64, s64, s96
    s_lshl_b32 s64, s64, 11
    s_lshl_b32 s96, s69, 9
    s_add_u32 s64, s64, s96
    v_add_u32 v{vWD}, s64, v{vWD}
    s_lshl_b32 s62, s62, 12
    s_lshl_b32 s64, s69, 10
    s_add_u32 s62, s62, s64
    s_add_u32 s62, s62, {PB}
    s_lshl_b32 s60, s60, 15
    s_add_u32 s60, s60, {GU}
    s_lshl_b32 s61, s61, 10
    s_add_u32 s61, s61, s60
    s_lshl_b32 s64, s98, 8
    s_add_u32 s60, s60, s64
    s_lshl_b32 s64, s3, 6
    s_add_u32 s60, s60, s64
    s_lshl_b32 s96, s67, 8
    s_lshl_b32 s97, s3, 10
    s_add_u32 s20, s44, s97
    s_lshl_b32 s23, s65, 18
    s_add_u32 s23, s23, {OP}
    s_add_u32 s22, s23, s96
    s_add_u32 s22, s22, s64
    s_lshl_b32 s96, s66, 12
    s_add_u32 s23, s23, s96
    s_add_u32 s23, s23, s97
    s_lshl_b32 s69, s65, 4
    s_add_u32 s69, s69, s67
    s_lshl_b32 s69, s69, 12
    s_lshl_b32 s96, s68, 10
    s_add_u32 s69, s69, s96
    s_add_u32 s69, s69, {PA}
    s_mov_b32 s24, {SCALE}
    s_mov_b32 s25, {LOG2E}
    v_mov_b32 v{vtag0}, s28
    s_mov_b32 s26, 0x07060500
    s_mov_b32 s27, 0x07060501
    s_mov_b32 s66, 0x07060502
    s_mov_b32 s67, 0x07060503
    s_mov_b32 s68, 0x0c04000c
    """)
    R_ = T + 8
    nk = k0 + k1 + k2
    for t in range(8):
        a(f"    s_waitcnt vmcnt({7 - t + nk})")
        srcc = "0" if t == 0 else vr(D1, 4)
        a(f"    v_mfma_f32_16x16x32_bf16 {vr(D1,4)}, {vr(A+4*t,4)}, {vr(WQ+4*t,4)}, {srcc}")
        while nk < 8 and t < 7 and (7 - t) + nk < Dt:
            kv_issue(nk); nk += 1
    kpre = nk
    a(f"""
    s_nop 7
    ds_write_b128 v{vred}, {vr(D1,4)} offset:{L_RED}
    s_waitcnt lgkmcnt(0)
    s_barrier
    s_cmp_lg_u32 s3, 0
    s_cbranch_scc1 L_nored
    ds_read2st64_b32 {vr(R_,2)}, v{vtid4} offset0:0 offset1:1
    ds_read2st64_b32 {vr(R_+2,2)}, v{vtid4} offset0:2 offset1:3
    ds_read2st64_b32 {vr(R_+4,2)}, v{vtid4} offset0:4 offset1:5
    ds_read2st64_b32 {vr(R_+6,2)}, v{vtid4} offset0:6 offset1:7
    s_waitcnt lgkmcnt(0)
    v_add_f32 v{R_}, v{R_}, v{R_+1}
    v_add_f32 v{R_+2}, v{R_+2}, v{R_+3}
    v_add_f32 v{R_+4}, v{R_+4}, v{R_+5}
    v_add_f32 v{R_+6}, v{R_+6}, v{R_+7}
    v_add_f32 v{R_}, v{R_}, v{R_+2}
    v_add_f32 v{R_+4}, v{R_+4}, v{R_+6}
    v_add_f32 v{R_}, v{R_}, v{R_+4}
    v_add_u32 v{R_}, v{R_}, v{vaddP}
    v_bfi_b32 v{R_}, s70, v{vtagP}, v{R_}
    buffer_store_dword v{R_}, v{vtid4}, s[40:43], s45 offen sc1
L_nored:
    """)
    stamp(3)
    a("""
    s_cmp_ge_u32 s34, 28
    s_cbranch_scc1 L_light
    """)
    PSEL = (26, 27, 66, 67)

    def abuild(H, AA):
        a("    s_nop 1")
        for u in range(4):
            for m_ in range(4):
                a(f"    v_and_b32_dpp v{AA+4*u+m_}, v{H}, v{2+m_} quad_perm:[{u},{u},{u},{u}] row_mask:0xf bank_mask:0xf")
    def merge2(X, Y, full_y):
        if full_y:
            a(f"""
    s_nop 0
    v_permlane32_swap_b32 v{X}, v{X+2}
    v_permlane32_swap_b32 v{X+1}, v{X+3}
    v_permlane32_swap_b32 v{Y}, v{Y+2}
    v_permlane32_swap_b32 v{Y+1}, v{Y+3}
    v_add_f32 v{X}, v{X}, v{X+2}
    v_add_f32 v{X+1}, v{X+1}, v{X+3}
    v_add_f32 v{Y}, v{Y}, v{Y+2}
    v_add_f32 v{Y+1}, v{Y+1}, v{Y+3}
    s_nop 0
    v_permlane16_swap_b32 v{X}, v{X+1}
    v_permlane16_swap_b32 v{Y}, v{Y+1}
    v_add_f32 v{X}, v{X}, v{X+1}
    v_add_f32 v{Y}, v{Y}, v{Y+1}
    """)
        else:
            a(f"""
    v_mov_b32 v{Y+1}, v{Y}
    s_nop 0
    v_permlane32_swap_b32 v{X}, v{X+2}
    v_permlane32_swap_b32 v{X+1}, v{X+3}
    v_permlane32_swap_b32 v{Y+1}, v{Y}
    v_add_f32 v{X}, v{X}, v{X+2}
    v_add_f32 v{X+1}, v{X+1}, v{X+3}
    v_add_f32 v{Y}, v{Y}, v{Y+1}
    s_nop 0
    v_mov_b32 v{Y+1}, v{Y}
    v_permlane16_swap_b32 v{X}, v{X+1}
    s_nop 0
    v_permlane16_swap_b32 v{Y+1}, v{Y}
    v_add_f32 v{X}, v{X}, v{X+1}
    v_add_f32 v{Y}, v{Y}, v{Y+1}
    """)
        for s_ in (8, 4):
            a(f"""
    s_nop 0
    v_add_f32_dpp v{X}, v{X}, v{X} row_ror:{s_} row_mask:0xf bank_mask:0xf
    v_add_f32_dpp v{Y}, v{Y}, v{Y} row_ror:{s_} row_mask:0xf bank_mask:0xf
    """)

    def path(ffn, P):
        S = Sched(a)
        def seg_end():
            if warm: a(f"    s_cbranch_execz {P}W_ret")
        def gsprk(n):
            with guard(): S.sprk(n)
        def gwait(name, sub=0):
            with guard(): S.wait(name, sub)
        def out_tail(Dx, Tt, lds, out_off_s):
            a(f"""
    s_nop 6
    ds_write_b128 v{vOT}, {vr(Dx,4)} offset:{lds}
    ds_write_b128 v{vOT}, {vr(Dx+4,4)} offset:{lds+512}
    s_waitcnt lgkmcnt(0)
    """)
            barrier()
            a(f"""
    ds_read2st64_b32 {vr(Tt+2,2)}, v{vtid4} offset0:{lds//256} offset1:{lds//256+4}
    ds_read2st64_b32 {vr(Tt+4,2)}, v{vtid4} offset0:{lds//256+8} offset1:{lds//256+12}
    s_waitcnt lgkmcnt(0)
    v_add_f32 v{Tt+2}, v{Tt+2}, v{Tt+3}
    v_add_f32 v{Tt+4}, v{Tt+4}, v{Tt+5}
    v_add_f32 v{Tt+2}, v{Tt+2}, v{Tt+4}
    v_add_u32 v{Tt+2}, v{Tt+2}, v{vaddP}
    v_bfi_b32 v{Tt+2}, s70, v{vtagP}, v{Tt+2}
    """)
            seg_end()
            a(f"    buffer_store_dword v{Tt+2}, v{vtid4}, s[40:43], s{out_off_s} offen sc1")
            S.extra(1)
        for t in range(8):
            S.items.append((f"wq{t}", None, 1)); S.nops += 1; S.pos[f"wq{t}"] = S.nops; S.issued += 1
        base = []
        for i in range(8): base.append((f"kv{i}", (lambda i=i: kv_issue(i)), 1))
        def mk_gu(i):
            u, mat, c = i // 4, (i // 2) % 2, i % 2
            def f():
                so = "0"
                if u: a(f"    s_movk_i32 s99, {u*7168}"); so = "s99"
                a(f"    buffer_load_dwordx4 {ar(GW+4*i,4)}, v{vGU}, s[{4+4*mat}:{7+4*mat}], {so} offen offset:{256*c}{NT}")
            return f
        def mk_wo(k):
            u, c = k // 2, k % 2
            def f():
                so = "0"
                if u: a(f"    s_mov_b32 s99, {u*0x40000}"); so = "s99"
                a(f"    buffer_load_dwordx4 {vr(WO+4*k,4)}, v{vWO}, s[56:59], {so} offen offset:{c*256}{NT}")
            return f
        def mk_wd(k):
            u, c = k // 2, k % 2
            def f():
                so = "0"
                if u: a(f"    s_movk_i32 s99, {u*8192}"); so = "s99"
                a(f"    buffer_load_dwordx4 {ar(WD+4*k,4)}, v{vWD}, s[12:15], {so} offen offset:{c*256}{NT}")
            return f
        def pollq():
            if not ffn and lq_sleep: a(f"    s_sleep {lq_sleep}")
            pollq2()
        def pollq2():
            if nogather:
                for k in range(4): a(f"    buffer_load_dwordx4 {vr(G0+4*k,4)}, v6, s[36:39], 0 offen")
                return
            a(f"    buffer_load_dwordx4 {vr(G0,4)}, v6, s[40:43], s20 offen sc1")
            for k in range(1, 4):
                a(f"    s_add_u32 s99, s20, {4096*k}")
                a(f"    buffer_load_dwordx4 {vr(G0+4*k,4)}, v6, s[40:43], s99 offen sc1")
        def pollo():
            if not ffn and lo_sleep: a(f"    s_waitcnt vmcnt(0)\n    s_sleep {lo_sleep}")
            pollo2()
        def pollo2():
            if nogather:
                for k in range(4): a(f"    buffer_load_dwordx4 {vr(G0+4*k,4)}, v6, s[36:39], 0 offen")
                return
            a(f"    buffer_load_dwordx4 {vr(G0,4)}, v{vPO}, s[40:43], s22 offen sc1")
            for k in range(1, 4):
                a(f"    s_add_u32 s99, s22, {0x10000*k}")
                a(f"    buffer_load_dwordx4 {vr(G0+4*k,4)}, v{vPO}, s[40:43], s99 offen sc1")
        def pollh():
            if nogather:
                for k in range(2): a(f"    buffer_load_dwordx4 {vr(HG+4*k,4)}, v6, s[36:39], 0 offen")
                return
            a(f"""
    buffer_load_dwordx4 {vr(HG,4)}, v{vPH}, s[40:43], s60 offen sc1
    s_add_u32 s99, s60, 16384
    buffer_load_dwordx4 {vr(HG+4,4)}, v{vPH}, s[40:43], s99 offen sc1
    """)
        if ffn:
            for i in range(16): base.append((f"gu{i}", mk_gu(i), 1))
        for k in range(8): base.append((f"wo{k}", mk_wo(k), 1))
        if ffn:
            for k in range(8): base.append((f"wd{k}", mk_wd(k), 1))
        Pl = [] if pure else [(pq, ("pq", pollq, 4)), (po, ("po", pollo, 4)), (ph, ("ph", pollh, 2))] if ffn else [(lq, ("pq", pollq, 4)), (99, ("po", pollo, 4))]
        for i, it in enumerate(base):
            for p, pit in Pl:
                if p == i + 8: S.add(*pit)
            S.add(*it)
        for p, pit in Pl:
            if p >= len(base) + 8: S.add(*pit)
        for i in range(kpre):
            name = S.items[S.issued][0]; assert name == f"kv{i}"
            S.nops += 1; S.pos[name] = S.nops; S.issued += 1
        names = [it[0] for it in S.items]
        S.blocked |= {"po", "ph"}
        def retry(lab, fn, check):
            if noretry: return
            if cnt:
                bit = {"rq": 100, "ro": 1000, "rh": 10000}[lab[-2:]]
                a(f"""
    s_nop 1
    s_cbranch_vccz {lab}_c
    s_add_u32 s94, s94, {bit}
    s_addc_u32 s95, s95, 0
{lab}_c:
    """)
            a(f"""
    s_nop 1
    s_cbranch_vccz {lab}_ok
    s_mov_b32 s71, {spin_max}
{lab}:
    """)
            fn()
            a("    s_waitcnt vmcnt(0)")
            check(True)
            a(f"""
    s_sub_u32 s71, s71, 1
    s_cmp_eq_u32 s71, 0
    s_cbranch_scc1 {lab}_ok
    s_cbranch_vccnz {lab}
{lab}_ok:
    """)
        if pure:
            for name in names:
                if name.startswith("wq"): continue
                S.wait(name); S.topup(name, D if ffn else Dl)
                if name == "kv7": stamp(4)
                if name == "gu7": stamp(5)
                if name == "gu15": stamp(8)
                if name == "wo7": stamp(7)
                if name == "wd7": stamp(10)
            if not ffn:
                store_stamps(); a("    s_endpgm\nLtW_ret:")
            return
        S.blocked.add("pq"); S.sprk(warm_extra); S.blocked.discard("pq")
        if warm:
            a(f"""
    s_mov_b64 exec, 0
    s_cmp_eq_u32 s3, 0
    s_cbranch_scc1 {P}SEG0
    s_cmp_eq_u32 s3, 1
    s_cbranch_scc1 {P}SEG1
    s_cmp_eq_u32 s3, 2
    s_cbranch_scc1 {P}SEG2
    s_branch {P}SEG3
{P}W_ret:
    s_mov_b64 exec, -1
    """)
        if cnt: a('    s_waitcnt lgkmcnt(0)\n    s_mov_b64 s[94:95], s[72:73]')
        else: stamp(11)
        t3_done = False; have_o = False; have_h = False
        DD = D if ffn else Dl
        for name in names:
            depth = DD
            if dmap and ffn:
                for k_, v_ in dmap:
                    if names.index(name) >= k_: depth = v_
            def std():
                with guard():
                    S.wait(name); S.topup(name, depth)
            if name.startswith("wq"):
                pass
            elif name.startswith("kv"):
                std()
                if name == "kv7":
                    a("    s_barrier")
                    for s_ in range(2):
                        for c in range(2):
                            for h in range(2):
                                a(f"    ds_read_b64_tr_b16 {vr(VO+(s_*2+c)*4+2*h,2)}, v{vTR} offset:{L_V + s_*8192 + h*1024 + c*32}")
            elif name.startswith("gu"):
                i = int(name[2:]); u, dd = i // 4, i % 4
                with guard(): S.wait(name)
                srcc = "0" if u == 0 else vr(DG + 4 * dd, 4)
                a(f"    v_mfma_f32_16x16x32_bf16 {vr(DG+4*dd,4)}, {vr(AF+4*u,4)}, {ar(GW+4*i,4)}, {srcc}")
                with guard(): S.topup(name, depth)
                if i == 15:
                    a(f"""
    s_nop 4
{P}SEG3:
    ds_write_b128 v{vOT}, {vr(DG,4)} offset:{L_G}
    ds_write_b128 v{vOT}, {vr(DG+4,4)} offset:{L_G+512}
    ds_write_b128 v{vOT}, {vr(DG+8,4)} offset:{L_G+4096}
    ds_write_b128 v{vOT}, {vr(DG+12,4)} offset:{L_G+4096+512}
    s_waitcnt lgkmcnt(0)
    """)
                    barrier()
                    o = L_G // 256
                    a(f"""
    ds_read2st64_b32 {vr(T,2)}, v{vtid4} offset0:{o} offset1:{o+4}
    ds_read2st64_b32 {vr(T+2,2)}, v{vtid4} offset0:{o+8} offset1:{o+12}
    ds_read2st64_b32 {vr(T+4,2)}, v{vtid4} offset0:{o+16} offset1:{o+20}
    ds_read2st64_b32 {vr(T+6,2)}, v{vtid4} offset0:{o+24} offset1:{o+28}
    s_add_u32 s99, s61, 16384
    s_waitcnt lgkmcnt(0)
    v_add_f32 v{T}, v{T}, v{T+1}
    v_add_f32 v{T+2}, v{T+2}, v{T+3}
    v_add_f32 v{T+4}, v{T+4}, v{T+5}
    v_add_f32 v{T+6}, v{T+6}, v{T+7}
    v_add_f32 v{T}, v{T}, v{T+2}
    v_add_f32 v{T+4}, v{T+4}, v{T+6}
    v_add_u32 v{T}, v{T}, v{vaddP}
    v_add_u32 v{T+4}, v{T+4}, v{vaddP}
    v_bfi_b32 v{T}, s70, v{vtagP}, v{T}
    v_bfi_b32 v{T+4}, s70, v{vtagP}, v{T+4}
    """)
                    if warm: a(f"    s_cbranch_execz {P}SEG3b")
                    a(f"""
    buffer_store_dword v{T}, v{vtid4}, s[40:43], s61 offen sc1
    buffer_store_dword v{T+4}, v{vtid4}, s[40:43], s99 offen sc1
    """)
                    S.extra(2)
                    stamp(8)
                    S.blocked -= {"ph"}
                    S.sprk(1)
            elif name == "pq":
                acc = T
                def chk(re):
                    a(f"""
    v_mov_b32 v{acc}, 0
    v_mov_b32 v{acc+1}, 0
    """)
                    for k in range(4):
                        if not re: gwait("pq", 3 - k)
                        for e in range(4): a(f"    v_msad_u8 v{acc+(e&1)}, v{G0+4*k+e}, s{28+e}, v{acc+(e&1)}")
                    a(f"""
    v_or_b32 v{acc}, v{acc}, v{acc+1}
    v_cmp_ne_u32 vcc, 0, v{acc}
    """)
                while "pq" not in S.pos: S.issue()
                a(f"{P}SEG0:")
                chk(False)
                retry(f"{P}rq", pollq2, chk)
                with guard(): stamp(4)
                QS = T + 4
                a(f"""
    v_pk_add_f32 {vr(QS,2)}, {vr(G0,2)}, {vr(G0+4,2)}
    v_pk_add_f32 {vr(QS+2,2)}, {vr(G0+2,2)}, {vr(G0+6,2)}
    v_pk_add_f32 {vr(QS+4,2)}, {vr(G0+8,2)}, {vr(G0+12,2)}
    v_pk_add_f32 {vr(QS+6,2)}, {vr(G0+10,2)}, {vr(G0+14,2)}
    v_pk_add_f32 {vr(QS,2)}, {vr(QS,2)}, {vr(QS+4,2)}
    v_pk_add_f32 {vr(QS+2,2)}, {vr(QS+2,2)}, {vr(QS+6,2)}
    v_cvt_pk_bf16_f32 v{QS}, v{QS}, v{QS+1}
    v_cvt_pk_bf16_f32 v{QS+1}, v{QS+2}, v{QS+3}
    ds_write_b64 v{vQW}, {vr(QS,2)} offset:{L_Q}
    """)
                with guard(): S.topup(name, depth)
                a("    s_waitcnt lgkmcnt(0)")
                barrier()
                a(f"""
    ds_read_b128 {vr(QB,4)}, v{vQR} offset:{L_Q}
    ds_read_b128 {vr(QB+4,4)}, v{vQR} offset:{L_Q+64}
    ds_read_b128 {vr(QB+8,4)}, v{vQR} offset:{L_Q+128}
    ds_read_b128 {vr(QB+12,4)}, v{vQR} offset:{L_Q+192}
    """)
                gsprk(sprinkle[0])
                for t in range(4):
                    srcc = "0" if t == 0 else vr(D1, 4)
                    a(f"    s_waitcnt lgkmcnt({3-t})")
                    a(f"    v_mfma_f32_16x16x32_bf16 {vr(D1,4)}, {vr(KK+4*t,4)}, {vr(QB+4*t,4)}, {srcc}")
                Sx = T + 4
                a(f"""
    s_nop 7
    v_cvt_pk_bf16_f32 v{T}, v{D1}, v{D1+1}
    v_cvt_pk_bf16_f32 v{T+1}, v{D1+2}, v{D1+3}
    v_lshlrev_b32 v{Sx}, 16, v{T}
    v_and_b32 v{Sx+1}, 0xffff0000, v{T}
    v_lshlrev_b32 v{Sx+2}, 16, v{T+1}
    v_and_b32 v{Sx+3}, 0xffff0000, v{T+1}
    v_mul_f32 v{Sx}, s24, v{Sx}
    v_mul_f32 v{Sx+1}, s24, v{Sx+1}
    v_mul_f32 v{Sx+2}, s24, v{Sx+2}
    v_mul_f32 v{Sx+3}, s24, v{Sx+3}
    v_cvt_pk_bf16_f32 v{T}, v{Sx}, v{Sx+1}
    v_cvt_pk_bf16_f32 v{T+1}, v{Sx+2}, v{Sx+3}
    ds_write_b64 v{vSW}, {vr(T,2)} offset:{L_S}
    s_waitcnt lgkmcnt(0)
    """)
                seg_end()
                mx, tmp, lsum, wv, rl = T + 12, T + 13, T + 14, T + 15, T + 16
                Pp = T + 20
                a(f"""
    s_barrier
{P}SEG1:
    ds_read_b128 {vr(T,4)}, v{vSR} offset:{L_S}
    """)
                gsprk(sprinkle[1])
                a("    s_waitcnt lgkmcnt(0)")
                for k in range(4):
                    a(f"""
    v_lshlrev_b32 v{Sx+2*k}, 16, v{T+k}
    v_and_b32 v{Sx+2*k+1}, 0xffff0000, v{T+k}
    """)
                a(f"""
    v_max3_f32 v{mx}, v{Sx}, v{Sx+1}, v{Sx+2}
    v_max3_f32 v{tmp}, v{Sx+3}, v{Sx+4}, v{Sx+5}
    v_max3_f32 v{mx}, v{Sx+6}, v{Sx+7}, v{mx}
    v_max_f32 v{mx}, v{mx}, v{tmp}
    """)
                allreduce1(mx, tmp, op="v_max_f32", steps=(8,))
                a(f"    v_mul_f32 v{mx}, s25, v{mx}")
                for k in range(8): a(f"    v_fma_f32 v{Sx+k}, v{Sx+k}, s25, -v{mx}")
                for k in range(8): a(f"    v_exp_f32 v{Sx+k}, v{Sx+k}")
                for k in range(4): a(f"    v_cvt_pk_bf16_f32 v{Pp+k}, v{Sx+2*k}, v{Sx+2*k+1}")
                a(f"""
    v_pk_add_f32 {vr(T,2)}, {vr(Sx,2)}, {vr(Sx+2,2)}
    v_pk_add_f32 {vr(T+2,2)}, {vr(Sx+4,2)}, {vr(Sx+6,2)}
    """)
                for sc in (0, 2, 1, 3):
                    a(f"    v_mfma_f32_16x16x32_bf16 {vr(PD+4*sc,4)}, {vr(VO+4*sc,4)}, {vr(Pp,4)}, 0")
                gsprk(sprinkle[2])
                a(f"""
    v_pk_add_f32 {vr(T,2)}, {vr(T,2)}, {vr(T+2,2)}
    v_add_f32 v{lsum}, v{T}, v{T+1}
    """)
                allreduce1(lsum, tmp, steps=(8,))
                X = D1
                a(f"""
    v_log_f32 v{wv}, v{lsum}
    v_rcp_f32 v{rl}, v{lsum}
    """)
                for e in range(4): a(f"    v_add_f32_dpp v{X+e}, v{PD+8+e}, v{PD+e} row_ror:8 row_mask:0xf bank_mask:0x3")
                a(f"    v_add_f32 v{wv}, v{wv}, v{mx}")
                for e in range(4): a(f"    v_add_f32_dpp v{X+e}, v{PD+4+e}, v{PD+12+e} row_ror:8 row_mask:0xf bank_mask:0xc")
                a(f"""
    v_add_u32 v{wv}, 0x80, v{wv}
    v_bfi_b32 v{wv}, s70, v{vtag0}, v{wv}
    """)
                for e in range(4): a(f"    v_mul_f32 v{X+e}, v{X+e}, v{rl}")
                for e in range(4): a(f"    v_perm_b32 v{X+e}, v{X+e}, v{wv}, s{PSEL[e]}")
                seg_end()
                a(f"    buffer_store_dwordx4 {vr(X,4)}, v6, s[40:43], s23 offen sc1")
                S.extra(1)
                stamp(5)
                S.blocked -= {"po"}
                S.sprk(sprinkle[3])
            elif name == "po":
                F = T + 8
                def chk(re):
                    a(f"    v_mov_b32 v{T+3}, 0")
                    for k in range(4):
                        if not re: gwait("po", 3 - k)
                        a(f"""
    v_msad_u8 v{T+3}, v{G0+4*k}, s28, v{T+3}
    v_perm_b32 v{F+k}, v{G0+4*k+2}, v{G0+4*k+1}, s68
    v_lshl_or_b32 v{F+k}, v{G0+4*k+3}, 24, v{F+k}
    """)
                    a(f"    v_cmp_ne_u32 vcc, 0, v{T+3}")
                while "po" not in S.pos: S.issue()
                a(f"{P}SEG2:")
                chk(False)
                retry(f"{P}ro", pollo2, chk)
                with guard():
                    stamp(6); S.topup(name, depth + spr3)
                a(f"""
    v_max_f32 v{T+4}, v{F}, v{F+1}
    v_max3_f32 v{T+4}, v{F+2}, v{F+3}, v{T+4}
    """)
                allreduce1(T + 4, T + 5, op="v_max_f32", steps=(8, 4))
                for k in range(4): a(f"    v_sub_f32 v{F+k}, v{F+k}, v{T+4}")
                for k in range(4): a(f"    v_exp_f32 v{F+k}, v{F+k}")
                L_ = T + 6
                for e in range(4): a(f"    v_mul_f32 v{G0+e}, v{G0+e}, v{F}")
                a(f"""
    v_add_f32 v{L_}, v{F}, v{F+1}
    v_add_f32 v{L_+1}, v{F+2}, v{F+3}
    """)
                for t in range(1, 4):
                    for e in range(4): a(f"    v_fmac_f32 v{G0+e}, v{G0+4*t+e}, v{F+t}")
                    if t == 1: a(f"    v_add_f32 v{L_}, v{L_}, v{L_+1}")
                merge2(G0, L_, False)
                a(f"""
    v_rcp_f32 v{L_}, v{L_}
    s_nop 0
    v_mul_f32 v{G0}, v{G0}, v{L_}
    v_cvt_pk_bf16_f32 v{G0}, v{G0}, v{G0}
    """)
                abuild(G0, A3)
                a("    s_nop 1")
                have_o = True
                for k in range(8):
                    if names.index(f"wo{k}") < names.index("po"):
                        u, c = k // 2, k % 2
                        srcc = "0" if u == 0 else vr(PD + 4 * c, 4)
                        a(f"    v_mfma_f32_16x16x32_bf16 {vr(PD+4*c,4)}, {vr(A3+4*u,4)}, {vr(WO+4*k,4)}, {srcc}")
            elif name.startswith("wo"):
                k = int(name[2:])
                std()
                if have_o:
                    u, c = k // 2, k % 2
                    srcc = "0" if u == 0 else vr(PD + 4 * c, 4)
                    a(f"    v_mfma_f32_16x16x32_bf16 {vr(PD+4*c,4)}, {vr(A3+4*u,4)}, {vr(WO+4*k,4)}, {srcc}")
            elif name == "ph":
                def chk(re):
                    a(f"""
    v_mov_b32 v{T+8}, 0
    v_mov_b32 v{T+9}, 0
    """)
                    if not re: gwait("ph")
                    for k in range(8): a(f"    v_msad_u8 v{T+8+(k&1)}, v{HG+k}, s{28+(k&3)}, v{T+8+(k&1)}")
                    a(f"""
    v_or_b32 v{T+8}, v{T+8}, v{T+9}
    v_cmp_ne_u32 vcc, 0, v{T+8}
    """)
                while "ph" not in S.pos: S.issue()
                a(f"{P}SEG3b:")
                chk(False)
                retry(f"{P}rh", pollh, chk)
                with guard():
                    stamp(9); S.topup(name, depth + 1)
                G_, U_ = HG, HG + 4
                merge2(G_, U_, True)
                rbf16(G_, G_); rbf16(U_, U_)
                a(f"""
    v_mul_f32 v{T+4}, {0x80000000 | LOG2E}, v{G_}
    v_exp_f32 v{T+4}, v{T+4}
    s_nop 0
    v_add_f32 v{T+4}, 1.0, v{T+4}
    v_rcp_f32 v{T+4}, v{T+4}
    s_nop 0
    v_mul_f32 v{G_}, v{G_}, v{T+4}
    """)
                rbf16(G_, G_)
                a(f"""
    v_mul_f32 v{G_}, v{G_}, v{U_}
    v_cvt_pk_bf16_f32 v{G_}, v{G_}, v{G_}
    """)
                abuild(G_, A2)
                a("    s_nop 1")
                have_h = True
                for k in range(8):
                    if names.index(f"wd{k}") < names.index("ph"):
                        u, c = k // 2, k % 2
                        srcc = "0" if u == 0 else vr(DG + 4 * c, 4)
                        a(f"    v_mfma_f32_16x16x32_bf16 {vr(DG+4*c,4)}, {vr(A2+4*u,4)}, {ar(WD+4*k,4)}, {srcc}")
            elif name.startswith("wd"):
                k = int(name[2:])
                std()
                if have_h:
                    u, c = k // 2, k % 2
                    srcc = "0" if u == 0 else vr(DG + 4 * c, 4)
                    a(f"    v_mfma_f32_16x16x32_bf16 {vr(DG+4*c,4)}, {vr(A2+4*u,4)}, {ar(WD+4*k,4)}, {srcc}")
            if not t3_done and have_o and names.index(name) >= max(names.index("wo7"), names.index("po")):
                if fuse and ffn:
                    a(f"""
    s_nop 6
    ds_write_b128 v{vOT}, {vr(PD,4)} offset:{L_OUT}
    ds_write_b128 v{vOT}, {vr(PD+4,4)} offset:{L_OUT+512}
    """)
                    seg_end()
                else:
                    out_tail(PD, T, L_OUT, 69)
                stamp(7)
                t3_done = True
                S.sprk(1)
        if ffn:
            assert names.index("ph") > max(names.index("wo7"), names.index("po"))
            if fuse:
                o1, o2 = L_OUT // 256, L_OUT2 // 256
                a(f"""
    s_nop 6
    ds_write_b128 v{vOT}, {vr(DG,4)} offset:{L_OUT2}
    ds_write_b128 v{vOT}, {vr(DG+4,4)} offset:{L_OUT2+512}
    s_waitcnt lgkmcnt(0)
    """)
                barrier()
                a(f"""
    ds_read2st64_b32 {vr(T,2)}, v{vtid4} offset0:{o2} offset1:{o2+4}
    ds_read2st64_b32 {vr(T+2,2)}, v{vtid4} offset0:{o2+8} offset1:{o2+12}
    ds_read2st64_b32 {vr(T+4,2)}, v{vtid4} offset0:{o1} offset1:{o1+4}
    ds_read2st64_b32 {vr(T+6,2)}, v{vtid4} offset0:{o1+8} offset1:{o1+12}
    s_waitcnt lgkmcnt(2)
    v_add_f32 v{T}, v{T}, v{T+1}
    v_add_f32 v{T+2}, v{T+2}, v{T+3}
    v_add_f32 v{T}, v{T}, v{T+2}
    v_add_u32 v{T}, v{T}, v{vaddP}
    v_bfi_b32 v{T}, s70, v{vtagP}, v{T}
    """)
                with guard(): a(f"    buffer_store_dword v{T}, v{vtid4}, s[40:43], s62 offen sc1")
                a(f"""
    s_waitcnt lgkmcnt(0)
    v_add_f32 v{T+4}, v{T+4}, v{T+5}
    v_add_f32 v{T+6}, v{T+6}, v{T+7}
    v_add_f32 v{T+4}, v{T+4}, v{T+6}
    v_add_u32 v{T+4}, v{T+4}, v{vaddP}
    v_bfi_b32 v{T+4}, s70, v{vtagP}, v{T+4}
    """)
                seg_end()
                a(f"    buffer_store_dword v{T+4}, v{vtid4}, s[40:43], s69 offen sc1")
            else:
                out_tail(DG, T, L_OUT2, 62)
            stamp(10)

    path(True, "H")
    store_stamps()
    a("    s_endpgm")
    a("L_light:")
    path(False, "Lt")
    vA, vB1, vkeep, vX, vO, vF = T + 8, T + 9, T + 10, T + 11, T + 12, T + 13
    RA = G0; RB = G0 + 8; ac = T + 6
    a(f"""
    s_lshl_b32 s65, s33, 2
    s_add_u32 s65, s65, s34
    s_sub_u32 s65, s65, 28            ; c
    s_lshl_b32 s66, s65, 6
    v_lshlrev_b32 v{vO}, 1, v1
    v_add_u32 v{vO}, s66, v{vO}
    buffer_load_ushort v{vX}, v{vO}, s[36:39], 0 offen
    v_lshlrev_b32 v{vA}, 12, v7
    v_lshl_add_u32 v{vA}, v8, 4, v{vA}
    v_cmp_gt_u32 vcc, 48, v1
    v_add_u32 v{vB1}, {8*4096}, v{vA}
    v_lshlrev_b32 v{vF}, 2, v{vG}
    v_cndmask_b32 v{vB1}, v{vA}, v{vB1}, vcc
    v_cndmask_b32 v{vkeep}, 0, 1.0, vcc
    v_lshl_add_u32 v{vF}, v8, 4, v{vF}
    s_lshl_b32 s64, s3, 8
    v_add_u32 v{vF}, s64, v{vF}
    s_lshl_b32 s67, s65, 7
    s_lshl_b32 s64, s3, 16
    s_add_u32 s68, s67, s64
    s_add_u32 s68, s68, {PA}
    s_add_u32 s69, s68, {8*4096}
    s_mul_i32 s64, s3, {14*4096}
    s_add_u32 s67, s67, s64
    s_add_u32 s67, s67, {PB}
    s_mov_b32 s71, {spin_max}
    s_waitcnt vmcnt(0)
    v_lshlrev_b32 v{vX}, 16, v{vX}
R_poll:
    buffer_load_dwordx4 {vr(RA,4)}, v{vA}, s[40:43], s68 offen sc1
    buffer_load_dwordx4 {vr(RA+4,4)}, v{vA}, s[40:43], s69 offen sc1
    buffer_load_dwordx4 {vr(RB,4)}, v{vA}, s[40:43], s67 offen sc1
    buffer_load_dwordx4 {vr(RB+4,4)}, v{vB1}, s[40:43], s67 offen sc1
    v_mov_b32 v{ac}, 0
    v_mov_b32 v{ac+1}, 0
    """)
    for k in range(4):
        a(f"    s_waitcnt vmcnt({3-k})")
        for e in range(4): a(f"    v_msad_u8 v{ac+(e&1)}, v{RA+4*k+e}, s{28+e}, v{ac+(e&1)}")
    a(f"""
    v_or_b32 v{ac}, v{ac}, v{ac+1}
    v_cmp_ne_u32 vcc, 0, v{ac}
    s_sub_u32 s71, s71, 1
    s_cmp_eq_u32 s71, 0
    s_cbranch_scc1 R_ok
    s_cbranch_vccnz R_poll
R_ok:
    """)
    stamp(8)
    a("LtSEG3:")
    for e in range(4): a(f"    v_add_f32 v{RA+e}, v{RA+e}, v{RA+4+e}")
    for e in range(4): a(f"    v_fmac_f32 v{RB+e}, v{RB+4+e}, v{vkeep}")
    a(f"""
    v_permlane32_swap_b32 v{RA}, v{RA+2}
    v_permlane32_swap_b32 v{RA+1}, v{RA+3}
    v_permlane32_swap_b32 v{RB}, v{RB+2}
    v_permlane32_swap_b32 v{RB+1}, v{RB+3}
    v_add_f32 v{RA}, v{RA}, v{RA+2}
    v_add_f32 v{RA+1}, v{RA+1}, v{RA+3}
    v_add_f32 v{RB}, v{RB}, v{RB+2}
    v_add_f32 v{RB+1}, v{RB+1}, v{RB+3}
    s_nop 0
    v_permlane16_swap_b32 v{RA}, v{RA+1}
    v_permlane16_swap_b32 v{RB}, v{RB+1}
    v_add_f32 v{RA}, v{RA}, v{RA+1}
    v_add_f32 v{RB}, v{RB}, v{RB+1}
    s_nop 0
    v_add_f32_dpp v{RA}, v{RA}, v{RA} row_ror:8 row_mask:0xf bank_mask:0xf
    v_add_f32_dpp v{RB}, v{RB}, v{RB} row_ror:8 row_mask:0xf bank_mask:0xf
    ds_write_b32 v{vF}, v{RA} offset:{L_FIN}
    ds_write_b32 v{vF}, v{RB} offset:{L_FIN+128}
    s_waitcnt lgkmcnt(0)
    """)
    barrier()
    a(f"""
    ds_read2st64_b32 {vr(RA,2)}, v{vtid4} offset0:{L_FIN//256} offset1:{L_FIN//256+1}
    ds_read2st64_b32 {vr(RA+2,2)}, v{vtid4} offset0:{L_FIN//256+2} offset1:{L_FIN//256+3}
    s_waitcnt lgkmcnt(0)
    v_add_f32 v{RA}, v{RA}, v{RA+1}
    v_add_f32 v{RA+2}, v{RA+2}, v{RA+3}
    v_add_f32 v{RA}, v{RA}, v{RA+2}
    """)
    rbf16(RA, RA)
    a(f"""
    v_mov_b32 v{RB}, v{RA}
    v_add_f32 v{RA+1}, v{RA}, v{vX}
    s_nop 0
    v_permlane32_swap_b32 v{RA}, v{RB}
    """)
    rbf16(RA + 1, RA + 1)
    a(f"""
    v_add_f32 v{RA}, v{RA+1}, v{RB}
    v_cvt_pk_bf16_f32 v{RA}, v{RA}, v{RA}
    """)
    if warm: a("    s_cbranch_execz LtW_ret")
    a(f"""
    s_cmp_lg_u32 s3, 0
    s_cbranch_scc1 R_done
    s_mov_b32 exec_hi, 0
    buffer_store_short v{RA}, v{vO}, s[16:19], 0 offen
    s_cmp_lg_u32 s65, 0
    s_cbranch_scc1 R_done
    v_mov_b32 v{RB}, s35
    v_mov_b32 v{RB+1}, 0
    s_mov_b64 exec, 1
    buffer_store_dword v{RB}, v{RB+1}, s[40:43], 0 offen offset:{EPOCH} sc1
R_done:
    s_mov_b64 exec, -1
    """)
    stamp(9)
    store_stamps()
    a("""
L_end:
    s_endpgm
L_code_end:
    """)
    print(out, "vgprs", nv, "agprs", nagpr, "lds", LDS_BYTES)
    open(out, "w").write(wrap(a.text(), 256, 256, LDS_BYTES, vgpr=accum + nagpr, accum=accum))

if __name__ == "__main__":
    gen("k8.s", stamps=True)
    gen("k8_ns.s", stamps=False)
```

```python
from gen8 import *
b = dict(stamps=False, lightmap=True, Dl=5, D=5, Dt=7, sprinkle=(2,2,1,1), spr3=3, lq=22, lo_sleep=48, pq=23, po=42, ph=45)
gen("o_a.s", **b)
gen("o_b.s", tlb=21, **b)
b2 = dict(b); b2.update(fuse=False, ph=47)
gen("o_c.s", **b2)
b3 = dict(b); b3.update(D=6, pq=24, po=43, ph=46)
gen("o_d.s", **b3)
b4 = dict(b); b4.update(D=4, pq=22, po=41, ph=45)
gen("o_e.s", **b4)
b5 = dict(b); b5.update(pq=25, po=44, ph=47, lq=24, lo_sleep=56)
gen("o_f.s", **b5)
```

```python
from gen8 import *
import sys
def strip(s):
    out = []
    lines = s.split("\n"); i = 0
    while i < len(lines):
        if lines[i].strip() == "s_waitcnt lgkmcnt(0)" and i + 2 < len(lines) and "nost_" in lines[i+2]:
            lab = lines[i+2].split()[-1]
            while not lines[i].startswith(lab + ":"): i += 1
            i += 1; continue
        out.append(lines[i]); i += 1
    return "\n".join(out)
def mk(base, name, k, mult=2, who="heavy", neg=False):
    x = f"    s_sub_u32 s96, s{72+2*k}, s72\n"
    if neg: x += "    s_sub_u32 s96, 1500, s96\n"
    tail = f"""
    s_waitcnt lgkmcnt(0)
{x}    s_mul_i32 s96, s96, {mult}
    s_add_u32 s96, s96, 2000
    s_add_u32 s96, s96, s72
DG_spin:
    s_memrealtime s[98:99]
    s_waitcnt lgkmcnt(0)
    s_sub_u32 s97, s96, s98
    s_cmp_gt_i32 s97, 0
    s_cbranch_scc1 DG_spin
"""
    if who == "heavy":
        s = base.replace("    s_endpgm\nL_light:", tail + "    s_endpgm\nL_light:")
    else:
        s = base.replace("\nL_end:\n", tail + "L_end:\n")
    assert s != base
    open(name, "w").write(s)
if __name__ == "__main__":
    b = dict(lightmap=True, Dl=5, D=5, Dt=7, sprinkle=(2,2,1,1), spr3=3, lq=22, lo_sleep=48, pq=23, po=42, ph=45)
    gen("tmp_st.s", stamps=True, **b)
    base = strip(open("tmp_st.s").read())
    mk(base, "dg_a.s", 0)
    mk(base, "dg_b.s", 3)
    mk(base, "dg_c.s", 4)
    mk(base, "dg_d.s", 8)
    mk(base, "dg_e.s", 10)
    mk(base, "dg_f.s", 10, neg=True)
```

```python
import sys
from asmgen import *

STAMP_OFF = 128 << 20
NST = 12
EPOCH = 0
QP = 0x1000
OP = 0x40000
GU = 0x180000
PA = 0x200000
PB = 0x240000
WS_SIZE = 256 << 20

L_RED = 0
L_TRASH = 2048
L_Q = 3072
L_S = 5376
L_OUT = 8192
L_OUT2 = 12288
L_FIN = 16384
L_G = 18432
L_V = 26624
LDS_BYTES = L_V + 16384

LOG2E = 0x3FB8AA3B
SCALE = 0x3DB504F3

class R:
    def __init__(self, start): self.n = start
    def a(self, k=1, al=1):
        self.n = (self.n + al - 1) // al * al
        r = self.n; self.n += k
        return r
def vr(b, n): return f"v[{b}:{b+n-1}]"
def ar(b, n): return f"a[{b}:{b+n-1}]"

class Sched:
    def __init__(self, a): self.a = a; self.items = []; self.issued = 0; self.nops = 0; self.pos = {}; self.blocked = set()
    def add(self, name, fn, n=1): self.items.append((name, fn, n))
    def issue(self):
        name, fn, n = self.items[self.issued]
        fn(); self.nops += n; self.pos[name] = self.nops; self.issued += 1
    def can(self): return self.issued < len(self.items) and self.items[self.issued][0] not in self.blocked
    def extra(self, n=1): self.nops += n
    def wait(self, name, sub=0):
        while name not in self.pos:
            assert self.can(), (name, self.items[self.issued][0])
            self.issue()
        cnt = self.nops - self.pos[name] + sub
        assert cnt <= 63
        self.a(f"    s_waitcnt vmcnt({cnt})")
    def index(self, name): return [i for i, it in enumerate(self.items) if it[0] == name][0]
    def topup(self, name, depth):
        i = self.index(name)
        while self.can() and self.issued - (i + 1) < depth: self.issue()
    def sprk(self, n):
        for _ in range(n):
            if self.can(): self.issue()

def gen(out, stamps=True, nt=True, D=5, Dl=5, pq=20, po=37, ph=44, lq=20, lo_sleep=40, lq_sleep=0, spin_max=1 << 20, warm=True,
        k0=2, k1=0, k2=2, Dt=8, sprinkle=(1, 1, 1, 1), spr3=1, dmap=None, warm_extra=3, noretry=False, nogather=False, cnt=False, pure=False, lightmap=False, fuse=True, t3local=True, ostep=None, tlb=0, ep_flags="sc1", out_flags="", ackstamp=False):
    a = Asm()
    NT = " nt" if nt else ""
    def stamp(i):
        if stamps: a(f"    s_memrealtime s[{72+2*i}:{73+2*i}]")
    def store_stamps():
        if not stamps: return
        lab = a.label("nost")
        a(f"""
    s_waitcnt lgkmcnt(0)
    s_cmp_lg_u32 s3, 0
    s_cbranch_scc1 {lab}
    s_mul_i32 s64, s2, {NST*8}
    s_add_u32 s64, s64, {STAMP_OFF}
    v_mov_b32 v20, 0
    s_mov_b64 exec, 1
    """)
        for i in range(NST):
            a(f"""
    v_mov_b32 v22, s{72+2*i}
    v_mov_b32 v23, s{73+2*i}
    buffer_store_dwordx2 v[22:23], v20, s[40:43], s64 offen offset:{8*i}
    s_nop 1
    """)
        a(f"{lab}:")
    def srd(base, lo, size):
        a(f"""
    s_mov_b32 s{base}, s{lo}
    s_mov_b32 s{base+1}, s{lo+1}
    s_mov_b32 s{base+2}, {size}
    s_mov_b32 s{base+3}, 0x20000
    """)
    class guard:
        def __enter__(self):
            self.l = a.label("G"); self.n = len(a.lines)
            if warm: a(f"    s_cbranch_execz {self.l}")
        def __exit__(self, *x):
            if warm:
                if len(a.lines) == self.n + 1: a.lines.pop()
                else: a(f"{self.l}:")
    def barrier():
        with guard(): a("    s_barrier")

    r = R(10)
    (vtagP, vaddP, vOT, vtid4, vPF, vG4, vWQ, vK, vWO, vPO, vQW, vQR, vSW, vSR, vTR, vred, vtag0, vGU, vWD, vPH, vJ, vG) = [r.a() for _ in range(22)]
    XA = r.a(8, 4); XS = r.a(4, 4); XF = r.a(2, 2); T = r.a(28, 4); A = r.a(32, 4); AF = r.a(16, 4)
    D1 = r.a(4, 4); PD = r.a(16, 4); DG = r.a(16, 4); WQ = r.a(32, 4); KK = r.a(16, 4); VO = r.a(16, 4); G0 = r.a(16, 4); HG = r.a(8, 4)
    nv = r.n
    assert nv <= 256, nv
    accum = (nv + 3) // 4 * 4
    GW = 0; WD = 64; nagpr = 96
    QB = A; A3 = A + 16; A2 = A; WO = WQ

    a(f"""
    s_cmp_ge_u32 s2, 256
    s_cbranch_scc1 L_end
    s_load_dwordx16 s[4:19], s[0:1], 0
    s_load_dwordx8 s[20:27], s[0:1], 64
    """)
    if stamps:
        for i in range(1, NST): a(f"    s_mov_b64 s[{72+2*i}:{73+2*i}], 0")
    stamp(0)
    if lightmap:
        LM = """s_sub_u32 s64, s34, 28
    s_lshl_b32 s64, s64, 3
    s_add_u32 s64, s64, 3             ; 8(idx-28)+3
    s_lshr_b32 s96, s34, 3
    s_add_u32 s96, s96, 28            ; 28 + idx>>3
    s_and_b32 s97, s34, 7
    s_cmp_eq_u32 s97, 3
    s_cselect_b32 s67, s96, s34
    s_cmp_ge_u32 s34, 28
    s_cselect_b32 s67, s64, s67
    s_lshr_b32 s68, s67, 4
    s_and_b32 s64, s33, 1
    s_lshl_b32 s64, s64, 1
    s_add_u32 s68, s68, s64           ; rq
    s_and_b32 s67, s67, 15            ; cb"""
    else:
        LM = """s_and_b32 s67, s66, 15           ; cb
    s_lshr_b32 s68, s66, 4           ; rq"""
    a(f"""
    v_lshrrev_b32 v6, 6, v0
    v_and_b32 v1, 63, v0
    s_and_b32 s33, s2, 7            ; xcd
    v_readfirstlane_b32 s3, v6
    s_lshr_b32 s34, s2, 3           ; idx
    s_getpc_b64 s[96:97]
L_pc:
    s_lshl_b32 s64, s34, 2
    s_add_u32 s64, s64, s3
    s_lshl_b32 s64, s64, 7
    s_min_u32 s64, s64, L_code_end - L_pc - 4
    v_mov_b32 v9, s64
    global_load_dword v{vPF}, v9, s[96:97]
    v_lshlrev_b32 v6, 4, v1         ; lane*16
    v_lshrrev_b32 v7, 3, v1          ; l>>3
    v_and_b32 v8, 7, v1              ; l&7
    s_lshr_b32 s65, s33, 1           ; g
    s_and_b32 s66, s33, 1
    s_lshl_b32 s66, s66, 5
    s_add_u32 s66, s66, s34          ; m
    {LM}
    s_lshl_b32 s69, s68, 8
    s_lshl_b32 s64, s3, 6
    s_add_u32 s69, s69, s64          ; R0
    s_lshl_b32 s97, s69, 1
    v_lshlrev_b32 v9, 4, v7
    s_lshl_b32 s64, s69, 13
    s_lshl_b32 s96, s65, 11
    s_add_u32 s64, s64, s96
    s_lshl_b32 s96, s67, 7
    s_add_u32 s64, s64, s96
    v_lshlrev_b32 v{vWQ}, 16, v7
    v_lshl_add_u32 v{vWQ}, v8, 4, v{vWQ}
    v_add_u32 v{vWQ}, s64, v{vWQ}
    s_mul_i32 s60, s33, 28
    s_add_u32 s60, s60, s34
    s_and_b32 s61, s60, 15
    s_lshr_b32 s60, s60, 4
    s_lshl_b32 s62, s61, 6
    s_lshl_b32 s64, s3, 4
    s_add_u32 s62, s62, s64
    s_lshl_b32 s98, s62, 1
    v_lshrrev_b32 v{vG}, 4, v1
    v_and_b32 v{vJ}, 15, v1
    v_lshlrev_b32 v{vPH}, 3, v{vG}
    s_mov_b32 s38, 2048
    s_mov_b32 s39, 0x20000
    s_mov_b32 s46, {8<<20}
    s_mov_b32 s47, 0x20000
    s_mov_b32 s64, 0
    s_waitcnt lgkmcnt(0)
    s_mov_b32 s36, s4
    s_mov_b32 s37, s5
    buffer_load_dwordx4 {vr(XA,4)}, v6, s[36:39], 0 offen
    buffer_load_dwordx4 {vr(XA+4,4)}, v6, s[36:39], 0 offen offset:1024
    buffer_load_dwordx4 {vr(XS,4)}, v9, s[36:39], s97 offen
    buffer_load_dwordx2 {vr(XF,2)}, v{vPH}, s[36:39], s98 offen
    s_load_dword s28, s[26:27], {EPOCH}
    s_mov_b32 s44, s10
    s_mov_b32 s45, s11
    s_barrier
    """)
    for t in range(8):
        a(f"    buffer_load_dwordx4 {vr(WQ+4*t,4)}, v{vWQ}, s[44:47], s64 offen{NT}")
        if t < 7: a(f"    s_add_u32 s64, s64, 8192")
    a(f"""
    v_bfe_u32 v{T}, v0, 1, 2
    v_and_b32 v{T+1}, 1, v0
    v_lshlrev_b32 v{T+1}, 4, v{T+1}
    v_mov_b32 v9, 0xffff
    v_lshlrev_b32 v9, v{T+1}, v9
    v_cmp_eq_u32 vcc, 0, v{T}
    v_cmp_eq_u32 s[96:97], 1, v{T}
    v_cmp_eq_u32 s[98:99], 2, v{T}
    v_cmp_eq_u32 s[100:101], 3, v{T}
    v_cndmask_b32 v2, 0, v9, vcc
    v_cndmask_b32 v3, 0, v9, s[96:97]
    v_cndmask_b32 v4, 0, v9, s[98:99]
    v_cndmask_b32 v5, 0, v9, s[100:101]
    s_lshl_b32 s63, s65, 23
    s_lshl_b32 s96, s66, 14
    s_add_u32 s63, s63, s96
    s_lshl_b32 s96, s3, 12
    s_add_u32 s63, s63, s96
    s_add_u32 s63, s63, {28672*256}
    s_add_u32 s96, s96, {L_V}
    s_mov_b32 m0, s96
    v_lshlrev_b32 v{vK}, 8, v{vJ}
    v_lshl_add_u32 v{vK}, v{vG}, 4, v{vK}
    """)
    srd(48, 6, 32 << 20)
    srd(52, 8, 32 << 20)
    srd(40, 26, WS_SIZE)
    if tlb:
        a(f"""
    s_lshl_b32 s64, s34, 2
    s_add_u32 s64, s64, s3
    s_and_b32 s64, s64, 7
    v_lshlrev_b32 v9, {tlb}, v1
    s_mov_b32 s98, {7<<20}
    s_mov_b32 s99, 0x20000
    s_mov_b64 s[96:97], s[16:17]
    s_cmp_eq_u32 s64, 1
    s_cselect_b64 s[96:97], s[18:19], s[96:97]
    s_cmp_eq_u32 s64, 2
    s_cselect_b64 s[96:97], s[20:21], s[96:97]
    s_cmp_eq_u32 s64, 3
    s_cselect_b64 s[96:97], s[12:13], s[96:97]
    s_cselect_b32 s98, {8<<20}, s98
    s_cmp_eq_u32 s64, 4
    s_cselect_b64 s[96:97], s[26:27], s[96:97]
    s_cselect_b32 s98, {3<<20}, s98
    s_cmp_gt_u32 s64, 4
    s_cbranch_scc1 L_notlb
    buffer_load_dword v{vPF}, v9, s[96:99], 0 offen offset:2048
L_notlb:
    """)

    def allreduce2(x, y, t1, t2):
        for s_ in (8, 4, 2, 1):
            a(f"""
    s_nop 0
    v_add_f32_dpp v{x}, v{x}, v{x} row_ror:{s_} row_mask:0xf bank_mask:0xf
    v_add_f32_dpp v{y}, v{y}, v{y} row_ror:{s_} row_mask:0xf bank_mask:0xf
    """)
        for sw in ("v_permlane16_swap_b32", "v_permlane32_swap_b32"):
            a(f"""
    v_mov_b32 v{t1}, v{x}
    v_mov_b32 v{t2}, v{y}
    s_nop 0
    {sw} v{t1}, v{x}
    {sw} v{t2}, v{y}
    v_add_f32 v{x}, v{x}, v{t1}
    v_add_f32 v{y}, v{y}, v{t2}
    """)
    def allreduce1(x, t1, op="v_add_f32", steps=(8, 4, 2, 1)):
        for s_ in steps:
            a(f"""
    s_nop 1
    {op}_dpp v{x}, v{x}, v{x} row_ror:{s_} row_mask:0xf bank_mask:0xf
    """)
        for sw in ("v_permlane16_swap_b32", "v_permlane32_swap_b32"):
            a(f"""
    v_mov_b32 v{t1}, v{x}
    s_nop 1
    {sw} v{t1}, v{x}
    {op} v{x}, v{x}, v{t1}
    """)
    def rbf16(d, s_):
        a(f"""
    v_cvt_pk_bf16_f32 v{d}, v{s_}, v{s_}
    v_and_b32 v{d}, 0xffff0000, v{d}
    """)
    a(f"""
    v_lshrrev_b32 v{vred}, 2, v1
    v_xor_b32 v{vred}, v{vred}, v1
    v_and_b32 v{vred}, 8, v{vred}
    v_cmp_eq_u32 vcc, 0, v{vred}
    v_lshlrev_b32 v{vred}, 5, v8
    v_bfe_u32 v9, v1, 4, 1
    v_lshl_add_u32 v{vred}, v9, 4, v{vred}
    v_lshrrev_b32 v9, 5, v1
    v_lshl_add_u32 v{vred}, v9, 8, v{vred}
    s_lshl_b32 s64, s3, 9
    v_add_u32 v{vred}, s64, v{vred}
    v_add_u32 v9, {L_TRASH}, v6
    v_cndmask_b32 v{vred}, v9, v{vred}, vcc
    v_lshlrev_b32 v{vtid4}, 2, v0
    v_and_b32 v{vG4}, 3, v1
    v_lshlrev_b32 v{vtagP}, 3, v{vG4}
    s_lshl_b32 s44, s65, 14
    s_add_u32 s44, s44, {QP}
    s_lshl_b32 s45, s68, 12
    s_add_u32 s45, s45, s44
    s_lshl_b32 s96, s67, 8
    s_add_u32 s45, s45, s96
    s_waitcnt lgkmcnt(0)
    s_and_b32 s28, s28, 0x7f
    s_cmp_eq_u32 s28, 127
    s_cselect_b32 s28, 0, s28
    s_add_u32 s35, s28, 1
    s_add_u32 s29, s28, 33
    s_sub_u32 s64, s29, 127
    s_cmp_gt_u32 s29, 127
    s_cselect_b32 s29, s64, s29
    s_add_u32 s30, s28, 65
    s_sub_u32 s64, s30, 127
    s_cmp_gt_u32 s30, 127
    s_cselect_b32 s30, s64, s30
    s_add_u32 s31, s28, 97
    s_sub_u32 s64, s31, 127
    s_cmp_gt_u32 s31, 127
    s_cselect_b32 s31, s64, s31
    s_add_u32 s28, s28, 1
    s_lshl_b32 s32, s29, 8
    s_or_b32 s32, s32, s28
    s_lshl_b32 s64, s30, 16
    s_or_b32 s32, s32, s64
    s_lshl_b32 s64, s31, 24
    s_or_b32 s32, s32, s64
    s_movk_i32 s70, 0xff
    v_bfe_u32 v{vtagP}, s32, v{vtagP}, 8
    v_sub_u32 v{vaddP}, 0x80, v{vtagP}
    """)
    def kv_issue(i):
        if i < 4: a(f"    buffer_load_dwordx4 {vr(KK+4*i,4)}, v{vK}, s[48:51], s63 offen offset:{64*i}{NT}")
        else: a(f"    buffer_load_dwordx4 v6, s[52:55], s63 offen offset:{1024*(i-4)}{NT} lds")
    a(f"    s_waitcnt vmcnt(10)")
    stamp(1)
    for i in range(k0): kv_issue(i)
    for k in range(8):
        a(f"""
    v_lshlrev_b32 v{T+2*k}, 16, v{XA+k}
    v_and_b32 v{T+2*k+1}, 0xffff0000, v{XA+k}
    """)
    a(f"""
    v_readfirstlane_b32 s64, v{T}
    s_nop 1
    """)
    for k in range(16): a(f"    v_subrev_f32 v{T+k}, s64, v{T+k}")
    a(f"""
    v_pk_add_f32 {vr(T+16,2)}, {vr(T,2)}, {vr(T+2,2)}
    v_pk_mul_f32 {vr(T+18,2)}, {vr(T,2)}, {vr(T,2)}
    """)
    for k in range(1, 8):
        a(f"    v_pk_fma_f32 {vr(T+18,2)}, {vr(T+2*k,2)}, {vr(T+2*k,2)}, {vr(T+18,2)}")
        if k >= 2: a(f"    v_pk_add_f32 {vr(T+16,2)}, {vr(T+16,2)}, {vr(T+2*k,2)}")
    S1, S2, t1, t2 = T + 16, T + 18, T + 17, T + 19
    a(f"""
    v_add_f32 v{S1}, v{S1}, v{t1}
    v_add_f32 v{S2}, v{S2}, v{t2}
    s_nop 0
    """)
    allreduce2(S1, S2, t1, t2)
    mean, var, rs, sd = T, T + 1, T + 2, T + 3
    a(f"""
    v_mul_f32 v{S1}, 0x3a800000, v{S1}
    v_mul_f32 v{S2}, 0x3a800000, v{S2}
    v_add_f32 v{mean}, s64, v{S1}
    v_fma_f32 v{var}, -v{S1}, v{S1}, v{S2}
    v_max_f32 v{var}, 0, v{var}
    """)
    rbf16(mean, mean); rbf16(var, var)
    a(f"    v_add_f32 v{var}, 0x3727c5ac, v{var}")
    rbf16(var, var)
    a(f"""
    v_sqrt_f32 v{sd}, v{var}
    s_waitcnt vmcnt({8+k0})
    """)
    for i in range(k0, k0 + k1): kv_issue(i)
    rbf16(sd, sd)
    a(f"    v_rcp_f32 v{rs}, v{sd}")
    Dd = T + 4; Q = T + 16
    def norm(src, dst):
        n = len(src)
        for k in range(n):
            a(f"""
    v_lshlrev_b32 v{Dd+2*k}, 16, v{src[k]}
    v_and_b32 v{Dd+2*k+1}, 0xffff0000, v{src[k]}
    """)
        for k in range(2*n): a(f"    v_sub_f32 v{Dd+k}, v{Dd+k}, v{mean}")
        for k in range(n): a(f"    v_cvt_pk_bf16_f32 v{src[k]}, v{Dd+2*k}, v{Dd+2*k+1}")
        for k in range(n):
            a(f"""
    v_lshlrev_b32 v{Dd+2*k}, 16, v{src[k]}
    v_and_b32 v{Dd+2*k+1}, 0xffff0000, v{src[k]}
    """)
        for k in range(2*n): a(f"    v_mul_f32 v{Q+k}, v{Dd+k}, v{rs}")
        for k in range(2*n): a(f"    v_fma_f32 v{Dd+k}, -v{Q+k}, v{sd}, v{Dd+k}")
        for k in range(2*n): a(f"    v_fmac_f32 v{Q+k}, v{Dd+k}, v{rs}")
        for k in range(2*n): a(f"    v_cvt_pk_bf16_f32 v{Q+k}, v{Q+k}, v{Q+k}")
        for k in range(2*n):
            for m_ in range(4): a(f"    v_and_b32 v{dst+4*k+m_}, v{Q+k}, v{2+m_}")
    norm([XS, XS + 1, XS + 2, XS + 3], A)
    stamp(2)
    for i in range(k0 + k1, k0 + k1 + k2): kv_issue(i)
    norm([XF, XF + 1], AF)
    srd(56, 12, 8 << 20)
    srd(4, 16, 7 << 20)
    srd(8, 18, 7 << 20)
    srd(12, 20, 7 << 20)
    srd(16, 22, 2048)
    a(f"""
    v_bfe_u32 v9, v1, 4, 1
    v_lshlrev_b32 v{vOT}, 5, v{vJ}
    v_lshl_add_u32 v{vOT}, v9, 4, v{vOT}
    s_lshl_b32 s64, s3, 10
    v_add_u32 v{vOT}, s64, v{vOT}
    v_lshlrev_b32 v{vG4}, 4, v{vG4}
    {"s_lshr_b32 s67, s66, 2" if t3local else ""}
    {"s_and_b32 s68, s66, 3" if t3local else ""}
    ; wo voffset
    s_lshl_b32 s64, s65, 10
    s_and_b32 s96, s3, 1
    s_lshl_b32 s96, s96, 9
    s_add_u32 s64, s64, s96
    s_lshr_b32 s96, s67, 2
    s_lshl_b32 s96, s96, 5
    s_add_u32 s64, s64, s96
    s_lshr_b32 s96, s3, 1
    s_lshl_b32 s96, s96, 4
    s_add_u32 s64, s64, s96
    s_and_b32 s96, s67, 3
    s_lshl_b32 s96, s96, 2
    s_add_u32 s64, s64, s96
    s_lshl_b32 s64, s64, 11
    s_lshl_b32 s96, s68, 9
    s_add_u32 s64, s64, s96
    v_lshlrev_b32 v{vWD}, 11, v{vG}
    v_lshl_add_u32 v{vWD}, v{vJ}, 4, v{vWD}
    v_add_u32 v{vWO}, s64, v{vWD}
    v_mul_u32_u24 v{vQR}, 272, v8
    v_lshl_add_u32 v{vQR}, v{vG}, 4, v{vQR}
    v_mul_u32_u24 v{vSW}, 144, v8
    v_lshl_add_u32 v{vSR}, v{vG}, 4, v{vSW}
    v_bfe_u32 v9, v1, 3, 1
    v_lshl_add_u32 v{vSR}, v9, 6, v{vSR}
    v_lshl_add_u32 v{vSW}, v{vG}, 3, v{vSW}
    s_lshl_b32 s96, s3, 5
    v_add_u32 v{vSW}, s96, v{vSW}
    v_bfe_u32 v9, v1, 2, 2
    v_lshl_add_u32 v{vTR}, v{vG}, 3, v9
    v_lshlrev_b32 v{vTR}, 8, v{vTR}
    v_lshrrev_b32 v9, 1, v{vG4}
    s_lshl_b32 s96, s3, 6
    v_add3_u32 v{vTR}, v{vTR}, v9, s96
    v_lshrrev_b32 v{vQW}, 5, v0
    v_and_b32 v9, 31, v0
    v_mul_u32_u24 v{vQW}, 272, v{vQW}
    v_lshl_add_u32 v{vQW}, v9, 3, v{vQW}
    v_lshrrev_b32 v9, 2, v1
    v_lshl_add_u32 v{vPO}, v9, 12, v{vG4}
    v_lshl_add_u32 v{vPH}, v9, 10, v{vG4}
    s_mul_i32 s64, s62, 7168
    s_lshl_b32 s96, s60, 9
    s_add_u32 s64, s64, s96
    v_mul_u32_u24 v{vGU}, {4*7168}, v{vG}
    v_lshl_add_u32 v{vGU}, v{vJ}, 4, v{vGU}
    v_add_u32 v{vGU}, s64, v{vGU}
    s_lshr_b32 s98, s61, 2
    s_lshl_b32 s62, s60, 2
    s_add_u32 s62, s62, s98
    s_and_b32 s69, s61, 3
    s_lshl_b32 s64, s62, 6
    s_lshl_b32 s96, s3, 4
    s_add_u32 s64, s64, s96
    s_lshl_b32 s64, s64, 11
    s_lshl_b32 s96, s69, 9
    s_add_u32 s64, s64, s96
    v_add_u32 v{vWD}, s64, v{vWD}
    s_lshl_b32 s62, s62, 12
    s_lshl_b32 s64, s69, 10
    s_add_u32 s62, s62, s64
    s_add_u32 s62, s62, {PB}
    s_lshl_b32 s60, s60, 15
    s_add_u32 s60, s60, {GU}
    s_lshl_b32 s61, s61, 10
    s_add_u32 s61, s61, s60
    s_lshl_b32 s64, s98, 8
    s_add_u32 s60, s60, s64
    s_lshl_b32 s64, s3, 6
    s_add_u32 s60, s60, s64
    s_lshl_b32 s96, s67, 8
    s_lshl_b32 s97, s3, 10
    s_add_u32 s20, s44, s97
    s_lshl_b32 s23, s65, 18
    s_add_u32 s23, s23, {OP}
    s_add_u32 s22, s23, s96
    s_add_u32 s22, s22, s64
    s_lshl_b32 s96, s66, 12
    s_add_u32 s23, s23, s96
    s_add_u32 s23, s23, s97
    s_lshl_b32 s69, s65, 4
    s_add_u32 s69, s69, s67
    s_lshl_b32 s69, s69, 12
    s_lshl_b32 s96, s68, 10
    s_add_u32 s69, s69, s96
    s_add_u32 s69, s69, {PA}
    s_mov_b32 s24, {SCALE}
    s_mov_b32 s25, {LOG2E}
    v_mov_b32 v{vtag0}, s28
    s_mov_b32 s26, 0x07060500
    s_mov_b32 s27, 0x07060501
    s_mov_b32 s66, 0x07060502
    s_mov_b32 s67, 0x07060503
    s_mov_b32 s68, 0x0c04000c
    """)
    R_ = T + 8
    nk = k0 + k1 + k2
    for t in range(8):
        a(f"    s_waitcnt vmcnt({7 - t + nk})")
        srcc = "0" if t == 0 else vr(D1, 4)
        a(f"    v_mfma_f32_16x16x32_bf16 {vr(D1,4)}, {vr(A+4*t,4)}, {vr(WQ+4*t,4)}, {srcc}")
        while nk < 8 and t < 7 and (7 - t) + nk < Dt:
            kv_issue(nk); nk += 1
    kpre = nk
    a(f"""
    s_nop 7
    ds_write_b128 v{vred}, {vr(D1,4)} offset:{L_RED}
    s_waitcnt lgkmcnt(0)
    s_barrier
    s_cmp_lg_u32 s3, 0
    s_cbranch_scc1 L_nored
    ds_read2st64_b32 {vr(R_,2)}, v{vtid4} offset0:0 offset1:1
    ds_read2st64_b32 {vr(R_+2,2)}, v{vtid4} offset0:2 offset1:3
    ds_read2st64_b32 {vr(R_+4,2)}, v{vtid4} offset0:4 offset1:5
    ds_read2st64_b32 {vr(R_+6,2)}, v{vtid4} offset0:6 offset1:7
    s_waitcnt lgkmcnt(0)
    v_add_f32 v{R_}, v{R_}, v{R_+1}
    v_add_f32 v{R_+2}, v{R_+2}, v{R_+3}
    v_add_f32 v{R_+4}, v{R_+4}, v{R_+5}
    v_add_f32 v{R_+6}, v{R_+6}, v{R_+7}
    v_add_f32 v{R_}, v{R_}, v{R_+2}
    v_add_f32 v{R_+4}, v{R_+4}, v{R_+6}
    v_add_f32 v{R_}, v{R_}, v{R_+4}
    v_add_u32 v{R_}, v{R_}, v{vaddP}
    v_bfi_b32 v{R_}, s70, v{vtagP}, v{R_}
    buffer_store_dword v{R_}, v{vtid4}, s[40:43], s45 offen sc1
L_nored:
    """)
    stamp(3)
    a("""
    s_cmp_ge_u32 s34, 28
    s_cbranch_scc1 L_light
    """)
    PSEL = (26, 27, 66, 67)

    def abuild(H, AA):
        a("    s_nop 1")
        for u in range(4):
            for m_ in range(4):
                a(f"    v_and_b32_dpp v{AA+4*u+m_}, v{H}, v{2+m_} quad_perm:[{u},{u},{u},{u}] row_mask:0xf bank_mask:0xf")
    def merge2(X, Y, full_y):
        if full_y:
            a(f"""
    s_nop 0
    v_permlane32_swap_b32 v{X}, v{X+2}
    v_permlane32_swap_b32 v{X+1}, v{X+3}
    v_permlane32_swap_b32 v{Y}, v{Y+2}
    v_permlane32_swap_b32 v{Y+1}, v{Y+3}
    v_add_f32 v{X}, v{X}, v{X+2}
    v_add_f32 v{X+1}, v{X+1}, v{X+3}
    v_add_f32 v{Y}, v{Y}, v{Y+2}
    v_add_f32 v{Y+1}, v{Y+1}, v{Y+3}
    s_nop 0
    v_permlane16_swap_b32 v{X}, v{X+1}
    v_permlane16_swap_b32 v{Y}, v{Y+1}
    v_add_f32 v{X}, v{X}, v{X+1}
    v_add_f32 v{Y}, v{Y}, v{Y+1}
    """)
        else:
            a(f"""
    v_mov_b32 v{Y+1}, v{Y}
    s_nop 0
    v_permlane32_swap_b32 v{X}, v{X+2}
    v_permlane32_swap_b32 v{X+1}, v{X+3}
    v_permlane32_swap_b32 v{Y+1}, v{Y}
    v_add_f32 v{X}, v{X}, v{X+2}
    v_add_f32 v{X+1}, v{X+1}, v{X+3}
    v_add_f32 v{Y}, v{Y}, v{Y+1}
    s_nop 0
    v_mov_b32 v{Y+1}, v{Y}
    v_permlane16_swap_b32 v{X}, v{X+1}
    s_nop 0
    v_permlane16_swap_b32 v{Y+1}, v{Y}
    v_add_f32 v{X}, v{X}, v{X+1}
    v_add_f32 v{Y}, v{Y}, v{Y+1}
    """)
        for s_ in (8, 4):
            a(f"""
    s_nop 0
    v_add_f32_dpp v{X}, v{X}, v{X} row_ror:{s_} row_mask:0xf bank_mask:0xf
    v_add_f32_dpp v{Y}, v{Y}, v{Y} row_ror:{s_} row_mask:0xf bank_mask:0xf
    """)

    def path(ffn, P):
        S = Sched(a)
        def seg_end():
            if warm: a(f"    s_cbranch_execz {P}W_ret")
        def gsprk(n):
            with guard(): S.sprk(n)
        def gwait(name, sub=0):
            with guard(): S.wait(name, sub)
        def out_tail(Dx, Tt, lds, out_off_s):
            a(f"""
    s_nop 6
    ds_write_b128 v{vOT}, {vr(Dx,4)} offset:{lds}
    ds_write_b128 v{vOT}, {vr(Dx+4,4)} offset:{lds+512}
    s_waitcnt lgkmcnt(0)
    """)
            barrier()
            a(f"""
    ds_read2st64_b32 {vr(Tt+2,2)}, v{vtid4} offset0:{lds//256} offset1:{lds//256+4}
    ds_read2st64_b32 {vr(Tt+4,2)}, v{vtid4} offset0:{lds//256+8} offset1:{lds//256+12}
    s_waitcnt lgkmcnt(0)
    v_add_f32 v{Tt+2}, v{Tt+2}, v{Tt+3}
    v_add_f32 v{Tt+4}, v{Tt+4}, v{Tt+5}
    v_add_f32 v{Tt+2}, v{Tt+2}, v{Tt+4}
    v_add_u32 v{Tt+2}, v{Tt+2}, v{vaddP}
    v_bfi_b32 v{Tt+2}, s70, v{vtagP}, v{Tt+2}
    """)
            seg_end()
            a(f"    buffer_store_dword v{Tt+2}, v{vtid4}, s[40:43], s{out_off_s} offen sc1")
            S.extra(1)
        for t in range(8):
            S.items.append((f"wq{t}", None, 1)); S.nops += 1; S.pos[f"wq{t}"] = S.nops; S.issued += 1
        base = []
        for i in range(8): base.append((f"kv{i}", (lambda i=i: kv_issue(i)), 1))
        def mk_gu(i):
            u, mat, c = i // 4, (i // 2) % 2, i % 2
            def f():
                so = "0"
                if u: a(f"    s_movk_i32 s99, {u*7168}"); so = "s99"
                a(f"    buffer_load_dwordx4 {ar(GW+4*i,4)}, v{vGU}, s[{4+4*mat}:{7+4*mat}], {so} offen offset:{256*c}{NT}")
            return f
        def mk_wo(k):
            u, c = k // 2, k % 2
            def f():
                so = "0"
                if u: a(f"    s_mov_b32 s99, {u*0x40000}"); so = "s99"
                a(f"    buffer_load_dwordx4 {vr(WO+4*k,4)}, v{vWO}, s[56:59], {so} offen offset:{c*256}{NT}")
            return f
        def mk_wd(k):
            u, c = k // 2, k % 2
            def f():
                so = "0"
                if u: a(f"    s_movk_i32 s99, {u*8192}"); so = "s99"
                a(f"    buffer_load_dwordx4 {ar(WD+4*k,4)}, v{vWD}, s[12:15], {so} offen offset:{c*256}{NT}")
            return f
        def pollq():
            if not ffn and lq_sleep: a(f"    s_sleep {lq_sleep}")
            pollq2()
        def pollq2():
            if nogather:
                for k in range(4): a(f"    buffer_load_dwordx4 {vr(G0+4*k,4)}, v6, s[36:39], 0 offen")
                return
            a(f"    buffer_load_dwordx4 {vr(G0,4)}, v6, s[40:43], s20 offen sc1")
            for k in range(1, 4):
                a(f"    s_add_u32 s99, s20, {4096*k}")
                a(f"    buffer_load_dwordx4 {vr(G0+4*k,4)}, v6, s[40:43], s99 offen sc1")
        def pollo():
            if not ffn and lo_sleep: a(f"    s_waitcnt vmcnt(0)\n    s_sleep {lo_sleep}")
            pollo2()
        def pollo2():
            if nogather:
                for k in range(4): a(f"    buffer_load_dwordx4 {vr(G0+4*k,4)}, v6, s[36:39], 0 offen")
                return
            a(f"    buffer_load_dwordx4 {vr(G0,4)}, v{vPO}, s[40:43], s22 offen sc1")
            for k in range(1, 4):
                a(f"    s_add_u32 s99, s22, {0x10000*k}")
                a(f"    buffer_load_dwordx4 {vr(G0+4*k,4)}, v{vPO}, s[40:43], s99 offen sc1")
        def pollh():
            if nogather:
                for k in range(2): a(f"    buffer_load_dwordx4 {vr(HG+4*k,4)}, v6, s[36:39], 0 offen")
                return
            a(f"""
    buffer_load_dwordx4 {vr(HG,4)}, v{vPH}, s[40:43], s60 offen sc1
    s_add_u32 s99, s60, 16384
    buffer_load_dwordx4 {vr(HG+4,4)}, v{vPH}, s[40:43], s99 offen sc1
    """)
        if ffn:
            for i in range(16): base.append((f"gu{i}", mk_gu(i), 1))
        for k in range(8): base.append((f"wo{k}", mk_wo(k), 1))
        if ffn:
            for k in range(8): base.append((f"wd{k}", mk_wd(k), 1))
        Pl = [] if pure else [(pq, ("pq", pollq, 4)), (po, ("po", pollo, 4)), (ph, ("ph", pollh, 2))] if ffn else [(lq, ("pq", pollq, 4)), (99, ("po", pollo, 4))]
        for i, it in enumerate(base):
            for p, pit in Pl:
                if p == i + 8: S.add(*pit)
            S.add(*it)
        for p, pit in Pl:
            if p >= len(base) + 8: S.add(*pit)
        for i in range(kpre):
            name = S.items[S.issued][0]; assert name == f"kv{i}"
            S.nops += 1; S.pos[name] = S.nops; S.issued += 1
        names = [it[0] for it in S.items]
        S.blocked |= {"po", "ph"}
        def retry(lab, fn, check):
            if noretry: return
            if cnt:
                bit = {"rq": 100, "ro": 1000, "rh": 10000}[lab[-2:]]
                a(f"""
    s_nop 1
    s_cbranch_vccz {lab}_c
    s_add_u32 s94, s94, {bit}
    s_addc_u32 s95, s95, 0
{lab}_c:
    """)
            a(f"""
    s_nop 1
    s_cbranch_vccz {lab}_ok
    s_mov_b32 s71, {spin_max}
{lab}:
    """)
            fn()
            a("    s_waitcnt vmcnt(0)")
            check(True)
            a(f"""
    s_sub_u32 s71, s71, 1
    s_cmp_eq_u32 s71, 0
    s_cbranch_scc1 {lab}_ok
    s_cbranch_vccnz {lab}
{lab}_ok:
    """)
        if pure:
            for name in names:
                if name.startswith("wq"): continue
                S.wait(name); S.topup(name, D if ffn else Dl)
                if name == "kv7": stamp(4)
                if name == "gu7": stamp(5)
                if name == "gu15": stamp(8)
                if name == "wo7": stamp(7)
                if name == "wd7": stamp(10)
            if not ffn:
                store_stamps(); a("    s_endpgm\nLtW_ret:")
            return
        S.blocked.add("pq"); S.sprk(warm_extra); S.blocked.discard("pq")
        if warm:
            a(f"""
    s_mov_b64 exec, 0
    s_cmp_eq_u32 s3, 0
    s_cbranch_scc1 {P}SEG0
    s_cmp_eq_u32 s3, 1
    s_cbranch_scc1 {P}SEG1
    s_cmp_eq_u32 s3, 2
    s_cbranch_scc1 {P}SEG2
    s_branch {P}SEG3
{P}W_ret:
    s_mov_b64 exec, -1
    """)
        if cnt: a('    s_waitcnt lgkmcnt(0)\n    s_mov_b64 s[94:95], s[72:73]')
        else: stamp(11)
        t3_done = False; have_o = False; have_h = False
        DD = D if ffn else Dl
        for name in names:
            depth = DD
            if dmap and ffn:
                for k_, v_ in dmap:
                    if names.index(name) >= k_: depth = v_
            def std():
                with guard():
                    S.wait(name); S.topup(name, depth)
            if name.startswith("wq"):
                pass
            elif name.startswith("kv"):
                std()
                if name == "kv7":
                    a("    s_barrier")
                    for s_ in range(2):
                        for c in range(2):
                            for h in range(2):
                                a(f"    ds_read_b64_tr_b16 {vr(VO+(s_*2+c)*4+2*h,2)}, v{vTR} offset:{L_V + s_*8192 + h*1024 + c*32}")
            elif name.startswith("gu"):
                i = int(name[2:]); u, dd = i // 4, i % 4
                with guard(): S.wait(name)
                srcc = "0" if u == 0 else vr(DG + 4 * dd, 4)
                a(f"    v_mfma_f32_16x16x32_bf16 {vr(DG+4*dd,4)}, {vr(AF+4*u,4)}, {ar(GW+4*i,4)}, {srcc}")
                with guard(): S.topup(name, depth)
                if i == 15:
                    a(f"""
    s_nop 4
{P}SEG3:
    ds_write_b128 v{vOT}, {vr(DG,4)} offset:{L_G}
    ds_write_b128 v{vOT}, {vr(DG+4,4)} offset:{L_G+512}
    ds_write_b128 v{vOT}, {vr(DG+8,4)} offset:{L_G+4096}
    ds_write_b128 v{vOT}, {vr(DG+12,4)} offset:{L_G+4096+512}
    s_waitcnt lgkmcnt(0)
    """)
                    barrier()
                    o = L_G // 256
                    a(f"""
    ds_read2st64_b32 {vr(T,2)}, v{vtid4} offset0:{o} offset1:{o+4}
    ds_read2st64_b32 {vr(T+2,2)}, v{vtid4} offset0:{o+8} offset1:{o+12}
    ds_read2st64_b32 {vr(T+4,2)}, v{vtid4} offset0:{o+16} offset1:{o+20}
    ds_read2st64_b32 {vr(T+6,2)}, v{vtid4} offset0:{o+24} offset1:{o+28}
    s_add_u32 s99, s61, 16384
    s_waitcnt lgkmcnt(0)
    v_add_f32 v{T}, v{T}, v{T+1}
    v_add_f32 v{T+2}, v{T+2}, v{T+3}
    v_add_f32 v{T+4}, v{T+4}, v{T+5}
    v_add_f32 v{T+6}, v{T+6}, v{T+7}
    v_add_f32 v{T}, v{T}, v{T+2}
    v_add_f32 v{T+4}, v{T+4}, v{T+6}
    v_add_u32 v{T}, v{T}, v{vaddP}
    v_add_u32 v{T+4}, v{T+4}, v{vaddP}
    v_bfi_b32 v{T}, s70, v{vtagP}, v{T}
    v_bfi_b32 v{T+4}, s70, v{vtagP}, v{T+4}
    """)
                    if warm: a(f"    s_cbranch_execz {P}SEG3b")
                    a(f"""
    buffer_store_dword v{T}, v{vtid4}, s[40:43], s61 offen sc1
    buffer_store_dword v{T+4}, v{vtid4}, s[40:43], s99 offen sc1
    """)
                    S.extra(2)
                    stamp(8)
                    S.blocked -= {"ph"}
                    S.sprk(1)
            elif name == "pq":
                acc = T
                def chk(re):
                    a(f"""
    v_mov_b32 v{acc}, 0
    v_mov_b32 v{acc+1}, 0
    """)
                    for k in range(4):
                        if not re: gwait("pq", 3 - k)
                        for e in range(4): a(f"    v_msad_u8 v{acc+(e&1)}, v{G0+4*k+e}, s{28+e}, v{acc+(e&1)}")
                    a(f"""
    v_or_b32 v{acc}, v{acc}, v{acc+1}
    v_cmp_ne_u32 vcc, 0, v{acc}
    """)
                while "pq" not in S.pos: S.issue()
                a(f"{P}SEG0:")
                chk(False)
                retry(f"{P}rq", pollq2, chk)
                with guard(): stamp(4)
                QS = T + 4
                a(f"""
    v_pk_add_f32 {vr(QS,2)}, {vr(G0,2)}, {vr(G0+4,2)}
    v_pk_add_f32 {vr(QS+2,2)}, {vr(G0+2,2)}, {vr(G0+6,2)}
    v_pk_add_f32 {vr(QS+4,2)}, {vr(G0+8,2)}, {vr(G0+12,2)}
    v_pk_add_f32 {vr(QS+6,2)}, {vr(G0+10,2)}, {vr(G0+14,2)}
    v_pk_add_f32 {vr(QS,2)}, {vr(QS,2)}, {vr(QS+4,2)}
    v_pk_add_f32 {vr(QS+2,2)}, {vr(QS+2,2)}, {vr(QS+6,2)}
    v_cvt_pk_bf16_f32 v{QS}, v{QS}, v{QS+1}
    v_cvt_pk_bf16_f32 v{QS+1}, v{QS+2}, v{QS+3}
    ds_write_b64 v{vQW}, {vr(QS,2)} offset:{L_Q}
    """)
                with guard(): S.topup(name, depth)
                a("    s_waitcnt lgkmcnt(0)")
                barrier()
                a(f"""
    ds_read_b128 {vr(QB,4)}, v{vQR} offset:{L_Q}
    ds_read_b128 {vr(QB+4,4)}, v{vQR} offset:{L_Q+64}
    ds_read_b128 {vr(QB+8,4)}, v{vQR} offset:{L_Q+128}
    ds_read_b128 {vr(QB+12,4)}, v{vQR} offset:{L_Q+192}
    """)
                gsprk(sprinkle[0])
                for t in range(4):
                    srcc = "0" if t == 0 else vr(D1, 4)
                    a(f"    s_waitcnt lgkmcnt({3-t})")
                    a(f"    v_mfma_f32_16x16x32_bf16 {vr(D1,4)}, {vr(KK+4*t,4)}, {vr(QB+4*t,4)}, {srcc}")
                Sx = T + 4
                a(f"""
    s_nop 7
    v_cvt_pk_bf16_f32 v{T}, v{D1}, v{D1+1}
    v_cvt_pk_bf16_f32 v{T+1}, v{D1+2}, v{D1+3}
    v_lshlrev_b32 v{Sx}, 16, v{T}
    v_and_b32 v{Sx+1}, 0xffff0000, v{T}
    v_lshlrev_b32 v{Sx+2}, 16, v{T+1}
    v_and_b32 v{Sx+3}, 0xffff0000, v{T+1}
    v_mul_f32 v{Sx}, s24, v{Sx}
    v_mul_f32 v{Sx+1}, s24, v{Sx+1}
    v_mul_f32 v{Sx+2}, s24, v{Sx+2}
    v_mul_f32 v{Sx+3}, s24, v{Sx+3}
    v_cvt_pk_bf16_f32 v{T}, v{Sx}, v{Sx+1}
    v_cvt_pk_bf16_f32 v{T+1}, v{Sx+2}, v{Sx+3}
    ds_write_b64 v{vSW}, {vr(T,2)} offset:{L_S}
    s_waitcnt lgkmcnt(0)
    """)
                seg_end()
                mx, tmp, lsum, wv, rl = T + 12, T + 13, T + 14, T + 15, T + 16
                Pp = T + 20
                a(f"""
    s_barrier
{P}SEG1:
    ds_read_b128 {vr(T,4)}, v{vSR} offset:{L_S}
    """)
                gsprk(sprinkle[1])
                a("    s_waitcnt lgkmcnt(0)")
                for k in range(4):
                    a(f"""
    v_lshlrev_b32 v{Sx+2*k}, 16, v{T+k}
    v_and_b32 v{Sx+2*k+1}, 0xffff0000, v{T+k}
    """)
                a(f"""
    v_max3_f32 v{mx}, v{Sx}, v{Sx+1}, v{Sx+2}
    v_max3_f32 v{tmp}, v{Sx+3}, v{Sx+4}, v{Sx+5}
    v_max3_f32 v{mx}, v{Sx+6}, v{Sx+7}, v{mx}
    v_max_f32 v{mx}, v{mx}, v{tmp}
    """)
                allreduce1(mx, tmp, op="v_max_f32", steps=(8,))
                a(f"    v_mul_f32 v{mx}, s25, v{mx}")
                for k in range(8): a(f"    v_fma_f32 v{Sx+k}, v{Sx+k}, s25, -v{mx}")
                for k in range(8): a(f"    v_exp_f32 v{Sx+k}, v{Sx+k}")
                for k in range(4): a(f"    v_cvt_pk_bf16_f32 v{Pp+k}, v{Sx+2*k}, v{Sx+2*k+1}")
                a(f"""
    v_pk_add_f32 {vr(T,2)}, {vr(Sx,2)}, {vr(Sx+2,2)}
    v_pk_add_f32 {vr(T+2,2)}, {vr(Sx+4,2)}, {vr(Sx+6,2)}
    """)
                for sc in (0, 2, 1, 3):
                    a(f"    v_mfma_f32_16x16x32_bf16 {vr(PD+4*sc,4)}, {vr(VO+4*sc,4)}, {vr(Pp,4)}, 0")
                gsprk(sprinkle[2])
                a(f"""
    v_pk_add_f32 {vr(T,2)}, {vr(T,2)}, {vr(T+2,2)}
    v_add_f32 v{lsum}, v{T}, v{T+1}
    """)
                allreduce1(lsum, tmp, steps=(8,))
                X = D1
                a(f"""
    v_log_f32 v{wv}, v{lsum}
    v_rcp_f32 v{rl}, v{lsum}
    """)
                for e in range(4): a(f"    v_add_f32_dpp v{X+e}, v{PD+8+e}, v{PD+e} row_ror:8 row_mask:0xf bank_mask:0x3")
                a(f"    v_add_f32 v{wv}, v{wv}, v{mx}")
                for e in range(4): a(f"    v_add_f32_dpp v{X+e}, v{PD+4+e}, v{PD+12+e} row_ror:8 row_mask:0xf bank_mask:0xc")
                a(f"""
    v_add_u32 v{wv}, 0x80, v{wv}
    v_bfi_b32 v{wv}, s70, v{vtag0}, v{wv}
    """)
                for e in range(4): a(f"    v_mul_f32 v{X+e}, v{X+e}, v{rl}")
                for e in range(4): a(f"    v_perm_b32 v{X+e}, v{X+e}, v{wv}, s{PSEL[e]}")
                seg_end()
                a(f"    buffer_store_dwordx4 {vr(X,4)}, v6, s[40:43], s23 offen sc1")
                S.extra(1)
                stamp(5)
                S.blocked -= {"po"}
                S.sprk(sprinkle[3])
            elif name == "po":
                F = T + 8
                def chk(re):
                    a(f"    v_mov_b32 v{T+3}, 0")
                    for k in range(4):
                        if not re: gwait("po", 3 - k)
                        a(f"""
    v_msad_u8 v{T+3}, v{G0+4*k}, s28, v{T+3}
    v_perm_b32 v{F+k}, v{G0+4*k+2}, v{G0+4*k+1}, s68
    v_lshl_or_b32 v{F+k}, v{G0+4*k+3}, 24, v{F+k}
    """)
                    a(f"    v_cmp_ne_u32 vcc, 0, v{T+3}")
                while "po" not in S.pos: S.issue()
                a(f"{P}SEG2:")
                chk(False)
                retry(f"{P}ro", pollo2, chk)
                with guard():
                    stamp(6); S.topup(name, depth + spr3)
                a(f"""
    v_max_f32 v{T+4}, v{F}, v{F+1}
    v_max3_f32 v{T+4}, v{F+2}, v{F+3}, v{T+4}
    """)
                allreduce1(T + 4, T + 5, op="v_max_f32", steps=(8, 4))
                for k in range(4): a(f"    v_sub_f32 v{F+k}, v{F+k}, v{T+4}")
                for k in range(4): a(f"    v_exp_f32 v{F+k}, v{F+k}")
                L_ = T + 6
                for e in range(4): a(f"    v_mul_f32 v{G0+e}, v{G0+e}, v{F}")
                a(f"""
    v_add_f32 v{L_}, v{F}, v{F+1}
    v_add_f32 v{L_+1}, v{F+2}, v{F+3}
    """)
                for t in range(1, 4):
                    for e in range(4): a(f"    v_fmac_f32 v{G0+e}, v{G0+4*t+e}, v{F+t}")
                    if t == 1: a(f"    v_add_f32 v{L_}, v{L_}, v{L_+1}")
                merge2(G0, L_, False)
                a(f"""
    v_rcp_f32 v{L_}, v{L_}
    s_nop 0
    v_mul_f32 v{G0}, v{G0}, v{L_}
    v_cvt_pk_bf16_f32 v{G0}, v{G0}, v{G0}
    """)
                abuild(G0, A3)
                a("    s_nop 1")
                have_o = True
                for k in range(8):
                    if names.index(f"wo{k}") < names.index("po"):
                        u, c = k // 2, k % 2
                        srcc = "0" if u == 0 else vr(PD + 4 * c, 4)
                        a(f"    v_mfma_f32_16x16x32_bf16 {vr(PD+4*c,4)}, {vr(A3+4*u,4)}, {vr(WO+4*k,4)}, {srcc}")
            elif name.startswith("wo"):
                k = int(name[2:])
                std()
                if have_o:
                    u, c = k // 2, k % 2
                    srcc = "0" if u == 0 else vr(PD + 4 * c, 4)
                    a(f"    v_mfma_f32_16x16x32_bf16 {vr(PD+4*c,4)}, {vr(A3+4*u,4)}, {vr(WO+4*k,4)}, {srcc}")
            elif name == "ph":
                def chk(re):
                    a(f"""
    v_mov_b32 v{T+8}, 0
    v_mov_b32 v{T+9}, 0
    """)
                    if not re: gwait("ph")
                    for k in range(8): a(f"    v_msad_u8 v{T+8+(k&1)}, v{HG+k}, s{28+(k&3)}, v{T+8+(k&1)}")
                    a(f"""
    v_or_b32 v{T+8}, v{T+8}, v{T+9}
    v_cmp_ne_u32 vcc, 0, v{T+8}
    """)
                while "ph" not in S.pos: S.issue()
                a(f"{P}SEG3b:")
                chk(False)
                retry(f"{P}rh", pollh, chk)
                with guard():
                    stamp(9); S.topup(name, depth + 1)
                G_, U_ = HG, HG + 4
                merge2(G_, U_, True)
                rbf16(G_, G_); rbf16(U_, U_)
                a(f"""
    v_mul_f32 v{T+4}, {0x80000000 | LOG2E}, v{G_}
    v_exp_f32 v{T+4}, v{T+4}
    s_nop 0
    v_add_f32 v{T+4}, 1.0, v{T+4}
    v_rcp_f32 v{T+4}, v{T+4}
    s_nop 0
    v_mul_f32 v{G_}, v{G_}, v{T+4}
    """)
                rbf16(G_, G_)
                a(f"""
    v_mul_f32 v{G_}, v{G_}, v{U_}
    v_cvt_pk_bf16_f32 v{G_}, v{G_}, v{G_}
    """)
                abuild(G_, A2)
                a("    s_nop 1")
                have_h = True
                for k in range(8):
                    if names.index(f"wd{k}") < names.index("ph"):
                        u, c = k // 2, k % 2
                        srcc = "0" if u == 0 else vr(DG + 4 * c, 4)
                        a(f"    v_mfma_f32_16x16x32_bf16 {vr(DG+4*c,4)}, {vr(A2+4*u,4)}, {ar(WD+4*k,4)}, {srcc}")
            elif name.startswith("wd"):
                k = int(name[2:])
                std()
                if have_h:
                    u, c = k // 2, k % 2
                    srcc = "0" if u == 0 else vr(DG + 4 * c, 4)
                    a(f"    v_mfma_f32_16x16x32_bf16 {vr(DG+4*c,4)}, {vr(A2+4*u,4)}, {ar(WD+4*k,4)}, {srcc}")
            if not t3_done and have_o and names.index(name) >= max(names.index("wo7"), names.index("po")):
                if fuse and ffn:
                    a(f"""
    s_nop 6
    ds_write_b128 v{vOT}, {vr(PD,4)} offset:{L_OUT}
    ds_write_b128 v{vOT}, {vr(PD+4,4)} offset:{L_OUT+512}
    """)
                    seg_end()
                else:
                    out_tail(PD, T, L_OUT, 69)
                stamp(7)
                t3_done = True
                S.sprk(1)
        if ffn:
            assert names.index("ph") > max(names.index("wo7"), names.index("po"))
            if fuse:
                o1, o2 = L_OUT // 256, L_OUT2 // 256
                a(f"""
    s_nop 6
    ds_write_b128 v{vOT}, {vr(DG,4)} offset:{L_OUT2}
    ds_write_b128 v{vOT}, {vr(DG+4,4)} offset:{L_OUT2+512}
    s_waitcnt lgkmcnt(0)
    """)
                barrier()
                a(f"""
    ds_read2st64_b32 {vr(T,2)}, v{vtid4} offset0:{o2} offset1:{o2+4}
    ds_read2st64_b32 {vr(T+2,2)}, v{vtid4} offset0:{o2+8} offset1:{o2+12}
    ds_read2st64_b32 {vr(T+4,2)}, v{vtid4} offset0:{o1} offset1:{o1+4}
    ds_read2st64_b32 {vr(T+6,2)}, v{vtid4} offset0:{o1+8} offset1:{o1+12}
    s_waitcnt lgkmcnt(2)
    v_add_f32 v{T}, v{T}, v{T+1}
    v_add_f32 v{T+2}, v{T+2}, v{T+3}
    v_add_f32 v{T}, v{T}, v{T+2}
    v_add_u32 v{T}, v{T}, v{vaddP}
    v_bfi_b32 v{T}, s70, v{vtagP}, v{T}
    """)
                with guard(): a(f"    buffer_store_dword v{T}, v{vtid4}, s[40:43], s62 offen sc1")
                a(f"""
    s_waitcnt lgkmcnt(0)
    v_add_f32 v{T+4}, v{T+4}, v{T+5}
    v_add_f32 v{T+6}, v{T+6}, v{T+7}
    v_add_f32 v{T+4}, v{T+4}, v{T+6}
    v_add_u32 v{T+4}, v{T+4}, v{vaddP}
    v_bfi_b32 v{T+4}, s70, v{vtagP}, v{T+4}
    """)
                seg_end()
                a(f"    buffer_store_dword v{T+4}, v{vtid4}, s[40:43], s69 offen sc1")
            else:
                out_tail(DG, T, L_OUT2, 62)
            stamp(10)

    path(True, "H")
    store_stamps()
    a("    s_endpgm")
    a("L_light:")
    path(False, "Lt")
    vA, vB1, vkeep, vX, vO, vF = T + 8, T + 9, T + 10, T + 11, T + 12, T + 13
    RA = G0; RB = G0 + 8; ac = T + 6
    a(f"""
    s_lshl_b32 s65, s33, 2
    s_add_u32 s65, s65, s34
    s_sub_u32 s65, s65, 28            ; c
    s_lshl_b32 s66, s65, 6
    v_lshlrev_b32 v{vO}, 1, v1
    v_add_u32 v{vO}, s66, v{vO}
    buffer_load_ushort v{vX}, v{vO}, s[36:39], 0 offen
    v_lshlrev_b32 v{vA}, 12, v7
    v_lshl_add_u32 v{vA}, v8, 4, v{vA}
    v_cmp_gt_u32 vcc, 48, v1
    v_add_u32 v{vB1}, {8*4096}, v{vA}
    v_lshlrev_b32 v{vF}, 2, v{vG}
    v_cndmask_b32 v{vB1}, v{vA}, v{vB1}, vcc
    v_cndmask_b32 v{vkeep}, 0, 1.0, vcc
    v_lshl_add_u32 v{vF}, v8, 4, v{vF}
    s_lshl_b32 s64, s3, 8
    v_add_u32 v{vF}, s64, v{vF}
    s_lshl_b32 s67, s65, 7
    s_lshl_b32 s64, s3, 16
    s_add_u32 s68, s67, s64
    s_add_u32 s68, s68, {PA}
    s_add_u32 s69, s68, {8*4096}
    s_mul_i32 s64, s3, {14*4096}
    s_add_u32 s67, s67, s64
    s_add_u32 s67, s67, {PB}
    s_mov_b32 s71, {spin_max}
    s_waitcnt vmcnt(0)
    v_lshlrev_b32 v{vX}, 16, v{vX}
R_poll:
    buffer_load_dwordx4 {vr(RA,4)}, v{vA}, s[40:43], s68 offen sc1
    buffer_load_dwordx4 {vr(RA+4,4)}, v{vA}, s[40:43], s69 offen sc1
    buffer_load_dwordx4 {vr(RB,4)}, v{vA}, s[40:43], s67 offen sc1
    buffer_load_dwordx4 {vr(RB+4,4)}, v{vB1}, s[40:43], s67 offen sc1
    v_mov_b32 v{ac}, 0
    v_mov_b32 v{ac+1}, 0
    """)
    for k in range(4):
        a(f"    s_waitcnt vmcnt({3-k})")
        for e in range(4): a(f"    v_msad_u8 v{ac+(e&1)}, v{RA+4*k+e}, s{28+e}, v{ac+(e&1)}")
    a(f"""
    v_or_b32 v{ac}, v{ac}, v{ac+1}
    v_cmp_ne_u32 vcc, 0, v{ac}
    s_sub_u32 s71, s71, 1
    s_cmp_eq_u32 s71, 0
    s_cbranch_scc1 R_ok
    s_cbranch_vccnz R_poll
R_ok:
    """)
    stamp(8)
    a("LtSEG3:")
    for e in range(4): a(f"    v_add_f32 v{RA+e}, v{RA+e}, v{RA+4+e}")
    for e in range(4): a(f"    v_fmac_f32 v{RB+e}, v{RB+4+e}, v{vkeep}")
    a(f"""
    v_permlane32_swap_b32 v{RA}, v{RA+2}
    v_permlane32_swap_b32 v{RA+1}, v{RA+3}
    v_permlane32_swap_b32 v{RB}, v{RB+2}
    v_permlane32_swap_b32 v{RB+1}, v{RB+3}
    v_add_f32 v{RA}, v{RA}, v{RA+2}
    v_add_f32 v{RA+1}, v{RA+1}, v{RA+3}
    v_add_f32 v{RB}, v{RB}, v{RB+2}
    v_add_f32 v{RB+1}, v{RB+1}, v{RB+3}
    s_nop 0
    v_permlane16_swap_b32 v{RA}, v{RA+1}
    v_permlane16_swap_b32 v{RB}, v{RB+1}
    v_add_f32 v{RA}, v{RA}, v{RA+1}
    v_add_f32 v{RB}, v{RB}, v{RB+1}
    s_nop 0
    v_add_f32_dpp v{RA}, v{RA}, v{RA} row_ror:8 row_mask:0xf bank_mask:0xf
    v_add_f32_dpp v{RB}, v{RB}, v{RB} row_ror:8 row_mask:0xf bank_mask:0xf
    ds_write_b32 v{vF}, v{RA} offset:{L_FIN}
    ds_write_b32 v{vF}, v{RB} offset:{L_FIN+128}
    s_waitcnt lgkmcnt(0)
    """)
    barrier()
    a(f"""
    ds_read2st64_b32 {vr(RA,2)}, v{vtid4} offset0:{L_FIN//256} offset1:{L_FIN//256+1}
    ds_read2st64_b32 {vr(RA+2,2)}, v{vtid4} offset0:{L_FIN//256+2} offset1:{L_FIN//256+3}
    s_waitcnt lgkmcnt(0)
    v_add_f32 v{RA}, v{RA}, v{RA+1}
    v_add_f32 v{RA+2}, v{RA+2}, v{RA+3}
    v_add_f32 v{RA}, v{RA}, v{RA+2}
    """)
    rbf16(RA, RA)
    a(f"""
    v_mov_b32 v{RB}, v{RA}
    v_add_f32 v{RA+1}, v{RA}, v{vX}
    s_nop 0
    v_permlane32_swap_b32 v{RA}, v{RB}
    """)
    rbf16(RA + 1, RA + 1)
    a(f"""
    v_add_f32 v{RA}, v{RA+1}, v{RB}
    v_cvt_pk_bf16_f32 v{RA}, v{RA}, v{RA}
    """)
    if warm: a("    s_cbranch_execz LtW_ret")
    a(f"""
    s_cmp_lg_u32 s3, 0
    s_cbranch_scc1 R_done
    s_mov_b32 exec_hi, 0
    buffer_store_short v{RA}, v{vO}, s[16:19], 0 offen {out_flags}
    s_cmp_lg_u32 s65, 0
    s_cbranch_scc1 R_done
    v_mov_b32 v{RB}, s35
    v_mov_b32 v{RB+1}, 0
    s_mov_b64 exec, 1
    buffer_store_dword v{RB}, v{RB+1}, s[40:43], 0 offen offset:{EPOCH} {ep_flags}
R_done:
    s_mov_b64 exec, -1
    """)
    stamp(9)
    if ackstamp:
        a("    s_waitcnt vmcnt(0)"); stamp(10)
    store_stamps()
    a("""
L_end:
    s_endpgm
L_code_end:
    """)
    print(out, "vgprs", nv, "agprs", nagpr, "lds", LDS_BYTES)
    open(out, "w").write(wrap(a.text(), 256, 256, LDS_BYTES, vgpr=accum + nagpr, accum=accum))

if __name__ == "__main__":
    gen("k8.s", stamps=True)
    gen("k8_ns.s", stamps=False)
```

```python
from gen8 import *
b = dict(stamps=False, lightmap=True, Dl=5, D=5, Dt=7, sprinkle=(2,2,1,1), spr3=3, lq=22, lo_sleep=48, pq=23, po=42, ph=45)
gen("o_a.s", **b)
gen("o_b.s", ep_flags="", **b)
gen("o_c.s", ep_flags="sc1", out_flags="sc1", **b)
```

```python
import sys
from asmgen import *

STAMP_OFF = 128 << 20
NST = 12
EPOCH = 0
QP = 0x1000
OP = 0x40000
GU = 0x180000
PA = 0x200000
PB = 0x240000
WS_SIZE = 256 << 20

L_RED = 0
L_TRASH = 2048
L_Q = 3072
L_S = 5376
L_OUT = 8192
L_OUT2 = 12288
L_FIN = 16384
L_G = 18432
L_V = 26624
LDS_BYTES = L_V + 16384

LOG2E = 0x3FB8AA3B
SCALE = 0x3DB504F3

class R:
    def __init__(self, start): self.n = start
    def a(self, k=1, al=1):
        self.n = (self.n + al - 1) // al * al
        r = self.n; self.n += k
        return r
def vr(b, n): return f"v[{b}:{b+n-1}]"
def ar(b, n): return f"a[{b}:{b+n-1}]"

class Sched:
    def __init__(self, a): self.a = a; self.items = []; self.issued = 0; self.nops = 0; self.pos = {}; self.blocked = set()
    def add(self, name, fn, n=1): self.items.append((name, fn, n))
    def issue(self):
        name, fn, n = self.items[self.issued]
        fn(); self.nops += n; self.pos[name] = self.nops; self.issued += 1
    def can(self): return self.issued < len(self.items) and self.items[self.issued][0] not in self.blocked
    def extra(self, n=1): self.nops += n
    def wait(self, name, sub=0):
        while name not in self.pos:
            assert self.can(), (name, self.items[self.issued][0])
            self.issue()
        cnt = self.nops - self.pos[name] + sub
        assert cnt <= 63
        self.a(f"    s_waitcnt vmcnt({cnt})")
    def index(self, name): return [i for i, it in enumerate(self.items) if it[0] == name][0]
    def topup(self, name, depth):
        i = self.index(name)
        while self.can() and self.issued - (i + 1) < depth: self.issue()
    def sprk(self, n):
        for _ in range(n):
            if self.can(): self.issue()

def gen(out, stamps=True, nt=True, D=5, Dl=5, pq=20, po=37, ph=44, lq=20, lo_sleep=40, lq_sleep=0, spin_max=1 << 20, warm=True,
        k0=2, k1=0, k2=2, Dt=8, sprinkle=(1, 1, 1, 1), spr3=1, dmap=None, warm_extra=3, noretry=False, nogather=False, cnt=False, pure=False, lightmap=False, fuse=True, t3local=True, ostep=None, tlb=0, ep_flags="sc1", out_flags="", ackstamp=False, late=False, oracle_q=False, rpre=0, rbet=0, par3=False, parU=False):
    a = Asm()
    NT = " nt" if nt else ""
    def stamp(i):
        if late and i in (1, 2, 3, 4, 5, 11): return
        if stamps: a(f"    s_memrealtime s[{72+2*i}:{73+2*i}]")
    def lstamp(i):
        if late: a(f"    s_memrealtime s[{72+2*i}:{73+2*i}]")
    def store_stamps():
        if not stamps: return
        lab = a.label("nost")
        a(f"""
    s_waitcnt lgkmcnt(0)
    s_cmp_lg_u32 s3, 0
    s_cbranch_scc1 {lab}
    s_mul_i32 s64, s2, {NST*8}
    s_add_u32 s64, s64, {STAMP_OFF}
    v_mov_b32 v20, 0
    s_mov_b64 exec, 1
    """)
        for i in range(NST):
            a(f"""
    v_mov_b32 v22, s{72+2*i}
    v_mov_b32 v23, s{73+2*i}
    buffer_store_dwordx2 v[22:23], v20, s[40:43], s64 offen offset:{8*i}
    s_nop 1
    """)
        a(f"{lab}:")
    def srd(base, lo, size):
        a(f"""
    s_mov_b32 s{base}, s{lo}
    s_mov_b32 s{base+1}, s{lo+1}
    s_mov_b32 s{base+2}, {size}
    s_mov_b32 s{base+3}, 0x20000
    """)
    class guard:
        def __enter__(self):
            self.l = a.label("G"); self.n = len(a.lines)
            if warm: a(f"    s_cbranch_execz {self.l}")
        def __exit__(self, *x):
            if warm:
                if len(a.lines) == self.n + 1: a.lines.pop()
                else: a(f"{self.l}:")
    def barrier():
        with guard(): a("    s_barrier")

    r = R(10)
    (vtagP, vaddP, vOT, vtid4, vPF, vG4, vWQ, vK, vWO, vPO, vQW, vQR, vSW, vSR, vTR, vred, vtag0, vGU, vWD, vPH, vJ, vG, vGU2) = [r.a() for _ in range(23)]
    XA = r.a(8, 4); XS = r.a(4, 4); XF = r.a(2, 2); T = r.a(28, 4); A = r.a(32, 4); AF = r.a(16, 4)
    D1 = r.a(4, 4); PD = r.a(16, 4); DG = r.a(16, 4); WQ = r.a(32, 4); KK = r.a(16, 4); VO = r.a(16, 4); G0 = r.a(16, 4); HG = r.a(8, 4)
    nv = r.n
    assert nv <= 256, nv
    accum = (nv + 3) // 4 * 4
    GW = 0; WD = 64; nagpr = 96
    QB = A; A3 = A + 16; A2 = A; WO = WQ

    a(f"""
    s_cmp_ge_u32 s2, 256
    s_cbranch_scc1 L_end
    s_load_dwordx16 s[4:19], s[0:1], 0
    s_load_dwordx8 s[20:27], s[0:1], 64
    """)
    if stamps:
        for i in range(1, NST): a(f"    s_mov_b64 s[{72+2*i}:{73+2*i}], 0")
    stamp(0)
    if lightmap:
        LM = """s_sub_u32 s64, s34, 28
    s_lshl_b32 s64, s64, 3
    s_add_u32 s64, s64, 3             ; 8(idx-28)+3
    s_lshr_b32 s96, s34, 3
    s_add_u32 s96, s96, 28            ; 28 + idx>>3
    s_and_b32 s97, s34, 7
    s_cmp_eq_u32 s97, 3
    s_cselect_b32 s67, s96, s34
    s_cmp_ge_u32 s34, 28
    s_cselect_b32 s67, s64, s67
    s_lshr_b32 s68, s67, 4
    s_and_b32 s64, s33, 1
    s_lshl_b32 s64, s64, 1
    s_add_u32 s68, s68, s64           ; rq
    s_and_b32 s67, s67, 15            ; cb"""
    else:
        LM = """s_and_b32 s67, s66, 15           ; cb
    s_lshr_b32 s68, s66, 4           ; rq"""
    a(f"""
    v_lshrrev_b32 v6, 6, v0
    v_and_b32 v1, 63, v0
    s_and_b32 s33, s2, 7            ; xcd
    v_readfirstlane_b32 s3, v6
    s_lshr_b32 s34, s2, 3           ; idx
    s_getpc_b64 s[96:97]
L_pc:
    s_lshl_b32 s64, s34, 2
    s_add_u32 s64, s64, s3
    s_lshl_b32 s64, s64, 7
    s_min_u32 s64, s64, L_code_end - L_pc - 4
    v_mov_b32 v9, s64
    global_load_dword v{vPF}, v9, s[96:97]
    v_lshlrev_b32 v6, 4, v1         ; lane*16
    v_lshrrev_b32 v7, 3, v1          ; l>>3
    v_and_b32 v8, 7, v1              ; l&7
    s_lshr_b32 s65, s33, 1           ; g
    s_and_b32 s66, s33, 1
    s_lshl_b32 s66, s66, 5
    s_add_u32 s66, s66, s34          ; m
    {LM}
    s_lshl_b32 s69, s68, 8
    s_lshl_b32 s64, s3, 6
    s_add_u32 s69, s69, s64          ; R0
    s_lshl_b32 s97, s69, 1
    v_lshlrev_b32 v9, 4, v7
    s_lshl_b32 s64, s69, 13
    s_lshl_b32 s96, s65, 11
    s_add_u32 s64, s64, s96
    s_lshl_b32 s96, s67, 7
    s_add_u32 s64, s64, s96
    v_lshlrev_b32 v{vWQ}, 16, v7
    v_lshl_add_u32 v{vWQ}, v8, 4, v{vWQ}
    v_add_u32 v{vWQ}, s64, v{vWQ}
    s_mul_i32 s60, s33, 28
    s_add_u32 s60, s60, s34
    s_and_b32 s61, s60, 15
    s_lshr_b32 s60, s60, 4
    s_lshl_b32 s62, s61, 6
    s_lshl_b32 s64, s3, 4
    s_add_u32 s62, s62, s64
    s_lshl_b32 s98, s62, 1
    v_lshrrev_b32 v{vG}, 4, v1
    v_and_b32 v{vJ}, 15, v1
    v_lshlrev_b32 v{vPH}, 3, v{vG}
    s_mov_b32 s38, 2048
    s_mov_b32 s39, 0x20000
    s_mov_b32 s46, {8<<20}
    s_mov_b32 s47, 0x20000
    s_mov_b32 s64, 0
    s_waitcnt lgkmcnt(0)
    s_mov_b32 s36, s4
    s_mov_b32 s37, s5
    buffer_load_dwordx4 {vr(XA,4)}, v6, s[36:39], 0 offen
    buffer_load_dwordx4 {vr(XA+4,4)}, v6, s[36:39], 0 offen offset:1024
    buffer_load_dwordx4 {vr(XS,4)}, v9, s[36:39], s97 offen
    buffer_load_dwordx2 {vr(XF,2)}, v{vPH}, s[36:39], s98 offen
    s_load_dword s28, s[26:27], {EPOCH}
    s_mov_b32 s44, s10
    s_mov_b32 s45, s11
    s_barrier
    """)
    for t in range(8):
        a(f"    buffer_load_dwordx4 {vr(WQ+4*t,4)}, v{vWQ}, s[44:47], s64 offen{NT}")
        if t < 7: a(f"    s_add_u32 s64, s64, 8192")
    a(f"""
    v_bfe_u32 v{T}, v0, 1, 2
    v_and_b32 v{T+1}, 1, v0
    v_lshlrev_b32 v{T+1}, 4, v{T+1}
    v_mov_b32 v9, 0xffff
    v_lshlrev_b32 v9, v{T+1}, v9
    v_cmp_eq_u32 vcc, 0, v{T}
    v_cmp_eq_u32 s[96:97], 1, v{T}
    v_cmp_eq_u32 s[98:99], 2, v{T}
    v_cmp_eq_u32 s[100:101], 3, v{T}
    v_cndmask_b32 v2, 0, v9, vcc
    v_cndmask_b32 v3, 0, v9, s[96:97]
    v_cndmask_b32 v4, 0, v9, s[98:99]
    v_cndmask_b32 v5, 0, v9, s[100:101]
    s_lshl_b32 s63, s65, 23
    s_lshl_b32 s96, s66, 14
    s_add_u32 s63, s63, s96
    s_lshl_b32 s96, s3, 12
    s_add_u32 s63, s63, s96
    s_add_u32 s63, s63, {28672*256}
    s_add_u32 s96, s96, {L_V}
    s_mov_b32 m0, s96
    v_lshlrev_b32 v{vK}, 8, v{vJ}
    v_lshl_add_u32 v{vK}, v{vG}, 4, v{vK}
    """)
    srd(48, 6, 32 << 20)
    srd(52, 8, 32 << 20)
    srd(40, 26, WS_SIZE)
    if tlb:
        a(f"""
    s_lshl_b32 s64, s34, 2
    s_add_u32 s64, s64, s3
    s_and_b32 s64, s64, 7
    v_lshlrev_b32 v9, {tlb}, v1
    s_mov_b32 s98, {7<<20}
    s_mov_b32 s99, 0x20000
    s_mov_b64 s[96:97], s[16:17]
    s_cmp_eq_u32 s64, 1
    s_cselect_b64 s[96:97], s[18:19], s[96:97]
    s_cmp_eq_u32 s64, 2
    s_cselect_b64 s[96:97], s[20:21], s[96:97]
    s_cmp_eq_u32 s64, 3
    s_cselect_b64 s[96:97], s[12:13], s[96:97]
    s_cselect_b32 s98, {8<<20}, s98
    s_cmp_eq_u32 s64, 4
    s_cselect_b64 s[96:97], s[26:27], s[96:97]
    s_cselect_b32 s98, {3<<20}, s98
    s_cmp_gt_u32 s64, 4
    s_cbranch_scc1 L_notlb
    buffer_load_dword v{vPF}, v9, s[96:99], 0 offen offset:2048
L_notlb:
    """)

    def allreduce2(x, y, t1, t2):
        for s_ in (8, 4, 2, 1):
            a(f"""
    s_nop 0
    v_add_f32_dpp v{x}, v{x}, v{x} row_ror:{s_} row_mask:0xf bank_mask:0xf
    v_add_f32_dpp v{y}, v{y}, v{y} row_ror:{s_} row_mask:0xf bank_mask:0xf
    """)
        for sw in ("v_permlane16_swap_b32", "v_permlane32_swap_b32"):
            a(f"""
    v_mov_b32 v{t1}, v{x}
    v_mov_b32 v{t2}, v{y}
    s_nop 0
    {sw} v{t1}, v{x}
    {sw} v{t2}, v{y}
    v_add_f32 v{x}, v{x}, v{t1}
    v_add_f32 v{y}, v{y}, v{t2}
    """)
    def allreduce1(x, t1, op="v_add_f32", steps=(8, 4, 2, 1)):
        for s_ in steps:
            a(f"""
    s_nop 1
    {op}_dpp v{x}, v{x}, v{x} row_ror:{s_} row_mask:0xf bank_mask:0xf
    """)
        for sw in ("v_permlane16_swap_b32", "v_permlane32_swap_b32"):
            a(f"""
    v_mov_b32 v{t1}, v{x}
    s_nop 1
    {sw} v{t1}, v{x}
    {op} v{x}, v{x}, v{t1}
    """)
    def rbf16(d, s_):
        a(f"""
    v_cvt_pk_bf16_f32 v{d}, v{s_}, v{s_}
    v_and_b32 v{d}, 0xffff0000, v{d}
    """)
    a(f"""
    v_lshrrev_b32 v{vred}, 2, v1
    v_xor_b32 v{vred}, v{vred}, v1
    v_and_b32 v{vred}, 8, v{vred}
    v_cmp_eq_u32 vcc, 0, v{vred}
    v_lshlrev_b32 v{vred}, 5, v8
    v_bfe_u32 v9, v1, 4, 1
    v_lshl_add_u32 v{vred}, v9, 4, v{vred}
    v_lshrrev_b32 v9, 5, v1
    v_lshl_add_u32 v{vred}, v9, 8, v{vred}
    s_lshl_b32 s64, s3, 9
    v_add_u32 v{vred}, s64, v{vred}
    v_add_u32 v9, {L_TRASH}, v6
    v_cndmask_b32 v{vred}, v9, v{vred}, vcc
    v_lshlrev_b32 v{vtid4}, 2, v0
    v_and_b32 v{vG4}, 3, v1
    v_lshlrev_b32 v{vtagP}, 3, v{vG4}
    s_lshl_b32 s44, s65, 14
    s_add_u32 s44, s44, {QP}
    s_lshl_b32 s45, s68, 12
    s_add_u32 s45, s45, s44
    s_lshl_b32 s96, s67, 8
    s_add_u32 s45, s45, s96
    s_waitcnt lgkmcnt(0)
    s_and_b32 s28, s28, 0x7f
    s_cmp_eq_u32 s28, 127
    s_cselect_b32 s28, 0, s28
    s_add_u32 s35, s28, 1
    s_add_u32 s29, s28, 33
    s_sub_u32 s64, s29, 127
    s_cmp_gt_u32 s29, 127
    s_cselect_b32 s29, s64, s29
    s_add_u32 s30, s28, 65
    s_sub_u32 s64, s30, 127
    s_cmp_gt_u32 s30, 127
    s_cselect_b32 s30, s64, s30
    s_add_u32 s31, s28, 97
    s_sub_u32 s64, s31, 127
    s_cmp_gt_u32 s31, 127
    s_cselect_b32 s31, s64, s31
    s_add_u32 s28, s28, 1
    s_lshl_b32 s32, s29, 8
    s_or_b32 s32, s32, s28
    s_lshl_b32 s64, s30, 16
    s_or_b32 s32, s32, s64
    s_lshl_b32 s64, s31, 24
    s_or_b32 s32, s32, s64
    s_movk_i32 s70, 0xff
    v_bfe_u32 v{vtagP}, s32, v{vtagP}, 8
    v_sub_u32 v{vaddP}, 0x80, v{vtagP}
    """)
    def kv_issue(i):
        if i < 4: a(f"    buffer_load_dwordx4 {vr(KK+4*i,4)}, v{vK}, s[48:51], s63 offen offset:{64*i}{NT}")
        else: a(f"    buffer_load_dwordx4 v6, s[52:55], s63 offen offset:{1024*(i-4)}{NT} lds")
    a(f"    s_waitcnt vmcnt(10)")
    stamp(1)
    for i in range(k0): kv_issue(i)
    for k in range(8):
        a(f"""
    v_lshlrev_b32 v{T+2*k}, 16, v{XA+k}
    v_and_b32 v{T+2*k+1}, 0xffff0000, v{XA+k}
    """)
    a(f"""
    v_readfirstlane_b32 s64, v{T}
    s_nop 1
    """)
    for k in range(16): a(f"    v_subrev_f32 v{T+k}, s64, v{T+k}")
    a(f"""
    v_pk_add_f32 {vr(T+16,2)}, {vr(T,2)}, {vr(T+2,2)}
    v_pk_mul_f32 {vr(T+18,2)}, {vr(T,2)}, {vr(T,2)}
    """)
    for k in range(1, 8):
        a(f"    v_pk_fma_f32 {vr(T+18,2)}, {vr(T+2*k,2)}, {vr(T+2*k,2)}, {vr(T+18,2)}")
        if k >= 2: a(f"    v_pk_add_f32 {vr(T+16,2)}, {vr(T+16,2)}, {vr(T+2*k,2)}")
    S1, S2, t1, t2 = T + 16, T + 18, T + 17, T + 19
    a(f"""
    v_add_f32 v{S1}, v{S1}, v{t1}
    v_add_f32 v{S2}, v{S2}, v{t2}
    s_nop 0
    """)
    allreduce2(S1, S2, t1, t2)
    mean, var, rs, sd = T, T + 1, T + 2, T + 3
    a(f"""
    v_mul_f32 v{S1}, 0x3a800000, v{S1}
    v_mul_f32 v{S2}, 0x3a800000, v{S2}
    v_add_f32 v{mean}, s64, v{S1}
    v_fma_f32 v{var}, -v{S1}, v{S1}, v{S2}
    v_max_f32 v{var}, 0, v{var}
    """)
    rbf16(mean, mean); rbf16(var, var)
    a(f"    v_add_f32 v{var}, 0x3727c5ac, v{var}")
    rbf16(var, var)
    a(f"""
    v_sqrt_f32 v{sd}, v{var}
    s_waitcnt vmcnt({8+k0})
    """)
    for i in range(k0, k0 + k1): kv_issue(i)
    rbf16(sd, sd)
    a(f"    v_rcp_f32 v{rs}, v{sd}")
    Dd = T + 4; Q = T + 16
    def norm(src, dst):
        n = len(src)
        for k in range(n):
            a(f"""
    v_lshlrev_b32 v{Dd+2*k}, 16, v{src[k]}
    v_and_b32 v{Dd+2*k+1}, 0xffff0000, v{src[k]}
    """)
        for k in range(2*n): a(f"    v_sub_f32 v{Dd+k}, v{Dd+k}, v{mean}")
        for k in range(n): a(f"    v_cvt_pk_bf16_f32 v{src[k]}, v{Dd+2*k}, v{Dd+2*k+1}")
        for k in range(n):
            a(f"""
    v_lshlrev_b32 v{Dd+2*k}, 16, v{src[k]}
    v_and_b32 v{Dd+2*k+1}, 0xffff0000, v{src[k]}
    """)
        for k in range(2*n): a(f"    v_mul_f32 v{Q+k}, v{Dd+k}, v{rs}")
        for k in range(2*n): a(f"    v_fma_f32 v{Dd+k}, -v{Q+k}, v{sd}, v{Dd+k}")
        for k in range(2*n): a(f"    v_fmac_f32 v{Q+k}, v{Dd+k}, v{rs}")
        for k in range(2*n): a(f"    v_cvt_pk_bf16_f32 v{Q+k}, v{Q+k}, v{Q+k}")
        for k in range(2*n):
            for m_ in range(4): a(f"    v_and_b32 v{dst+4*k+m_}, v{Q+k}, v{2+m_}")
    norm([XS, XS + 1, XS + 2, XS + 3], A)
    stamp(2)
    for i in range(k0 + k1, k0 + k1 + k2): kv_issue(i)
    norm([XF, XF + 1], AF)
    PU = f"""s_movk_i32 s21, 16384
    v_mov_b32 v{vGU2}, v{vGU}"""
    if parU:
        PU = f"""s_and_b32 s96, s60, 1
    s_cmp_eq_u32 s96, 0
    s_movk_i32 s21, -16384
    s_cselect_b32 s21, {16384+32768}, s21
    v_xor_b32 v{vGU2}, 512, v{vGU}"""
    srd(56, 12, 8 << 20)
    srd(4, 16, 7 << 20)
    srd(8, 18, 7 << 20)
    srd(12, 20, 7 << 20)
    srd(16, 22, 2048)
    a(f"""
    v_bfe_u32 v9, v1, 4, 1
    v_lshlrev_b32 v{vOT}, 5, v{vJ}
    v_lshl_add_u32 v{vOT}, v9, 4, v{vOT}
    s_lshl_b32 s64, s3, 10
    v_add_u32 v{vOT}, s64, v{vOT}
    v_lshlrev_b32 v{vG4}, 4, v{vG4}
    {"s_lshr_b32 s67, s66, 2" if t3local else ""}
    {"s_and_b32 s68, s66, 3" if t3local else ""}
    {"s_xor_b32 s68, s68, 1" if par3 else ""}
    ; wo voffset
    s_lshl_b32 s64, s65, 10
    s_and_b32 s96, s3, 1
    s_lshl_b32 s96, s96, 9
    s_add_u32 s64, s64, s96
    s_lshr_b32 s96, s67, 2
    s_lshl_b32 s96, s96, 5
    s_add_u32 s64, s64, s96
    s_lshr_b32 s96, s3, 1
    s_lshl_b32 s96, s96, 4
    s_add_u32 s64, s64, s96
    s_and_b32 s96, s67, 3
    s_lshl_b32 s96, s96, 2
    s_add_u32 s64, s64, s96
    s_lshl_b32 s64, s64, 11
    s_lshl_b32 s96, s68, 9
    s_add_u32 s64, s64, s96
    v_lshlrev_b32 v{vWD}, 11, v{vG}
    v_lshl_add_u32 v{vWD}, v{vJ}, 4, v{vWD}
    v_add_u32 v{vWO}, s64, v{vWD}
    v_mul_u32_u24 v{vQR}, 272, v8
    v_lshl_add_u32 v{vQR}, v{vG}, 4, v{vQR}
    v_mul_u32_u24 v{vSW}, 144, v8
    v_lshl_add_u32 v{vSR}, v{vG}, 4, v{vSW}
    v_bfe_u32 v9, v1, 3, 1
    v_lshl_add_u32 v{vSR}, v9, 6, v{vSR}
    v_lshl_add_u32 v{vSW}, v{vG}, 3, v{vSW}
    s_lshl_b32 s96, s3, 5
    v_add_u32 v{vSW}, s96, v{vSW}
    v_bfe_u32 v9, v1, 2, 2
    v_lshl_add_u32 v{vTR}, v{vG}, 3, v9
    v_lshlrev_b32 v{vTR}, 8, v{vTR}
    v_lshrrev_b32 v9, 1, v{vG4}
    s_lshl_b32 s96, s3, 6
    v_add3_u32 v{vTR}, v{vTR}, v9, s96
    v_lshrrev_b32 v{vQW}, 5, v0
    v_and_b32 v9, 31, v0
    v_mul_u32_u24 v{vQW}, 272, v{vQW}
    v_lshl_add_u32 v{vQW}, v9, 3, v{vQW}
    v_lshrrev_b32 v9, 2, v1
    v_lshl_add_u32 v{vPO}, v9, 12, v{vG4}
    v_lshl_add_u32 v{vPH}, v9, 10, v{vG4}
    s_mul_i32 s64, s62, 7168
    s_lshl_b32 s96, s60, 9
    s_add_u32 s64, s64, s96
    v_mul_u32_u24 v{vGU}, {4*7168}, v{vG}
    v_lshl_add_u32 v{vGU}, v{vJ}, 4, v{vGU}
    v_add_u32 v{vGU}, s64, v{vGU}
    {PU}
    s_lshr_b32 s98, s61, 2
    s_lshl_b32 s62, s60, 2
    s_add_u32 s62, s62, s98
    s_and_b32 s69, s61, 3
    s_lshl_b32 s64, s62, 6
    s_lshl_b32 s96, s3, 4
    s_add_u32 s64, s64, s96
    s_lshl_b32 s64, s64, 11
    s_lshl_b32 s96, s69, 9
    s_add_u32 s64, s64, s96
    v_add_u32 v{vWD}, s64, v{vWD}
    s_lshl_b32 s62, s62, 12
    s_lshl_b32 s64, s69, 10
    s_add_u32 s62, s62, s64
    s_add_u32 s62, s62, {PB}
    s_lshl_b32 s60, s60, 15
    s_add_u32 s60, s60, {GU}
    s_lshl_b32 s61, s61, 10
    s_add_u32 s61, s61, s60
    s_lshl_b32 s64, s98, 8
    s_add_u32 s60, s60, s64
    s_lshl_b32 s64, s3, 6
    s_add_u32 s60, s60, s64
    s_lshl_b32 s96, s67, 8
    s_lshl_b32 s97, s3, 10
    s_add_u32 s20, s44, s97
    s_lshl_b32 s23, s65, 18
    s_add_u32 s23, s23, {OP}
    s_add_u32 s22, s23, s96
    s_add_u32 s22, s22, s64
    s_lshl_b32 s96, s66, 12
    s_add_u32 s23, s23, s96
    s_add_u32 s23, s23, s97
    s_lshl_b32 s69, s65, 4
    s_add_u32 s69, s69, s67
    s_lshl_b32 s69, s69, 12
    s_lshl_b32 s96, s68, 10
    s_add_u32 s69, s69, s96
    s_add_u32 s69, s69, {PA}
    s_mov_b32 s24, {SCALE}
    s_mov_b32 s25, {LOG2E}
    v_mov_b32 v{vtag0}, s28
    s_mov_b32 s26, 0x07060500
    s_mov_b32 s27, 0x07060501
    s_mov_b32 s66, 0x07060502
    s_mov_b32 s67, 0x07060503
    s_mov_b32 s68, 0x0c04000c
    """)
    R_ = T + 8
    nk = k0 + k1 + k2
    for t in range(8):
        a(f"    s_waitcnt vmcnt({7 - t + nk})")
        srcc = "0" if t == 0 else vr(D1, 4)
        a(f"    v_mfma_f32_16x16x32_bf16 {vr(D1,4)}, {vr(A+4*t,4)}, {vr(WQ+4*t,4)}, {srcc}")
        while nk < 8 and t < 7 and (7 - t) + nk < Dt:
            kv_issue(nk); nk += 1
    kpre = nk
    a(f"""
    s_nop 7
    ds_write_b128 v{vred}, {vr(D1,4)} offset:{L_RED}
    s_waitcnt lgkmcnt(0)
    s_barrier
    s_cmp_lg_u32 s3, 0
    s_cbranch_scc1 L_nored
    ds_read2st64_b32 {vr(R_,2)}, v{vtid4} offset0:0 offset1:1
    ds_read2st64_b32 {vr(R_+2,2)}, v{vtid4} offset0:2 offset1:3
    ds_read2st64_b32 {vr(R_+4,2)}, v{vtid4} offset0:4 offset1:5
    ds_read2st64_b32 {vr(R_+6,2)}, v{vtid4} offset0:6 offset1:7
    s_waitcnt lgkmcnt(0)
    v_add_f32 v{R_}, v{R_}, v{R_+1}
    v_add_f32 v{R_+2}, v{R_+2}, v{R_+3}
    v_add_f32 v{R_+4}, v{R_+4}, v{R_+5}
    v_add_f32 v{R_+6}, v{R_+6}, v{R_+7}
    v_add_f32 v{R_}, v{R_}, v{R_+2}
    v_add_f32 v{R_+4}, v{R_+4}, v{R_+6}
    v_add_f32 v{R_}, v{R_}, v{R_+4}
    v_add_u32 v{R_}, v{R_}, v{vaddP}
    v_bfi_b32 v{R_}, s70, v{vtagP}, v{R_}
    buffer_store_dword v{R_}, v{vtid4}, s[40:43], s45 offen sc1
L_nored:
    """)
    stamp(3)
    a("""
    s_cmp_ge_u32 s34, 28
    s_cbranch_scc1 L_light
    """)
    PSEL = (26, 27, 66, 67)

    def abuild(H, AA):
        a("    s_nop 1")
        for u in range(4):
            for m_ in range(4):
                a(f"    v_and_b32_dpp v{AA+4*u+m_}, v{H}, v{2+m_} quad_perm:[{u},{u},{u},{u}] row_mask:0xf bank_mask:0xf")
    def merge2(X, Y, full_y):
        if full_y:
            a(f"""
    s_nop 0
    v_permlane32_swap_b32 v{X}, v{X+2}
    v_permlane32_swap_b32 v{X+1}, v{X+3}
    v_permlane32_swap_b32 v{Y}, v{Y+2}
    v_permlane32_swap_b32 v{Y+1}, v{Y+3}
    v_add_f32 v{X}, v{X}, v{X+2}
    v_add_f32 v{X+1}, v{X+1}, v{X+3}
    v_add_f32 v{Y}, v{Y}, v{Y+2}
    v_add_f32 v{Y+1}, v{Y+1}, v{Y+3}
    s_nop 0
    v_permlane16_swap_b32 v{X}, v{X+1}
    v_permlane16_swap_b32 v{Y}, v{Y+1}
    v_add_f32 v{X}, v{X}, v{X+1}
    v_add_f32 v{Y}, v{Y}, v{Y+1}
    """)
        else:
            a(f"""
    v_mov_b32 v{Y+1}, v{Y}
    s_nop 0
    v_permlane32_swap_b32 v{X}, v{X+2}
    v_permlane32_swap_b32 v{X+1}, v{X+3}
    v_permlane32_swap_b32 v{Y+1}, v{Y}
    v_add_f32 v{X}, v{X}, v{X+2}
    v_add_f32 v{X+1}, v{X+1}, v{X+3}
    v_add_f32 v{Y}, v{Y}, v{Y+1}
    s_nop 0
    v_mov_b32 v{Y+1}, v{Y}
    v_permlane16_swap_b32 v{X}, v{X+1}
    s_nop 0
    v_permlane16_swap_b32 v{Y+1}, v{Y}
    v_add_f32 v{X}, v{X}, v{X+1}
    v_add_f32 v{Y}, v{Y}, v{Y+1}
    """)
        for s_ in (8, 4):
            a(f"""
    s_nop 0
    v_add_f32_dpp v{X}, v{X}, v{X} row_ror:{s_} row_mask:0xf bank_mask:0xf
    v_add_f32_dpp v{Y}, v{Y}, v{Y} row_ror:{s_} row_mask:0xf bank_mask:0xf
    """)

    def path(ffn, P):
        S = Sched(a)
        def seg_end():
            if warm: a(f"    s_cbranch_execz {P}W_ret")
        def gsprk(n):
            with guard(): S.sprk(n)
        def gwait(name, sub=0):
            with guard(): S.wait(name, sub)
        def out_tail(Dx, Tt, lds, out_off_s):
            a(f"""
    s_nop 6
    ds_write_b128 v{vOT}, {vr(Dx,4)} offset:{lds}
    ds_write_b128 v{vOT}, {vr(Dx+4,4)} offset:{lds+512}
    s_waitcnt lgkmcnt(0)
    """)
            barrier()
            a(f"""
    ds_read2st64_b32 {vr(Tt+2,2)}, v{vtid4} offset0:{lds//256} offset1:{lds//256+4}
    ds_read2st64_b32 {vr(Tt+4,2)}, v{vtid4} offset0:{lds//256+8} offset1:{lds//256+12}
    s_waitcnt lgkmcnt(0)
    v_add_f32 v{Tt+2}, v{Tt+2}, v{Tt+3}
    v_add_f32 v{Tt+4}, v{Tt+4}, v{Tt+5}
    v_add_f32 v{Tt+2}, v{Tt+2}, v{Tt+4}
    v_add_u32 v{Tt+2}, v{Tt+2}, v{vaddP}
    v_bfi_b32 v{Tt+2}, s70, v{vtagP}, v{Tt+2}
    """)
            seg_end()
            a(f"    buffer_store_dword v{Tt+2}, v{vtid4}, s[40:43], s{out_off_s} offen sc1")
            S.extra(1)
        for t in range(8):
            S.items.append((f"wq{t}", None, 1)); S.nops += 1; S.pos[f"wq{t}"] = S.nops; S.issued += 1
        base = []
        for i in range(8): base.append((f"kv{i}", (lambda i=i: kv_issue(i)), 1))
        def mk_gu(i):
            u, mat, c = i // 4, (i // 2) % 2, i % 2
            def f():
                so = "0"
                if u: a(f"    s_movk_i32 s99, {u*7168}"); so = "s99"
                a(f"    buffer_load_dwordx4 {ar(GW+4*i,4)}, v{vGU2 if mat else vGU}, s[{4+4*mat}:{7+4*mat}], {so} offen offset:{256*c}{NT}")
            return f
        def mk_wo(k):
            u, c = k // 2, k % 2
            def f():
                so = "0"
                if u: a(f"    s_mov_b32 s99, {u*0x40000}"); so = "s99"
                a(f"    buffer_load_dwordx4 {vr(WO+4*k,4)}, v{vWO}, s[56:59], {so} offen offset:{c*256}{NT}")
            return f
        def mk_wd(k):
            u, c = k // 2, k % 2
            def f():
                so = "0"
                if u: a(f"    s_movk_i32 s99, {u*8192}"); so = "s99"
                a(f"    buffer_load_dwordx4 {ar(WD+4*k,4)}, v{vWD}, s[12:15], {so} offen offset:{c*256}{NT}")
            return f
        def pollq():
            if not ffn and lq_sleep: a(f"    s_sleep {lq_sleep}")
            pollq2()
        def pollq2():
            if nogather or oracle_q:
                for k in range(4): a(f"    buffer_load_dwordx4 {vr(G0+4*k,4)}, v6, s[36:39], 0 offen")
                return
            a(f"    buffer_load_dwordx4 {vr(G0,4)}, v6, s[40:43], s20 offen sc1")
            for k in range(1, 4):
                a(f"    s_add_u32 s99, s20, {4096*k}")
                a(f"    buffer_load_dwordx4 {vr(G0+4*k,4)}, v6, s[40:43], s99 offen sc1")
        def pollo():
            if not ffn and lo_sleep: a(f"    s_waitcnt vmcnt(0)\n    s_sleep {lo_sleep}")
            pollo2()
        def pollo2():
            if nogather:
                for k in range(4): a(f"    buffer_load_dwordx4 {vr(G0+4*k,4)}, v6, s[36:39], 0 offen")
                return
            a(f"    buffer_load_dwordx4 {vr(G0,4)}, v{vPO}, s[40:43], s22 offen sc1")
            for k in range(1, 4):
                a(f"    s_add_u32 s99, s22, {0x10000*k}")
                a(f"    buffer_load_dwordx4 {vr(G0+4*k,4)}, v{vPO}, s[40:43], s99 offen sc1")
        def pollh():
            if nogather:
                for k in range(2): a(f"    buffer_load_dwordx4 {vr(HG+4*k,4)}, v6, s[36:39], 0 offen")
                return
            a(f"""
    buffer_load_dwordx4 {vr(HG,4)}, v{vPH}, s[40:43], s60 offen sc1
    s_add_u32 s99, s60, 16384
    buffer_load_dwordx4 {vr(HG+4,4)}, v{vPH}, s[40:43], s99 offen sc1
    """)
        if ffn:
            for i in range(16): base.append((f"gu{i}", mk_gu(i), 1))
        for k in range(8): base.append((f"wo{k}", mk_wo(k), 1))
        if ffn:
            for k in range(8): base.append((f"wd{k}", mk_wd(k), 1))
        Pl = [] if pure else [(pq, ("pq", pollq, 4)), (po, ("po", pollo, 4)), (ph, ("ph", pollh, 2))] if ffn else [(lq, ("pq", pollq, 4)), (99, ("po", pollo, 4))]
        for i, it in enumerate(base):
            for p, pit in Pl:
                if p == i + 8: S.add(*pit)
            S.add(*it)
        for p, pit in Pl:
            if p >= len(base) + 8: S.add(*pit)
        for i in range(kpre):
            name = S.items[S.issued][0]; assert name == f"kv{i}"
            S.nops += 1; S.pos[name] = S.nops; S.issued += 1
        names = [it[0] for it in S.items]
        S.blocked |= {"po", "ph"}
        def retry(lab, fn, check):
            if noretry or (oracle_q and lab.endswith("rq")): return
            if cnt:
                bit = {"rq": 100, "ro": 1000, "rh": 10000}[lab[-2:]]
                a(f"""
    s_nop 1
    s_cbranch_vccz {lab}_c
    s_add_u32 s94, s94, {bit}
    s_addc_u32 s95, s95, 0
{lab}_c:
    """)
            a(f"""
    s_nop 1
    s_cbranch_vccz {lab}_ok
    s_mov_b32 s71, {spin_max}
{lab}:
    """)
            fn()
            a("    s_waitcnt vmcnt(0)")
            check(True)
            a(f"""
    s_sub_u32 s71, s71, 1
    s_cmp_eq_u32 s71, 0
    s_cbranch_scc1 {lab}_ok
    s_cbranch_vccnz {lab}
{lab}_ok:
    """)
        if pure:
            for name in names:
                if name.startswith("wq"): continue
                S.wait(name); S.topup(name, D if ffn else Dl)
                if name == "kv7": stamp(4)
                if name == "gu7": stamp(5)
                if name == "gu15": stamp(8)
                if name == "wo7": stamp(7)
                if name == "wd7": stamp(10)
            if not ffn:
                store_stamps(); a("    s_endpgm\nLtW_ret:")
            return
        S.blocked.add("pq"); S.sprk(warm_extra); S.blocked.discard("pq")
        if warm:
            a(f"""
    s_mov_b64 exec, 0
    s_cmp_eq_u32 s3, 0
    s_cbranch_scc1 {P}SEG0
    s_cmp_eq_u32 s3, 1
    s_cbranch_scc1 {P}SEG1
    s_cmp_eq_u32 s3, 2
    s_cbranch_scc1 {P}SEG2
    s_branch {P}SEG3
{P}W_ret:
    s_mov_b64 exec, -1
    """)
        if cnt: a('    s_waitcnt lgkmcnt(0)\n    s_mov_b64 s[94:95], s[72:73]')
        else: stamp(11)
        t3_done = False; have_o = False; have_h = False
        DD = D if ffn else Dl
        for name in names:
            depth = DD
            if dmap and ffn:
                for k_, v_ in dmap:
                    if names.index(name) >= k_: depth = v_
            def std():
                with guard():
                    S.wait(name); S.topup(name, depth)
                    if ffn and name == "wo3": lstamp(2)
                    if ffn and name == "wo7": lstamp(3)
                    if name == "wd7": lstamp(11)
            if name.startswith("wq"):
                pass
            elif name.startswith("kv"):
                std()
                if name == "kv7":
                    a("    s_barrier")
                    for s_ in range(2):
                        for c in range(2):
                            for h in range(2):
                                a(f"    ds_read_b64_tr_b16 {vr(VO+(s_*2+c)*4+2*h,2)}, v{vTR} offset:{L_V + s_*8192 + h*1024 + c*32}")
            elif name.startswith("gu"):
                i = int(name[2:]); u, dd = i // 4, i % 4
                with guard(): S.wait(name)
                srcc = "0" if u == 0 else vr(DG + 4 * dd, 4)
                a(f"    v_mfma_f32_16x16x32_bf16 {vr(DG+4*dd,4)}, {vr(AF+4*u,4)}, {ar(GW+4*i,4)}, {srcc}")
                with guard(): S.topup(name, depth)
                if i == 15:
                    lstamp(1)
                    a(f"""
    s_nop 4
{P}SEG3:
    ds_write_b128 v{vOT}, {vr(DG,4)} offset:{L_G}
    ds_write_b128 v{vOT}, {vr(DG+4,4)} offset:{L_G+512}
    ds_write_b128 v{vOT}, {vr(DG+8,4)} offset:{L_G+4096}
    ds_write_b128 v{vOT}, {vr(DG+12,4)} offset:{L_G+4096+512}
    s_waitcnt lgkmcnt(0)
    """)
                    barrier()
                    o = L_G // 256
                    a(f"""
    ds_read2st64_b32 {vr(T,2)}, v{vtid4} offset0:{o} offset1:{o+4}
    ds_read2st64_b32 {vr(T+2,2)}, v{vtid4} offset0:{o+8} offset1:{o+12}
    ds_read2st64_b32 {vr(T+4,2)}, v{vtid4} offset0:{o+16} offset1:{o+20}
    ds_read2st64_b32 {vr(T+6,2)}, v{vtid4} offset0:{o+24} offset1:{o+28}
    s_add_u32 s99, s61, s21
    s_waitcnt lgkmcnt(0)
    v_add_f32 v{T}, v{T}, v{T+1}
    v_add_f32 v{T+2}, v{T+2}, v{T+3}
    v_add_f32 v{T+4}, v{T+4}, v{T+5}
    v_add_f32 v{T+6}, v{T+6}, v{T+7}
    v_add_f32 v{T}, v{T}, v{T+2}
    v_add_f32 v{T+4}, v{T+4}, v{T+6}
    v_add_u32 v{T}, v{T}, v{vaddP}
    v_add_u32 v{T+4}, v{T+4}, v{vaddP}
    v_bfi_b32 v{T}, s70, v{vtagP}, v{T}
    v_bfi_b32 v{T+4}, s70, v{vtagP}, v{T+4}
    """)
                    if warm: a(f"    s_cbranch_execz {P}SEG3b")
                    a(f"""
    buffer_store_dword v{T}, v{vtid4}, s[40:43], s61 offen sc1
    buffer_store_dword v{T+4}, v{vtid4}, s[40:43], s99 offen sc1
    """)
                    S.extra(2)
                    stamp(8)
                    S.blocked -= {"ph"}
                    S.sprk(1)
            elif name == "pq":
                acc = T
                def chk(re):
                    a(f"""
    v_mov_b32 v{acc}, 0
    v_mov_b32 v{acc+1}, 0
    """)
                    for k in range(4):
                        if not re: gwait("pq", 3 - k)
                        for e in range(4): a(f"    v_msad_u8 v{acc+(e&1)}, v{G0+4*k+e}, s{28+e}, v{acc+(e&1)}")
                    a(f"""
    v_or_b32 v{acc}, v{acc}, v{acc+1}
    v_cmp_ne_u32 vcc, 0, v{acc}
    """)
                while "pq" not in S.pos: S.issue()
                a(f"{P}SEG0:")
                chk(False)
                retry(f"{P}rq", pollq2, chk)
                with guard(): stamp(4)
                QS = T + 4
                a(f"""
    v_pk_add_f32 {vr(QS,2)}, {vr(G0,2)}, {vr(G0+4,2)}
    v_pk_add_f32 {vr(QS+2,2)}, {vr(G0+2,2)}, {vr(G0+6,2)}
    v_pk_add_f32 {vr(QS+4,2)}, {vr(G0+8,2)}, {vr(G0+12,2)}
    v_pk_add_f32 {vr(QS+6,2)}, {vr(G0+10,2)}, {vr(G0+14,2)}
    v_pk_add_f32 {vr(QS,2)}, {vr(QS,2)}, {vr(QS+4,2)}
    v_pk_add_f32 {vr(QS+2,2)}, {vr(QS+2,2)}, {vr(QS+6,2)}
    v_cvt_pk_bf16_f32 v{QS}, v{QS}, v{QS+1}
    v_cvt_pk_bf16_f32 v{QS+1}, v{QS+2}, v{QS+3}
    ds_write_b64 v{vQW}, {vr(QS,2)} offset:{L_Q}
    """)
                with guard(): S.topup(name, depth)
                a("    s_waitcnt lgkmcnt(0)")
                barrier()
                a(f"""
    ds_read_b128 {vr(QB,4)}, v{vQR} offset:{L_Q}
    ds_read_b128 {vr(QB+4,4)}, v{vQR} offset:{L_Q+64}
    ds_read_b128 {vr(QB+8,4)}, v{vQR} offset:{L_Q+128}
    ds_read_b128 {vr(QB+12,4)}, v{vQR} offset:{L_Q+192}
    """)
                gsprk(sprinkle[0])
                for t in range(4):
                    srcc = "0" if t == 0 else vr(D1, 4)
                    a(f"    s_waitcnt lgkmcnt({3-t})")
                    a(f"    v_mfma_f32_16x16x32_bf16 {vr(D1,4)}, {vr(KK+4*t,4)}, {vr(QB+4*t,4)}, {srcc}")
                Sx = T + 4
                a(f"""
    s_nop 7
    v_cvt_pk_bf16_f32 v{T}, v{D1}, v{D1+1}
    v_cvt_pk_bf16_f32 v{T+1}, v{D1+2}, v{D1+3}
    v_lshlrev_b32 v{Sx}, 16, v{T}
    v_and_b32 v{Sx+1}, 0xffff0000, v{T}
    v_lshlrev_b32 v{Sx+2}, 16, v{T+1}
    v_and_b32 v{Sx+3}, 0xffff0000, v{T+1}
    v_mul_f32 v{Sx}, s24, v{Sx}
    v_mul_f32 v{Sx+1}, s24, v{Sx+1}
    v_mul_f32 v{Sx+2}, s24, v{Sx+2}
    v_mul_f32 v{Sx+3}, s24, v{Sx+3}
    v_cvt_pk_bf16_f32 v{T}, v{Sx}, v{Sx+1}
    v_cvt_pk_bf16_f32 v{T+1}, v{Sx+2}, v{Sx+3}
    ds_write_b64 v{vSW}, {vr(T,2)} offset:{L_S}
    s_waitcnt lgkmcnt(0)
    """)
                seg_end()
                mx, tmp, lsum, wv, rl = T + 12, T + 13, T + 14, T + 15, T + 16
                Pp = T + 20
                a(f"""
    s_barrier
{P}SEG1:
    ds_read_b128 {vr(T,4)}, v{vSR} offset:{L_S}
    """)
                gsprk(sprinkle[1])
                a("    s_waitcnt lgkmcnt(0)")
                for k in range(4):
                    a(f"""
    v_lshlrev_b32 v{Sx+2*k}, 16, v{T+k}
    v_and_b32 v{Sx+2*k+1}, 0xffff0000, v{T+k}
    """)
                a(f"""
    v_max3_f32 v{mx}, v{Sx}, v{Sx+1}, v{Sx+2}
    v_max3_f32 v{tmp}, v{Sx+3}, v{Sx+4}, v{Sx+5}
    v_max3_f32 v{mx}, v{Sx+6}, v{Sx+7}, v{mx}
    v_max_f32 v{mx}, v{mx}, v{tmp}
    """)
                allreduce1(mx, tmp, op="v_max_f32", steps=(8,))
                a(f"    v_mul_f32 v{mx}, s25, v{mx}")
                for k in range(8): a(f"    v_fma_f32 v{Sx+k}, v{Sx+k}, s25, -v{mx}")
                for k in range(8): a(f"    v_exp_f32 v{Sx+k}, v{Sx+k}")
                for k in range(4): a(f"    v_cvt_pk_bf16_f32 v{Pp+k}, v{Sx+2*k}, v{Sx+2*k+1}")
                a(f"""
    v_pk_add_f32 {vr(T,2)}, {vr(Sx,2)}, {vr(Sx+2,2)}
    v_pk_add_f32 {vr(T+2,2)}, {vr(Sx+4,2)}, {vr(Sx+6,2)}
    """)
                for sc in (0, 2, 1, 3):
                    a(f"    v_mfma_f32_16x16x32_bf16 {vr(PD+4*sc,4)}, {vr(VO+4*sc,4)}, {vr(Pp,4)}, 0")
                gsprk(sprinkle[2])
                a(f"""
    v_pk_add_f32 {vr(T,2)}, {vr(T,2)}, {vr(T+2,2)}
    v_add_f32 v{lsum}, v{T}, v{T+1}
    """)
                allreduce1(lsum, tmp, steps=(8,))
                X = D1
                a(f"""
    v_log_f32 v{wv}, v{lsum}
    v_rcp_f32 v{rl}, v{lsum}
    """)
                for e in range(4): a(f"    v_add_f32_dpp v{X+e}, v{PD+8+e}, v{PD+e} row_ror:8 row_mask:0xf bank_mask:0x3")
                a(f"    v_add_f32 v{wv}, v{wv}, v{mx}")
                for e in range(4): a(f"    v_add_f32_dpp v{X+e}, v{PD+4+e}, v{PD+12+e} row_ror:8 row_mask:0xf bank_mask:0xc")
                a(f"""
    v_add_u32 v{wv}, 0x80, v{wv}
    v_bfi_b32 v{wv}, s70, v{vtag0}, v{wv}
    """)
                for e in range(4): a(f"    v_mul_f32 v{X+e}, v{X+e}, v{rl}")
                for e in range(4): a(f"    v_perm_b32 v{X+e}, v{X+e}, v{wv}, s{PSEL[e]}")
                seg_end()
                a(f"    buffer_store_dwordx4 {vr(X,4)}, v6, s[40:43], s23 offen sc1")
                S.extra(1)
                stamp(5)
                S.blocked -= {"po"}
                S.sprk(sprinkle[3])
            elif name == "po":
                F = T + 8
                def chk(re):
                    a(f"    v_mov_b32 v{T+3}, 0")
                    for k in range(4):
                        if not re: gwait("po", 3 - k)
                        a(f"""
    v_msad_u8 v{T+3}, v{G0+4*k}, s28, v{T+3}
    v_perm_b32 v{F+k}, v{G0+4*k+2}, v{G0+4*k+1}, s68
    v_lshl_or_b32 v{F+k}, v{G0+4*k+3}, 24, v{F+k}
    """)
                    a(f"    v_cmp_ne_u32 vcc, 0, v{T+3}")
                while "po" not in S.pos: S.issue()
                lstamp(4)
                a(f"{P}SEG2:")
                chk(False)
                retry(f"{P}ro", pollo2, chk)
                with guard():
                    stamp(6); S.topup(name, depth + spr3)
                a(f"""
    v_max_f32 v{T+4}, v{F}, v{F+1}
    v_max3_f32 v{T+4}, v{F+2}, v{F+3}, v{T+4}
    """)
                allreduce1(T + 4, T + 5, op="v_max_f32", steps=(8, 4))
                for k in range(4): a(f"    v_sub_f32 v{F+k}, v{F+k}, v{T+4}")
                for k in range(4): a(f"    v_exp_f32 v{F+k}, v{F+k}")
                L_ = T + 6
                for e in range(4): a(f"    v_mul_f32 v{G0+e}, v{G0+e}, v{F}")
                a(f"""
    v_add_f32 v{L_}, v{F}, v{F+1}
    v_add_f32 v{L_+1}, v{F+2}, v{F+3}
    """)
                for t in range(1, 4):
                    for e in range(4): a(f"    v_fmac_f32 v{G0+e}, v{G0+4*t+e}, v{F+t}")
                    if t == 1: a(f"    v_add_f32 v{L_}, v{L_}, v{L_+1}")
                merge2(G0, L_, False)
                a(f"""
    v_rcp_f32 v{L_}, v{L_}
    s_nop 0
    v_mul_f32 v{G0}, v{G0}, v{L_}
    v_cvt_pk_bf16_f32 v{G0}, v{G0}, v{G0}
    """)
                abuild(G0, A3)
                a("    s_nop 1")
                have_o = True
                for k in range(8):
                    if names.index(f"wo{k}") < names.index("po"):
                        u, c = k // 2, k % 2
                        srcc = "0" if u == 0 else vr(PD + 4 * c, 4)
                        a(f"    v_mfma_f32_16x16x32_bf16 {vr(PD+4*c,4)}, {vr(A3+4*u,4)}, {vr(WO+4*k,4)}, {srcc}")
            elif name.startswith("wo"):
                k = int(name[2:])
                std()
                if have_o:
                    u, c = k // 2, k % 2
                    srcc = "0" if u == 0 else vr(PD + 4 * c, 4)
                    a(f"    v_mfma_f32_16x16x32_bf16 {vr(PD+4*c,4)}, {vr(A3+4*u,4)}, {vr(WO+4*k,4)}, {srcc}")
            elif name == "ph":
                def chk(re):
                    a(f"""
    v_mov_b32 v{T+8}, 0
    v_mov_b32 v{T+9}, 0
    """)
                    if not re: gwait("ph")
                    for k in range(8): a(f"    v_msad_u8 v{T+8+(k&1)}, v{HG+k}, s{28+(k&3)}, v{T+8+(k&1)}")
                    a(f"""
    v_or_b32 v{T+8}, v{T+8}, v{T+9}
    v_cmp_ne_u32 vcc, 0, v{T+8}
    """)
                while "ph" not in S.pos: S.issue()
                lstamp(5)
                a(f"{P}SEG3b:")
                chk(False)
                retry(f"{P}rh", pollh, chk)
                with guard():
                    stamp(9); S.topup(name, depth + 1)
                G_, U_ = HG, HG + 4
                merge2(G_, U_, True)
                rbf16(G_, G_); rbf16(U_, U_)
                a(f"""
    v_mul_f32 v{T+4}, {0x80000000 | LOG2E}, v{G_}
    v_exp_f32 v{T+4}, v{T+4}
    s_nop 0
    v_add_f32 v{T+4}, 1.0, v{T+4}
    v_rcp_f32 v{T+4}, v{T+4}
    s_nop 0
    v_mul_f32 v{G_}, v{G_}, v{T+4}
    """)
                rbf16(G_, G_)
                a(f"""
    v_mul_f32 v{G_}, v{G_}, v{U_}
    v_cvt_pk_bf16_f32 v{G_}, v{G_}, v{G_}
    """)
                abuild(G_, A2)
                a("    s_nop 1")
                have_h = True
                for k in range(8):
                    if names.index(f"wd{k}") < names.index("ph"):
                        u, c = k // 2, k % 2
                        srcc = "0" if u == 0 else vr(DG + 4 * c, 4)
                        a(f"    v_mfma_f32_16x16x32_bf16 {vr(DG+4*c,4)}, {vr(A2+4*u,4)}, {ar(WD+4*k,4)}, {srcc}")
            elif name.startswith("wd"):
                k = int(name[2:])
                std()
                if have_h:
                    u, c = k // 2, k % 2
                    srcc = "0" if u == 0 else vr(DG + 4 * c, 4)
                    a(f"    v_mfma_f32_16x16x32_bf16 {vr(DG+4*c,4)}, {vr(A2+4*u,4)}, {ar(WD+4*k,4)}, {srcc}")
            if not t3_done and have_o and names.index(name) >= max(names.index("wo7"), names.index("po")):
                if fuse and ffn:
                    a(f"""
    s_nop 6
    ds_write_b128 v{vOT}, {vr(PD,4)} offset:{L_OUT}
    ds_write_b128 v{vOT}, {vr(PD+4,4)} offset:{L_OUT+512}
    """)
                    seg_end()
                else:
                    out_tail(PD, T, L_OUT, 69)
                stamp(7)
                t3_done = True
                S.sprk(1)
        if ffn:
            assert names.index("ph") > max(names.index("wo7"), names.index("po"))
            if fuse:
                o1, o2 = L_OUT // 256, L_OUT2 // 256
                a(f"""
    s_nop 6
    ds_write_b128 v{vOT}, {vr(DG,4)} offset:{L_OUT2}
    ds_write_b128 v{vOT}, {vr(DG+4,4)} offset:{L_OUT2+512}
    s_waitcnt lgkmcnt(0)
    """)
                barrier()
                a(f"""
    ds_read2st64_b32 {vr(T,2)}, v{vtid4} offset0:{o2} offset1:{o2+4}
    ds_read2st64_b32 {vr(T+2,2)}, v{vtid4} offset0:{o2+8} offset1:{o2+12}
    ds_read2st64_b32 {vr(T+4,2)}, v{vtid4} offset0:{o1} offset1:{o1+4}
    ds_read2st64_b32 {vr(T+6,2)}, v{vtid4} offset0:{o1+8} offset1:{o1+12}
    s_waitcnt lgkmcnt(2)
    v_add_f32 v{T}, v{T}, v{T+1}
    v_add_f32 v{T+2}, v{T+2}, v{T+3}
    v_add_f32 v{T}, v{T}, v{T+2}
    v_add_u32 v{T}, v{T}, v{vaddP}
    v_bfi_b32 v{T}, s70, v{vtagP}, v{T}
    """)
                with guard(): a(f"    buffer_store_dword v{T}, v{vtid4}, s[40:43], s62 offen sc1")
                a(f"""
    s_waitcnt lgkmcnt(0)
    v_add_f32 v{T+4}, v{T+4}, v{T+5}
    v_add_f32 v{T+6}, v{T+6}, v{T+7}
    v_add_f32 v{T+4}, v{T+4}, v{T+6}
    v_add_u32 v{T+4}, v{T+4}, v{vaddP}
    v_bfi_b32 v{T+4}, s70, v{vtagP}, v{T+4}
    """)
                seg_end()
                a(f"    buffer_store_dword v{T+4}, v{vtid4}, s[40:43], s69 offen sc1")
            else:
                out_tail(DG, T, L_OUT2, 62)
            stamp(10)

    path(True, "H")
    store_stamps()
    a("    s_endpgm")
    a("L_light:")
    path(False, "Lt")
    vA, vB1, vkeep, vX, vO, vF = T + 8, T + 9, T + 10, T + 11, T + 12, T + 13
    RA = G0; RB = G0 + 8; ac = T + 6
    a(f"""
    s_lshl_b32 s65, s33, 2
    s_add_u32 s65, s65, s34
    s_sub_u32 s65, s65, 28            ; c
    s_lshl_b32 s66, s65, 6
    v_lshlrev_b32 v{vO}, 1, v1
    v_add_u32 v{vO}, s66, v{vO}
    buffer_load_ushort v{vX}, v{vO}, s[36:39], 0 offen
    v_lshlrev_b32 v{vA}, 12, v7
    v_lshl_add_u32 v{vA}, v8, 4, v{vA}
    v_cmp_gt_u32 vcc, 48, v1
    v_add_u32 v{vB1}, {8*4096}, v{vA}
    v_lshlrev_b32 v{vF}, 2, v{vG}
    v_cndmask_b32 v{vB1}, v{vA}, v{vB1}, vcc
    v_cndmask_b32 v{vkeep}, 0, 1.0, vcc
    v_lshl_add_u32 v{vF}, v8, 4, v{vF}
    s_lshl_b32 s64, s3, 8
    v_add_u32 v{vF}, s64, v{vF}
    s_lshl_b32 s67, s65, 7
    s_lshl_b32 s64, s3, 16
    s_add_u32 s68, s67, s64
    s_add_u32 s68, s68, {PA}
    s_add_u32 s69, s68, {8*4096}
    s_mul_i32 s64, s3, {14*4096}
    s_add_u32 s67, s67, s64
    s_add_u32 s67, s67, {PB}
    s_mov_b32 s71, {spin_max}
    s_waitcnt vmcnt(0)
    v_lshlrev_b32 v{vX}, 16, v{vX}
    {f"s_sleep {rpre}" if rpre else ""}
R_poll:
    {f"s_sleep {rbet}" if rbet else ""}
    buffer_load_dwordx4 {vr(RA,4)}, v{vA}, s[40:43], s68 offen sc1
    buffer_load_dwordx4 {vr(RA+4,4)}, v{vA}, s[40:43], s69 offen sc1
    buffer_load_dwordx4 {vr(RB,4)}, v{vA}, s[40:43], s67 offen sc1
    buffer_load_dwordx4 {vr(RB+4,4)}, v{vB1}, s[40:43], s67 offen sc1
    v_mov_b32 v{ac}, 0
    v_mov_b32 v{ac+1}, 0
    """)
    for k in range(4):
        a(f"    s_waitcnt vmcnt({3-k})")
        for e in range(4): a(f"    v_msad_u8 v{ac+(e&1)}, v{RA+4*k+e}, s{28+e}, v{ac+(e&1)}")
    a(f"""
    v_or_b32 v{ac}, v{ac}, v{ac+1}
    v_cmp_ne_u32 vcc, 0, v{ac}
    s_sub_u32 s71, s71, 1
    s_cmp_eq_u32 s71, 0
    s_cbranch_scc1 R_ok
    s_cbranch_vccnz R_poll
R_ok:
    """)
    stamp(8)
    a("LtSEG3:")
    for e in range(4): a(f"    v_add_f32 v{RA+e}, v{RA+e}, v{RA+4+e}")
    for e in range(4): a(f"    v_fmac_f32 v{RB+e}, v{RB+4+e}, v{vkeep}")
    a(f"""
    v_permlane32_swap_b32 v{RA}, v{RA+2}
    v_permlane32_swap_b32 v{RA+1}, v{RA+3}
    v_permlane32_swap_b32 v{RB}, v{RB+2}
    v_permlane32_swap_b32 v{RB+1}, v{RB+3}
    v_add_f32 v{RA}, v{RA}, v{RA+2}
    v_add_f32 v{RA+1}, v{RA+1}, v{RA+3}
    v_add_f32 v{RB}, v{RB}, v{RB+2}
    v_add_f32 v{RB+1}, v{RB+1}, v{RB+3}
    s_nop 0
    v_permlane16_swap_b32 v{RA}, v{RA+1}
    v_permlane16_swap_b32 v{RB}, v{RB+1}
    v_add_f32 v{RA}, v{RA}, v{RA+1}
    v_add_f32 v{RB}, v{RB}, v{RB+1}
    s_nop 0
    v_add_f32_dpp v{RA}, v{RA}, v{RA} row_ror:8 row_mask:0xf bank_mask:0xf
    v_add_f32_dpp v{RB}, v{RB}, v{RB} row_ror:8 row_mask:0xf bank_mask:0xf
    ds_write_b32 v{vF}, v{RA} offset:{L_FIN}
    ds_write_b32 v{vF}, v{RB} offset:{L_FIN+128}
    s_waitcnt lgkmcnt(0)
    """)
    barrier()
    a(f"""
    ds_read2st64_b32 {vr(RA,2)}, v{vtid4} offset0:{L_FIN//256} offset1:{L_FIN//256+1}
    ds_read2st64_b32 {vr(RA+2,2)}, v{vtid4} offset0:{L_FIN//256+2} offset1:{L_FIN//256+3}
    s_waitcnt lgkmcnt(0)
    v_add_f32 v{RA}, v{RA}, v{RA+1}
    v_add_f32 v{RA+2}, v{RA+2}, v{RA+3}
    v_add_f32 v{RA}, v{RA}, v{RA+2}
    """)
    rbf16(RA, RA)
    a(f"""
    v_mov_b32 v{RB}, v{RA}
    v_add_f32 v{RA+1}, v{RA}, v{vX}
    s_nop 0
    v_permlane32_swap_b32 v{RA}, v{RB}
    """)
    rbf16(RA + 1, RA + 1)
    a(f"""
    v_add_f32 v{RA}, v{RA+1}, v{RB}
    v_cvt_pk_bf16_f32 v{RA}, v{RA}, v{RA}
    """)
    if warm: a("    s_cbranch_execz LtW_ret")
    a(f"""
    s_cmp_lg_u32 s3, 0
    s_cbranch_scc1 R_done
    s_mov_b32 exec_hi, 0
    buffer_store_short v{RA}, v{vO}, s[16:19], 0 offen {out_flags}
    s_cmp_lg_u32 s65, 0
    s_cbranch_scc1 R_done
    v_mov_b32 v{RB}, s35
    v_mov_b32 v{RB+1}, 0
    s_mov_b64 exec, 1
    buffer_store_dword v{RB}, v{RB+1}, s[40:43], 0 offen offset:{EPOCH} {ep_flags}
R_done:
    s_mov_b64 exec, -1
    """)
    stamp(9)
    if ackstamp:
        a("    s_waitcnt vmcnt(0)"); stamp(10)
    store_stamps()
    a("""
L_end:
    s_endpgm
L_code_end:
    """)
    print(out, "vgprs", nv, "agprs", nagpr, "lds", LDS_BYTES)
    open(out, "w").write(wrap(a.text(), 256, 256, LDS_BYTES, vgpr=accum + nagpr, accum=accum))

if __name__ == "__main__":
    gen("k8.s", stamps=True)
    gen("k8_ns.s", stamps=False)
```

```python
import sys
from asmgen import *

STAMP_OFF = 128 << 20
NST = 12
EPOCH = 0
QP = 0x1000
OP = 0x40000
GU = 0x180000
PA = 0x200000
PBL = 0x240000
PBG = 0x260000
WS_SIZE = 256 << 20

L_RED = 0
L_G = 2048
L_TRASH = 6144
L_Q = 11264
L_S = 13440
L_OUT = 14848
L_OUT2 = 18944
L_FIN = 20992
L_V = 23040
LDS_BYTES = L_V + 16384

LOG2E = 0x3FB8AA3B
SCALE = 0x3DB504F3

class R:
    def __init__(self, start): self.n = start
    def a(self, k=1, al=1):
        self.n = (self.n + al - 1) // al * al
        r = self.n; self.n += k
        return r
def vr(b, n): return f"v[{b}:{b+n-1}]"
def ar(b, n): return f"a[{b}:{b+n-1}]"

class Sched:
    def __init__(self, a): self.a = a; self.items = []; self.issued = 0; self.nops = 0; self.pos = {}; self.blocked = set()
    def add(self, name, fn, n=1): self.items.append((name, fn, n))
    def issue(self):
        name, fn, n = self.items[self.issued]
        fn(); self.nops += n; self.pos[name] = self.nops; self.issued += 1
    def can(self): return self.issued < len(self.items) and self.items[self.issued][0] not in self.blocked
    def extra(self, n=1): self.nops += n
    def wait(self, name, sub=0):
        while name not in self.pos:
            assert self.can(), (name, self.items[self.issued][0])
            self.issue()
        cnt = self.nops - self.pos[name] + sub
        assert cnt <= 63
        self.a(f"    s_waitcnt vmcnt({cnt})")
    def index(self, name): return [i for i, it in enumerate(self.items) if it[0] == name][0]
    def topup(self, name, depth):
        i = self.index(name)
        while self.can() and self.issued - (i + 1) < depth: self.issue()
    def sprk(self, n):
        for _ in range(n):
            if self.can(): self.issue()

def gen(out, stamps=True, nt=True, D=5, Dl=5, pq=23, po=41, ph=45, lq=22, lo_sleep=48, spin_max=1 << 20, warm=True,
        k0=2, k1=0, k2=2, Dt=7, sprinkle=(2, 2, 1, 1), spr3=3, dmap=None, warm_extra=3, cnt=False, gper=7, local=True, sprg=1, mixU=True, oracle_q=False):
    a = Asm()
    NT = " nt" if nt else ""
    def stamp(i):
        if stamps: a(f"    s_memrealtime s[{72+2*i}:{73+2*i}]")
    def store_stamps():
        if not stamps: return
        lab = a.label("nost")
        a(f"""
    s_waitcnt lgkmcnt(0)
    s_cmp_lg_u32 s3, 0
    s_cbranch_scc1 {lab}
    s_mul_i32 s64, s2, {NST*8}
    s_add_u32 s64, s64, {STAMP_OFF}
    v_mov_b32 v20, 0
    s_mov_b64 exec, 1
    """)
        for i in range(NST):
            a(f"""
    v_mov_b32 v22, s{72+2*i}
    v_mov_b32 v23, s{73+2*i}
    buffer_store_dwordx2 v[22:23], v20, s[40:43], s64 offen offset:{8*i}
    s_nop 1
    """)
        a(f"{lab}:")
    def srd(base, lo, size):
        a(f"""
    s_mov_b32 s{base}, s{lo}
    s_mov_b32 s{base+1}, s{lo+1}
    s_mov_b32 s{base+2}, {size}
    s_mov_b32 s{base+3}, 0x20000
    """)
    class guard:
        def __enter__(self):
            self.l = a.label("G"); self.n = len(a.lines)
            if warm: a(f"    s_cbranch_execz {self.l}")
        def __exit__(self, *x):
            if warm:
                if len(a.lines) == self.n + 1: a.lines.pop()
                else: a(f"{self.l}:")
    def barrier():
        with guard(): a("    s_barrier")

    r = R(10)
    (vtagP, vaddP, vOT, vtid4, vPF, vG4, vWQ, vK, vWO, vPO, vQW, vQR, vSW, vSR, vTR, vred, vtag0, vGU, vGU2, vWD, vPH, vJ, vG,
     vOT2, vl4, vt7) = [r.a() for _ in range(26)]
    XA = r.a(8, 4); XS = r.a(4, 4); T = r.a(24, 4); A = r.a(32, 4); QB = r.a(16, 4)
    D1 = r.a(4, 4); PD = r.a(16, 4); DG = r.a(8, 4); WQ = r.a(32, 4); KK = r.a(16, 4); VO = r.a(16, 4); G0 = r.a(16, 4); HG = r.a(4, 4)
    nv = r.n
    assert nv <= 256, nv
    accum = (nv + 3) // 4 * 4
    GW = 0; WD = 64; nagpr = 96
    A3 = QB; A2 = A; WO = WQ

    a(f"""
    s_cmp_ge_u32 s2, 256
    s_cbranch_scc1 L_end
    s_load_dwordx16 s[4:19], s[0:1], 0
    s_load_dwordx8 s[20:27], s[0:1], 64
    """)
    if stamps:
        for i in range(1, NST): a(f"    s_mov_b64 s[{72+2*i}:{73+2*i}], 0")
    stamp(0)
    a(f"""
    v_lshrrev_b32 v6, 6, v0
    v_and_b32 v1, 63, v0
    s_and_b32 s33, s2, 7            ; xcd
    v_readfirstlane_b32 s3, v6
    s_lshr_b32 s34, s2, 3           ; idx
    s_getpc_b64 s[96:97]
L_pc:
    s_lshl_b32 s64, s34, 2
    s_add_u32 s64, s64, s3
    s_lshl_b32 s64, s64, 7
    s_min_u32 s64, s64, L_code_end - L_pc - 4
    v_mov_b32 v9, s64
    global_load_dword v{vPF}, v9, s[96:97]
    v_lshlrev_b32 v6, 4, v1          ; lane*16
    v_lshrrev_b32 v7, 3, v1          ; l>>3
    v_and_b32 v8, 7, v1              ; l&7
    s_lshr_b32 s65, s33, 1           ; g
    s_and_b32 s66, s33, 1
    s_lshl_b32 s66, s66, 5
    s_add_u32 s66, s66, s34          ; m
    s_and_b32 s67, s66, 15           ; cb
    s_lshr_b32 s68, s66, 4           ; rq
    s_lshl_b32 s69, s68, 8
    s_lshl_b32 s64, s3, 6
    s_add_u32 s69, s69, s64          ; R0
    s_lshl_b32 s97, s69, 1
    v_lshlrev_b32 v9, 4, v7
    s_lshl_b32 s64, s69, 13
    s_lshl_b32 s96, s65, 11
    s_add_u32 s64, s64, s96
    s_lshl_b32 s96, s67, 7
    s_add_u32 s64, s64, s96
    v_lshlrev_b32 v{vWQ}, 16, v7
    v_lshl_add_u32 v{vWQ}, v8, 4, v{vWQ}
    v_add_u32 v{vWQ}, s64, v{vWQ}
    v_lshrrev_b32 v{vG}, 4, v1
    v_and_b32 v{vJ}, 15, v1
    s_mov_b32 s38, 2048
    s_mov_b32 s39, 0x20000
    s_mov_b32 s46, {8<<20}
    s_mov_b32 s47, 0x20000
    s_mov_b32 s64, 0
    s_waitcnt lgkmcnt(0)
    s_mov_b32 s36, s4
    s_mov_b32 s37, s5
    buffer_load_dwordx4 {vr(XA,4)}, v6, s[36:39], 0 offen
    buffer_load_dwordx4 {vr(XA+4,4)}, v6, s[36:39], 0 offen offset:1024
    buffer_load_dwordx4 {vr(XS,4)}, v9, s[36:39], s97 offen
    s_load_dword s28, s[26:27], {EPOCH}
    s_mov_b32 s44, s10
    s_mov_b32 s45, s11
    s_barrier
    """)
    for t in range(8):
        a(f"    buffer_load_dwordx4 {vr(WQ+4*t,4)}, v{vWQ}, s[44:47], s64 offen{NT}")
        if t < 7: a(f"    s_add_u32 s64, s64, 8192")
    a(f"""
    v_bfe_u32 v{T}, v0, 1, 2
    v_and_b32 v{T+1}, 1, v0
    v_lshlrev_b32 v{T+1}, 4, v{T+1}
    v_mov_b32 v9, 0xffff
    v_lshlrev_b32 v9, v{T+1}, v9
    v_cmp_eq_u32 vcc, 0, v{T}
    v_cmp_eq_u32 s[96:97], 1, v{T}
    v_cmp_eq_u32 s[98:99], 2, v{T}
    v_cmp_eq_u32 s[100:101], 3, v{T}
    v_cndmask_b32 v2, 0, v9, vcc
    v_cndmask_b32 v3, 0, v9, s[96:97]
    v_cndmask_b32 v4, 0, v9, s[98:99]
    v_cndmask_b32 v5, 0, v9, s[100:101]
    s_lshl_b32 s63, s65, 23
    s_lshl_b32 s96, s66, 14
    s_add_u32 s63, s63, s96
    s_lshl_b32 s96, s3, 12
    s_add_u32 s63, s63, s96
    s_add_u32 s63, s63, {28672*256}
    s_add_u32 s96, s96, {L_V}
    s_mov_b32 m0, s96
    v_lshlrev_b32 v{vK}, 8, v{vJ}
    v_lshl_add_u32 v{vK}, v{vG}, 4, v{vK}
    """)
    srd(48, 6, 32 << 20)
    srd(52, 8, 32 << 20)
    srd(40, 26, WS_SIZE)

    def allreduce2(x, y, t1, t2):
        for s_ in (8, 4, 2, 1):
            a(f"""
    s_nop 0
    v_add_f32_dpp v{x}, v{x}, v{x} row_ror:{s_} row_mask:0xf bank_mask:0xf
    v_add_f32_dpp v{y}, v{y}, v{y} row_ror:{s_} row_mask:0xf bank_mask:0xf
    """)
        for sw in ("v_permlane16_swap_b32", "v_permlane32_swap_b32"):
            a(f"""
    v_mov_b32 v{t1}, v{x}
    v_mov_b32 v{t2}, v{y}
    s_nop 0
    {sw} v{t1}, v{x}
    {sw} v{t2}, v{y}
    v_add_f32 v{x}, v{x}, v{t1}
    v_add_f32 v{y}, v{y}, v{t2}
    """)
    def allreduce1(x, t1, op="v_add_f32", steps=(8, 4, 2, 1)):
        for s_ in steps:
            a(f"""
    s_nop 1
    {op}_dpp v{x}, v{x}, v{x} row_ror:{s_} row_mask:0xf bank_mask:0xf
    """)
        for sw in ("v_permlane16_swap_b32", "v_permlane32_swap_b32"):
            a(f"""
    v_mov_b32 v{t1}, v{x}
    s_nop 1
    {sw} v{t1}, v{x}
    {op} v{x}, v{x}, v{t1}
    """)
    def rbf16(d, s_):
        a(f"""
    v_cvt_pk_bf16_f32 v{d}, v{s_}, v{s_}
    v_and_b32 v{d}, 0xffff0000, v{d}
    """)
    a(f"""
    v_lshrrev_b32 v{vred}, 2, v1
    v_xor_b32 v{vred}, v{vred}, v1
    v_and_b32 v{vred}, 8, v{vred}
    v_cmp_eq_u32 vcc, 0, v{vred}
    v_lshlrev_b32 v{vred}, 5, v8
    v_bfe_u32 v9, v1, 4, 1
    v_lshl_add_u32 v{vred}, v9, 4, v{vred}
    v_lshrrev_b32 v9, 5, v1
    v_lshl_add_u32 v{vred}, v9, 8, v{vred}
    s_lshl_b32 s64, s3, 9
    v_add_u32 v{vred}, s64, v{vred}
    v_add_u32 v9, {L_TRASH}, v6
    v_cndmask_b32 v{vred}, v9, v{vred}, vcc
    v_lshlrev_b32 v{vtid4}, 2, v0
    v_and_b32 v{vG4}, 3, v1
    v_lshlrev_b32 v{vtagP}, 3, v{vG4}
    s_lshl_b32 s44, s65, 14
    s_add_u32 s44, s44, {QP}
    s_lshl_b32 s45, s68, 12
    s_add_u32 s45, s45, s44
    s_lshl_b32 s96, s67, 8
    s_add_u32 s45, s45, s96
    s_waitcnt lgkmcnt(0)
    s_and_b32 s28, s28, 0x7f
    s_cmp_eq_u32 s28, 127
    s_cselect_b32 s28, 0, s28
    s_add_u32 s35, s28, 1
    s_add_u32 s29, s28, 33
    s_sub_u32 s64, s29, 127
    s_cmp_gt_u32 s29, 127
    s_cselect_b32 s29, s64, s29
    s_add_u32 s30, s28, 65
    s_sub_u32 s64, s30, 127
    s_cmp_gt_u32 s30, 127
    s_cselect_b32 s30, s64, s30
    s_add_u32 s31, s28, 97
    s_sub_u32 s64, s31, 127
    s_cmp_gt_u32 s31, 127
    s_cselect_b32 s31, s64, s31
    s_add_u32 s28, s28, 1
    s_lshl_b32 s32, s29, 8
    s_or_b32 s32, s32, s28
    s_lshl_b32 s64, s30, 16
    s_or_b32 s32, s32, s64
    s_lshl_b32 s64, s31, 24
    s_or_b32 s32, s32, s64
    s_movk_i32 s70, 0xff
    v_bfe_u32 v{vtagP}, s32, v{vtagP}, 8
    v_sub_u32 v{vaddP}, 0x80, v{vtagP}
    """)
    def kv_issue(i):
        if i < 4: a(f"    buffer_load_dwordx4 {vr(KK+4*i,4)}, v{vK}, s[48:51], s63 offen offset:{64*i}{NT}")
        else: a(f"    buffer_load_dwordx4 v6, s[52:55], s63 offen offset:{1024*(i-4)}{NT} lds")
    a(f"    s_waitcnt vmcnt(9)")
    stamp(1)
    for i in range(k0): kv_issue(i)
    for k in range(8):
        a(f"""
    v_lshlrev_b32 v{T+2*k}, 16, v{XA+k}
    v_and_b32 v{T+2*k+1}, 0xffff0000, v{XA+k}
    """)
    a(f"""
    v_readfirstlane_b32 s64, v{T}
    s_nop 1
    """)
    for k in range(16): a(f"    v_subrev_f32 v{T+k}, s64, v{T+k}")
    a(f"""
    v_pk_add_f32 {vr(T+16,2)}, {vr(T,2)}, {vr(T+2,2)}
    v_pk_mul_f32 {vr(T+18,2)}, {vr(T,2)}, {vr(T,2)}
    """)
    for k in range(1, 8):
        a(f"    v_pk_fma_f32 {vr(T+18,2)}, {vr(T+2*k,2)}, {vr(T+2*k,2)}, {vr(T+18,2)}")
        if k >= 2: a(f"    v_pk_add_f32 {vr(T+16,2)}, {vr(T+16,2)}, {vr(T+2*k,2)}")
    S1, S2, t1, t2 = T + 16, T + 18, T + 17, T + 19
    a(f"""
    v_add_f32 v{S1}, v{S1}, v{t1}
    v_add_f32 v{S2}, v{S2}, v{t2}
    s_nop 0
    """)
    allreduce2(S1, S2, t1, t2)
    mean, var, rs, sd = T, T + 1, T + 2, T + 3
    a(f"""
    v_mul_f32 v{S1}, 0x3a800000, v{S1}
    v_mul_f32 v{S2}, 0x3a800000, v{S2}
    v_add_f32 v{mean}, s64, v{S1}
    v_fma_f32 v{var}, -v{S1}, v{S1}, v{S2}
    v_max_f32 v{var}, 0, v{var}
    """)
    rbf16(mean, mean); rbf16(var, var)
    a(f"    v_add_f32 v{var}, 0x3727c5ac, v{var}")
    rbf16(var, var)
    a(f"""
    v_sqrt_f32 v{sd}, v{var}
    s_waitcnt vmcnt({8+k0})
    """)
    for i in range(k0, k0 + k1): kv_issue(i)
    rbf16(sd, sd)
    a(f"    v_rcp_f32 v{rs}, v{sd}")
    Dd = T + 4; Q = T + 12
    for k in range(4):
        a(f"""
    v_lshlrev_b32 v{Dd+2*k}, 16, v{XS+k}
    v_and_b32 v{Dd+2*k+1}, 0xffff0000, v{XS+k}
    """)
    for k in range(8): a(f"    v_sub_f32 v{Dd+k}, v{Dd+k}, v{mean}")
    for k in range(4): a(f"    v_cvt_pk_bf16_f32 v{XS+k}, v{Dd+2*k}, v{Dd+2*k+1}")
    for k in range(4):
        a(f"""
    v_lshlrev_b32 v{Dd+2*k}, 16, v{XS+k}
    v_and_b32 v{Dd+2*k+1}, 0xffff0000, v{XS+k}
    """)
    for k in range(8): a(f"    v_mul_f32 v{Q+k}, v{Dd+k}, v{rs}")
    for k in range(8): a(f"    v_fma_f32 v{Dd+k}, -v{Q+k}, v{sd}, v{Dd+k}")
    for k in range(8): a(f"    v_fmac_f32 v{Q+k}, v{Dd+k}, v{rs}")
    for k in range(8): a(f"    v_cvt_pk_bf16_f32 v{Q+k}, v{Q+k}, v{Q+k}")
    for k in range(8):
        for m_ in range(4): a(f"    v_and_b32 v{A+4*k+m_}, v{Q+k}, v{2+m_}")
    stamp(2)
    for i in range(k0 + k1, k0 + k1 + k2): kv_issue(i)
    srd(56, 12, 8 << 20)
    srd(4, 16, 7 << 20)
    srd(8, 18, 7 << 20)
    srd(12, 20, 7 << 20)
    srd(16, 22, 2048)
    a(f"""
    s_add_u32 s64, s67, 4
    s_lshr_b32 s64, s64, 3
    s_mul_i32 s60, s65, 14
    s_add_u32 s60, s60, s67
    s_sub_u32 s60, s60, s64
    s_add_u32 s61, s60, {28 if mixU else 0}
    s_sub_u32 s64, s61, 56
    s_cmp_ge_u32 s61, 56
    s_cselect_b32 s61, s64, s61
    s_add_u32 s64, s34, 4
    s_lshr_b32 s64, s64, 3
    s_sub_u32 s62, s34, s64
    s_mul_i32 s64, s69, 7168
    v_mul_u32_u24 v{vGU}, {8*7168}, v7
    v_lshl_add_u32 v{vGU}, v8, 4, v{vGU}
    s_lshl_b32 s96, s61, 7
    s_add_u32 s96, s96, s64
    v_add_u32 v{vGU2}, s96, v{vGU}
    s_lshl_b32 s96, s60, 7
    s_add_u32 s96, s96, s64
    v_add_u32 v{vGU}, s96, v{vGU}
    s_lshl_b32 s60, s60, 11
    s_lshl_b32 s61, s61, 11
    s_add_u32 s61, s61, 1024
    s_cmp_eq_u32 s3, 0
    s_cselect_b32 s60, s60, s61
    s_lshl_b32 s64, s68, 8
    s_add_u32 s60, s60, s64
    s_add_u32 s60, s60, {GU}
    s_lshl_b32 s61, s62, 12
    s_lshr_b32 s64, s3, 1
    s_lshl_b32 s64, s64, 11
    s_add_u32 s61, s61, s64
    s_and_b32 s64, s3, 1
    s_lshl_b32 s64, s64, 7
    s_add_u32 s61, s61, s64
    s_add_u32 s61, s61, {GU}
    v_bfe_u32 v9, v1, 3, 1
    v_lshlrev_b32 v{vPH}, 8, v9
    v_lshl_add_u32 v{vPH}, v{vG}, 5, v{vPH}
    v_lshl_add_u32 v{vPH}, v8, 2, v{vPH}
    ; wd voffset = (128j + 32w + 8G)*2048 + 256x + 16jj
    s_lshl_b32 s64, s62, 18
    s_lshl_b32 s96, s3, 16
    s_add_u32 s64, s64, s96
    s_lshl_b32 s96, s33, 8
    s_add_u32 s64, s64, s96
    v_lshlrev_b32 v{vWD}, 14, v{vG}
    v_lshl_add_u32 v{vWD}, v{vJ}, 4, v{vWD}
    v_add_u32 v{vWD}, s64, v{vWD}
    s_lshl_b32 s62, s62, 9
    s_mul_i32 s64, s33, 14336
    s_add_u32 s62, s62, s64
    s_add_u32 s62, s62, {PBL}
    v_and_b32 v{vt7}, 511, v{vtid4}
    v_lshlrev_b32 v{vl4}, 2, v1
    ; T3 tile: cb3 = m>>2 ; rq3 = m&3
    s_lshr_b32 s67, s66, 2
    s_and_b32 s68, s66, 3
    v_mul_u32_u24 v{vSW}, 144, v8
    v_lshl_add_u32 v{vSR}, v{vG}, 4, v{vSW}
    v_lshl_add_u32 v{vSR}, v9, 6, v{vSR}
    v_bfe_u32 v9, v1, 4, 1
    v_lshlrev_b32 v{vOT}, 5, v{vJ}
    v_lshl_add_u32 v{vOT}, v9, 4, v{vOT}
    s_lshl_b32 s64, s3, 9
    v_add_u32 v{vOT2}, s64, v{vOT}
    v_add_u32 v{vOT}, s64, v{vOT2}
    v_lshlrev_b32 v{vG4}, 4, v{vG4}
    s_lshl_b32 s64, s65, 10
    s_and_b32 s96, s3, 1
    s_lshl_b32 s96, s96, 9
    s_add_u32 s64, s64, s96
    s_lshr_b32 s96, s67, 2
    s_lshl_b32 s96, s96, 5
    s_add_u32 s64, s64, s96
    s_lshr_b32 s96, s3, 1
    s_lshl_b32 s96, s96, 4
    s_add_u32 s64, s64, s96
    s_and_b32 s96, s67, 3
    s_lshl_b32 s96, s96, 2
    s_add_u32 s64, s64, s96
    s_lshl_b32 s64, s64, 11
    s_lshl_b32 s96, s68, 9
    s_add_u32 s64, s64, s96
    v_lshlrev_b32 v{vWO}, 11, v{vG}
    v_lshl_add_u32 v{vWO}, v{vJ}, 4, v{vWO}
    v_add_u32 v{vWO}, s64, v{vWO}
    v_mul_u32_u24 v{vQR}, 272, v8
    v_lshl_add_u32 v{vQR}, v{vG}, 4, v{vQR}
    v_lshl_add_u32 v{vSW}, v{vG}, 3, v{vSW}
    s_lshl_b32 s96, s3, 5
    v_add_u32 v{vSW}, s96, v{vSW}
    v_bfe_u32 v9, v1, 2, 2
    v_lshl_add_u32 v{vTR}, v{vG}, 3, v9
    v_lshlrev_b32 v{vTR}, 8, v{vTR}
    v_lshrrev_b32 v9, 1, v{vG4}
    s_lshl_b32 s64, s3, 6
    v_add3_u32 v{vTR}, v{vTR}, v9, s64
    v_lshrrev_b32 v{vQW}, 5, v0
    v_and_b32 v9, 31, v0
    v_mul_u32_u24 v{vQW}, 272, v{vQW}
    v_lshl_add_u32 v{vQW}, v9, 3, v{vQW}
    v_lshrrev_b32 v9, 2, v1
    v_lshl_add_u32 v{vPO}, v9, 12, v{vG4}
    s_lshl_b32 s96, s67, 8
    s_lshl_b32 s97, s3, 10
    s_add_u32 s20, s44, s97
    s_lshl_b32 s23, s65, 18
    s_add_u32 s23, s23, {OP}
    s_add_u32 s22, s23, s96
    s_add_u32 s22, s22, s64
    s_lshl_b32 s96, s66, 12
    s_add_u32 s23, s23, s96
    s_add_u32 s23, s23, s97
    s_lshl_b32 s69, s65, 4
    s_add_u32 s69, s69, s67
    s_lshl_b32 s69, s69, 12
    s_lshl_b32 s96, s68, 10
    s_add_u32 s69, s69, s96
    s_add_u32 s69, s69, {PA}
    s_mov_b32 s24, {SCALE}
    s_mov_b32 s25, {LOG2E}
    v_mov_b32 v{vtag0}, s28
    s_mov_b32 s26, 0x07060500
    s_mov_b32 s27, 0x07060501
    s_mov_b32 s66, 0x07060502
    s_mov_b32 s67, 0x07060503
    s_mov_b32 s68, 0x0c04000c
    s_lshl_b32 s21, s3, 11
    v_add_u32 v{vt7+0 if False else XS}, s21, v{vl4}
    """)
    vGR = XS
    PSEL = (26, 27, 66, 67)
    def red8(Rr, vaddr, o):
        a(f"""
    ds_read2st64_b32 {vr(Rr,2)}, v{vaddr} offset0:{o} offset1:{o+1}
    ds_read2st64_b32 {vr(Rr+2,2)}, v{vaddr} offset0:{o+2} offset1:{o+3}
    ds_read2st64_b32 {vr(Rr+4,2)}, v{vaddr} offset0:{o+4} offset1:{o+5}
    ds_read2st64_b32 {vr(Rr+6,2)}, v{vaddr} offset0:{o+6} offset1:{o+7}
    s_waitcnt lgkmcnt(0)
    v_add_f32 v{Rr}, v{Rr}, v{Rr+1}
    v_add_f32 v{Rr+2}, v{Rr+2}, v{Rr+3}
    v_add_f32 v{Rr+4}, v{Rr+4}, v{Rr+5}
    v_add_f32 v{Rr+6}, v{Rr+6}, v{Rr+7}
    v_add_f32 v{Rr}, v{Rr}, v{Rr+2}
    v_add_f32 v{Rr+4}, v{Rr+4}, v{Rr+6}
    v_add_f32 v{Rr}, v{Rr}, v{Rr+4}
    v_add_u32 v{Rr}, v{Rr}, v{vaddP}
    v_bfi_b32 v{Rr}, s70, v{vtagP}, v{Rr}
    """)
    nk = k0 + k1 + k2
    for t in range(8):
        a(f"    s_waitcnt vmcnt({7 - t + nk})")
        srcc = "0" if t == 0 else vr(D1, 4)
        a(f"    v_mfma_f32_16x16x32_bf16 {vr(D1,4)}, {vr(A+4*t,4)}, {vr(WQ+4*t,4)}, {srcc}")
        while nk < 8 and t < 7 and (7 - t) + nk < Dt:
            kv_issue(nk); nk += 1
    kpre = nk
    a(f"""
    s_nop 7
    ds_write_b128 v{vred}, {vr(D1,4)} offset:{L_RED}
    s_waitcnt lgkmcnt(0)
    s_barrier
    s_cmp_lg_u32 s3, 0
    s_cbranch_scc1 L_nored
    """)
    red8(T, vl4, L_RED // 256)
    a(f"""
    buffer_store_dword v{T}, v{vl4}, s[40:43], s45 offen sc1
L_nored:
    """)
    stamp(3)
    a("""
    s_and_b32 s64, s34, 7
    s_cmp_eq_u32 s64, 3
    s_cbranch_scc1 L_light
    """)

    def merge2(X, Y):
        a(f"""
    v_mov_b32 v{Y+1}, v{Y}
    s_nop 0
    v_permlane32_swap_b32 v{X}, v{X+2}
    v_permlane32_swap_b32 v{X+1}, v{X+3}
    v_permlane32_swap_b32 v{Y+1}, v{Y}
    v_add_f32 v{X}, v{X}, v{X+2}
    v_add_f32 v{X+1}, v{X+1}, v{X+3}
    v_add_f32 v{Y}, v{Y}, v{Y+1}
    s_nop 0
    v_mov_b32 v{Y+1}, v{Y}
    v_permlane16_swap_b32 v{X}, v{X+1}
    s_nop 0
    v_permlane16_swap_b32 v{Y+1}, v{Y}
    v_add_f32 v{X}, v{X}, v{X+1}
    v_add_f32 v{Y}, v{Y}, v{Y+1}
    """)
        for s_ in (8, 4):
            a(f"""
    s_nop 0
    v_add_f32_dpp v{X}, v{X}, v{X} row_ror:{s_} row_mask:0xf bank_mask:0xf
    v_add_f32_dpp v{Y}, v{Y}, v{Y} row_ror:{s_} row_mask:0xf bank_mask:0xf
    """)

    def path(ffn, P):
        S = Sched(a)
        def seg_end():
            if warm: a(f"    s_cbranch_execz {P}W_ret")
        def gsprk(n):
            with guard(): S.sprk(n)
        def gwait(name, sub=0):
            with guard(): S.wait(name, sub)
        for t in range(8):
            S.items.append((f"wq{t}", None, 1)); S.nops += 1; S.pos[f"wq{t}"] = S.nops; S.issued += 1
        base = []
        for i in range(8): base.append((f"kv{i}", (lambda i=i: kv_issue(i)), 1))
        def mk_gu(i):
            t, mat = i // 2, i % 2
            def f():
                so = "0"
                if t: a(f"    s_mov_b32 s99, {t*7168}"); so = "s99"
                a(f"    buffer_load_dwordx4 {ar(GW+4*i,4)}, v{vGU2 if mat else vGU}, s[{4+4*mat}:{7+4*mat}], {so} offen{NT}")
            return f
        def mk_wo(k):
            u, c = k // 2, k % 2
            def f():
                so = "0"
                if u: a(f"    s_mov_b32 s99, {u*0x40000}"); so = "s99"
                a(f"    buffer_load_dwordx4 {vr(WO+4*k,4)}, v{vWO}, s[56:59], {so} offen offset:{c*256}{NT}")
            return f
        def mk_wd(k):
            def f():
                so = "0"
                if k >= 2: a(f"    s_movk_i32 s99, {(k & ~1)*2048}"); so = "s99"
                a(f"    buffer_load_dwordx4 {ar(WD+4*k,4)}, v{vWD}, s[12:15], {so} offen offset:{(k&1)*2048}{NT}")
            return f
        def pollq():
            if oracle_q:
                for k in range(4): a(f"    buffer_load_dwordx4 {vr(G0+4*k,4)}, v6, s[36:39], 0 offen")
                return
            a(f"    buffer_load_dwordx4 {vr(G0,4)}, v6, s[40:43], s20 offen sc1")
            for k in range(1, 4):
                a(f"    s_add_u32 s99, s20, {4096*k}")
                a(f"    buffer_load_dwordx4 {vr(G0+4*k,4)}, v6, s[40:43], s99 offen sc1")
        def pollo():
            if not ffn and lo_sleep: a(f"    s_waitcnt vmcnt(0)\n    s_sleep {lo_sleep}")
            pollo2()
        def pollo2():
            a(f"    buffer_load_dwordx4 {vr(G0,4)}, v{vPO}, s[40:43], s22 offen sc1")
            for k in range(1, 4):
                a(f"    s_add_u32 s99, s22, {0x10000*k}")
                a(f"    buffer_load_dwordx4 {vr(G0+4*k,4)}, v{vPO}, s[40:43], s99 offen sc1")
        def pollh():
            for k in range(4): a(f"    buffer_load_dword v{HG+k}, v{vPH}, s[40:43], s61 offen offset:{512*k} sc1")
        if ffn:
            for i in range(16): base.append((f"gu{i}", mk_gu(i), 1))
        for k in range(8): base.append((f"wo{k}", mk_wo(k), 1))
        if ffn:
            for k in range(8): base.append((f"wd{k}", mk_wd(k), 1))
        Pl = [(pq, ("pq", pollq, 4)), (po, ("po", pollo, 4)), (ph, ("ph", pollh, 4))] if ffn else [(lq, ("pq", pollq, 4)), (99, ("po", pollo, 4))]
        for i, it in enumerate(base):
            for p, pit in Pl:
                if p == i + 8: S.add(*pit)
            S.add(*it)
        for p, pit in Pl:
            if p >= len(base) + 8: S.add(*pit)
        for i in range(kpre):
            name = S.items[S.issued][0]; assert name == f"kv{i}"
            S.nops += 1; S.pos[name] = S.nops; S.issued += 1
        names = [it[0] for it in S.items]
        S.blocked |= {"po", "ph"}
        def retry(lab, fn, check):
            if oracle_q and lab.endswith("rq"): return
            if cnt:
                bit = {"rq": 100, "ro": 1000, "rh": 10000}[lab[-2:]]
                a(f"""
    s_nop 1
    s_cbranch_vccz {lab}_c
    s_add_u32 s94, s94, {bit}
    s_addc_u32 s95, s95, 0
{lab}_c:
    """)
            a(f"""
    s_nop 1
    s_cbranch_vccz {lab}_ok
    s_mov_b32 s71, {spin_max}
{lab}:
    """)
            fn()
            a("    s_waitcnt vmcnt(0)")
            check(True)
            a(f"""
    s_sub_u32 s71, s71, 1
    s_cmp_eq_u32 s71, 0
    s_cbranch_scc1 {lab}_ok
    s_cbranch_vccnz {lab}
{lab}_ok:
    """)
        S.blocked.add("pq"); S.sprk(warm_extra); S.blocked.discard("pq")
        if warm:
            a(f"""
    s_mov_b64 exec, 0
    s_cmp_eq_u32 s3, 0
    s_cbranch_scc1 {P}SEG0
    s_cmp_eq_u32 s3, 1
    s_cbranch_scc1 {P}SEG1
    s_cmp_eq_u32 s3, 2
    s_cbranch_scc1 {P}SEG2
    s_branch {P}SEG3
{P}W_ret:
    s_mov_b64 exec, -1
    """)
        if cnt: a('    s_waitcnt lgkmcnt(0)\n    s_mov_b64 s[94:95], s[72:73]')
        else: stamp(11)
        t3_done = False; have_o = False; have_h = False
        DD = D if ffn else Dl
        def mf_wo(k):
            u, c = k // 2, k % 2
            srcc = "0" if u == 0 else vr(PD + 4 * c, 4)
            a(f"    v_mfma_f32_16x16x32_bf16 {vr(PD+4*c,4)}, {vr(A3+4*u,4)}, {vr(WO+4*k,4)}, {srcc}")
        def mf_wd(k):
            srcc = "0" if k == 0 else vr(DG, 4)
            a(f"    v_mfma_f32_16x16x32_bf16 {vr(DG,4)}, {vr(A2+4*k,4)}, {ar(WD+4*k,4)}, {srcc}")
        for name in names:
            depth = DD
            if dmap and ffn:
                for k_, v_ in dmap:
                    if names.index(name) >= k_: depth = v_
            def std():
                with guard():
                    S.wait(name); S.topup(name, depth)
            if name.startswith("wq"):
                pass
            elif name.startswith("kv"):
                std()
                if name == "kv7":
                    a("    s_barrier")
                    for s_ in range(2):
                        for c in range(2):
                            for h in range(2):
                                a(f"    ds_read_b64_tr_b16 {vr(VO+(s_*2+c)*4+2*h,2)}, v{vTR} offset:{L_V + s_*8192 + h*1024 + c*32}")
            elif name.startswith("gu"):
                i = int(name[2:]); t, mat = i // 2, i % 2
                with guard(): S.wait(name)
                srcc = "0" if t == 0 else vr(DG + 4 * mat, 4)
                a(f"    v_mfma_f32_16x16x32_bf16 {vr(DG+4*mat,4)}, {vr(A+4*t,4)}, {ar(GW+4*i,4)}, {srcc}")
                with guard(): S.topup(name, depth + (sprg if i == 15 else 0))
                if i == 15:
                    a(f"""
    s_nop 6
{P}SEG3:
    ds_write_b128 v{vred}, {vr(DG,4)} offset:{L_G}
    ds_write_b128 v{vred}, {vr(DG+4,4)} offset:{L_G+2048}
    s_waitcnt lgkmcnt(0)
    """)
                    with guard():
                        a(f"""
    s_barrier
    s_cmp_ge_u32 s3, 2
    s_cbranch_scc1 {P}nogu
    """)
                    red8(T, vGR, L_G // 256)
                    if warm: a(f"    s_cbranch_execz {P}SEG3b")
                    a(f"""
    buffer_store_dword v{T}, v{vl4}, s[40:43], s60 offen sc1
{P}nogu:
    """)
                    stamp(8)
                    S.blocked -= {"ph"}
            elif name == "pq":
                acc = T
                def chk(re):
                    a(f"""
    v_mov_b32 v{acc}, 0
    v_mov_b32 v{acc+1}, 0
    """)
                    for k in range(4):
                        if not re: gwait("pq", 3 - k)
                        for e in range(4): a(f"    v_msad_u8 v{acc+(e&1)}, v{G0+4*k+e}, s{28+e}, v{acc+(e&1)}")
                    a(f"""
    v_or_b32 v{acc}, v{acc}, v{acc+1}
    v_cmp_ne_u32 vcc, 0, v{acc}
    """)
                while "pq" not in S.pos: S.issue()
                a(f"{P}SEG0:")
                chk(False)
                retry(f"{P}rq", pollq, chk)
                with guard(): stamp(4)
                QS = T + 4
                a(f"""
    v_pk_add_f32 {vr(QS,2)}, {vr(G0,2)}, {vr(G0+4,2)}
    v_pk_add_f32 {vr(QS+2,2)}, {vr(G0+2,2)}, {vr(G0+6,2)}
    v_pk_add_f32 {vr(QS+4,2)}, {vr(G0+8,2)}, {vr(G0+12,2)}
    v_pk_add_f32 {vr(QS+6,2)}, {vr(G0+10,2)}, {vr(G0+14,2)}
    v_pk_add_f32 {vr(QS,2)}, {vr(QS,2)}, {vr(QS+4,2)}
    v_pk_add_f32 {vr(QS+2,2)}, {vr(QS+2,2)}, {vr(QS+6,2)}
    v_cvt_pk_bf16_f32 v{QS}, v{QS}, v{QS+1}
    v_cvt_pk_bf16_f32 v{QS+1}, v{QS+2}, v{QS+3}
    ds_write_b64 v{vQW}, {vr(QS,2)} offset:{L_Q}
    """)
                with guard(): S.topup(name, depth)
                a("    s_waitcnt lgkmcnt(0)")
                barrier()
                a(f"""
    ds_read_b128 {vr(QB,4)}, v{vQR} offset:{L_Q}
    ds_read_b128 {vr(QB+4,4)}, v{vQR} offset:{L_Q+64}
    ds_read_b128 {vr(QB+8,4)}, v{vQR} offset:{L_Q+128}
    ds_read_b128 {vr(QB+12,4)}, v{vQR} offset:{L_Q+192}
    """)
                gsprk(sprinkle[0])
                for t in range(4):
                    srcc = "0" if t == 0 else vr(D1, 4)
                    a(f"    s_waitcnt lgkmcnt({3-t})")
                    a(f"    v_mfma_f32_16x16x32_bf16 {vr(D1,4)}, {vr(KK+4*t,4)}, {vr(QB+4*t,4)}, {srcc}")
                Sx = T + 4
                a(f"""
    s_nop 7
    v_cvt_pk_bf16_f32 v{T}, v{D1}, v{D1+1}
    v_cvt_pk_bf16_f32 v{T+1}, v{D1+2}, v{D1+3}
    v_lshlrev_b32 v{Sx}, 16, v{T}
    v_and_b32 v{Sx+1}, 0xffff0000, v{T}
    v_lshlrev_b32 v{Sx+2}, 16, v{T+1}
    v_and_b32 v{Sx+3}, 0xffff0000, v{T+1}
    v_mul_f32 v{Sx}, s24, v{Sx}
    v_mul_f32 v{Sx+1}, s24, v{Sx+1}
    v_mul_f32 v{Sx+2}, s24, v{Sx+2}
    v_mul_f32 v{Sx+3}, s24, v{Sx+3}
    v_cvt_pk_bf16_f32 v{T}, v{Sx}, v{Sx+1}
    v_cvt_pk_bf16_f32 v{T+1}, v{Sx+2}, v{Sx+3}
    ds_write_b64 v{vSW}, {vr(T,2)} offset:{L_S}
    s_waitcnt lgkmcnt(0)
    """)
                seg_end()
                mx, tmp, lsum, wv, rl = T + 12, T + 13, T + 14, T + 15, T + 16
                Pp = T + 20
                a(f"""
    s_barrier
{P}SEG1:
    ds_read_b128 {vr(T,4)}, v{vSR} offset:{L_S}
    """)
                gsprk(sprinkle[1])
                a("    s_waitcnt lgkmcnt(0)")
                for k in range(4):
                    a(f"""
    v_lshlrev_b32 v{Sx+2*k}, 16, v{T+k}
    v_and_b32 v{Sx+2*k+1}, 0xffff0000, v{T+k}
    """)
                a(f"""
    v_max3_f32 v{mx}, v{Sx}, v{Sx+1}, v{Sx+2}
    v_max3_f32 v{tmp}, v{Sx+3}, v{Sx+4}, v{Sx+5}
    v_max3_f32 v{mx}, v{Sx+6}, v{Sx+7}, v{mx}
    v_max_f32 v{mx}, v{mx}, v{tmp}
    """)
                allreduce1(mx, tmp, op="v_max_f32", steps=(8,))
                a(f"    v_mul_f32 v{mx}, s25, v{mx}")
                for k in range(8): a(f"    v_fma_f32 v{Sx+k}, v{Sx+k}, s25, -v{mx}")
                for k in range(8): a(f"    v_exp_f32 v{Sx+k}, v{Sx+k}")
                for k in range(4): a(f"    v_cvt_pk_bf16_f32 v{Pp+k}, v{Sx+2*k}, v{Sx+2*k+1}")
                a(f"""
    v_pk_add_f32 {vr(T,2)}, {vr(Sx,2)}, {vr(Sx+2,2)}
    v_pk_add_f32 {vr(T+2,2)}, {vr(Sx+4,2)}, {vr(Sx+6,2)}
    """)
                for sc in (0, 2, 1, 3):
                    a(f"    v_mfma_f32_16x16x32_bf16 {vr(PD+4*sc,4)}, {vr(VO+4*sc,4)}, {vr(Pp,4)}, 0")
                gsprk(sprinkle[2])
                a(f"""
    v_pk_add_f32 {vr(T,2)}, {vr(T,2)}, {vr(T+2,2)}
    v_add_f32 v{lsum}, v{T}, v{T+1}
    """)
                allreduce1(lsum, tmp, steps=(8,))
                X = D1
                a(f"""
    v_log_f32 v{wv}, v{lsum}
    v_rcp_f32 v{rl}, v{lsum}
    """)
                for e in range(4): a(f"    v_add_f32_dpp v{X+e}, v{PD+8+e}, v{PD+e} row_ror:8 row_mask:0xf bank_mask:0x3")
                a(f"    v_add_f32 v{wv}, v{wv}, v{mx}")
                for e in range(4): a(f"    v_add_f32_dpp v{X+e}, v{PD+4+e}, v{PD+12+e} row_ror:8 row_mask:0xf bank_mask:0xc")
                a(f"""
    v_add_u32 v{wv}, 0x80, v{wv}
    v_bfi_b32 v{wv}, s70, v{vtag0}, v{wv}
    """)
                for e in range(4): a(f"    v_mul_f32 v{X+e}, v{X+e}, v{rl}")
                for e in range(4): a(f"    v_perm_b32 v{X+e}, v{X+e}, v{wv}, s{PSEL[e]}")
                seg_end()
                a(f"    buffer_store_dwordx4 {vr(X,4)}, v6, s[40:43], s23 offen sc1")
                S.extra(1)
                stamp(5)
                S.blocked -= {"po"}
                S.sprk(sprinkle[3])
            elif name == "po":
                F = T + 8
                def chk(re):
                    a(f"    v_mov_b32 v{T+3}, 0")
                    for k in range(4):
                        if not re: gwait("po", 3 - k)
                        a(f"""
    v_msad_u8 v{T+3}, v{G0+4*k}, s28, v{T+3}
    v_perm_b32 v{F+k}, v{G0+4*k+2}, v{G0+4*k+1}, s68
    v_lshl_or_b32 v{F+k}, v{G0+4*k+3}, 24, v{F+k}
    """)
                    a(f"    v_cmp_ne_u32 vcc, 0, v{T+3}")
                while "po" not in S.pos: S.issue()
                a(f"{P}SEG2:")
                chk(False)
                retry(f"{P}ro", pollo2, chk)
                with guard():
                    stamp(6); S.topup(name, depth + spr3)
                a(f"""
    v_max_f32 v{T+4}, v{F}, v{F+1}
    v_max3_f32 v{T+4}, v{F+2}, v{F+3}, v{T+4}
    """)
                allreduce1(T + 4, T + 5, op="v_max_f32", steps=(8, 4))
                for k in range(4): a(f"    v_sub_f32 v{F+k}, v{F+k}, v{T+4}")
                for k in range(4): a(f"    v_exp_f32 v{F+k}, v{F+k}")
                L_ = T + 6
                for e in range(4): a(f"    v_mul_f32 v{G0+e}, v{G0+e}, v{F}")
                a(f"""
    v_add_f32 v{L_}, v{F}, v{F+1}
    v_add_f32 v{L_+1}, v{F+2}, v{F+3}
    """)
                for t in range(1, 4):
                    for e in range(4): a(f"    v_fmac_f32 v{G0+e}, v{G0+4*t+e}, v{F+t}")
                    if t == 1: a(f"    v_add_f32 v{L_}, v{L_}, v{L_+1}")
                merge2(G0, L_)
                a(f"""
    v_rcp_f32 v{L_}, v{L_}
    s_nop 0
    v_mul_f32 v{G0}, v{G0}, v{L_}
    v_cvt_pk_bf16_f32 v{G0}, v{G0}, v{G0}
    s_nop 1
    """)
                for u in range(4):
                    for m_ in range(4):
                        a(f"    v_and_b32_dpp v{A3+4*u+m_}, v{G0}, v{2+m_} quad_perm:[{u},{u},{u},{u}] row_mask:0xf bank_mask:0xf")
                a("    s_nop 1")
                have_o = True
                for k in range(8):
                    if names.index(f"wo{k}") < names.index("po"): mf_wo(k)
            elif name.startswith("wo"):
                std()
                if have_o: mf_wo(int(name[2:]))
            elif name == "ph":
                def chk(re):
                    if not re: gwait("ph")
                    a(f"""
    v_msad_u8 v{T+8}, v{HG}, v{vtagP}, 0
    v_msad_u8 v{T+9}, v{HG+1}, v{vtagP}, 0
    v_msad_u8 v{T+8}, v{HG+2}, v{vtagP}, v{T+8}
    v_msad_u8 v{T+9}, v{HG+3}, v{vtagP}, v{T+9}
    v_or_b32 v{T+8}, v{T+8}, v{T+9}
    v_cmp_ne_u32 vcc, 0, v{T+8}
    """)
                while "ph" not in S.pos: S.issue()
                a(f"{P}SEG3b:")
                chk(False)
                retry(f"{P}rh", pollh, chk)
                with guard():
                    stamp(9); S.topup(name, depth + 1)
                G_, U_ = HG, HG + 2
                a(f"""
    v_add_f32 v{G_}, v{HG}, v{HG+1}
    v_add_f32 v{U_}, v{HG+2}, v{HG+3}
    s_nop 0
    v_add_f32_dpp v{G_}, v{G_}, v{G_} row_ror:8 row_mask:0xf bank_mask:0xf
    v_add_f32_dpp v{U_}, v{U_}, v{U_} row_ror:8 row_mask:0xf bank_mask:0xf
    """)
                rbf16(G_, G_)
                a(f"""
    v_mul_f32 v{T+4}, {0x80000000 | LOG2E}, v{G_}
    v_exp_f32 v{T+4}, v{T+4}
    """)
                rbf16(U_, U_)
                a(f"""
    v_add_f32 v{T+4}, 1.0, v{T+4}
    v_rcp_f32 v{T+4}, v{T+4}
    s_nop 0
    v_mul_f32 v{G_}, v{G_}, v{T+4}
    """)
                rbf16(G_, G_)
                a(f"""
    v_mul_f32 v{G_}, v{G_}, v{U_}
    v_cvt_pk_bf16_f32 v{G_}, v{G_}, v{G_}
    s_nop 1
    """)
                have_h = True
                ready = [k for k in range(8) if names.index(f"wd{k}") < names.index("ph")]
                for u in range(8):
                    for m_ in range(4):
                        a(f"    v_and_b32_dpp v{A2+4*u+m_}, v{G_}, v{2+m_} row_newbcast:{u} row_mask:0xf bank_mask:0xf")
                    if u >= 1 and (u - 1) in ready: mf_wd(u - 1)
                a("    s_nop 1")
                if 7 in ready: mf_wd(7)
            elif name.startswith("wd"):
                std()
                if have_h: mf_wd(int(name[2:]))
            if not t3_done and have_o and names.index(name) >= max(names.index("wo7"), names.index("po")):
                o1 = L_OUT // 256
                a(f"""
    s_nop 6
    ds_write_b128 v{vOT}, {vr(PD,4)} offset:{L_OUT}
    ds_write_b128 v{vOT}, {vr(PD+4,4)} offset:{L_OUT+512}
    s_waitcnt lgkmcnt(0)
    """)
                barrier()
                a(f"""
    ds_read2st64_b32 {vr(T+2,2)}, v{vtid4} offset0:{o1} offset1:{o1+4}
    ds_read2st64_b32 {vr(T+4,2)}, v{vtid4} offset0:{o1+8} offset1:{o1+12}
    s_waitcnt lgkmcnt(0)
    v_add_f32 v{T+2}, v{T+2}, v{T+3}
    v_add_f32 v{T+4}, v{T+4}, v{T+5}
    v_add_f32 v{T+2}, v{T+2}, v{T+4}
    v_add_u32 v{T+2}, v{T+2}, v{vaddP}
    v_bfi_b32 v{T+2}, s70, v{vtagP}, v{T+2}
    """)
                seg_end()
                a(f"    buffer_store_dword v{T+2}, v{vtid4}, s[40:43], s69 offen sc1")
                S.extra(1)
                stamp(7)
                t3_done = True
                S.sprk(1)
        if ffn:
            assert names.index("ph") > max(names.index("wo7"), names.index("po"))
            o2 = L_OUT2 // 256
            a(f"""
    s_add_u32 s99, s62, {PBG-PBL}
    s_nop 6
    ds_write_b128 v{vOT2}, {vr(DG,4)} offset:{L_OUT2}
    s_waitcnt lgkmcnt(0)
    """)
            barrier()
            a(f"""
    ds_read2st64_b32 {vr(T,2)}, v{vt7} offset0:{o2} offset1:{o2+2}
    ds_read2st64_b32 {vr(T+2,2)}, v{vt7} offset0:{o2+4} offset1:{o2+6}
    s_cmp_ge_u32 s3, 2
    s_waitcnt lgkmcnt(0)
    v_add_f32 v{T}, v{T}, v{T+1}
    v_add_f32 v{T+2}, v{T+2}, v{T+3}
    v_add_f32 v{T}, v{T}, v{T+2}
    v_add_u32 v{T}, v{T}, v{vaddP}
    v_bfi_b32 v{T}, s70, v{vtagP}, v{T}
    """)
            seg_end()
            a(f"""
    s_cbranch_scc1 H_glob
    buffer_store_dword v{T}, v{vt7}, s[40:43], s62 offen
    s_branch H_fin
H_glob:
    buffer_store_dword v{T}, v{vt7}, s[40:43], s99 offen sc1
H_fin:
    """)
            stamp(10)

    path(True, "H")
    store_stamps()
    a("    s_endpgm")
    a("L_light:")
    path(False, "Lt")
    vA, vB, vkeep, vX, vO, vF = T + 8, T + 9, T + 10, T + 11, T + 12, T + 13
    RA = G0; RB = G0 + 8; ac = T + 6
    a(f"""
    s_lshr_b32 s64, s34, 3            ; k
    s_lshl_b32 s65, s33, 2
    s_add_u32 s65, s65, s64           ; c
    s_lshl_b32 s66, s65, 6
    v_lshlrev_b32 v{vO}, 1, v1
    v_add_u32 v{vO}, s66, v{vO}
    buffer_load_ushort v{vX}, v{vO}, s[36:39], 0 offen
    v_lshlrev_b32 v{vA}, 12, v7
    v_lshl_add_u32 v{vA}, v8, 4, v{vA}
    v_cmp_gt_u32 vcc, 56, v1
    v_min_u32 v{vB}, 6, v7
    v_lshlrev_b32 v{vB}, 9, v{vB}
    v_lshl_add_u32 v{vB}, v8, 4, v{vB}
    v_cndmask_b32 v{vkeep}, 0, 1.0, vcc
    v_lshlrev_b32 v{vF}, 2, v{vG}
    v_lshl_add_u32 v{vF}, v8, 4, v{vF}
    s_lshl_b32 s96, s3, 8
    v_add_u32 v{vF}, s96, v{vF}
    s_lshl_b32 s67, s65, 7
    s_lshl_b32 s96, s3, 16
    s_add_u32 s68, s67, s96
    s_add_u32 s68, s68, {PA}
    s_add_u32 s69, s68, {8*4096}
    s_mul_i32 s67, s33, 14336
    s_mul_i32 s96, s3, {7*512}
    s_add_u32 s67, s67, s96
    s_lshl_b32 s64, s64, 7
    s_add_u32 s67, s67, s64
    s_add_u32 s66, s67, {PBG}
    s_add_u32 s67, s67, {PBL if local else PBG}
    s_mov_b32 s71, {spin_max}
R_pa:
    buffer_load_dwordx4 {vr(RA,4)}, v{vA}, s[40:43], s68 offen sc1
    buffer_load_dwordx4 {vr(RA+4,4)}, v{vA}, s[40:43], s69 offen sc1
    buffer_load_dwordx4 {vr(RB,4)}, v{vB}, s[40:43], s67 offen sc1
    v_mov_b32 v{ac}, 0
    v_mov_b32 v{ac+1}, 0
    """)
    for k in range(2):
        a(f"    s_waitcnt vmcnt({2-k})")
        for e in range(4): a(f"    v_msad_u8 v{ac+(e&1)}, v{RA+4*k+e}, s{28+e}, v{ac+(e&1)}")
    a(f"""
    v_or_b32 v{ac}, v{ac}, v{ac+1}
    v_cmp_ne_u32 vcc, 0, v{ac}
    s_sub_u32 s71, s71, 1
    s_cmp_eq_u32 s71, 0
    s_cbranch_scc1 R_aok
    s_cbranch_vccnz R_pa
R_aok:
    s_mov_b32 s71, 0
    """)
    stamp(10)
    a("LtSEG3:")
    for e in range(4): a(f"    v_add_f32 v{RA+e}, v{RA+e}, v{RA+4+e}")
    def merge1(X):
        a(f"""
    s_nop 0
    v_permlane32_swap_b32 v{X}, v{X+2}
    v_permlane32_swap_b32 v{X+1}, v{X+3}
    v_add_f32 v{X}, v{X}, v{X+2}
    v_add_f32 v{X+1}, v{X+1}, v{X+3}
    s_nop 1
    v_permlane16_swap_b32 v{X}, v{X+1}
    v_add_f32 v{X}, v{X}, v{X+1}
    s_nop 1
    v_add_f32_dpp v{X}, v{X}, v{X} row_ror:8 row_mask:0xf bank_mask:0xf
    """)
    merge1(RA)
    a(f"""
    v_lshlrev_b32 v{vX}, 16, v{vX}
    ds_write_b32 v{vF}, v{RA} offset:{L_FIN}
    s_branch R_chk
R_pb:
    s_add_u32 s71, s71, 1
    s_and_b32 s96, s71, {gper}
    s_cmp_eq_u32 s96, 0
    s_cselect_b32 s96, s66, s67
    buffer_load_dwordx4 {vr(RB,4)}, v{vB}, s[40:43], s96 offen sc1
R_chk:
    """)
    with guard(): a("    s_waitcnt vmcnt(0)")
    a(f"""
    v_msad_u8 v{ac}, v{RB}, s28, 0
    v_msad_u8 v{ac+1}, v{RB+1}, s29, 0
    v_msad_u8 v{ac}, v{RB+2}, s30, v{ac}
    v_msad_u8 v{ac+1}, v{RB+3}, s31, v{ac+1}
    v_or_b32 v{ac}, v{ac}, v{ac+1}
    v_cmp_ne_u32 vcc, 0, v{ac}
    s_cmp_eq_u32 s71, {spin_max}
    s_cbranch_scc1 R_bok
    s_cbranch_vccnz R_pb
R_bok:
    """)
    with guard(): stamp(8)
    for e in range(4): a(f"    v_mul_f32 v{RB+e}, v{RB+e}, v{vkeep}")
    merge1(RB)
    a(f"""
    ds_write_b32 v{vF}, v{RB} offset:{L_FIN+128}
    s_waitcnt lgkmcnt(0)
    """)
    barrier()
    a(f"""
    ds_read2st64_b32 {vr(RA,2)}, v{vtid4} offset0:{L_FIN//256} offset1:{L_FIN//256+1}
    ds_read2st64_b32 {vr(RA+2,2)}, v{vtid4} offset0:{L_FIN//256+2} offset1:{L_FIN//256+3}
    s_waitcnt lgkmcnt(0)
    v_add_f32 v{RA}, v{RA}, v{RA+1}
    v_add_f32 v{RA+2}, v{RA+2}, v{RA+3}
    v_add_f32 v{RA}, v{RA}, v{RA+2}
    """)
    rbf16(RA, RA)
    a(f"""
    v_mov_b32 v{RB}, v{RA}
    v_add_f32 v{RA+1}, v{RA}, v{vX}
    s_nop 0
    v_permlane32_swap_b32 v{RA}, v{RB}
    """)
    rbf16(RA + 1, RA + 1)
    a(f"""
    v_add_f32 v{RA}, v{RA+1}, v{RB}
    v_cvt_pk_bf16_f32 v{RA}, v{RA}, v{RA}
    """)
    if warm: a("    s_cbranch_execz LtW_ret")
    a(f"""
    s_cmp_lg_u32 s3, 0
    s_cbranch_scc1 R_done
    s_mov_b32 exec_hi, 0
    buffer_store_short v{RA}, v{vO}, s[16:19], 0 offen
    s_cmp_lg_u32 s65, 0
    s_cbranch_scc1 R_done
    v_mov_b32 v{RB}, s35
    v_mov_b32 v{RB+1}, 0
    s_mov_b64 exec, 1
    buffer_store_dword v{RB}, v{RB+1}, s[40:43], 0 offen offset:{EPOCH}
R_done:
    s_mov_b64 exec, -1
    """)
    stamp(9)
    store_stamps()
    a("""
L_end:
    s_endpgm
L_code_end:
    """)
    print(out, "vgprs", nv, "agprs", nagpr, "lds", LDS_BYTES)
    open(out, "w").write(wrap(a.text(), 256, 256, LDS_BYTES, vgpr=accum + nagpr, accum=accum))

if __name__ == "__main__":
    gen("k9.s", stamps=True)
    gen("k9_ns.s", stamps=False)
```

```python
import gen8, gen9
b = dict(stamps=False, lightmap=True, Dl=5, D=5, Dt=7, sprinkle=(2,2,1,1), spr3=3, ep_flags="", lq=22, lo_sleep=48, pq=23, po=42, ph=45, par3=True)
gen8.gen("o_a.s", **b)
gen9.gen("o_b.s", stamps=False, po=40, ph=45)
gen9.gen("o_c.s", stamps=False, po=41, ph=45)
```

```python
import gen9
gen9.gen("o_a.s", stamps=False, po=40, ph=46)
gen9.gen("o_b.s", stamps=False, po=40, ph=47)
gen9.gen("o_c.s", stamps=False, po=41, ph=47)
gen9.gen("o_d.s", stamps=False, po=39, ph=45)
gen9.gen("o_e.s", stamps=False, po=40, ph=45, pq=22, lq=21)
gen9.gen("o_f.s", stamps=False, po=40, ph=45, pq=24, lq=23)
```

```python
import sys
from asmgen import *

STAMP_OFF = 128 << 20
NST = 12
EPOCH = 0
QP = 0x1000
OP = 0x40000
GU = 0x180000
PA = 0x200000
PBL = 0x240000
PBG = 0x260000
WS_SIZE = 256 << 20

L_RED = 0
L_G = 2048
L_TRASH = 6144
L_Q = 11264
L_S = 13440
L_OUT = 14848
L_OUT2 = 18944
L_FIN = 20992
L_V = 23040
LDS_BYTES = L_V + 16384

LOG2E = 0x3FB8AA3B
SCALE = 0x3DB504F3

class R:
    def __init__(self, start): self.n = start
    def a(self, k=1, al=1):
        self.n = (self.n + al - 1) // al * al
        r = self.n; self.n += k
        return r
def vr(b, n): return f"v[{b}:{b+n-1}]"
def ar(b, n): return f"a[{b}:{b+n-1}]"

class Sched:
    def __init__(self, a): self.a = a; self.items = []; self.issued = 0; self.nops = 0; self.pos = {}; self.blocked = set()
    def add(self, name, fn, n=1): self.items.append((name, fn, n))
    def issue(self):
        name, fn, n = self.items[self.issued]
        fn(); self.nops += n; self.pos[name] = self.nops; self.issued += 1
    def can(self): return self.issued < len(self.items) and self.items[self.issued][0] not in self.blocked
    def extra(self, n=1): self.nops += n
    def wait(self, name, sub=0):
        while name not in self.pos:
            assert self.can(), (name, self.items[self.issued][0])
            self.issue()
        cnt = self.nops - self.pos[name] + sub
        assert cnt <= 63
        self.a(f"    s_waitcnt vmcnt({cnt})")
    def index(self, name): return [i for i, it in enumerate(self.items) if it[0] == name][0]
    def topup(self, name, depth):
        i = self.index(name)
        while self.can() and self.issued - (i + 1) < depth: self.issue()
    def sprk(self, n):
        for _ in range(n):
            if self.can(): self.issue()

def gen(out, stamps=True, nt=True, D=5, Dl=5, pq=23, po=41, ph=45, lq=22, lo_sleep=48, spin_max=1 << 20, warm=True,
        k0=2, k1=0, k2=2, Dt=7, sprinkle=(2, 2, 1, 1), spr3=3, dmap=None, warm_extra=3, cnt=False, gper=7, local=True, sprg=1, mixU=True, oracle_q=False, ph_after_o=False, tail_step=0, wq_flags=" nt", nobar=False):
    a = Asm()
    NT = " nt" if nt else ""
    def stamp(i):
        if stamps: a(f"    s_memrealtime s[{72+2*i}:{73+2*i}]")
    def store_stamps():
        if not stamps: return
        lab = a.label("nost")
        a(f"""
    s_waitcnt lgkmcnt(0)
    s_cmp_lg_u32 s3, 0
    s_cbranch_scc1 {lab}
    s_mul_i32 s64, s2, {NST*8}
    s_add_u32 s64, s64, {STAMP_OFF}
    v_mov_b32 v20, 0
    s_mov_b64 exec, 1
    """)
        for i in range(NST):
            a(f"""
    v_mov_b32 v22, s{72+2*i}
    v_mov_b32 v23, s{73+2*i}
    buffer_store_dwordx2 v[22:23], v20, s[40:43], s64 offen offset:{8*i}
    s_nop 1
    """)
        a(f"{lab}:")
    def srd(base, lo, size):
        a(f"""
    s_mov_b32 s{base}, s{lo}
    s_mov_b32 s{base+1}, s{lo+1}
    s_mov_b32 s{base+2}, {size}
    s_mov_b32 s{base+3}, 0x20000
    """)
    class guard:
        def __enter__(self):
            self.l = a.label("G"); self.n = len(a.lines)
            if warm: a(f"    s_cbranch_execz {self.l}")
        def __exit__(self, *x):
            if warm:
                if len(a.lines) == self.n + 1: a.lines.pop()
                else: a(f"{self.l}:")
    def barrier():
        with guard(): a("    s_barrier")

    r = R(10)
    (vtagP, vaddP, vOT, vtid4, vPF, vG4, vWQ, vK, vWO, vPO, vQW, vQR, vSW, vSR, vTR, vred, vtag0, vGU, vGU2, vWD, vPH, vJ, vG,
     vOT2, vl4, vt7) = [r.a() for _ in range(26)]
    XA = r.a(8, 4); XS = r.a(4, 4); T = r.a(24, 4); A = r.a(32, 4); QB = r.a(16, 4)
    D1 = r.a(4, 4); PD = r.a(16, 4); DG = r.a(8, 4); WQ = r.a(32, 4); KK = r.a(16, 4); VO = r.a(16, 4); G0 = r.a(16, 4); HG = r.a(4, 4)
    nv = r.n
    assert nv <= 256, nv
    accum = (nv + 3) // 4 * 4
    GW = 0; WD = 64; nagpr = 96
    A3 = QB; A2 = A; WO = WQ

    a(f"""
    s_cmp_ge_u32 s2, 256
    s_cbranch_scc1 L_end
    s_load_dwordx16 s[4:19], s[0:1], 0
    s_load_dwordx8 s[20:27], s[0:1], 64
    """)
    if stamps:
        for i in range(1, NST): a(f"    s_mov_b64 s[{72+2*i}:{73+2*i}], 0")
    stamp(0)
    a(f"""
    v_lshrrev_b32 v6, 6, v0
    v_and_b32 v1, 63, v0
    s_and_b32 s33, s2, 7            ; xcd
    v_readfirstlane_b32 s3, v6
    s_lshr_b32 s34, s2, 3           ; idx
    s_getpc_b64 s[96:97]
L_pc:
    s_lshl_b32 s64, s34, 2
    s_add_u32 s64, s64, s3
    s_lshl_b32 s64, s64, 7
    s_min_u32 s64, s64, L_code_end - L_pc - 4
    v_mov_b32 v9, s64
    global_load_dword v{vPF}, v9, s[96:97]
    v_lshlrev_b32 v6, 4, v1          ; lane*16
    v_lshrrev_b32 v7, 3, v1          ; l>>3
    v_and_b32 v8, 7, v1              ; l&7
    s_lshr_b32 s65, s33, 1           ; g
    s_and_b32 s66, s33, 1
    s_lshl_b32 s66, s66, 5
    s_add_u32 s66, s66, s34          ; m
    s_and_b32 s67, s66, 15           ; cb
    s_lshr_b32 s68, s66, 4           ; rq
    s_lshl_b32 s69, s68, 8
    s_lshl_b32 s64, s3, 6
    s_add_u32 s69, s69, s64          ; R0
    s_lshl_b32 s97, s69, 1
    v_lshlrev_b32 v9, 4, v7
    s_lshl_b32 s64, s69, 13
    s_lshl_b32 s96, s65, 11
    s_add_u32 s64, s64, s96
    s_lshl_b32 s96, s67, 7
    s_add_u32 s64, s64, s96
    v_lshlrev_b32 v{vWQ}, 16, v7
    v_lshl_add_u32 v{vWQ}, v8, 4, v{vWQ}
    v_add_u32 v{vWQ}, s64, v{vWQ}
    v_lshrrev_b32 v{vG}, 4, v1
    v_and_b32 v{vJ}, 15, v1
    s_mov_b32 s38, 2048
    s_mov_b32 s39, 0x20000
    s_mov_b32 s46, {8<<20}
    s_mov_b32 s47, 0x20000
    s_mov_b32 s64, 0
    s_waitcnt lgkmcnt(0)
    s_mov_b32 s36, s4
    s_mov_b32 s37, s5
    buffer_load_dwordx4 {vr(XA,4)}, v6, s[36:39], 0 offen
    buffer_load_dwordx4 {vr(XA+4,4)}, v6, s[36:39], 0 offen offset:1024
    buffer_load_dwordx4 {vr(XS,4)}, v9, s[36:39], s97 offen
    s_load_dword s28, s[26:27], {EPOCH}
    s_mov_b32 s44, s10
    s_mov_b32 s45, s11
    {"" if nobar else "s_barrier"}
    """)
    for t in range(8):
        a(f"    buffer_load_dwordx4 {vr(WQ+4*t,4)}, v{vWQ}, s[44:47], s64 offen{wq_flags}")
        if t < 7: a(f"    s_add_u32 s64, s64, 8192")
    a(f"""
    v_bfe_u32 v{T}, v0, 1, 2
    v_and_b32 v{T+1}, 1, v0
    v_lshlrev_b32 v{T+1}, 4, v{T+1}
    v_mov_b32 v9, 0xffff
    v_lshlrev_b32 v9, v{T+1}, v9
    v_cmp_eq_u32 vcc, 0, v{T}
    v_cmp_eq_u32 s[96:97], 1, v{T}
    v_cmp_eq_u32 s[98:99], 2, v{T}
    v_cmp_eq_u32 s[100:101], 3, v{T}
    v_cndmask_b32 v2, 0, v9, vcc
    v_cndmask_b32 v3, 0, v9, s[96:97]
    v_cndmask_b32 v4, 0, v9, s[98:99]
    v_cndmask_b32 v5, 0, v9, s[100:101]
    s_lshl_b32 s63, s65, 23
    s_lshl_b32 s96, s66, 14
    s_add_u32 s63, s63, s96
    s_lshl_b32 s96, s3, 12
    s_add_u32 s63, s63, s96
    s_add_u32 s63, s63, {28672*256}
    s_add_u32 s96, s96, {L_V}
    s_mov_b32 m0, s96
    v_lshlrev_b32 v{vK}, 8, v{vJ}
    v_lshl_add_u32 v{vK}, v{vG}, 4, v{vK}
    """)
    srd(48, 6, 32 << 20)
    srd(52, 8, 32 << 20)
    srd(40, 26, WS_SIZE)

    def allreduce2(x, y, t1, t2):
        for s_ in (8, 4, 2, 1):
            a(f"""
    s_nop 0
    v_add_f32_dpp v{x}, v{x}, v{x} row_ror:{s_} row_mask:0xf bank_mask:0xf
    v_add_f32_dpp v{y}, v{y}, v{y} row_ror:{s_} row_mask:0xf bank_mask:0xf
    """)
        for sw in ("v_permlane16_swap_b32", "v_permlane32_swap_b32"):
            a(f"""
    v_mov_b32 v{t1}, v{x}
    v_mov_b32 v{t2}, v{y}
    s_nop 0
    {sw} v{t1}, v{x}
    {sw} v{t2}, v{y}
    v_add_f32 v{x}, v{x}, v{t1}
    v_add_f32 v{y}, v{y}, v{t2}
    """)
    def allreduce1(x, t1, op="v_add_f32", steps=(8, 4, 2, 1)):
        for s_ in steps:
            a(f"""
    s_nop 1
    {op}_dpp v{x}, v{x}, v{x} row_ror:{s_} row_mask:0xf bank_mask:0xf
    """)
        for sw in ("v_permlane16_swap_b32", "v_permlane32_swap_b32"):
            a(f"""
    v_mov_b32 v{t1}, v{x}
    s_nop 1
    {sw} v{t1}, v{x}
    {op} v{x}, v{x}, v{t1}
    """)
    def rbf16(d, s_):
        a(f"""
    v_cvt_pk_bf16_f32 v{d}, v{s_}, v{s_}
    v_and_b32 v{d}, 0xffff0000, v{d}
    """)
    a(f"""
    v_lshrrev_b32 v{vred}, 2, v1
    v_xor_b32 v{vred}, v{vred}, v1
    v_and_b32 v{vred}, 8, v{vred}
    v_cmp_eq_u32 vcc, 0, v{vred}
    v_lshlrev_b32 v{vred}, 5, v8
    v_bfe_u32 v9, v1, 4, 1
    v_lshl_add_u32 v{vred}, v9, 4, v{vred}
    v_lshrrev_b32 v9, 5, v1
    v_lshl_add_u32 v{vred}, v9, 8, v{vred}
    s_lshl_b32 s64, s3, 9
    v_add_u32 v{vred}, s64, v{vred}
    v_add_u32 v9, {L_TRASH}, v6
    v_cndmask_b32 v{vred}, v9, v{vred}, vcc
    v_lshlrev_b32 v{vtid4}, 2, v0
    v_and_b32 v{vG4}, 3, v1
    v_lshlrev_b32 v{vtagP}, 3, v{vG4}
    s_lshl_b32 s44, s65, 14
    s_add_u32 s44, s44, {QP}
    s_lshl_b32 s45, s68, 12
    s_add_u32 s45, s45, s44
    s_lshl_b32 s96, s67, 8
    s_add_u32 s45, s45, s96
    s_waitcnt lgkmcnt(0)
    s_and_b32 s28, s28, 0x7f
    s_cmp_eq_u32 s28, 127
    s_cselect_b32 s28, 0, s28
    s_add_u32 s35, s28, 1
    s_add_u32 s29, s28, 33
    s_sub_u32 s64, s29, 127
    s_cmp_gt_u32 s29, 127
    s_cselect_b32 s29, s64, s29
    s_add_u32 s30, s28, 65
    s_sub_u32 s64, s30, 127
    s_cmp_gt_u32 s30, 127
    s_cselect_b32 s30, s64, s30
    s_add_u32 s31, s28, 97
    s_sub_u32 s64, s31, 127
    s_cmp_gt_u32 s31, 127
    s_cselect_b32 s31, s64, s31
    s_add_u32 s28, s28, 1
    s_lshl_b32 s32, s29, 8
    s_or_b32 s32, s32, s28
    s_lshl_b32 s64, s30, 16
    s_or_b32 s32, s32, s64
    s_lshl_b32 s64, s31, 24
    s_or_b32 s32, s32, s64
    s_movk_i32 s70, 0xff
    v_bfe_u32 v{vtagP}, s32, v{vtagP}, 8
    v_sub_u32 v{vaddP}, 0x80, v{vtagP}
    """)
    def kv_issue(i):
        if i < 4: a(f"    buffer_load_dwordx4 {vr(KK+4*i,4)}, v{vK}, s[48:51], s63 offen offset:{64*i}{NT}")
        else: a(f"    buffer_load_dwordx4 v6, s[52:55], s63 offen offset:{1024*(i-4)}{NT} lds")
    a(f"    s_waitcnt vmcnt(9)")
    stamp(1)
    for i in range(k0): kv_issue(i)
    for k in range(8):
        a(f"""
    v_lshlrev_b32 v{T+2*k}, 16, v{XA+k}
    v_and_b32 v{T+2*k+1}, 0xffff0000, v{XA+k}
    """)
    a(f"""
    v_readfirstlane_b32 s64, v{T}
    s_nop 1
    """)
    for k in range(16): a(f"    v_subrev_f32 v{T+k}, s64, v{T+k}")
    a(f"""
    v_pk_add_f32 {vr(T+16,2)}, {vr(T,2)}, {vr(T+2,2)}
    v_pk_mul_f32 {vr(T+18,2)}, {vr(T,2)}, {vr(T,2)}
    """)
    for k in range(1, 8):
        a(f"    v_pk_fma_f32 {vr(T+18,2)}, {vr(T+2*k,2)}, {vr(T+2*k,2)}, {vr(T+18,2)}")
        if k >= 2: a(f"    v_pk_add_f32 {vr(T+16,2)}, {vr(T+16,2)}, {vr(T+2*k,2)}")
    S1, S2, t1, t2 = T + 16, T + 18, T + 17, T + 19
    a(f"""
    v_add_f32 v{S1}, v{S1}, v{t1}
    v_add_f32 v{S2}, v{S2}, v{t2}
    s_nop 0
    """)
    allreduce2(S1, S2, t1, t2)
    mean, var, rs, sd = T, T + 1, T + 2, T + 3
    a(f"""
    v_mul_f32 v{S1}, 0x3a800000, v{S1}
    v_mul_f32 v{S2}, 0x3a800000, v{S2}
    v_add_f32 v{mean}, s64, v{S1}
    v_fma_f32 v{var}, -v{S1}, v{S1}, v{S2}
    v_max_f32 v{var}, 0, v{var}
    """)
    rbf16(mean, mean); rbf16(var, var)
    a(f"    v_add_f32 v{var}, 0x3727c5ac, v{var}")
    rbf16(var, var)
    a(f"""
    v_sqrt_f32 v{sd}, v{var}
    s_waitcnt vmcnt({8+k0})
    """)
    for i in range(k0, k0 + k1): kv_issue(i)
    rbf16(sd, sd)
    a(f"    v_rcp_f32 v{rs}, v{sd}")
    Dd = T + 4; Q = T + 12
    for k in range(4):
        a(f"""
    v_lshlrev_b32 v{Dd+2*k}, 16, v{XS+k}
    v_and_b32 v{Dd+2*k+1}, 0xffff0000, v{XS+k}
    """)
    for k in range(8): a(f"    v_sub_f32 v{Dd+k}, v{Dd+k}, v{mean}")
    for k in range(4): a(f"    v_cvt_pk_bf16_f32 v{XS+k}, v{Dd+2*k}, v{Dd+2*k+1}")
    for k in range(4):
        a(f"""
    v_lshlrev_b32 v{Dd+2*k}, 16, v{XS+k}
    v_and_b32 v{Dd+2*k+1}, 0xffff0000, v{XS+k}
    """)
    for k in range(8): a(f"    v_mul_f32 v{Q+k}, v{Dd+k}, v{rs}")
    for k in range(8): a(f"    v_fma_f32 v{Dd+k}, -v{Q+k}, v{sd}, v{Dd+k}")
    for k in range(8): a(f"    v_fmac_f32 v{Q+k}, v{Dd+k}, v{rs}")
    for k in range(8): a(f"    v_cvt_pk_bf16_f32 v{Q+k}, v{Q+k}, v{Q+k}")
    for k in range(8):
        for m_ in range(4): a(f"    v_and_b32 v{A+4*k+m_}, v{Q+k}, v{2+m_}")
    stamp(2)
    for i in range(k0 + k1, k0 + k1 + k2): kv_issue(i)
    srd(56, 12, 8 << 20)
    srd(4, 16, 7 << 20)
    srd(8, 18, 7 << 20)
    srd(12, 20, 7 << 20)
    srd(16, 22, 2048)
    a(f"""
    s_add_u32 s64, s67, 4
    s_lshr_b32 s64, s64, 3
    s_mul_i32 s60, s65, 14
    s_add_u32 s60, s60, s67
    s_sub_u32 s60, s60, s64
    s_add_u32 s61, s60, {28 if mixU else 0}
    s_sub_u32 s64, s61, 56
    s_cmp_ge_u32 s61, 56
    s_cselect_b32 s61, s64, s61
    s_add_u32 s64, s34, 4
    s_lshr_b32 s64, s64, 3
    s_sub_u32 s62, s34, s64
    s_mul_i32 s64, s69, 7168
    v_mul_u32_u24 v{vGU}, {8*7168}, v7
    v_lshl_add_u32 v{vGU}, v8, 4, v{vGU}
    s_lshl_b32 s96, s61, 7
    s_add_u32 s96, s96, s64
    v_add_u32 v{vGU2}, s96, v{vGU}
    s_lshl_b32 s96, s60, 7
    s_add_u32 s96, s96, s64
    v_add_u32 v{vGU}, s96, v{vGU}
    s_lshl_b32 s60, s60, 11
    s_lshl_b32 s61, s61, 11
    s_add_u32 s61, s61, 1024
    s_cmp_eq_u32 s3, 0
    s_cselect_b32 s60, s60, s61
    s_lshl_b32 s64, s68, 8
    s_add_u32 s60, s60, s64
    s_add_u32 s60, s60, {GU}
    s_lshl_b32 s61, s62, 12
    s_lshr_b32 s64, s3, 1
    s_lshl_b32 s64, s64, 11
    s_add_u32 s61, s61, s64
    s_and_b32 s64, s3, 1
    s_lshl_b32 s64, s64, 7
    s_add_u32 s61, s61, s64
    s_add_u32 s61, s61, {GU}
    v_bfe_u32 v9, v1, 3, 1
    v_lshlrev_b32 v{vPH}, 8, v9
    v_lshl_add_u32 v{vPH}, v{vG}, 5, v{vPH}
    v_lshl_add_u32 v{vPH}, v8, 2, v{vPH}
    ; wd voffset = (128j + 32w + 8G)*2048 + 256x + 16jj
    s_lshl_b32 s64, s62, 18
    s_lshl_b32 s96, s3, 16
    s_add_u32 s64, s64, s96
    s_lshl_b32 s96, s33, 8
    s_add_u32 s64, s64, s96
    v_lshlrev_b32 v{vWD}, 14, v{vG}
    v_lshl_add_u32 v{vWD}, v{vJ}, 4, v{vWD}
    v_add_u32 v{vWD}, s64, v{vWD}
    s_lshl_b32 s62, s62, 9
    s_mul_i32 s64, s33, 14336
    s_add_u32 s62, s62, s64
    s_add_u32 s62, s62, {PBL}
    v_and_b32 v{vt7}, 511, v{vtid4}
    v_lshlrev_b32 v{vl4}, 2, v1
    ; T3 tile: cb3 = m>>2 ; rq3 = m&3
    s_lshr_b32 s67, s66, 2
    s_and_b32 s68, s66, 3
    v_mul_u32_u24 v{vSW}, 144, v8
    v_lshl_add_u32 v{vSR}, v{vG}, 4, v{vSW}
    v_lshl_add_u32 v{vSR}, v9, 6, v{vSR}
    v_bfe_u32 v9, v1, 4, 1
    v_lshlrev_b32 v{vOT}, 5, v{vJ}
    v_lshl_add_u32 v{vOT}, v9, 4, v{vOT}
    s_lshl_b32 s64, s3, 9
    v_add_u32 v{vOT2}, s64, v{vOT}
    v_add_u32 v{vOT}, s64, v{vOT2}
    v_lshlrev_b32 v{vG4}, 4, v{vG4}
    s_lshl_b32 s64, s65, 10
    s_and_b32 s96, s3, 1
    s_lshl_b32 s96, s96, 9
    s_add_u32 s64, s64, s96
    s_lshr_b32 s96, s67, 2
    s_lshl_b32 s96, s96, 5
    s_add_u32 s64, s64, s96
    s_lshr_b32 s96, s3, 1
    s_lshl_b32 s96, s96, 4
    s_add_u32 s64, s64, s96
    s_and_b32 s96, s67, 3
    s_lshl_b32 s96, s96, 2
    s_add_u32 s64, s64, s96
    s_lshl_b32 s64, s64, 11
    s_lshl_b32 s96, s68, 9
    s_add_u32 s64, s64, s96
    v_lshlrev_b32 v{vWO}, 11, v{vG}
    v_lshl_add_u32 v{vWO}, v{vJ}, 4, v{vWO}
    v_add_u32 v{vWO}, s64, v{vWO}
    v_mul_u32_u24 v{vQR}, 272, v8
    v_lshl_add_u32 v{vQR}, v{vG}, 4, v{vQR}
    v_lshl_add_u32 v{vSW}, v{vG}, 3, v{vSW}
    s_lshl_b32 s96, s3, 5
    v_add_u32 v{vSW}, s96, v{vSW}
    v_bfe_u32 v9, v1, 2, 2
    v_lshl_add_u32 v{vTR}, v{vG}, 3, v9
    v_lshlrev_b32 v{vTR}, 8, v{vTR}
    v_lshrrev_b32 v9, 1, v{vG4}
    s_lshl_b32 s64, s3, 6
    v_add3_u32 v{vTR}, v{vTR}, v9, s64
    v_lshrrev_b32 v{vQW}, 5, v0
    v_and_b32 v9, 31, v0
    v_mul_u32_u24 v{vQW}, 272, v{vQW}
    v_lshl_add_u32 v{vQW}, v9, 3, v{vQW}
    v_lshrrev_b32 v9, 2, v1
    v_lshl_add_u32 v{vPO}, v9, 12, v{vG4}
    s_lshl_b32 s96, s67, 8
    s_lshl_b32 s97, s3, 10
    s_add_u32 s20, s44, s97
    s_lshl_b32 s23, s65, 18
    s_add_u32 s23, s23, {OP}
    s_add_u32 s22, s23, s96
    s_add_u32 s22, s22, s64
    s_lshl_b32 s96, s66, 12
    s_add_u32 s23, s23, s96
    s_add_u32 s23, s23, s97
    s_lshl_b32 s69, s65, 4
    s_add_u32 s69, s69, s67
    s_lshl_b32 s69, s69, 12
    s_lshl_b32 s96, s68, 10
    s_add_u32 s69, s69, s96
    s_add_u32 s69, s69, {PA}
    s_mov_b32 s24, {SCALE}
    s_mov_b32 s25, {LOG2E}
    v_mov_b32 v{vtag0}, s28
    s_mov_b32 s26, 0x07060500
    s_mov_b32 s27, 0x07060501
    s_mov_b32 s66, 0x07060502
    s_mov_b32 s67, 0x07060503
    s_mov_b32 s68, 0x0c04000c
    s_lshl_b32 s21, s3, 11
    v_add_u32 v{vt7+0 if False else XS}, s21, v{vl4}
    """)
    vGR = XS
    PSEL = (26, 27, 66, 67)
    def red8(Rr, vaddr, o):
        a(f"""
    ds_read2st64_b32 {vr(Rr,2)}, v{vaddr} offset0:{o} offset1:{o+1}
    ds_read2st64_b32 {vr(Rr+2,2)}, v{vaddr} offset0:{o+2} offset1:{o+3}
    ds_read2st64_b32 {vr(Rr+4,2)}, v{vaddr} offset0:{o+4} offset1:{o+5}
    ds_read2st64_b32 {vr(Rr+6,2)}, v{vaddr} offset0:{o+6} offset1:{o+7}
    s_waitcnt lgkmcnt(0)
    v_add_f32 v{Rr}, v{Rr}, v{Rr+1}
    v_add_f32 v{Rr+2}, v{Rr+2}, v{Rr+3}
    v_add_f32 v{Rr+4}, v{Rr+4}, v{Rr+5}
    v_add_f32 v{Rr+6}, v{Rr+6}, v{Rr+7}
    v_add_f32 v{Rr}, v{Rr}, v{Rr+2}
    v_add_f32 v{Rr+4}, v{Rr+4}, v{Rr+6}
    v_add_f32 v{Rr}, v{Rr}, v{Rr+4}
    v_add_u32 v{Rr}, v{Rr}, v{vaddP}
    v_bfi_b32 v{Rr}, s70, v{vtagP}, v{Rr}
    """)
    nk = k0 + k1 + k2
    for t in range(8):
        a(f"    s_waitcnt vmcnt({7 - t + nk})")
        srcc = "0" if t == 0 else vr(D1, 4)
        a(f"    v_mfma_f32_16x16x32_bf16 {vr(D1,4)}, {vr(A+4*t,4)}, {vr(WQ+4*t,4)}, {srcc}")
        while nk < 8 and t < 7 and (7 - t) + nk < Dt:
            kv_issue(nk); nk += 1
    kpre = nk
    a(f"""
    s_nop 7
    ds_write_b128 v{vred}, {vr(D1,4)} offset:{L_RED}
    s_waitcnt lgkmcnt(0)
    s_barrier
    s_cmp_lg_u32 s3, 0
    s_cbranch_scc1 L_nored
    """)
    red8(T, vl4, L_RED // 256)
    a(f"""
    buffer_store_dword v{T}, v{vl4}, s[40:43], s45 offen sc1
L_nored:
    """)
    stamp(3)
    a("""
    s_and_b32 s64, s34, 7
    s_cmp_eq_u32 s64, 3
    s_cbranch_scc1 L_light
    """)

    def merge2(X, Y):
        a(f"""
    v_mov_b32 v{Y+1}, v{Y}
    s_nop 0
    v_permlane32_swap_b32 v{X}, v{X+2}
    v_permlane32_swap_b32 v{X+1}, v{X+3}
    v_permlane32_swap_b32 v{Y+1}, v{Y}
    v_add_f32 v{X}, v{X}, v{X+2}
    v_add_f32 v{X+1}, v{X+1}, v{X+3}
    v_add_f32 v{Y}, v{Y}, v{Y+1}
    s_nop 0
    v_mov_b32 v{Y+1}, v{Y}
    v_permlane16_swap_b32 v{X}, v{X+1}
    s_nop 0
    v_permlane16_swap_b32 v{Y+1}, v{Y}
    v_add_f32 v{X}, v{X}, v{X+1}
    v_add_f32 v{Y}, v{Y}, v{Y+1}
    """)
        for s_ in (8, 4):
            a(f"""
    s_nop 0
    v_add_f32_dpp v{X}, v{X}, v{X} row_ror:{s_} row_mask:0xf bank_mask:0xf
    v_add_f32_dpp v{Y}, v{Y}, v{Y} row_ror:{s_} row_mask:0xf bank_mask:0xf
    """)

    def path(ffn, P):
        S = Sched(a)
        def seg_end():
            if warm: a(f"    s_cbranch_execz {P}W_ret")
        def gsprk(n):
            with guard(): S.sprk(n)
        def gwait(name, sub=0):
            with guard(): S.wait(name, sub)
        for t in range(8):
            S.items.append((f"wq{t}", None, 1)); S.nops += 1; S.pos[f"wq{t}"] = S.nops; S.issued += 1
        base = []
        for i in range(8): base.append((f"kv{i}", (lambda i=i: kv_issue(i)), 1))
        def mk_gu(i):
            t, mat = i // 2, i % 2
            def f():
                so = "0"
                if t: a(f"    s_mov_b32 s99, {t*7168}"); so = "s99"
                a(f"    buffer_load_dwordx4 {ar(GW+4*i,4)}, v{vGU2 if mat else vGU}, s[{4+4*mat}:{7+4*mat}], {so} offen{NT}")
            return f
        def mk_wo(k):
            u, c = k // 2, k % 2
            def f():
                so = "0"
                if u: a(f"    s_mov_b32 s99, {u*0x40000}"); so = "s99"
                a(f"    buffer_load_dwordx4 {vr(WO+4*k,4)}, v{vWO}, s[56:59], {so} offen offset:{c*256}{NT}")
            return f
        def mk_wd(k):
            def f():
                so = "0"
                if k >= 2: a(f"    s_movk_i32 s99, {(k & ~1)*2048}"); so = "s99"
                a(f"    buffer_load_dwordx4 {ar(WD+4*k,4)}, v{vWD}, s[12:15], {so} offen offset:{(k&1)*2048}{NT}")
            return f
        def pollq():
            if oracle_q:
                for k in range(4): a(f"    buffer_load_dwordx4 {vr(G0+4*k,4)}, v6, s[36:39], 0 offen")
                return
            a(f"    buffer_load_dwordx4 {vr(G0,4)}, v6, s[40:43], s20 offen sc1")
            for k in range(1, 4):
                a(f"    s_add_u32 s99, s20, {4096*k}")
                a(f"    buffer_load_dwordx4 {vr(G0+4*k,4)}, v6, s[40:43], s99 offen sc1")
        def pollo():
            if not ffn and lo_sleep: a(f"    s_waitcnt vmcnt(0)\n    s_sleep {lo_sleep}")
            pollo2()
        def pollo2():
            a(f"    buffer_load_dwordx4 {vr(G0,4)}, v{vPO}, s[40:43], s22 offen sc1")
            for k in range(1, 4):
                a(f"    s_add_u32 s99, s22, {0x10000*k}")
                a(f"    buffer_load_dwordx4 {vr(G0+4*k,4)}, v{vPO}, s[40:43], s99 offen sc1")
        def pollh():
            for k in range(4): a(f"    buffer_load_dword v{HG+k}, v{vPH}, s[40:43], s61 offen offset:{512*k} sc1")
        if ffn:
            for i in range(16): base.append((f"gu{i}", mk_gu(i), 1))
        for k in range(8): base.append((f"wo{k}", mk_wo(k), 1))
        if ffn:
            for k in range(8): base.append((f"wd{k}", mk_wd(k), 1))
        Pl = [(pq, ("pq", pollq, 4)), (po, ("po", pollo, 4)), (ph, ("ph", pollh, 4))] if ffn else [(lq, ("pq", pollq, 4)), (99, ("po", pollo, 4))]
        for i, it in enumerate(base):
            for p, pit in Pl:
                if p == i + 8: S.add(*pit)
            S.add(*it)
        for p, pit in Pl:
            if p >= len(base) + 8: S.add(*pit)
        for i in range(kpre):
            name = S.items[S.issued][0]; assert name == f"kv{i}"
            S.nops += 1; S.pos[name] = S.nops; S.issued += 1
        names = [it[0] for it in S.items]
        S.blocked |= {"po", "ph"}
        def retry(lab, fn, check):
            if oracle_q and lab.endswith("rq"): return
            if cnt:
                bit = {"rq": 100, "ro": 1000, "rh": 10000}[lab[-2:]]
                a(f"""
    s_nop 1
    s_cbranch_vccz {lab}_c
    s_add_u32 s94, s94, {bit}
    s_addc_u32 s95, s95, 0
{lab}_c:
    """)
            a(f"""
    s_nop 1
    s_cbranch_vccz {lab}_ok
    s_mov_b32 s71, {spin_max}
{lab}:
    """)
            fn()
            a("    s_waitcnt vmcnt(0)")
            check(True)
            a(f"""
    s_sub_u32 s71, s71, 1
    s_cmp_eq_u32 s71, 0
    s_cbranch_scc1 {lab}_ok
    s_cbranch_vccnz {lab}
{lab}_ok:
    """)
        S.blocked.add("pq"); S.sprk(warm_extra); S.blocked.discard("pq")
        if warm:
            a(f"""
    s_mov_b64 exec, 0
    s_cmp_eq_u32 s3, 0
    s_cbranch_scc1 {P}SEG0
    s_cmp_eq_u32 s3, 1
    s_cbranch_scc1 {P}SEG1
    s_cmp_eq_u32 s3, 2
    s_cbranch_scc1 {P}SEG2
    s_branch {P}SEG3
{P}W_ret:
    s_mov_b64 exec, -1
    """)
        if cnt: a('    s_waitcnt lgkmcnt(0)\n    s_mov_b64 s[94:95], s[72:73]')
        else: stamp(11)
        t3_done = False; have_o = False; have_h = False
        DD = D if ffn else Dl
        def mf_wo(k):
            u, c = k // 2, k % 2
            srcc = "0" if u == 0 else vr(PD + 4 * c, 4)
            a(f"    v_mfma_f32_16x16x32_bf16 {vr(PD+4*c,4)}, {vr(A3+4*u,4)}, {vr(WO+4*k,4)}, {srcc}")
        def mf_wd(k):
            srcc = "0" if k == 0 else vr(DG, 4)
            a(f"    v_mfma_f32_16x16x32_bf16 {vr(DG,4)}, {vr(A2+4*k,4)}, {ar(WD+4*k,4)}, {srcc}")
        for name in names:
            depth = DD
            if dmap and ffn:
                for k_, v_ in dmap:
                    if names.index(name) >= k_: depth = v_
            def std():
                with guard():
                    S.wait(name)
                    if ffn and tail_step and "po" in S.pos: S.sprk(tail_step)
                    else: S.topup(name, depth)
            if name.startswith("wq"):
                pass
            elif name.startswith("kv"):
                std()
                if name == "kv7":
                    a("    s_barrier")
                    for s_ in range(2):
                        for c in range(2):
                            for h in range(2):
                                a(f"    ds_read_b64_tr_b16 {vr(VO+(s_*2+c)*4+2*h,2)}, v{vTR} offset:{L_V + s_*8192 + h*1024 + c*32}")
            elif name.startswith("gu"):
                i = int(name[2:]); t, mat = i // 2, i % 2
                with guard(): S.wait(name)
                srcc = "0" if t == 0 else vr(DG + 4 * mat, 4)
                a(f"    v_mfma_f32_16x16x32_bf16 {vr(DG+4*mat,4)}, {vr(A+4*t,4)}, {ar(GW+4*i,4)}, {srcc}")
                with guard(): S.topup(name, depth + (sprg if i == 15 else 0))
                if i == 15:
                    a(f"""
    s_nop 6
{P}SEG3:
    ds_write_b128 v{vred}, {vr(DG,4)} offset:{L_G}
    ds_write_b128 v{vred}, {vr(DG+4,4)} offset:{L_G+2048}
    s_waitcnt lgkmcnt(0)
    """)
                    with guard():
                        a(f"""
    s_barrier
    s_cmp_ge_u32 s3, 2
    s_cbranch_scc1 {P}nogu
    """)
                    red8(T, vGR, L_G // 256)
                    if warm: a(f"    s_cbranch_execz {P}SEG3b")
                    a(f"""
    buffer_store_dword v{T}, v{vl4}, s[40:43], s60 offen sc1
{P}nogu:
    """)
                    stamp(8)
                    if not ph_after_o: S.blocked -= {"ph"}
            elif name == "pq":
                acc = T
                def chk(re):
                    a(f"""
    v_mov_b32 v{acc}, 0
    v_mov_b32 v{acc+1}, 0
    """)
                    for k in range(4):
                        if not re: gwait("pq", 3 - k)
                        for e in range(4): a(f"    v_msad_u8 v{acc+(e&1)}, v{G0+4*k+e}, s{28+e}, v{acc+(e&1)}")
                    a(f"""
    v_or_b32 v{acc}, v{acc}, v{acc+1}
    v_cmp_ne_u32 vcc, 0, v{acc}
    """)
                while "pq" not in S.pos: S.issue()
                a(f"{P}SEG0:")
                chk(False)
                retry(f"{P}rq", pollq, chk)
                with guard(): stamp(4)
                QS = T + 4
                a(f"""
    v_pk_add_f32 {vr(QS,2)}, {vr(G0,2)}, {vr(G0+4,2)}
    v_pk_add_f32 {vr(QS+2,2)}, {vr(G0+2,2)}, {vr(G0+6,2)}
    v_pk_add_f32 {vr(QS+4,2)}, {vr(G0+8,2)}, {vr(G0+12,2)}
    v_pk_add_f32 {vr(QS+6,2)}, {vr(G0+10,2)}, {vr(G0+14,2)}
    v_pk_add_f32 {vr(QS,2)}, {vr(QS,2)}, {vr(QS+4,2)}
    v_pk_add_f32 {vr(QS+2,2)}, {vr(QS+2,2)}, {vr(QS+6,2)}
    v_cvt_pk_bf16_f32 v{QS}, v{QS}, v{QS+1}
    v_cvt_pk_bf16_f32 v{QS+1}, v{QS+2}, v{QS+3}
    ds_write_b64 v{vQW}, {vr(QS,2)} offset:{L_Q}
    """)
                with guard(): S.topup(name, depth)
                a("    s_waitcnt lgkmcnt(0)")
                barrier()
                a(f"""
    ds_read_b128 {vr(QB,4)}, v{vQR} offset:{L_Q}
    ds_read_b128 {vr(QB+4,4)}, v{vQR} offset:{L_Q+64}
    ds_read_b128 {vr(QB+8,4)}, v{vQR} offset:{L_Q+128}
    ds_read_b128 {vr(QB+12,4)}, v{vQR} offset:{L_Q+192}
    """)
                gsprk(sprinkle[0])
                for t in range(4):
                    srcc = "0" if t == 0 else vr(D1, 4)
                    a(f"    s_waitcnt lgkmcnt({3-t})")
                    a(f"    v_mfma_f32_16x16x32_bf16 {vr(D1,4)}, {vr(KK+4*t,4)}, {vr(QB+4*t,4)}, {srcc}")
                Sx = T + 4
                a(f"""
    s_nop 7
    v_cvt_pk_bf16_f32 v{T}, v{D1}, v{D1+1}
    v_cvt_pk_bf16_f32 v{T+1}, v{D1+2}, v{D1+3}
    v_lshlrev_b32 v{Sx}, 16, v{T}
    v_and_b32 v{Sx+1}, 0xffff0000, v{T}
    v_lshlrev_b32 v{Sx+2}, 16, v{T+1}
    v_and_b32 v{Sx+3}, 0xffff0000, v{T+1}
    v_mul_f32 v{Sx}, s24, v{Sx}
    v_mul_f32 v{Sx+1}, s24, v{Sx+1}
    v_mul_f32 v{Sx+2}, s24, v{Sx+2}
    v_mul_f32 v{Sx+3}, s24, v{Sx+3}
    v_cvt_pk_bf16_f32 v{T}, v{Sx}, v{Sx+1}
    v_cvt_pk_bf16_f32 v{T+1}, v{Sx+2}, v{Sx+3}
    ds_write_b64 v{vSW}, {vr(T,2)} offset:{L_S}
    s_waitcnt lgkmcnt(0)
    """)
                seg_end()
                mx, tmp, lsum, wv, rl = T + 12, T + 13, T + 14, T + 15, T + 16
                Pp = T + 20
                a(f"""
    s_barrier
{P}SEG1:
    ds_read_b128 {vr(T,4)}, v{vSR} offset:{L_S}
    """)
                gsprk(sprinkle[1])
                a("    s_waitcnt lgkmcnt(0)")
                for k in range(4):
                    a(f"""
    v_lshlrev_b32 v{Sx+2*k}, 16, v{T+k}
    v_and_b32 v{Sx+2*k+1}, 0xffff0000, v{T+k}
    """)
                a(f"""
    v_max3_f32 v{mx}, v{Sx}, v{Sx+1}, v{Sx+2}
    v_max3_f32 v{tmp}, v{Sx+3}, v{Sx+4}, v{Sx+5}
    v_max3_f32 v{mx}, v{Sx+6}, v{Sx+7}, v{mx}
    v_max_f32 v{mx}, v{mx}, v{tmp}
    """)
                allreduce1(mx, tmp, op="v_max_f32", steps=(8,))
                a(f"    v_mul_f32 v{mx}, s25, v{mx}")
                for k in range(8): a(f"    v_fma_f32 v{Sx+k}, v{Sx+k}, s25, -v{mx}")
                for k in range(8): a(f"    v_exp_f32 v{Sx+k}, v{Sx+k}")
                for k in range(4): a(f"    v_cvt_pk_bf16_f32 v{Pp+k}, v{Sx+2*k}, v{Sx+2*k+1}")
                a(f"""
    v_pk_add_f32 {vr(T,2)}, {vr(Sx,2)}, {vr(Sx+2,2)}
    v_pk_add_f32 {vr(T+2,2)}, {vr(Sx+4,2)}, {vr(Sx+6,2)}
    """)
                for sc in (0, 2, 1, 3):
                    a(f"    v_mfma_f32_16x16x32_bf16 {vr(PD+4*sc,4)}, {vr(VO+4*sc,4)}, {vr(Pp,4)}, 0")
                gsprk(sprinkle[2])
                a(f"""
    v_pk_add_f32 {vr(T,2)}, {vr(T,2)}, {vr(T+2,2)}
    v_add_f32 v{lsum}, v{T}, v{T+1}
    """)
                allreduce1(lsum, tmp, steps=(8,))
                X = D1
                a(f"""
    v_log_f32 v{wv}, v{lsum}
    v_rcp_f32 v{rl}, v{lsum}
    """)
                for e in range(4): a(f"    v_add_f32_dpp v{X+e}, v{PD+8+e}, v{PD+e} row_ror:8 row_mask:0xf bank_mask:0x3")
                a(f"    v_add_f32 v{wv}, v{wv}, v{mx}")
                for e in range(4): a(f"    v_add_f32_dpp v{X+e}, v{PD+4+e}, v{PD+12+e} row_ror:8 row_mask:0xf bank_mask:0xc")
                a(f"""
    v_add_u32 v{wv}, 0x80, v{wv}
    v_bfi_b32 v{wv}, s70, v{vtag0}, v{wv}
    """)
                for e in range(4): a(f"    v_mul_f32 v{X+e}, v{X+e}, v{rl}")
                for e in range(4): a(f"    v_perm_b32 v{X+e}, v{X+e}, v{wv}, s{PSEL[e]}")
                seg_end()
                a(f"    buffer_store_dwordx4 {vr(X,4)}, v6, s[40:43], s23 offen sc1")
                S.extra(1)
                stamp(5)
                S.blocked -= {"po"}
                S.sprk(sprinkle[3])
            elif name == "po":
                F = T + 8
                def chk(re):
                    a(f"    v_mov_b32 v{T+3}, 0")
                    for k in range(4):
                        if not re: gwait("po", 3 - k)
                        a(f"""
    v_msad_u8 v{T+3}, v{G0+4*k}, s28, v{T+3}
    v_perm_b32 v{F+k}, v{G0+4*k+2}, v{G0+4*k+1}, s68
    v_lshl_or_b32 v{F+k}, v{G0+4*k+3}, 24, v{F+k}
    """)
                    a(f"    v_cmp_ne_u32 vcc, 0, v{T+3}")
                while "po" not in S.pos: S.issue()
                a(f"{P}SEG2:")
                chk(False)
                retry(f"{P}ro", pollo2, chk)
                with guard():
                    stamp(6); S.blocked -= {"ph"}; S.topup(name, depth + spr3)
                a(f"""
    v_max_f32 v{T+4}, v{F}, v{F+1}
    v_max3_f32 v{T+4}, v{F+2}, v{F+3}, v{T+4}
    """)
                allreduce1(T + 4, T + 5, op="v_max_f32", steps=(8, 4))
                for k in range(4): a(f"    v_sub_f32 v{F+k}, v{F+k}, v{T+4}")
                for k in range(4): a(f"    v_exp_f32 v{F+k}, v{F+k}")
                L_ = T + 6
                for e in range(4): a(f"    v_mul_f32 v{G0+e}, v{G0+e}, v{F}")
                a(f"""
    v_add_f32 v{L_}, v{F}, v{F+1}
    v_add_f32 v{L_+1}, v{F+2}, v{F+3}
    """)
                for t in range(1, 4):
                    for e in range(4): a(f"    v_fmac_f32 v{G0+e}, v{G0+4*t+e}, v{F+t}")
                    if t == 1: a(f"    v_add_f32 v{L_}, v{L_}, v{L_+1}")
                merge2(G0, L_)
                a(f"""
    v_rcp_f32 v{L_}, v{L_}
    s_nop 0
    v_mul_f32 v{G0}, v{G0}, v{L_}
    v_cvt_pk_bf16_f32 v{G0}, v{G0}, v{G0}
    s_nop 1
    """)
                for u in range(4):
                    for m_ in range(4):
                        a(f"    v_and_b32_dpp v{A3+4*u+m_}, v{G0}, v{2+m_} quad_perm:[{u},{u},{u},{u}] row_mask:0xf bank_mask:0xf")
                a("    s_nop 1")
                have_o = True
                for k in range(8):
                    if names.index(f"wo{k}") < names.index("po"): mf_wo(k)
            elif name.startswith("wo"):
                std()
                if have_o: mf_wo(int(name[2:]))
            elif name == "ph":
                def chk(re):
                    if not re: gwait("ph")
                    a(f"""
    v_msad_u8 v{T+8}, v{HG}, v{vtagP}, 0
    v_msad_u8 v{T+9}, v{HG+1}, v{vtagP}, 0
    v_msad_u8 v{T+8}, v{HG+2}, v{vtagP}, v{T+8}
    v_msad_u8 v{T+9}, v{HG+3}, v{vtagP}, v{T+9}
    v_or_b32 v{T+8}, v{T+8}, v{T+9}
    v_cmp_ne_u32 vcc, 0, v{T+8}
    """)
                while "ph" not in S.pos: S.issue()
                a(f"{P}SEG3b:")
                chk(False)
                retry(f"{P}rh", pollh, chk)
                with guard():
                    stamp(9); S.topup(name, depth + 1)
                G_, U_ = HG, HG + 2
                a(f"""
    v_add_f32 v{G_}, v{HG}, v{HG+1}
    v_add_f32 v{U_}, v{HG+2}, v{HG+3}
    s_nop 0
    v_add_f32_dpp v{G_}, v{G_}, v{G_} row_ror:8 row_mask:0xf bank_mask:0xf
    v_add_f32_dpp v{U_}, v{U_}, v{U_} row_ror:8 row_mask:0xf bank_mask:0xf
    """)
                rbf16(G_, G_)
                a(f"""
    v_mul_f32 v{T+4}, {0x80000000 | LOG2E}, v{G_}
    v_exp_f32 v{T+4}, v{T+4}
    """)
                rbf16(U_, U_)
                a(f"""
    v_add_f32 v{T+4}, 1.0, v{T+4}
    v_rcp_f32 v{T+4}, v{T+4}
    s_nop 0
    v_mul_f32 v{G_}, v{G_}, v{T+4}
    """)
                rbf16(G_, G_)
                a(f"""
    v_mul_f32 v{G_}, v{G_}, v{U_}
    v_cvt_pk_bf16_f32 v{G_}, v{G_}, v{G_}
    s_nop 1
    """)
                have_h = True
                ready = [k for k in range(8) if names.index(f"wd{k}") < names.index("ph")]
                for u in range(8):
                    for m_ in range(4):
                        a(f"    v_and_b32_dpp v{A2+4*u+m_}, v{G_}, v{2+m_} row_newbcast:{u} row_mask:0xf bank_mask:0xf")
                    if u >= 1 and (u - 1) in ready: mf_wd(u - 1)
                a("    s_nop 1")
                if 7 in ready: mf_wd(7)
            elif name.startswith("wd"):
                std()
                if have_h: mf_wd(int(name[2:]))
            if not t3_done and have_o and names.index(name) >= max(names.index("wo7"), names.index("po")):
                o1 = L_OUT // 256
                a(f"""
    s_nop 6
    ds_write_b128 v{vOT}, {vr(PD,4)} offset:{L_OUT}
    ds_write_b128 v{vOT}, {vr(PD+4,4)} offset:{L_OUT+512}
    s_waitcnt lgkmcnt(0)
    """)
                barrier()
                a(f"""
    ds_read2st64_b32 {vr(T+2,2)}, v{vtid4} offset0:{o1} offset1:{o1+4}
    ds_read2st64_b32 {vr(T+4,2)}, v{vtid4} offset0:{o1+8} offset1:{o1+12}
    s_waitcnt lgkmcnt(0)
    v_add_f32 v{T+2}, v{T+2}, v{T+3}
    v_add_f32 v{T+4}, v{T+4}, v{T+5}
    v_add_f32 v{T+2}, v{T+2}, v{T+4}
    v_add_u32 v{T+2}, v{T+2}, v{vaddP}
    v_bfi_b32 v{T+2}, s70, v{vtagP}, v{T+2}
    """)
                seg_end()
                a(f"    buffer_store_dword v{T+2}, v{vtid4}, s[40:43], s69 offen sc1")
                S.extra(1)
                stamp(7)
                t3_done = True
                S.sprk(1)
        if ffn:
            assert names.index("ph") > max(names.index("wo7"), names.index("po"))
            o2 = L_OUT2 // 256
            a(f"""
    s_add_u32 s99, s62, {PBG-PBL}
    s_nop 6
    ds_write_b128 v{vOT2}, {vr(DG,4)} offset:{L_OUT2}
    s_waitcnt lgkmcnt(0)
    """)
            barrier()
            a(f"""
    ds_read2st64_b32 {vr(T,2)}, v{vt7} offset0:{o2} offset1:{o2+2}
    ds_read2st64_b32 {vr(T+2,2)}, v{vt7} offset0:{o2+4} offset1:{o2+6}
    s_cmp_ge_u32 s3, 2
    s_waitcnt lgkmcnt(0)
    v_add_f32 v{T}, v{T}, v{T+1}
    v_add_f32 v{T+2}, v{T+2}, v{T+3}
    v_add_f32 v{T}, v{T}, v{T+2}
    v_add_u32 v{T}, v{T}, v{vaddP}
    v_bfi_b32 v{T}, s70, v{vtagP}, v{T}
    """)
            seg_end()
            a(f"""
    s_cbranch_scc1 H_glob
    buffer_store_dword v{T}, v{vt7}, s[40:43], s62 offen
    s_branch H_fin
H_glob:
    buffer_store_dword v{T}, v{vt7}, s[40:43], s99 offen sc1
H_fin:
    """)
            stamp(10)

    path(True, "H")
    store_stamps()
    a("    s_endpgm")
    a("L_light:")
    path(False, "Lt")
    vA, vB, vkeep, vX, vO, vF = T + 8, T + 9, T + 10, T + 11, T + 12, T + 13
    RA = G0; RB = G0 + 8; ac = T + 6
    a(f"""
    s_lshr_b32 s64, s34, 3            ; k
    s_lshl_b32 s65, s33, 2
    s_add_u32 s65, s65, s64           ; c
    s_lshl_b32 s66, s65, 6
    v_lshlrev_b32 v{vO}, 1, v1
    v_add_u32 v{vO}, s66, v{vO}
    buffer_load_ushort v{vX}, v{vO}, s[36:39], 0 offen
    v_lshlrev_b32 v{vA}, 12, v7
    v_lshl_add_u32 v{vA}, v8, 4, v{vA}
    v_cmp_gt_u32 vcc, 56, v1
    v_min_u32 v{vB}, 6, v7
    v_lshlrev_b32 v{vB}, 9, v{vB}
    v_lshl_add_u32 v{vB}, v8, 4, v{vB}
    v_cndmask_b32 v{vkeep}, 0, 1.0, vcc
    v_lshlrev_b32 v{vF}, 2, v{vG}
    v_lshl_add_u32 v{vF}, v8, 4, v{vF}
    s_lshl_b32 s96, s3, 8
    v_add_u32 v{vF}, s96, v{vF}
    s_lshl_b32 s67, s65, 7
    s_lshl_b32 s96, s3, 16
    s_add_u32 s68, s67, s96
    s_add_u32 s68, s68, {PA}
    s_add_u32 s69, s68, {8*4096}
    s_mul_i32 s67, s33, 14336
    s_mul_i32 s96, s3, {7*512}
    s_add_u32 s67, s67, s96
    s_lshl_b32 s64, s64, 7
    s_add_u32 s67, s67, s64
    s_add_u32 s66, s67, {PBG}
    s_add_u32 s67, s67, {PBL if local else PBG}
    s_mov_b32 s71, {spin_max}
R_pa:
    buffer_load_dwordx4 {vr(RA,4)}, v{vA}, s[40:43], s68 offen sc1
    buffer_load_dwordx4 {vr(RA+4,4)}, v{vA}, s[40:43], s69 offen sc1
    buffer_load_dwordx4 {vr(RB,4)}, v{vB}, s[40:43], s67 offen sc1
    v_mov_b32 v{ac}, 0
    v_mov_b32 v{ac+1}, 0
    """)
    for k in range(2):
        a(f"    s_waitcnt vmcnt({2-k})")
        for e in range(4): a(f"    v_msad_u8 v{ac+(e&1)}, v{RA+4*k+e}, s{28+e}, v{ac+(e&1)}")
    a(f"""
    v_or_b32 v{ac}, v{ac}, v{ac+1}
    v_cmp_ne_u32 vcc, 0, v{ac}
    s_sub_u32 s71, s71, 1
    s_cmp_eq_u32 s71, 0
    s_cbranch_scc1 R_aok
    s_cbranch_vccnz R_pa
R_aok:
    s_mov_b32 s71, 0
    """)
    stamp(10)
    a("LtSEG3:")
    for e in range(4): a(f"    v_add_f32 v{RA+e}, v{RA+e}, v{RA+4+e}")
    def merge1(X):
        a(f"""
    s_nop 0
    v_permlane32_swap_b32 v{X}, v{X+2}
    v_permlane32_swap_b32 v{X+1}, v{X+3}
    v_add_f32 v{X}, v{X}, v{X+2}
    v_add_f32 v{X+1}, v{X+1}, v{X+3}
    s_nop 1
    v_permlane16_swap_b32 v{X}, v{X+1}
    v_add_f32 v{X}, v{X}, v{X+1}
    s_nop 1
    v_add_f32_dpp v{X}, v{X}, v{X} row_ror:8 row_mask:0xf bank_mask:0xf
    """)
    merge1(RA)
    a(f"""
    v_lshlrev_b32 v{vX}, 16, v{vX}
    ds_write_b32 v{vF}, v{RA} offset:{L_FIN}
    s_branch R_chk
R_pb:
    s_add_u32 s71, s71, 1
    s_and_b32 s96, s71, {gper}
    s_cmp_eq_u32 s96, 0
    s_cselect_b32 s96, s66, s67
    buffer_load_dwordx4 {vr(RB,4)}, v{vB}, s[40:43], s96 offen sc1
R_chk:
    """)
    with guard(): a("    s_waitcnt vmcnt(0)")
    a(f"""
    v_msad_u8 v{ac}, v{RB}, s28, 0
    v_msad_u8 v{ac+1}, v{RB+1}, s29, 0
    v_msad_u8 v{ac}, v{RB+2}, s30, v{ac}
    v_msad_u8 v{ac+1}, v{RB+3}, s31, v{ac+1}
    v_or_b32 v{ac}, v{ac}, v{ac+1}
    v_cmp_ne_u32 vcc, 0, v{ac}
    s_cmp_eq_u32 s71, {spin_max}
    s_cbranch_scc1 R_bok
    s_cbranch_vccnz R_pb
R_bok:
    """)
    with guard(): stamp(8)
    for e in range(4): a(f"    v_mul_f32 v{RB+e}, v{RB+e}, v{vkeep}")
    merge1(RB)
    a(f"""
    ds_write_b32 v{vF}, v{RB} offset:{L_FIN+128}
    s_waitcnt lgkmcnt(0)
    """)
    barrier()
    a(f"""
    ds_read2st64_b32 {vr(RA,2)}, v{vtid4} offset0:{L_FIN//256} offset1:{L_FIN//256+1}
    ds_read2st64_b32 {vr(RA+2,2)}, v{vtid4} offset0:{L_FIN//256+2} offset1:{L_FIN//256+3}
    s_waitcnt lgkmcnt(0)
    v_add_f32 v{RA}, v{RA}, v{RA+1}
    v_add_f32 v{RA+2}, v{RA+2}, v{RA+3}
    v_add_f32 v{RA}, v{RA}, v{RA+2}
    """)
    rbf16(RA, RA)
    a(f"""
    v_mov_b32 v{RB}, v{RA}
    v_add_f32 v{RA+1}, v{RA}, v{vX}
    s_nop 0
    v_permlane32_swap_b32 v{RA}, v{RB}
    """)
    rbf16(RA + 1, RA + 1)
    a(f"""
    v_add_f32 v{RA}, v{RA+1}, v{RB}
    v_cvt_pk_bf16_f32 v{RA}, v{RA}, v{RA}
    """)
    if warm: a("    s_cbranch_execz LtW_ret")
    a(f"""
    s_cmp_lg_u32 s3, 0
    s_cbranch_scc1 R_done
    s_mov_b32 exec_hi, 0
    buffer_store_short v{RA}, v{vO}, s[16:19], 0 offen
    s_cmp_lg_u32 s65, 0
    s_cbranch_scc1 R_done
    v_mov_b32 v{RB}, s35
    v_mov_b32 v{RB+1}, 0
    s_mov_b64 exec, 1
    buffer_store_dword v{RB}, v{RB+1}, s[40:43], 0 offen offset:{EPOCH}
R_done:
    s_mov_b64 exec, -1
    """)
    stamp(9)
    store_stamps()
    a("""
L_end:
    s_endpgm
L_code_end:
    """)
    print(out, "vgprs", nv, "agprs", nagpr, "lds", LDS_BYTES)
    open(out, "w").write(wrap(a.text(), 256, 256, LDS_BYTES, vgpr=accum + nagpr, accum=accum))

if __name__ == "__main__":
    gen("k9.s", stamps=True)
    gen("k9_ns.s", stamps=False)
```

```python
import gen9
gen9.gen("o_a.s", stamps=False, po=40, ph=45)
gen9.gen("o_b.s", stamps=False, po=40, ph=48, ph_after_o=True, spr3=8)
gen9.gen("o_c.s", stamps=False, po=42, ph=48, ph_after_o=True, spr3=8, tail_step=2)
```

```python
import sys
from asmgen import *

STAMP_OFF = 128 << 20
NST = 12
EPOCH = 0
QP = 0x1000
OP = 0x40000
GU = 0x180000
OF = 0x20000
PL = 0x200000
PG = 0x240000
WS_SIZE = 256 << 20

L_RED = 0
L_G = 2048
L_TRASH = 6144
L_Q = 11264
L_S = 13440
L_OUT = 14848
L_OUT2 = 18944
L_FIN = 20992
L_V = 23040
LDS_BYTES = L_V + 16384

LOG2E = 0x3FB8AA3B
SCALE = 0x3DB504F3

class R:
    def __init__(self, start): self.n = start
    def a(self, k=1, al=1):
        self.n = (self.n + al - 1) // al * al
        r = self.n; self.n += k
        return r
def vr(b, n): return f"v[{b}:{b+n-1}]"
def ar(b, n): return f"a[{b}:{b+n-1}]"

class Sched:
    def __init__(self, a): self.a = a; self.items = []; self.issued = 0; self.nops = 0; self.pos = {}; self.blocked = set()
    def add(self, name, fn, n=1): self.items.append((name, fn, n))
    def issue(self):
        name, fn, n = self.items[self.issued]
        fn(); self.nops += n; self.pos[name] = self.nops; self.issued += 1
    def can(self): return self.issued < len(self.items) and self.items[self.issued][0] not in self.blocked
    def extra(self, n=1): self.nops += n
    def wait(self, name, sub=0):
        while name not in self.pos:
            assert self.can(), (name, self.items[self.issued][0])
            self.issue()
        cnt = self.nops - self.pos[name] + sub
        assert cnt <= 63
        self.a(f"    s_waitcnt vmcnt({cnt})")
    def index(self, name): return [i for i, it in enumerate(self.items) if it[0] == name][0]
    def topup(self, name, depth):
        i = self.index(name)
        while self.can() and self.issued - (i + 1) < depth: self.issue()
    def sprk(self, n):
        for _ in range(n):
            if self.can(): self.issue()

def gen(out, stamps=True, nt=True, D=5, Dl=5, pq=23, pf=48, ph=45, lq=22, lo_sleep=48, spin_max=1 << 20, warm=True,
        k0=2, k1=0, k2=2, Dt=7, sprinkle=(2, 2, 1, 1), spr3=3, dmap=None, warm_extra=3, cnt=False, gper=7, local=True, sprg=1, mixU=True, oracle_q=False, ph_after_o=False, tail_step=0, wq_flags=" nt", nobar=False, kvs=False, lf_sleep=12, masked=True, c_bet=0, pf_late=False, hf_sleep=0, pure=False):
    a = Asm()
    NT = " nt" if nt else ""
    def stamp(i):
        if stamps: a(f"    s_memrealtime s[{72+2*i}:{73+2*i}]")
    def store_stamps():
        if not stamps: return
        lab = a.label("nost")
        a(f"""
    s_waitcnt lgkmcnt(0)
    s_cmp_lg_u32 s3, 0
    s_cbranch_scc1 {lab}
    s_mul_i32 s64, s2, {NST*8}
    s_add_u32 s64, s64, {STAMP_OFF}
    v_mov_b32 v20, 0
    s_mov_b64 exec, 1
    """)
        for i in range(NST):
            a(f"""
    v_mov_b32 v22, s{72+2*i}
    v_mov_b32 v23, s{73+2*i}
    buffer_store_dwordx2 v[22:23], v20, s[40:43], s64 offen offset:{8*i}
    s_nop 1
    """)
        a(f"{lab}:")
    def srd(base, lo, size):
        a(f"""
    s_mov_b32 s{base}, s{lo}
    s_mov_b32 s{base+1}, s{lo+1}
    s_mov_b32 s{base+2}, {size}
    s_mov_b32 s{base+3}, 0x20000
    """)
    class guard:
        def __enter__(self):
            self.l = a.label("G"); self.n = len(a.lines)
            if warm: a(f"    s_cbranch_execz {self.l}")
        def __exit__(self, *x):
            if warm:
                if len(a.lines) == self.n + 1: a.lines.pop()
                else: a(f"{self.l}:")
    def barrier():
        with guard(): a("    s_barrier")

    r = R(10)
    (vtagP, vaddP, vOT, vtid4, vPF, vG4, vWQ, vK, vWO, vPO, vQW, vQR, vSW, vSR, vTR, vred, vtag0, vGU, vGU2, vWD, vPH, vJ, vG,
     vOT2, vl4, vt7, vV) = [r.a() for _ in range(27)]
    XA = r.a(8, 4); XS = r.a(4, 4); T = r.a(24, 4); A = r.a(32, 4); QB = r.a(16, 4)
    D1 = r.a(4, 4); PD = r.a(16, 4); DG = r.a(8, 4); WQ = r.a(32, 4); KK = r.a(16, 4); VO = r.a(16, 4); G0 = r.a(16, 4); HG = r.a(4, 4)
    nv = r.n
    assert nv <= 256, nv
    accum = (nv + 3) // 4 * 4
    GW = 0; WD = 64; nagpr = 96
    A3 = KK; A2 = A; WO = WQ; OG = A; FF = QB
    assert VO == KK + 16

    a(f"""
    s_cmp_ge_u32 s2, 256
    s_cbranch_scc1 L_end
    s_load_dwordx16 s[4:19], s[0:1], 0
    s_load_dwordx8 s[20:27], s[0:1], 64
    """)
    if stamps:
        for i in range(1, NST): a(f"    s_mov_b64 s[{72+2*i}:{73+2*i}], 0")
    stamp(0)
    a(f"""
    v_lshrrev_b32 v6, 6, v0
    v_and_b32 v1, 63, v0
    s_and_b32 s33, s2, 7            ; xcd
    v_readfirstlane_b32 s3, v6
    s_lshr_b32 s34, s2, 3           ; idx
    s_getpc_b64 s[96:97]
L_pc:
    s_lshl_b32 s64, s34, 2
    s_add_u32 s64, s64, s3
    s_lshl_b32 s64, s64, 7
    s_min_u32 s64, s64, L_code_end - L_pc - 4
    v_mov_b32 v9, s64
    global_load_dword v{vPF}, v9, s[96:97]
    v_lshlrev_b32 v6, 4, v1          ; lane*16
    v_lshrrev_b32 v7, 3, v1          ; l>>3
    v_and_b32 v8, 7, v1              ; l&7
    s_lshr_b32 s65, s33, 1           ; g
    s_and_b32 s66, s33, 1
    s_lshl_b32 s66, s66, 5
    s_add_u32 s66, s66, s34          ; m
    s_and_b32 s67, s66, 15           ; cb
    s_lshr_b32 s68, s66, 4           ; rq
    s_lshl_b32 s69, s68, 8
    s_lshl_b32 s64, s3, 6
    s_add_u32 s69, s69, s64          ; R0
    s_lshl_b32 s97, s69, 1
    v_lshlrev_b32 v9, 4, v7
    s_lshl_b32 s64, s69, 13
    s_lshl_b32 s96, s65, 11
    s_add_u32 s64, s64, s96
    s_lshl_b32 s96, s67, 7
    s_add_u32 s64, s64, s96
    v_lshlrev_b32 v{vWQ}, 16, v7
    v_lshl_add_u32 v{vWQ}, v8, 4, v{vWQ}
    v_add_u32 v{vWQ}, s64, v{vWQ}
    v_lshrrev_b32 v{vG}, 4, v1
    v_and_b32 v{vJ}, 15, v1
    s_mov_b32 s38, 2048
    s_mov_b32 s39, 0x20000
    s_mov_b32 s46, {8<<20}
    s_mov_b32 s47, 0x20000
    s_mov_b32 s64, 0
    s_waitcnt lgkmcnt(0)
    s_mov_b32 s36, s4
    s_mov_b32 s37, s5
    buffer_load_dwordx4 {vr(XA,4)}, v6, s[36:39], 0 offen
    buffer_load_dwordx4 {vr(XA+4,4)}, v6, s[36:39], 0 offen offset:1024
    buffer_load_dwordx4 {vr(XS,4)}, v9, s[36:39], s97 offen
    s_load_dword s28, s[26:27], {EPOCH}
    s_mov_b32 s44, s10
    s_mov_b32 s45, s11
    {"" if nobar else "s_barrier"}
    """)
    for t in range(8):
        a(f"    buffer_load_dwordx4 {vr(WQ+4*t,4)}, v{vWQ}, s[44:47], s64 offen{wq_flags}")
        if t < 7: a(f"    s_add_u32 s64, s64, 8192")
    a(f"""
    v_bfe_u32 v{T}, v0, 1, 2
    v_and_b32 v{T+1}, 1, v0
    v_lshlrev_b32 v{T+1}, 4, v{T+1}
    v_mov_b32 v9, 0xffff
    v_lshlrev_b32 v9, v{T+1}, v9
    v_cmp_eq_u32 vcc, 0, v{T}
    v_cmp_eq_u32 s[96:97], 1, v{T}
    v_cmp_eq_u32 s[98:99], 2, v{T}
    v_cmp_eq_u32 s[100:101], 3, v{T}
    v_cndmask_b32 v2, 0, v9, vcc
    v_cndmask_b32 v3, 0, v9, s[96:97]
    v_cndmask_b32 v4, 0, v9, s[98:99]
    v_cndmask_b32 v5, 0, v9, s[100:101]
    s_lshl_b32 s63, s65, 23
    s_lshl_b32 s96, s66, {8 if kvs else 14}
    s_add_u32 s63, s63, s96
    s_lshl_b32 s96, s3, {18 if kvs else 12}
    s_add_u32 s63, s63, s96
    s_add_u32 s63, s63, {28672*256}
    s_lshl_b32 s96, s3, 12
    s_add_u32 s96, s96, {L_V}
    s_mov_b32 m0, s96
    v_lshlrev_b32 v{vK}, {14 if kvs else 8}, v{vJ}
    v_lshl_add_u32 v{vK}, v{vG}, 4, v{vK}
    v_lshlrev_b32 v{vV}, {14 if kvs else 8}, v{vG}
    v_lshl_add_u32 v{vV}, v{vJ}, 4, v{vV}
    """)
    srd(48, 6, 32 << 20)
    srd(52, 8, 32 << 20)
    srd(40, 26, WS_SIZE)

    def allreduce2(x, y, t1, t2):
        for s_ in (8, 4, 2, 1):
            a(f"""
    s_nop 0
    v_add_f32_dpp v{x}, v{x}, v{x} row_ror:{s_} row_mask:0xf bank_mask:0xf
    v_add_f32_dpp v{y}, v{y}, v{y} row_ror:{s_} row_mask:0xf bank_mask:0xf
    """)
        for sw in ("v_permlane16_swap_b32", "v_permlane32_swap_b32"):
            a(f"""
    v_mov_b32 v{t1}, v{x}
    v_mov_b32 v{t2}, v{y}
    s_nop 0
    {sw} v{t1}, v{x}
    {sw} v{t2}, v{y}
    v_add_f32 v{x}, v{x}, v{t1}
    v_add_f32 v{y}, v{y}, v{t2}
    """)
    def allreduce1(x, t1, op="v_add_f32", steps=(8, 4, 2, 1)):
        for s_ in steps:
            a(f"""
    s_nop 1
    {op}_dpp v{x}, v{x}, v{x} row_ror:{s_} row_mask:0xf bank_mask:0xf
    """)
        for sw in ("v_permlane16_swap_b32", "v_permlane32_swap_b32"):
            a(f"""
    v_mov_b32 v{t1}, v{x}
    s_nop 1
    {sw} v{t1}, v{x}
    {op} v{x}, v{x}, v{t1}
    """)
    def rbf16(d, s_):
        a(f"""
    v_cvt_pk_bf16_f32 v{d}, v{s_}, v{s_}
    v_and_b32 v{d}, 0xffff0000, v{d}
    """)
    a(f"""
    v_lshrrev_b32 v{vred}, 2, v1
    v_xor_b32 v{vred}, v{vred}, v1
    v_and_b32 v{vred}, 8, v{vred}
    v_cmp_eq_u32 vcc, 0, v{vred}
    v_lshlrev_b32 v{vred}, 5, v8
    v_bfe_u32 v9, v1, 4, 1
    v_lshl_add_u32 v{vred}, v9, 4, v{vred}
    v_lshrrev_b32 v9, 5, v1
    v_lshl_add_u32 v{vred}, v9, 8, v{vred}
    s_lshl_b32 s64, s3, 9
    v_add_u32 v{vred}, s64, v{vred}
    v_add_u32 v9, {L_TRASH}, v6
    v_cndmask_b32 v{vred}, v9, v{vred}, vcc
    v_lshlrev_b32 v{vtid4}, 2, v0
    v_and_b32 v{vG4}, 3, v1
    v_lshlrev_b32 v{vtagP}, 3, v{vG4}
    s_lshl_b32 s44, s65, 14
    s_add_u32 s44, s44, {QP}
    s_lshl_b32 s45, s68, 12
    s_add_u32 s45, s45, s44
    s_lshl_b32 s96, s67, 8
    s_add_u32 s45, s45, s96
    s_waitcnt lgkmcnt(0)
    s_and_b32 s28, s28, 0x7f
    s_cmp_eq_u32 s28, 127
    s_cselect_b32 s28, 0, s28
    s_add_u32 s35, s28, 1
    s_add_u32 s29, s28, 33
    s_sub_u32 s64, s29, 127
    s_cmp_gt_u32 s29, 127
    s_cselect_b32 s29, s64, s29
    s_add_u32 s30, s28, 65
    s_sub_u32 s64, s30, 127
    s_cmp_gt_u32 s30, 127
    s_cselect_b32 s30, s64, s30
    s_add_u32 s31, s28, 97
    s_sub_u32 s64, s31, 127
    s_cmp_gt_u32 s31, 127
    s_cselect_b32 s31, s64, s31
    s_add_u32 s28, s28, 1
    s_lshl_b32 s32, s29, 8
    s_or_b32 s32, s32, s28
    s_lshl_b32 s64, s30, 16
    s_or_b32 s32, s32, s64
    s_lshl_b32 s64, s31, 24
    s_or_b32 s32, s32, s64
    s_movk_i32 s70, 0xff
    v_bfe_u32 v{vtagP}, s32, v{vtagP}, 8
    v_sub_u32 v{vaddP}, 0x80, v{vtagP}
    """)
    def kv_issue(i):
        if i < 4: a(f"    buffer_load_dwordx4 {vr(KK+4*i,4)}, v{vK}, s[48:51], s63 offen offset:{64*i}{NT}")
        else:
            so = "s63"
            if kvs and i > 4:
                a(f"    s_add_u32 s99, s63, {(i-4)*(65536-1024)}"); so = "s99"
            a(f"    buffer_load_dwordx4 v{vV}, s[52:55], {so} offen offset:{1024*(i-4)}{NT} lds")
    a(f"    s_waitcnt vmcnt(9)")
    stamp(1)
    for i in range(k0): kv_issue(i)
    for k in range(8):
        a(f"""
    v_lshlrev_b32 v{T+2*k}, 16, v{XA+k}
    v_and_b32 v{T+2*k+1}, 0xffff0000, v{XA+k}
    """)
    a(f"""
    v_readfirstlane_b32 s64, v{T}
    s_nop 1
    """)
    for k in range(16): a(f"    v_subrev_f32 v{T+k}, s64, v{T+k}")
    a(f"""
    v_pk_add_f32 {vr(T+16,2)}, {vr(T,2)}, {vr(T+2,2)}
    v_pk_mul_f32 {vr(T+18,2)}, {vr(T,2)}, {vr(T,2)}
    """)
    for k in range(1, 8):
        a(f"    v_pk_fma_f32 {vr(T+18,2)}, {vr(T+2*k,2)}, {vr(T+2*k,2)}, {vr(T+18,2)}")
        if k >= 2: a(f"    v_pk_add_f32 {vr(T+16,2)}, {vr(T+16,2)}, {vr(T+2*k,2)}")
    S1, S2, t1, t2 = T + 16, T + 18, T + 17, T + 19
    a(f"""
    v_add_f32 v{S1}, v{S1}, v{t1}
    v_add_f32 v{S2}, v{S2}, v{t2}
    s_nop 0
    """)
    allreduce2(S1, S2, t1, t2)
    mean, var, rs, sd = T, T + 1, T + 2, T + 3
    a(f"""
    v_mul_f32 v{S1}, 0x3a800000, v{S1}
    v_mul_f32 v{S2}, 0x3a800000, v{S2}
    v_add_f32 v{mean}, s64, v{S1}
    v_fma_f32 v{var}, -v{S1}, v{S1}, v{S2}
    v_max_f32 v{var}, 0, v{var}
    """)
    rbf16(mean, mean); rbf16(var, var)
    a(f"    v_add_f32 v{var}, 0x3727c5ac, v{var}")
    rbf16(var, var)
    a(f"""
    v_sqrt_f32 v{sd}, v{var}
    s_waitcnt vmcnt({8+k0})
    """)
    for i in range(k0, k0 + k1): kv_issue(i)
    rbf16(sd, sd)
    a(f"    v_rcp_f32 v{rs}, v{sd}")
    Dd = T + 4; Q = T + 12
    for k in range(4):
        a(f"""
    v_lshlrev_b32 v{Dd+2*k}, 16, v{XS+k}
    v_and_b32 v{Dd+2*k+1}, 0xffff0000, v{XS+k}
    """)
    for k in range(8): a(f"    v_sub_f32 v{Dd+k}, v{Dd+k}, v{mean}")
    for k in range(4): a(f"    v_cvt_pk_bf16_f32 v{XS+k}, v{Dd+2*k}, v{Dd+2*k+1}")
    for k in range(4):
        a(f"""
    v_lshlrev_b32 v{Dd+2*k}, 16, v{XS+k}
    v_and_b32 v{Dd+2*k+1}, 0xffff0000, v{XS+k}
    """)
    for k in range(8): a(f"    v_mul_f32 v{Q+k}, v{Dd+k}, v{rs}")
    for k in range(8): a(f"    v_fma_f32 v{Dd+k}, -v{Q+k}, v{sd}, v{Dd+k}")
    for k in range(8): a(f"    v_fmac_f32 v{Q+k}, v{Dd+k}, v{rs}")
    for k in range(8): a(f"    v_cvt_pk_bf16_f32 v{Q+k}, v{Q+k}, v{Q+k}")
    for k in range(8):
        for m_ in range(4): a(f"    v_and_b32 v{A+4*k+m_}, v{Q+k}, v{2+m_}")
    stamp(2)
    for i in range(k0 + k1, k0 + k1 + k2): kv_issue(i)
    srd(56, 12, 8 << 20)
    srd(4, 16, 7 << 20)
    srd(8, 18, 7 << 20)
    srd(12, 20, 7 << 20)
    srd(16, 22, 2048)
    a(f"""
    s_add_u32 s64, s67, 4
    s_lshr_b32 s64, s64, 3
    s_mul_i32 s60, s65, 14
    s_add_u32 s60, s60, s67
    s_sub_u32 s60, s60, s64
    s_add_u32 s61, s60, {28 if mixU else 0}
    s_sub_u32 s64, s61, 56
    s_cmp_ge_u32 s61, 56
    s_cselect_b32 s61, s64, s61
    s_add_u32 s64, s34, 4
    s_lshr_b32 s64, s64, 3
    s_sub_u32 s62, s34, s64
    s_mul_i32 s64, s69, 7168
    v_mul_u32_u24 v{vGU}, {8*7168}, v7
    v_lshl_add_u32 v{vGU}, v8, 4, v{vGU}
    s_lshl_b32 s96, s61, 7
    s_add_u32 s96, s96, s64
    v_add_u32 v{vGU2}, s96, v{vGU}
    s_lshl_b32 s96, s60, 7
    s_add_u32 s96, s96, s64
    v_add_u32 v{vGU}, s96, v{vGU}
    s_lshl_b32 s60, s60, 11
    s_lshl_b32 s61, s61, 11
    s_add_u32 s61, s61, 1024
    s_cmp_eq_u32 s3, 0
    s_cselect_b32 s60, s60, s61
    s_lshl_b32 s64, s68, 8
    s_add_u32 s60, s60, s64
    s_add_u32 s60, s60, {GU}
    s_lshl_b32 s61, s62, 12
    s_lshr_b32 s64, s3, 1
    s_lshl_b32 s64, s64, 11
    s_add_u32 s61, s61, s64
    s_and_b32 s64, s3, 1
    s_lshl_b32 s64, s64, 7
    s_add_u32 s61, s61, s64
    s_add_u32 s61, s61, {GU}
    v_bfe_u32 v9, v1, 3, 1
    v_lshlrev_b32 v{vPH}, 8, v9
    v_lshl_add_u32 v{vPH}, v{vG}, 5, v{vPH}
    v_lshl_add_u32 v{vPH}, v8, 2, v{vPH}
    ; wd voffset = (128j + 32w + 8G)*2048 + 256x + 16jj
    s_lshl_b32 s64, s62, 18
    s_lshl_b32 s96, s3, 16
    s_add_u32 s64, s64, s96
    s_lshl_b32 s96, s33, 8
    s_add_u32 s64, s64, s96
    v_lshlrev_b32 v{vWD}, 14, v{vG}
    v_lshl_add_u32 v{vWD}, v{vJ}, 4, v{vWD}
    v_add_u32 v{vWD}, s64, v{vWD}
    s_lshl_b32 s62, s33, 5
    s_add_u32 s62, s62, s34
    s_lshl_b32 s62, s62, 10
    s_add_u32 s62, s62, {PL}
    v_and_b32 v{vt7}, 511, v{vtid4}
    s_lshr_b32 s64, s3, 1
    s_lshl_b32 s64, s64, 11
    v_add_u32 v{vt7}, s64, v{vt7}
    v_lshlrev_b32 v{vl4}, 2, v1
    v_mul_u32_u24 v{vSW}, 144, v8
    v_lshl_add_u32 v{vSR}, v{vG}, 4, v{vSW}
    v_lshl_add_u32 v{vSR}, v9, 6, v{vSR}
    v_bfe_u32 v9, v1, 4, 1
    v_lshlrev_b32 v{vOT}, 5, v{vJ}
    v_lshl_add_u32 v{vOT}, v9, 4, v{vOT}
    s_lshl_b32 s64, s3, 9
    v_add_u32 v{vOT}, s64, v{vOT}
    s_lshl_b32 s67, s34, 2
    s_add_u32 s67, s67, s3
    s_lshr_b32 s64, s67, 5
    s_lshl_b32 s64, s64, 10
    s_bfe_u32 s96, s67, 0x20003
    s_lshl_b32 s96, s96, 5
    s_add_u32 s64, s64, s96
    s_and_b32 s96, s67, 1
    s_lshl_b32 s96, s96, 4
    s_add_u32 s64, s64, s96
    s_bfe_u32 s96, s67, 0x20001
    s_lshl_b32 s96, s96, 2
    s_add_u32 s64, s64, s96
    s_lshl_b32 s64, s64, 11
    s_lshl_b32 s96, s33, 8
    s_add_u32 s64, s64, s96
    v_lshlrev_b32 v{vWO}, 11, v{vG}
    v_lshl_add_u32 v{vWO}, v{vJ}, 4, v{vWO}
    v_add_u32 v{vWO}, s64, v{vWO}
    s_lshl_b32 s69, s67, 7
    s_add_u32 s69, s69, {OF}
    v_lshlrev_b32 v{vOT2}, 5, v{vG}
    v_lshl_add_u32 v{vOT2}, v8, 2, v{vOT2}   ; vOF = (8G + (l&7))*4
    v_mul_u32_u24 v{vQR}, 272, v8
    v_lshl_add_u32 v{vQR}, v{vG}, 4, v{vQR}
    v_lshl_add_u32 v{vSW}, v{vG}, 3, v{vSW}
    s_lshl_b32 s96, s3, 5
    v_add_u32 v{vSW}, s96, v{vSW}
    v_bfe_u32 v9, v1, 2, 2
    v_lshl_add_u32 v{vTR}, v{vG}, 3, v9
    v_lshlrev_b32 v{vTR}, 8, v{vTR}
    v_lshlrev_b32 v9, 3, v{vG4}
    s_lshl_b32 s64, s3, 6
    v_add3_u32 v{vTR}, v{vTR}, v9, s64
    v_lshrrev_b32 v{vQW}, 5, v0
    v_and_b32 v9, 31, v0
    v_mul_u32_u24 v{vQW}, 272, v{vQW}
    v_lshl_add_u32 v{vQW}, v9, 3, v{vQW}
    s_lshl_b32 s97, s3, 10
    s_add_u32 s20, s44, s97
    s_lshl_b32 s22, s65, 18
    s_add_u32 s22, s22, {OP}
    s_lshl_b32 s96, s66, 12
    s_add_u32 s23, s22, s96
    s_add_u32 s23, s23, s97
    s_and_b32 s46, s32, 0xffff
    s_mov_b32 s47, 0x03020302
    s_mov_b32 s24, {SCALE}
    s_mov_b32 s25, {LOG2E}
    v_mov_b32 v{vtag0}, s28
    s_mov_b32 s26, 0x07060500
    s_mov_b32 s27, 0x07060501
    s_mov_b32 s66, 0x07060502
    s_mov_b32 s67, 0x07060503
    s_mov_b32 s68, 0x0c04000c
    s_lshl_b32 s21, s3, 11
    v_add_u32 v{vt7+0 if False else XS}, s21, v{vl4}
    """)
    vGR = XS; vOF = vOT2
    PSEL = (26, 27, 66, 67)
    def red8(Rr, vaddr, o):
        a(f"""
    ds_read2st64_b32 {vr(Rr,2)}, v{vaddr} offset0:{o} offset1:{o+1}
    ds_read2st64_b32 {vr(Rr+2,2)}, v{vaddr} offset0:{o+2} offset1:{o+3}
    ds_read2st64_b32 {vr(Rr+4,2)}, v{vaddr} offset0:{o+4} offset1:{o+5}
    ds_read2st64_b32 {vr(Rr+6,2)}, v{vaddr} offset0:{o+6} offset1:{o+7}
    s_waitcnt lgkmcnt(0)
    v_add_f32 v{Rr}, v{Rr}, v{Rr+1}
    v_add_f32 v{Rr+2}, v{Rr+2}, v{Rr+3}
    v_add_f32 v{Rr+4}, v{Rr+4}, v{Rr+5}
    v_add_f32 v{Rr+6}, v{Rr+6}, v{Rr+7}
    v_add_f32 v{Rr}, v{Rr}, v{Rr+2}
    v_add_f32 v{Rr+4}, v{Rr+4}, v{Rr+6}
    v_add_f32 v{Rr}, v{Rr}, v{Rr+4}
    v_add_u32 v{Rr}, v{Rr}, v{vaddP}
    v_bfi_b32 v{Rr}, s70, v{vtagP}, v{Rr}
    """)
    nk = k0 + k1 + k2
    for t in range(8):
        a(f"    s_waitcnt vmcnt({7 - t + nk})")
        srcc = "0" if t == 0 else vr(D1, 4)
        a(f"    v_mfma_f32_16x16x32_bf16 {vr(D1,4)}, {vr(A+4*t,4)}, {vr(WQ+4*t,4)}, {srcc}")
        while nk < 8 and t < 7 and (7 - t) + nk < Dt:
            kv_issue(nk); nk += 1
    kpre = nk
    a(f"""
    s_nop 7
    ds_write_b128 v{vred}, {vr(D1,4)} offset:{L_RED}
    s_waitcnt lgkmcnt(0)
    s_barrier
    s_cmp_lg_u32 s3, 0
    s_cbranch_scc1 L_nored
    """)
    red8(T, vl4, L_RED // 256)
    a(f"""
    buffer_store_dword v{T}, v{vl4}, s[40:43], s45 offen sc1
L_nored:
    """)
    stamp(3)
    a("""
    s_and_b32 s64, s34, 7
    s_cmp_eq_u32 s64, 3
    s_cbranch_scc1 L_light
    """)

    def merge2(X, Y, steps=(8, 4)):
        a(f"""
    v_mov_b32 v{Y+1}, v{Y}
    s_nop 0
    v_permlane32_swap_b32 v{X}, v{X+2}
    v_permlane32_swap_b32 v{X+1}, v{X+3}
    v_permlane32_swap_b32 v{Y+1}, v{Y}
    v_add_f32 v{X}, v{X}, v{X+2}
    v_add_f32 v{X+1}, v{X+1}, v{X+3}
    v_add_f32 v{Y}, v{Y}, v{Y+1}
    s_nop 0
    v_mov_b32 v{Y+1}, v{Y}
    v_permlane16_swap_b32 v{X}, v{X+1}
    s_nop 0
    v_permlane16_swap_b32 v{Y+1}, v{Y}
    v_add_f32 v{X}, v{X}, v{X+1}
    v_add_f32 v{Y}, v{Y}, v{Y+1}
    """)
        for s_ in steps:
            a(f"""
    s_nop 0
    v_add_f32_dpp v{X}, v{X}, v{X} row_ror:{s_} row_mask:0xf bank_mask:0xf
    v_add_f32_dpp v{Y}, v{Y}, v{Y} row_ror:{s_} row_mask:0xf bank_mask:0xf
    """)

    vA, vB, vkeep, vX, vO, vF = XA, XA + 1, XA + 2, XA + 3, XA + 4, XA + 5
    RA = G0; RB = G0 + 8; ac = T + 6
    def red_pre():
        a(f"""
    s_lshl_b32 s54, s65, 6
    v_lshlrev_b32 v{vO}, 1, v1
    v_add_u32 v{vO}, s54, v{vO}
    buffer_load_ushort v{vX}, v{vO}, s[36:39], 0 offen
    v_lshlrev_b32 v{vA}, 10, v7
    v_lshl_add_u32 v{vA}, v8, 4, v{vA}
    v_cmp_ne_u32 vcc, 3, v7
    v_add_u32 v{vB}, 512, v{vA}
    v_lshlrev_b32 v{vF}, 2, v{vG}
    v_cndmask_b32 v{vB}, v{vA}, v{vB}, vcc
    v_cndmask_b32 v{vkeep}, 0, 1.0, vcc
    v_lshl_add_u32 v{vF}, v8, 4, v{vF}
    s_lshl_b32 s96, s3, 8
    v_add_u32 v{vF}, s96, v{vF}
    s_lshl_b32 s55, s33, 15
    s_lshl_b32 s96, s3, 13
    s_add_u32 s55, s55, s96
    s_lshr_b32 s64, s34, 3
    s_lshl_b32 s64, s64, 7
    s_add_u32 s55, s55, s64
    s_add_u32 s54, s55, {PG}
    s_add_u32 s55, s55, {PL if local else PG}
    """)

    def path(ffn, P):
        S = Sched(a)
        def seg_end():
            if warm: a(f"    s_cbranch_execz {P}W_ret")
        def gsprk(n):
            with guard(): S.sprk(n)
        def gwait(name, sub=0):
            with guard(): S.wait(name, sub)
        for t in range(8):
            S.items.append((f"wq{t}", None, 1)); S.nops += 1; S.pos[f"wq{t}"] = S.nops; S.issued += 1
        base = []
        for i in range(8): base.append((f"kv{i}", (lambda i=i: kv_issue(i)), 1))
        def mk_gu(i):
            t, mat = i // 2, i % 2
            def f():
                so = "0"
                if t: a(f"    s_mov_b32 s99, {t*7168}"); so = "s99"
                a(f"    buffer_load_dwordx4 {ar(GW+4*i,4)}, v{vGU2 if mat else vGU}, s[{4+4*mat}:{7+4*mat}], {so} offen{NT}")
            return f
        def mk_wo(k):
            def f():
                so = "0"
                if k: a(f"    s_mov_b32 s99, {k*0x40000}"); so = "s99"
                a(f"    buffer_load_dwordx4 {vr(WO+4*k,4)}, v{vWO}, s[56:59], {so} offen{NT}")
            return f
        def mk_wd(k):
            def f():
                so = "0"
                if k >= 2: a(f"    s_movk_i32 s99, {(k & ~1)*2048}"); so = "s99"
                a(f"    buffer_load_dwordx4 {ar(WD+4*k,4)}, v{vWD}, s[12:15], {so} offen offset:{(k&1)*2048}{NT}")
            return f
        def pollq():
            if oracle_q:
                for k in range(4): a(f"    buffer_load_dwordx4 {vr(G0+4*k,4)}, v6, s[36:39], 0 offen")
                return
            a(f"    buffer_load_dwordx4 {vr(G0,4)}, v6, s[40:43], s20 offen sc1")
            for k in range(1, 4):
                a(f"    s_add_u32 s99, s20, {4096*k}")
                a(f"    buffer_load_dwordx4 {vr(G0+4*k,4)}, v6, s[40:43], s99 offen sc1")
        def pollf():
            a(f"    buffer_load_dword v{G0}, v{vOF}, s[40:43], s69 offen sc1")
        def pollh():
            for k in range(4): a(f"    buffer_load_dword v{HG+k}, v{vPH}, s[40:43], s61 offen offset:{512*k} sc1")
        if ffn:
            for i in range(16): base.append((f"gu{i}", mk_gu(i), 1))
        for k in range(8): base.append((f"wo{k}", mk_wo(k), 1))
        if ffn:
            for k in range(8): base.append((f"wd{k}", mk_wd(k), 1))
        Pl = [] if pure else [(pq, ("pq", pollq, 4)), (ph, ("ph", pollh, 4)), (pf, ("pf", pollf, 1))] if ffn else [(lq, ("pq", pollq, 4)), (98, ("comb", lambda: None, 0)), (99, ("pf", pollf, 1))]
        for i, it in enumerate(base):
            for p, pit in Pl:
                if p == i + 8: S.add(*pit)
            S.add(*it)
        for p, pit in Pl:
            if p >= len(base) + 8: S.add(*pit)
        for i in range(kpre):
            name = S.items[S.issued][0]; assert name == f"kv{i}"
            S.nops += 1; S.pos[name] = S.nops; S.issued += 1
        names = [it[0] for it in S.items]
        S.blocked |= {"ph"} | (set() if (ffn and not pf_late) else {"pf"})
        def retry(lab, fn, check):
            if oracle_q and lab.endswith("rq"): return
            if cnt:
                bit = {"rq": 100, "rf": 1000, "rh": 10000}[lab[-2:]]
                a(f"""
    s_nop 1
    s_cbranch_vccz {lab}_c
    s_add_u32 s94, s94, {bit}
    s_addc_u32 s95, s95, 0
{lab}_c:
    """)
            a(f"""
    s_nop 1
    s_cbranch_vccz {lab}_ok
    s_mov_b32 s71, {spin_max}
{lab}:
    """)
            fn()
            a("    s_waitcnt vmcnt(0)")
            check(True)
            a(f"""
    s_sub_u32 s71, s71, 1
    s_cmp_eq_u32 s71, 0
    s_cbranch_scc1 {lab}_ok
    s_cbranch_vccnz {lab}
{lab}_ok:
    """)
        if pure:
            for name in names:
                if name.startswith("wq"): continue
                S.wait(name); S.topup(name, D if ffn else Dl)
                if name == "kv7": stamp(4)
                if name == "gu7": stamp(5)
                if name == "gu15": stamp(8)
                if name == "wo7": stamp(7)
                if name == "wd7": stamp(10)
            if not ffn:
                stamp(9); store_stamps(); a("    s_endpgm\nLtW_ret:")
                red_pre()
            return
        S.blocked.add("pq"); S.sprk(warm_extra); S.blocked.discard("pq")
        if warm:
            a(f"""
    s_mov_b64 exec, 0
    s_cmp_eq_u32 s3, 0
    s_cbranch_scc1 {P}SEG0
    s_cmp_eq_u32 s3, 1
    s_cbranch_scc1 {P}SEG1
    s_cmp_eq_u32 s3, 2
    s_cbranch_scc1 {P}SEG2
    s_branch {P}SEG3
{P}W_ret:
    s_mov_b64 exec, -1
    """)
        if cnt: a('    s_waitcnt lgkmcnt(0)\n    s_mov_b64 s[94:95], s[72:73]')
        else: stamp(11)
        have_o = False; have_h = False; st_b = [False]
        DD = D if ffn else Dl
        def mf_wo(k):
            srcc = "0" if k == 0 else vr(PD, 4)
            a(f"    v_mfma_f32_16x16x32_bf16 {vr(PD,4)}, {vr(A3+4*k,4)}, {vr(WO+4*k,4)}, {srcc}")
        def mf_wd(k):
            srcc = "0" if k == 0 else vr(DG, 4)
            a(f"    v_mfma_f32_16x16x32_bf16 {vr(DG,4)}, {vr(A2+4*k,4)}, {ar(WD+4*k,4)}, {srcc}")
        for name in names:
            depth = DD
            if dmap and ffn:
                for k_, v_ in dmap:
                    if names.index(name) >= k_: depth = v_
            def std():
                with guard():
                    S.wait(name)
                    S.topup(name, depth)
            if name.startswith("wq"):
                pass
            elif name.startswith("kv"):
                std()
                if name == "kv7":
                    a("    s_barrier")
                    for s_ in range(2):
                        for c in range(2):
                            for h in range(2):
                                a(f"    ds_read_b64_tr_b16 {vr(VO+(s_*2+c)*4+2*h,2)}, v{vTR} offset:{L_V + s_*8192 + h*1024 + c*32}")
            elif name.startswith("gu"):
                i = int(name[2:]); t, mat = i // 2, i % 2
                with guard(): S.wait(name)
                srcc = "0" if t == 0 else vr(DG + 4 * mat, 4)
                a(f"    v_mfma_f32_16x16x32_bf16 {vr(DG+4*mat,4)}, {vr(A+4*t,4)}, {ar(GW+4*i,4)}, {srcc}")
                with guard(): S.topup(name, depth + (sprg if i == 15 else 0))
                if i == 15:
                    a(f"""
    s_nop 6
{P}SEG3:
    ds_write_b128 v{vred}, {vr(DG,4)} offset:{L_G}
    ds_write_b128 v{vred}, {vr(DG+4,4)} offset:{L_G+2048}
    s_waitcnt lgkmcnt(0)
    """)
                    with guard():
                        a(f"""
    s_barrier
    s_cmp_ge_u32 s3, 2
    s_cbranch_scc1 {P}nogu
    """)
                    red8(T, vGR, L_G // 256)
                    if warm: a(f"    s_cbranch_execz {P}SEG3b")
                    a(f"""
    buffer_store_dword v{T}, v{vl4}, s[40:43], s60 offen sc1
{P}nogu:
    """)
                    stamp(8)
                    S.blocked -= {"ph"}
            elif name == "pq":
                acc = T
                def chk(re):
                    a(f"""
    v_mov_b32 v{acc}, 0
    v_mov_b32 v{acc+1}, 0
    """)
                    for k in range(4):
                        if not re: gwait("pq", 3 - k)
                        for e in range(4): a(f"    v_msad_u8 v{acc+(e&1)}, v{G0+4*k+e}, s{28+e}, v{acc+(e&1)}")
                    a(f"""
    v_or_b32 v{acc}, v{acc}, v{acc+1}
    v_cmp_ne_u32 vcc, 0, v{acc}
    """)
                while "pq" not in S.pos: S.issue()
                a(f"{P}SEG0:")
                chk(False)
                retry(f"{P}rq", pollq, chk)
                with guard(): stamp(4)
                QS = T + 4
                a(f"""
    v_pk_add_f32 {vr(QS,2)}, {vr(G0,2)}, {vr(G0+4,2)}
    v_pk_add_f32 {vr(QS+2,2)}, {vr(G0+2,2)}, {vr(G0+6,2)}
    v_pk_add_f32 {vr(QS+4,2)}, {vr(G0+8,2)}, {vr(G0+12,2)}
    v_pk_add_f32 {vr(QS+6,2)}, {vr(G0+10,2)}, {vr(G0+14,2)}
    v_pk_add_f32 {vr(QS,2)}, {vr(QS,2)}, {vr(QS+4,2)}
    v_pk_add_f32 {vr(QS+2,2)}, {vr(QS+2,2)}, {vr(QS+6,2)}
    v_cvt_pk_bf16_f32 v{QS}, v{QS}, v{QS+1}
    v_cvt_pk_bf16_f32 v{QS+1}, v{QS+2}, v{QS+3}
    ds_write_b64 v{vQW}, {vr(QS,2)} offset:{L_Q}
    """)
                with guard(): S.topup(name, depth)
                a("    s_waitcnt lgkmcnt(0)")
                barrier()
                a(f"""
    ds_read_b128 {vr(QB,4)}, v{vQR} offset:{L_Q}
    ds_read_b128 {vr(QB+4,4)}, v{vQR} offset:{L_Q+64}
    ds_read_b128 {vr(QB+8,4)}, v{vQR} offset:{L_Q+128}
    ds_read_b128 {vr(QB+12,4)}, v{vQR} offset:{L_Q+192}
    """)
                gsprk(sprinkle[0])
                for t in range(4):
                    srcc = "0" if t == 0 else vr(D1, 4)
                    a(f"    s_waitcnt lgkmcnt({3-t})")
                    a(f"    v_mfma_f32_16x16x32_bf16 {vr(D1,4)}, {vr(KK+4*t,4)}, {vr(QB+4*t,4)}, {srcc}")
                Sx = T + 4
                a(f"""
    s_nop 7
    v_cvt_pk_bf16_f32 v{T}, v{D1}, v{D1+1}
    v_cvt_pk_bf16_f32 v{T+1}, v{D1+2}, v{D1+3}
    v_lshlrev_b32 v{Sx}, 16, v{T}
    v_and_b32 v{Sx+1}, 0xffff0000, v{T}
    v_lshlrev_b32 v{Sx+2}, 16, v{T+1}
    v_and_b32 v{Sx+3}, 0xffff0000, v{T+1}
    v_mul_f32 v{Sx}, s24, v{Sx}
    v_mul_f32 v{Sx+1}, s24, v{Sx+1}
    v_mul_f32 v{Sx+2}, s24, v{Sx+2}
    v_mul_f32 v{Sx+3}, s24, v{Sx+3}
    v_cvt_pk_bf16_f32 v{T}, v{Sx}, v{Sx+1}
    v_cvt_pk_bf16_f32 v{T+1}, v{Sx+2}, v{Sx+3}
    ds_write_b64 v{vSW}, {vr(T,2)} offset:{L_S}
    s_waitcnt lgkmcnt(0)
    """)
                seg_end()
                mx, tmp, lsum, wv, rl = T + 12, T + 13, T + 14, T + 15, T + 16
                Pp = T + 20
                a(f"""
    s_barrier
{P}SEG1:
    ds_read_b128 {vr(T,4)}, v{vSR} offset:{L_S}
    """)
                gsprk(sprinkle[1])
                a("    s_waitcnt lgkmcnt(0)")
                for k in range(4):
                    a(f"""
    v_lshlrev_b32 v{Sx+2*k}, 16, v{T+k}
    v_and_b32 v{Sx+2*k+1}, 0xffff0000, v{T+k}
    """)
                a(f"""
    v_max3_f32 v{mx}, v{Sx}, v{Sx+1}, v{Sx+2}
    v_max3_f32 v{tmp}, v{Sx+3}, v{Sx+4}, v{Sx+5}
    v_max3_f32 v{mx}, v{Sx+6}, v{Sx+7}, v{mx}
    v_max_f32 v{mx}, v{mx}, v{tmp}
    """)
                allreduce1(mx, tmp, op="v_max_f32", steps=(8,))
                a(f"    v_mul_f32 v{mx}, s25, v{mx}")
                for k in range(8): a(f"    v_fma_f32 v{Sx+k}, v{Sx+k}, s25, -v{mx}")
                for k in range(8): a(f"    v_exp_f32 v{Sx+k}, v{Sx+k}")
                for k in range(4): a(f"    v_cvt_pk_bf16_f32 v{Pp+k}, v{Sx+2*k}, v{Sx+2*k+1}")
                a(f"""
    v_pk_add_f32 {vr(T,2)}, {vr(Sx,2)}, {vr(Sx+2,2)}
    v_pk_add_f32 {vr(T+2,2)}, {vr(Sx+4,2)}, {vr(Sx+6,2)}
    """)
                for sc in (0, 2, 1, 3):
                    a(f"    v_mfma_f32_16x16x32_bf16 {vr(PD+4*sc,4)}, {vr(VO+4*sc,4)}, {vr(Pp,4)}, 0")
                gsprk(sprinkle[2])
                a(f"""
    v_pk_add_f32 {vr(T,2)}, {vr(T,2)}, {vr(T+2,2)}
    v_add_f32 v{lsum}, v{T}, v{T+1}
    """)
                allreduce1(lsum, tmp, steps=(8,))
                X = D1
                a(f"""
    v_log_f32 v{wv}, v{lsum}
    v_rcp_f32 v{rl}, v{lsum}
    """)
                for e in range(4): a(f"    v_add_f32_dpp v{X+e}, v{PD+8+e}, v{PD+e} row_ror:8 row_mask:0xf bank_mask:0x3")
                a(f"    v_add_f32 v{wv}, v{wv}, v{mx}")
                for e in range(4): a(f"    v_add_f32_dpp v{X+e}, v{PD+4+e}, v{PD+12+e} row_ror:8 row_mask:0xf bank_mask:0xc")
                a(f"""
    v_add_u32 v{wv}, 0x80, v{wv}
    v_bfi_b32 v{wv}, s70, v{vtag0}, v{wv}
    """)
                for e in range(4): a(f"    v_mul_f32 v{X+e}, v{X+e}, v{rl}")
                for e in range(4): a(f"    v_perm_b32 v{X+e}, v{X+e}, v{wv}, s{PSEL[e]}")
                seg_end()
                a(f"    buffer_store_dwordx4 {vr(X,4)}, v6, s[40:43], s23 offen sc1")
                S.extra(1)
                stamp(5)
                S.sprk(sprinkle[3])
            elif name == "comb":
                a(f"""
    v_lshlrev_b32 v{vPO}, 12, v7
    v_lshl_add_u32 v{vPO}, v8, 4, v{vPO}
    s_lshr_b32 s64, s34, 3
    s_lshl_b32 s65, s33, 2
    s_add_u32 s65, s65, s64           ; lam
    s_lshl_b32 s64, s65, 2
    s_add_u32 s64, s64, s3
    s_lshl_b32 s60, s64, 7
    s_add_u32 s60, s60, {OF}
    s_and_b32 s64, s64, 31
    s_lshl_b32 s64, s64, 7
    s_add_u32 s22, s22, s64
    s_mov_b32 s71, {spin_max}
    s_mov_b32 s52, 0x01010101
    s_mov_b32 s53, 0x01010101
    """)
                MS = [4, 6, 8, 10, 12, 14, 48, 50]
                for t in range(8): a(f"    s_mov_b64 s[{MS[t]}:{MS[t]+1}], -1")
                red_pre()
                a(f"""
    s_waitcnt vmcnt(0)
    {f"s_sleep {lo_sleep}" if lo_sleep else ""}
C_poll:
    """)
                for t in range(8):
                    a(f"""
    s_mov_b64 exec, s[{MS[t]}:{MS[t]+1}]
    s_cbranch_execz C_i{t}
    s_add_u32 s99, s22, {t*32768}
    buffer_load_dwordx4 {vr(OG+4*t,4)}, v{vPO}, s[40:43], s99 offen sc1
C_i{t}:
    """)
                a("    s_mov_b64 exec, -1\n    s_waitcnt vmcnt(0)")
                a(f"{P}SEG2:")
                for t in range(8):
                    a(f"""
    v_msad_u8 v{T+t}, v{OG+4*t}, s28, 0
    v_perm_b32 v{FF+t}, v{OG+4*t+2}, v{OG+4*t+1}, s68
    v_lshl_or_b32 v{FF+t}, v{OG+4*t+3}, 24, v{FF+t}
    """)
                a(f"""
    v_or3_b32 v{T+8}, v{T}, v{T+1}, v{T+2}
    v_or3_b32 v{T+9}, v{T+3}, v{T+4}, v{T+5}
    v_or3_b32 v{T+8}, v{T+6}, v{T+7}, v{T+8}
    v_or_b32 v{T+8}, v{T+8}, v{T+9}
    v_cmp_ne_u32 vcc, 0, v{T+8}
    v_max3_f32 v{T+10}, v{FF}, v{FF+1}, v{FF+2}
    v_max3_f32 v{T+11}, v{FF+3}, v{FF+4}, v{FF+5}
    s_cbranch_vccz C_ok
    """)
                for t in range(8): a(f"    v_cmp_ne_u32 s[{MS[t]}:{MS[t]+1}], 0, v{T+t}")
                a("    s_nop 1")
                for t in range(8):
                    m = f"s[{MS[t]}:{MS[t]+1}]"
                    if masked:
                        a(f"""
    s_lshr_b64 s[96:97], {m}, 4
    s_or_b64 {m}, {m}, s[96:97]
    s_lshr_b64 s[96:97], {m}, 2
    s_or_b64 {m}, {m}, s[96:97]
    s_lshr_b64 s[96:97], {m}, 1
    s_or_b64 {m}, {m}, s[96:97]
    s_and_b64 {m}, {m}, s[52:53]
    s_mul_i32 s{MS[t]}, s{MS[t]}, 0xff
    s_mul_i32 s{MS[t]+1}, s{MS[t]+1}, 0xff
    """)
                    else:
                        a(f"""
    s_cmp_lg_u64 {m}, 0
    s_cselect_b64 {m}, -1, 0
    """)
                if c_bet: a(f"    s_sleep {c_bet}")
                if cnt: a("    s_add_u32 s94, s94, 1000\n    s_addc_u32 s95, s95, 0")
                a(f"""
    s_sub_u32 s71, s71, 1
    s_cmp_lg_u32 s71, 0
    s_cbranch_scc1 C_poll
C_ok:
    """)
                with guard(): stamp(6)
                M_ = T + 10
                a(f"""
    v_max3_f32 v{M_}, v{FF+6}, v{FF+7}, v{M_}
    v_max_f32 v{M_}, v{M_}, v{T+11}
    """)
                allreduce1(M_, T + 11, op="v_max_f32", steps=(8,))
                for t in range(8): a(f"    v_sub_f32 v{FF+t}, v{FF+t}, v{M_}")
                for t in range(8): a(f"    v_exp_f32 v{FF+t}, v{FF+t}")
                for e in range(4): a(f"    v_mul_f32 v{OG+e}, v{OG+e}, v{FF}")
                for e in range(4): a(f"    v_mul_f32 v{OG+4+e}, v{OG+4+e}, v{FF+1}")
                for t in range(2, 8):
                    for e in range(4): a(f"    v_fmac_f32 v{OG+4*(t&1)+e}, v{OG+4*t+e}, v{FF+t}")
                L_ = T + 6
                a(f"""
    v_pk_add_f32 {vr(FF,2)}, {vr(FF,2)}, {vr(FF+2,2)}
    v_pk_add_f32 {vr(FF+4,2)}, {vr(FF+4,2)}, {vr(FF+6,2)}
    v_pk_add_f32 {vr(OG,2)}, {vr(OG,2)}, {vr(OG+4,2)}
    v_pk_add_f32 {vr(OG+2,2)}, {vr(OG+2,2)}, {vr(OG+6,2)}
    v_pk_add_f32 {vr(FF,2)}, {vr(FF,2)}, {vr(FF+4,2)}
    v_add_f32 v{L_}, v{FF}, v{FF+1}
    """)
                merge2(OG, L_, steps=(8,))
                a(f"""
    v_rcp_f32 v{L_}, v{L_}
    s_nop 0
    v_mul_f32 v{OG}, v{OG}, v{L_}
    v_cvt_pk_bf16_f32 v{OG}, v{OG}, v{OG}
    v_and_b32 v{OG}, 0xffff0000, v{OG}
    v_or_b32 v{OG}, s46, v{OG}
    """)
                with guard():
                    a(f"    buffer_store_dword v{OG}, v{vOF}, s[40:43], s60 offen sc1")
                    stamp(8)
                    if lf_sleep: a(f"    s_sleep {lf_sleep}")
                S.extra(1)
                S.blocked -= {"pf"}
            elif name == "pf":
                def chk(re):
                    if not re: gwait("pf")
                    a(f"""
    v_msad_u8 v{T+3}, v{G0}, s46, 0
    v_cmp_ne_u32 vcc, 0, v{T+3}
    """)
                with guard():
                    if ffn and hf_sleep: a(f"    s_sleep {hf_sleep}")
                    while "pf" not in S.pos: S.issue()
                if ffn: a(f"{P}SEG2:")
                chk(False)
                retry(f"{P}rf", pollf, chk)
                with guard():
                    stamp(7); S.topup(name, depth + 2)
                a(f"""
    v_perm_b32 v{G0}, v{G0}, v{G0}, s47
    s_nop 1
    """)
                have_o = True
                ready = [k for k in range(8) if names.index(f"wo{k}") < names.index("pf")]
                for u in range(8):
                    for m_ in range(4):
                        a(f"    v_and_b32_dpp v{A3+4*u+m_}, v{G0}, v{2+m_} row_newbcast:{u} row_mask:0xf bank_mask:0xf")
                    if u >= 1 and (u - 1) in ready: mf_wo(u - 1)
                a("    s_nop 1")
                if 7 in ready: mf_wo(7)
            elif name.startswith("wo"):
                std()
                if have_o: mf_wo(int(name[2:]))
            elif name == "ph":
                def chk(re):
                    if not re: gwait("ph")
                    a(f"""
    v_msad_u8 v{T+8}, v{HG}, v{vtagP}, 0
    v_msad_u8 v{T+9}, v{HG+1}, v{vtagP}, 0
    v_msad_u8 v{T+8}, v{HG+2}, v{vtagP}, v{T+8}
    v_msad_u8 v{T+9}, v{HG+3}, v{vtagP}, v{T+9}
    v_or_b32 v{T+8}, v{T+8}, v{T+9}
    v_cmp_ne_u32 vcc, 0, v{T+8}
    """)
                while "ph" not in S.pos: S.issue()
                a(f"{P}SEG3b:")
                chk(False)
                retry(f"{P}rh", pollh, chk)
                with guard():
                    stamp(9); S.topup(name, depth + 1)
                G_, U_ = HG, HG + 2
                a(f"""
    v_add_f32 v{G_}, v{HG}, v{HG+1}
    v_add_f32 v{U_}, v{HG+2}, v{HG+3}
    s_nop 0
    v_add_f32_dpp v{G_}, v{G_}, v{G_} row_ror:8 row_mask:0xf bank_mask:0xf
    v_add_f32_dpp v{U_}, v{U_}, v{U_} row_ror:8 row_mask:0xf bank_mask:0xf
    """)
                rbf16(G_, G_)
                a(f"""
    v_mul_f32 v{T+4}, {0x80000000 | LOG2E}, v{G_}
    v_exp_f32 v{T+4}, v{T+4}
    """)
                rbf16(U_, U_)
                a(f"""
    v_add_f32 v{T+4}, 1.0, v{T+4}
    v_rcp_f32 v{T+4}, v{T+4}
    s_nop 0
    v_mul_f32 v{G_}, v{G_}, v{T+4}
    """)
                rbf16(G_, G_)
                a(f"""
    v_mul_f32 v{G_}, v{G_}, v{U_}
    v_cvt_pk_bf16_f32 v{G_}, v{G_}, v{G_}
    s_nop 1
    """)
                have_h = True
                ready = [k for k in range(8) if names.index(f"wd{k}") < names.index("ph")]
                for u in range(8):
                    for m_ in range(4):
                        a(f"    v_and_b32_dpp v{A2+4*u+m_}, v{G_}, v{2+m_} row_newbcast:{u} row_mask:0xf bank_mask:0xf")
                    if u >= 1 and (u - 1) in ready: mf_wd(u - 1)
                a("    s_nop 1")
                if 7 in ready: mf_wd(7)
                seg_end()
            elif name.startswith("wd"):
                std()
                if have_h: mf_wd(int(name[2:]))
            if ffn and name == max(("ph", "wd7"), key=names.index) and name != names[-1]:
                a(f"""
    s_nop 7
    ds_write_b128 v{vOT}, {vr(DG,4)} offset:{L_OUT+2048}
    """)
                st_b[0] = True
        o1 = L_OUT // 256
        a(f"""
    s_add_u32 s99, s62, {PG-PL}
    s_nop 6
    ds_write_b128 v{vOT}, {vr(PD,4)} offset:{L_OUT}
    """)
        if ffn and not st_b[0]: a(f"    ds_write_b128 v{vOT}, {vr(DG,4)} offset:{L_OUT+2048}")
        a("    s_waitcnt lgkmcnt(0)")
        barrier()
        a(f"""
    ds_read2st64_b32 {vr(T,2)}, v{vt7} offset0:{o1} offset1:{o1+2}
    ds_read2st64_b32 {vr(T+2,2)}, v{vt7} offset0:{o1+4} offset1:{o1+6}
    s_cmp_ge_u32 s3, 2
    s_waitcnt lgkmcnt(0)
    v_add_f32 v{T}, v{T}, v{T+1}
    v_add_f32 v{T+2}, v{T+2}, v{T+3}
    v_add_f32 v{T}, v{T}, v{T+2}
    v_add_u32 v{T}, v{T}, v{vaddP}
    v_bfi_b32 v{T}, s70, v{vtagP}, v{T}
    """)
        seg_end()
        if not ffn: a("    s_cbranch_scc1 Lt_nopub")
        a(f"""
    buffer_store_dword v{T}, v{vtid4}, s[40:43], s62 offen
    buffer_store_dword v{T}, v{vtid4}, s[40:43], s99 offen sc1
    """)
        if not ffn: a("Lt_nopub:")
        stamp(10)

    path(True, "H")
    store_stamps()
    a("    s_endpgm")
    a("L_light:")
    path(False, "Lt")
    a(f"""
LtSEG3:
    s_mov_b32 s71, 0
R_p:
    s_add_u32 s71, s71, 1
    s_and_b32 s96, s71, {gper}
    s_cmp_eq_u32 s96, 0
    s_cselect_b32 s96, s54, s55
    """)
    with guard():
        a(f"""
    buffer_load_dwordx4 {vr(RA,4)}, v{vA}, s[40:43], s96 offen sc1
    buffer_load_dwordx4 {vr(RB,4)}, v{vB}, s[40:43], s96 offen sc1
    s_waitcnt vmcnt(0)
    """)
    a(f"""
    v_msad_u8 v{ac}, v{RA}, s28, 0
    v_msad_u8 v{ac+1}, v{RA+1}, s29, 0
    v_msad_u8 v{ac}, v{RA+2}, s30, v{ac}
    v_msad_u8 v{ac+1}, v{RA+3}, s31, v{ac+1}
    v_msad_u8 v{ac}, v{RB}, s28, v{ac}
    v_msad_u8 v{ac+1}, v{RB+1}, s29, v{ac+1}
    v_msad_u8 v{ac}, v{RB+2}, s30, v{ac}
    v_msad_u8 v{ac+1}, v{RB+3}, s31, v{ac+1}
    v_or_b32 v{ac}, v{ac}, v{ac+1}
    v_cmp_ne_u32 vcc, 0, v{ac}
    s_cmp_eq_u32 s71, {spin_max}
    s_cbranch_scc1 R_ok
    s_cbranch_vccnz R_p
R_ok:
    """)
    for e in range(4): a(f"    v_mul_f32 v{RB+e}, v{RB+e}, v{vkeep}")
    a(f"""
    v_permlane32_swap_b32 v{RA}, v{RA+2}
    v_permlane32_swap_b32 v{RA+1}, v{RA+3}
    v_permlane32_swap_b32 v{RB}, v{RB+2}
    v_permlane32_swap_b32 v{RB+1}, v{RB+3}
    v_add_f32 v{RA}, v{RA}, v{RA+2}
    v_add_f32 v{RA+1}, v{RA+1}, v{RA+3}
    v_add_f32 v{RB}, v{RB}, v{RB+2}
    v_add_f32 v{RB+1}, v{RB+1}, v{RB+3}
    v_lshlrev_b32 v{vX}, 16, v{vX}
    v_permlane16_swap_b32 v{RA}, v{RA+1}
    v_permlane16_swap_b32 v{RB}, v{RB+1}
    v_add_f32 v{RA}, v{RA}, v{RA+1}
    v_add_f32 v{RB}, v{RB}, v{RB+1}
    s_nop 0
    v_add_f32_dpp v{RA}, v{RA}, v{RA} row_ror:8 row_mask:0xf bank_mask:0xf
    v_add_f32_dpp v{RB}, v{RB}, v{RB} row_ror:8 row_mask:0xf bank_mask:0xf
    ds_write_b32 v{vF}, v{RA} offset:{L_FIN}
    ds_write_b32 v{vF}, v{RB} offset:{L_FIN+128}
    s_waitcnt lgkmcnt(0)
    """)
    barrier()
    a(f"""
    ds_read2st64_b32 {vr(RA,2)}, v{vtid4} offset0:{L_FIN//256} offset1:{L_FIN//256+1}
    ds_read2st64_b32 {vr(RA+2,2)}, v{vtid4} offset0:{L_FIN//256+2} offset1:{L_FIN//256+3}
    s_waitcnt lgkmcnt(0)
    v_add_f32 v{RA}, v{RA}, v{RA+1}
    v_add_f32 v{RA+2}, v{RA+2}, v{RA+3}
    v_add_f32 v{RA}, v{RA}, v{RA+2}
    """)
    rbf16(RA, RA)
    a(f"""
    v_mov_b32 v{RB}, v{RA}
    v_add_f32 v{RA+1}, v{RA}, v{vX}
    s_nop 0
    v_permlane32_swap_b32 v{RA}, v{RB}
    """)
    rbf16(RA + 1, RA + 1)
    a(f"""
    v_add_f32 v{RA}, v{RA+1}, v{RB}
    v_cvt_pk_bf16_f32 v{RA}, v{RA}, v{RA}
    """)
    if warm: a("    s_cbranch_execz LtW_ret")
    a(f"""
    s_cmp_lg_u32 s3, 0
    s_cbranch_scc1 R_done
    s_mov_b32 exec_hi, 0
    buffer_store_short v{RA}, v{vO}, s[16:19], 0 offen
    s_cmp_lg_u32 s65, 0
    s_cbranch_scc1 R_done
    v_mov_b32 v{RB}, s35
    v_mov_b32 v{RB+1}, 0
    s_mov_b64 exec, 1
    buffer_store_dword v{RB}, v{RB+1}, s[40:43], 0 offen offset:{EPOCH}
R_done:
    s_mov_b64 exec, -1
    """)
    stamp(9)
    store_stamps()
    a("""
L_end:
    s_endpgm
L_code_end:
    """)
    print(out, "vgprs", nv, "agprs", nagpr, "lds", LDS_BYTES)
    open(out, "w").write(wrap(a.text(), 256, 256, LDS_BYTES, vgpr=accum + nagpr, accum=accum))

if __name__ == "__main__":
    gen("k11.s", stamps=True)
    gen("k11_ns.s", stamps=False)
```

```python
import sys
from asmgen import *

STAMP_OFF = 128 << 20
NST = 12
EPOCH = 0
QP = 0x1000
OP = 0x40000
GU = 0x180000
PA = 0x200000
PBL = 0x240000
PBG = 0x260000
WS_SIZE = 256 << 20

L_RED = 0
L_G = 2048
L_TRASH = 6144
L_Q = 11264
L_S = 13440
L_OUT = 14848
L_OUT2 = 18944
L_FIN = 20992
L_V = 23040
LDS_BYTES = L_V + 16384

LOG2E = 0x3FB8AA3B
SCALE = 0x3DB504F3

class R:
    def __init__(self, start): self.n = start
    def a(self, k=1, al=1):
        self.n = (self.n + al - 1) // al * al
        r = self.n; self.n += k
        return r
def vr(b, n): return f"v[{b}:{b+n-1}]"
def ar(b, n): return f"a[{b}:{b+n-1}]"

class Sched:
    def __init__(self, a): self.a = a; self.items = []; self.issued = 0; self.nops = 0; self.pos = {}; self.blocked = set()
    def add(self, name, fn, n=1): self.items.append((name, fn, n))
    def issue(self):
        name, fn, n = self.items[self.issued]
        fn(); self.nops += n; self.pos[name] = self.nops; self.issued += 1
    def can(self): return self.issued < len(self.items) and self.items[self.issued][0] not in self.blocked
    def extra(self, n=1): self.nops += n
    def wait(self, name, sub=0):
        while name not in self.pos:
            assert self.can(), (name, self.items[self.issued][0])
            self.issue()
        cnt = self.nops - self.pos[name] + sub
        assert cnt <= 63
        self.a(f"    s_waitcnt vmcnt({cnt})")
    def index(self, name): return [i for i, it in enumerate(self.items) if it[0] == name][0]
    def topup(self, name, depth):
        i = self.index(name)
        while self.can() and self.issued - (i + 1) < depth: self.issue()
    def sprk(self, n):
        for _ in range(n):
            if self.can(): self.issue()

def gen(out, stamps=True, nt=True, D=5, Dl=5, pq=23, po=41, ph=45, lq=22, lo_sleep=48, spin_max=1 << 20, warm=True,
        k0=2, k1=0, k2=2, Dt=7, sprinkle=(2, 2, 1, 1), spr3=3, dmap=None, warm_extra=3, cnt=False, gper=7, local=True, sprg=1, mixU=True, oracle_q=False, ph_after_o=False, tail_step=0, wq_flags=" nt", nobar=False, kvs=False):
    a = Asm()
    NT = " nt" if nt else ""
    def stamp(i):
        if stamps: a(f"    s_memrealtime s[{72+2*i}:{73+2*i}]")
    def store_stamps():
        if not stamps: return
        lab = a.label("nost")
        a(f"""
    s_waitcnt lgkmcnt(0)
    s_cmp_lg_u32 s3, 0
    s_cbranch_scc1 {lab}
    s_mul_i32 s64, s2, {NST*8}
    s_add_u32 s64, s64, {STAMP_OFF}
    v_mov_b32 v20, 0
    s_mov_b64 exec, 1
    """)
        for i in range(NST):
            a(f"""
    v_mov_b32 v22, s{72+2*i}
    v_mov_b32 v23, s{73+2*i}
    buffer_store_dwordx2 v[22:23], v20, s[40:43], s64 offen offset:{8*i}
    s_nop 1
    """)
        a(f"{lab}:")
    def srd(base, lo, size):
        a(f"""
    s_mov_b32 s{base}, s{lo}
    s_mov_b32 s{base+1}, s{lo+1}
    s_mov_b32 s{base+2}, {size}
    s_mov_b32 s{base+3}, 0x20000
    """)
    class guard:
        def __enter__(self):
            self.l = a.label("G"); self.n = len(a.lines)
            if warm: a(f"    s_cbranch_execz {self.l}")
        def __exit__(self, *x):
            if warm:
                if len(a.lines) == self.n + 1: a.lines.pop()
                else: a(f"{self.l}:")
    def barrier():
        with guard(): a("    s_barrier")

    r = R(10)
    (vtagP, vaddP, vOT, vtid4, vPF, vG4, vWQ, vK, vWO, vPO, vQW, vQR, vSW, vSR, vTR, vred, vtag0, vGU, vGU2, vWD, vPH, vJ, vG,
     vOT2, vl4, vt7, vV) = [r.a() for _ in range(27)]
    XA = r.a(8, 4); XS = r.a(4, 4); T = r.a(24, 4); A = r.a(32, 4); QB = r.a(16, 4)
    D1 = r.a(4, 4); PD = r.a(16, 4); DG = r.a(8, 4); WQ = r.a(32, 4); KK = r.a(16, 4); VO = r.a(16, 4); G0 = r.a(16, 4); HG = r.a(4, 4)
    nv = r.n
    assert nv <= 256, nv
    accum = (nv + 3) // 4 * 4
    GW = 0; WD = 64; nagpr = 96
    A3 = QB; A2 = A; WO = WQ

    a(f"""
    s_cmp_ge_u32 s2, 256
    s_cbranch_scc1 L_end
    s_load_dwordx16 s[4:19], s[0:1], 0
    s_load_dwordx8 s[20:27], s[0:1], 64
    """)
    if stamps:
        for i in range(1, NST): a(f"    s_mov_b64 s[{72+2*i}:{73+2*i}], 0")
    stamp(0)
    a(f"""
    v_lshrrev_b32 v6, 6, v0
    v_and_b32 v1, 63, v0
    s_and_b32 s33, s2, 7            ; xcd
    v_readfirstlane_b32 s3, v6
    s_lshr_b32 s34, s2, 3           ; idx
    s_getpc_b64 s[96:97]
L_pc:
    s_lshl_b32 s64, s34, 2
    s_add_u32 s64, s64, s3
    s_lshl_b32 s64, s64, 7
    s_min_u32 s64, s64, L_code_end - L_pc - 4
    v_mov_b32 v9, s64
    global_load_dword v{vPF}, v9, s[96:97]
    v_lshlrev_b32 v6, 4, v1          ; lane*16
    v_lshrrev_b32 v7, 3, v1          ; l>>3
    v_and_b32 v8, 7, v1              ; l&7
    s_lshr_b32 s65, s33, 1           ; g
    s_and_b32 s66, s33, 1
    s_lshl_b32 s66, s66, 5
    s_add_u32 s66, s66, s34          ; m
    s_and_b32 s67, s66, 15           ; cb
    s_lshr_b32 s68, s66, 4           ; rq
    s_lshl_b32 s69, s68, 8
    s_lshl_b32 s64, s3, 6
    s_add_u32 s69, s69, s64          ; R0
    s_lshl_b32 s97, s69, 1
    v_lshlrev_b32 v9, 4, v7
    s_lshl_b32 s64, s69, 13
    s_lshl_b32 s96, s65, 11
    s_add_u32 s64, s64, s96
    s_lshl_b32 s96, s67, 7
    s_add_u32 s64, s64, s96
    v_lshlrev_b32 v{vWQ}, 16, v7
    v_lshl_add_u32 v{vWQ}, v8, 4, v{vWQ}
    v_add_u32 v{vWQ}, s64, v{vWQ}
    v_lshrrev_b32 v{vG}, 4, v1
    v_and_b32 v{vJ}, 15, v1
    s_mov_b32 s38, 2048
    s_mov_b32 s39, 0x20000
    s_mov_b32 s46, {8<<20}
    s_mov_b32 s47, 0x20000
    s_mov_b32 s64, 0
    s_waitcnt lgkmcnt(0)
    s_mov_b32 s36, s4
    s_mov_b32 s37, s5
    buffer_load_dwordx4 {vr(XA,4)}, v6, s[36:39], 0 offen
    buffer_load_dwordx4 {vr(XA+4,4)}, v6, s[36:39], 0 offen offset:1024
    buffer_load_dwordx4 {vr(XS,4)}, v9, s[36:39], s97 offen
    s_load_dword s28, s[26:27], {EPOCH}
    s_mov_b32 s44, s10
    s_mov_b32 s45, s11
    {"" if nobar else "s_barrier"}
    """)
    for t in range(8):
        a(f"    buffer_load_dwordx4 {vr(WQ+4*t,4)}, v{vWQ}, s[44:47], s64 offen{wq_flags}")
        if t < 7: a(f"    s_add_u32 s64, s64, 8192")
    a(f"""
    v_bfe_u32 v{T}, v0, 1, 2
    v_and_b32 v{T+1}, 1, v0
    v_lshlrev_b32 v{T+1}, 4, v{T+1}
    v_mov_b32 v9, 0xffff
    v_lshlrev_b32 v9, v{T+1}, v9
    v_cmp_eq_u32 vcc, 0, v{T}
    v_cmp_eq_u32 s[96:97], 1, v{T}
    v_cmp_eq_u32 s[98:99], 2, v{T}
    v_cmp_eq_u32 s[100:101], 3, v{T}
    v_cndmask_b32 v2, 0, v9, vcc
    v_cndmask_b32 v3, 0, v9, s[96:97]
    v_cndmask_b32 v4, 0, v9, s[98:99]
    v_cndmask_b32 v5, 0, v9, s[100:101]
    s_lshl_b32 s63, s65, 23
    s_lshl_b32 s96, s66, {8 if kvs else 14}
    s_add_u32 s63, s63, s96
    s_lshl_b32 s96, s3, {18 if kvs else 12}
    s_add_u32 s63, s63, s96
    s_add_u32 s63, s63, {28672*256}
    s_lshl_b32 s96, s3, 12
    s_add_u32 s96, s96, {L_V}
    s_mov_b32 m0, s96
    v_lshlrev_b32 v{vK}, {14 if kvs else 8}, v{vJ}
    v_lshl_add_u32 v{vK}, v{vG}, 4, v{vK}
    v_lshlrev_b32 v{vV}, {14 if kvs else 8}, v{vG}
    v_lshl_add_u32 v{vV}, v{vJ}, 4, v{vV}
    """)
    srd(48, 6, 32 << 20)
    srd(52, 8, 32 << 20)
    srd(40, 26, WS_SIZE)

    def allreduce2(x, y, t1, t2):
        for s_ in (8, 4, 2, 1):
            a(f"""
    s_nop 0
    v_add_f32_dpp v{x}, v{x}, v{x} row_ror:{s_} row_mask:0xf bank_mask:0xf
    v_add_f32_dpp v{y}, v{y}, v{y} row_ror:{s_} row_mask:0xf bank_mask:0xf
    """)
        for sw in ("v_permlane16_swap_b32", "v_permlane32_swap_b32"):
            a(f"""
    v_mov_b32 v{t1}, v{x}
    v_mov_b32 v{t2}, v{y}
    s_nop 0
    {sw} v{t1}, v{x}
    {sw} v{t2}, v{y}
    v_add_f32 v{x}, v{x}, v{t1}
    v_add_f32 v{y}, v{y}, v{t2}
    """)
    def allreduce1(x, t1, op="v_add_f32", steps=(8, 4, 2, 1)):
        for s_ in steps:
            a(f"""
    s_nop 1
    {op}_dpp v{x}, v{x}, v{x} row_ror:{s_} row_mask:0xf bank_mask:0xf
    """)
        for sw in ("v_permlane16_swap_b32", "v_permlane32_swap_b32"):
            a(f"""
    v_mov_b32 v{t1}, v{x}
    s_nop 1
    {sw} v{t1}, v{x}
    {op} v{x}, v{x}, v{t1}
    """)
    def rbf16(d, s_):
        a(f"""
    v_cvt_pk_bf16_f32 v{d}, v{s_}, v{s_}
    v_and_b32 v{d}, 0xffff0000, v{d}
    """)
    a(f"""
    v_lshrrev_b32 v{vred}, 2, v1
    v_xor_b32 v{vred}, v{vred}, v1
    v_and_b32 v{vred}, 8, v{vred}
    v_cmp_eq_u32 vcc, 0, v{vred}
    v_lshlrev_b32 v{vred}, 5, v8
    v_bfe_u32 v9, v1, 4, 1
    v_lshl_add_u32 v{vred}, v9, 4, v{vred}
    v_lshrrev_b32 v9, 5, v1
    v_lshl_add_u32 v{vred}, v9, 8, v{vred}
    s_lshl_b32 s64, s3, 9
    v_add_u32 v{vred}, s64, v{vred}
    v_add_u32 v9, {L_TRASH}, v6
    v_cndmask_b32 v{vred}, v9, v{vred}, vcc
    v_lshlrev_b32 v{vtid4}, 2, v0
    v_and_b32 v{vG4}, 3, v1
    v_lshlrev_b32 v{vtagP}, 3, v{vG4}
    s_lshl_b32 s44, s65, 14
    s_add_u32 s44, s44, {QP}
    s_lshl_b32 s45, s68, 12
    s_add_u32 s45, s45, s44
    s_lshl_b32 s96, s67, 8
    s_add_u32 s45, s45, s96
    s_waitcnt lgkmcnt(0)
    s_and_b32 s28, s28, 0x7f
    s_cmp_eq_u32 s28, 127
    s_cselect_b32 s28, 0, s28
    s_add_u32 s35, s28, 1
    s_add_u32 s29, s28, 33
    s_sub_u32 s64, s29, 127
    s_cmp_gt_u32 s29, 127
    s_cselect_b32 s29, s64, s29
    s_add_u32 s30, s28, 65
    s_sub_u32 s64, s30, 127
    s_cmp_gt_u32 s30, 127
    s_cselect_b32 s30, s64, s30
    s_add_u32 s31, s28, 97
    s_sub_u32 s64, s31, 127
    s_cmp_gt_u32 s31, 127
    s_cselect_b32 s31, s64, s31
    s_add_u32 s28, s28, 1
    s_lshl_b32 s32, s29, 8
    s_or_b32 s32, s32, s28
    s_lshl_b32 s64, s30, 16
    s_or_b32 s32, s32, s64
    s_lshl_b32 s64, s31, 24
    s_or_b32 s32, s32, s64
    s_movk_i32 s70, 0xff
    v_bfe_u32 v{vtagP}, s32, v{vtagP}, 8
    v_sub_u32 v{vaddP}, 0x80, v{vtagP}
    """)
    def kv_issue(i):
        if i < 4: a(f"    buffer_load_dwordx4 {vr(KK+4*i,4)}, v{vK}, s[48:51], s63 offen offset:{64*i}{NT}")
        else:
            so = "s63"
            if kvs and i > 4:
                a(f"    s_add_u32 s99, s63, {(i-4)*(65536-1024)}"); so = "s99"
            a(f"    buffer_load_dwordx4 v{vV}, s[52:55], {so} offen offset:{1024*(i-4)}{NT} lds")
    a(f"    s_waitcnt vmcnt(9)")
    stamp(1)
    for i in range(k0): kv_issue(i)
    for k in range(8):
        a(f"""
    v_lshlrev_b32 v{T+2*k}, 16, v{XA+k}
    v_and_b32 v{T+2*k+1}, 0xffff0000, v{XA+k}
    """)
    a(f"""
    v_readfirstlane_b32 s64, v{T}
    s_nop 1
    """)
    for k in range(16): a(f"    v_subrev_f32 v{T+k}, s64, v{T+k}")
    a(f"""
    v_pk_add_f32 {vr(T+16,2)}, {vr(T,2)}, {vr(T+2,2)}
    v_pk_mul_f32 {vr(T+18,2)}, {vr(T,2)}, {vr(T,2)}
    """)
    for k in range(1, 8):
        a(f"    v_pk_fma_f32 {vr(T+18,2)}, {vr(T+2*k,2)}, {vr(T+2*k,2)}, {vr(T+18,2)}")
        if k >= 2: a(f"    v_pk_add_f32 {vr(T+16,2)}, {vr(T+16,2)}, {vr(T+2*k,2)}")
    S1, S2, t1, t2 = T + 16, T + 18, T + 17, T + 19
    a(f"""
    v_add_f32 v{S1}, v{S1}, v{t1}
    v_add_f32 v{S2}, v{S2}, v{t2}
    s_nop 0
    """)
    allreduce2(S1, S2, t1, t2)
    mean, var, rs, sd = T, T + 1, T + 2, T + 3
    a(f"""
    v_mul_f32 v{S1}, 0x3a800000, v{S1}
    v_mul_f32 v{S2}, 0x3a800000, v{S2}
    v_add_f32 v{mean}, s64, v{S1}
    v_fma_f32 v{var}, -v{S1}, v{S1}, v{S2}
    v_max_f32 v{var}, 0, v{var}
    """)
    rbf16(mean, mean); rbf16(var, var)
    a(f"    v_add_f32 v{var}, 0x3727c5ac, v{var}")
    rbf16(var, var)
    a(f"""
    v_sqrt_f32 v{sd}, v{var}
    s_waitcnt vmcnt({8+k0})
    """)
    for i in range(k0, k0 + k1): kv_issue(i)
    rbf16(sd, sd)
    a(f"    v_rcp_f32 v{rs}, v{sd}")
    Dd = T + 4; Q = T + 12
    for k in range(4):
        a(f"""
    v_lshlrev_b32 v{Dd+2*k}, 16, v{XS+k}
    v_and_b32 v{Dd+2*k+1}, 0xffff0000, v{XS+k}
    """)
    for k in range(8): a(f"    v_sub_f32 v{Dd+k}, v{Dd+k}, v{mean}")
    for k in range(4): a(f"    v_cvt_pk_bf16_f32 v{XS+k}, v{Dd+2*k}, v{Dd+2*k+1}")
    for k in range(4):
        a(f"""
    v_lshlrev_b32 v{Dd+2*k}, 16, v{XS+k}
    v_and_b32 v{Dd+2*k+1}, 0xffff0000, v{XS+k}
    """)
    for k in range(8): a(f"    v_mul_f32 v{Q+k}, v{Dd+k}, v{rs}")
    for k in range(8): a(f"    v_fma_f32 v{Dd+k}, -v{Q+k}, v{sd}, v{Dd+k}")
    for k in range(8): a(f"    v_fmac_f32 v{Q+k}, v{Dd+k}, v{rs}")
    for k in range(8): a(f"    v_cvt_pk_bf16_f32 v{Q+k}, v{Q+k}, v{Q+k}")
    for k in range(8):
        for m_ in range(4): a(f"    v_and_b32 v{A+4*k+m_}, v{Q+k}, v{2+m_}")
    stamp(2)
    for i in range(k0 + k1, k0 + k1 + k2): kv_issue(i)
    srd(56, 12, 8 << 20)
    srd(4, 16, 7 << 20)
    srd(8, 18, 7 << 20)
    srd(12, 20, 7 << 20)
    srd(16, 22, 2048)
    a(f"""
    s_add_u32 s64, s67, 4
    s_lshr_b32 s64, s64, 3
    s_mul_i32 s60, s65, 14
    s_add_u32 s60, s60, s67
    s_sub_u32 s60, s60, s64
    s_add_u32 s61, s60, {28 if mixU else 0}
    s_sub_u32 s64, s61, 56
    s_cmp_ge_u32 s61, 56
    s_cselect_b32 s61, s64, s61
    s_add_u32 s64, s34, 4
    s_lshr_b32 s64, s64, 3
    s_sub_u32 s62, s34, s64
    s_mul_i32 s64, s69, 7168
    v_mul_u32_u24 v{vGU}, {8*7168}, v7
    v_lshl_add_u32 v{vGU}, v8, 4, v{vGU}
    s_lshl_b32 s96, s61, 7
    s_add_u32 s96, s96, s64
    v_add_u32 v{vGU2}, s96, v{vGU}
    s_lshl_b32 s96, s60, 7
    s_add_u32 s96, s96, s64
    v_add_u32 v{vGU}, s96, v{vGU}
    s_lshl_b32 s60, s60, 11
    s_lshl_b32 s61, s61, 11
    s_add_u32 s61, s61, 1024
    s_cmp_eq_u32 s3, 0
    s_cselect_b32 s60, s60, s61
    s_lshl_b32 s64, s68, 8
    s_add_u32 s60, s60, s64
    s_add_u32 s60, s60, {GU}
    s_lshl_b32 s61, s62, 12
    s_lshr_b32 s64, s3, 1
    s_lshl_b32 s64, s64, 11
    s_add_u32 s61, s61, s64
    s_and_b32 s64, s3, 1
    s_lshl_b32 s64, s64, 7
    s_add_u32 s61, s61, s64
    s_add_u32 s61, s61, {GU}
    v_bfe_u32 v9, v1, 3, 1
    v_lshlrev_b32 v{vPH}, 8, v9
    v_lshl_add_u32 v{vPH}, v{vG}, 5, v{vPH}
    v_lshl_add_u32 v{vPH}, v8, 2, v{vPH}
    ; wd voffset = (128j + 32w + 8G)*2048 + 256x + 16jj
    s_lshl_b32 s64, s62, 18
    s_lshl_b32 s96, s3, 16
    s_add_u32 s64, s64, s96
    s_lshl_b32 s96, s33, 8
    s_add_u32 s64, s64, s96
    v_lshlrev_b32 v{vWD}, 14, v{vG}
    v_lshl_add_u32 v{vWD}, v{vJ}, 4, v{vWD}
    v_add_u32 v{vWD}, s64, v{vWD}
    s_lshl_b32 s62, s62, 9
    s_mul_i32 s64, s33, 14336
    s_add_u32 s62, s62, s64
    s_add_u32 s62, s62, {PBL}
    v_and_b32 v{vt7}, 511, v{vtid4}
    v_lshlrev_b32 v{vl4}, 2, v1
    ; T3 tile: cb3 = m>>2 ; rq3 = m&3
    s_lshr_b32 s67, s66, 2
    s_and_b32 s68, s66, 3
    v_mul_u32_u24 v{vSW}, 144, v8
    v_lshl_add_u32 v{vSR}, v{vG}, 4, v{vSW}
    v_lshl_add_u32 v{vSR}, v9, 6, v{vSR}
    v_bfe_u32 v9, v1, 4, 1
    v_lshlrev_b32 v{vOT}, 5, v{vJ}
    v_lshl_add_u32 v{vOT}, v9, 4, v{vOT}
    s_lshl_b32 s64, s3, 9
    v_add_u32 v{vOT2}, s64, v{vOT}
    v_add_u32 v{vOT}, s64, v{vOT2}
    v_lshlrev_b32 v{vG4}, 4, v{vG4}
    s_lshl_b32 s64, s65, 10
    s_and_b32 s96, s3, 1
    s_lshl_b32 s96, s96, 9
    s_add_u32 s64, s64, s96
    s_lshr_b32 s96, s67, 2
    s_lshl_b32 s96, s96, 5
    s_add_u32 s64, s64, s96
    s_lshr_b32 s96, s3, 1
    s_lshl_b32 s96, s96, 4
    s_add_u32 s64, s64, s96
    s_and_b32 s96, s67, 3
    s_lshl_b32 s96, s96, 2
    s_add_u32 s64, s64, s96
    s_lshl_b32 s64, s64, 11
    s_lshl_b32 s96, s68, 9
    s_add_u32 s64, s64, s96
    v_lshlrev_b32 v{vWO}, 11, v{vG}
    v_lshl_add_u32 v{vWO}, v{vJ}, 4, v{vWO}
    v_add_u32 v{vWO}, s64, v{vWO}
    v_mul_u32_u24 v{vQR}, 272, v8
    v_lshl_add_u32 v{vQR}, v{vG}, 4, v{vQR}
    v_lshl_add_u32 v{vSW}, v{vG}, 3, v{vSW}
    s_lshl_b32 s96, s3, 5
    v_add_u32 v{vSW}, s96, v{vSW}
    v_bfe_u32 v9, v1, 2, 2
    v_lshl_add_u32 v{vTR}, v{vG}, 3, v9
    v_lshlrev_b32 v{vTR}, 8, v{vTR}
    v_lshrrev_b32 v9, 1, v{vG4}
    s_lshl_b32 s64, s3, 6
    v_add3_u32 v{vTR}, v{vTR}, v9, s64
    v_lshrrev_b32 v{vQW}, 5, v0
    v_and_b32 v9, 31, v0
    v_mul_u32_u24 v{vQW}, 272, v{vQW}
    v_lshl_add_u32 v{vQW}, v9, 3, v{vQW}
    v_lshrrev_b32 v9, 2, v1
    v_lshl_add_u32 v{vPO}, v9, 12, v{vG4}
    s_lshl_b32 s96, s67, 8
    s_lshl_b32 s97, s3, 10
    s_add_u32 s20, s44, s97
    s_lshl_b32 s23, s65, 18
    s_add_u32 s23, s23, {OP}
    s_add_u32 s22, s23, s96
    s_add_u32 s22, s22, s64
    s_lshl_b32 s96, s66, 12
    s_add_u32 s23, s23, s96
    s_add_u32 s23, s23, s97
    s_lshl_b32 s69, s65, 4
    s_add_u32 s69, s69, s67
    s_lshl_b32 s69, s69, 12
    s_lshl_b32 s96, s68, 10
    s_add_u32 s69, s69, s96
    s_add_u32 s69, s69, {PA}
    s_mov_b32 s24, {SCALE}
    s_mov_b32 s25, {LOG2E}
    v_mov_b32 v{vtag0}, s28
    s_mov_b32 s26, 0x07060500
    s_mov_b32 s27, 0x07060501
    s_mov_b32 s66, 0x07060502
    s_mov_b32 s67, 0x07060503
    s_mov_b32 s68, 0x0c04000c
    s_lshl_b32 s21, s3, 11
    v_add_u32 v{vt7+0 if False else XS}, s21, v{vl4}
    """)
    vGR = XS
    PSEL = (26, 27, 66, 67)
    def red8(Rr, vaddr, o):
        a(f"""
    ds_read2st64_b32 {vr(Rr,2)}, v{vaddr} offset0:{o} offset1:{o+1}
    ds_read2st64_b32 {vr(Rr+2,2)}, v{vaddr} offset0:{o+2} offset1:{o+3}
    ds_read2st64_b32 {vr(Rr+4,2)}, v{vaddr} offset0:{o+4} offset1:{o+5}
    ds_read2st64_b32 {vr(Rr+6,2)}, v{vaddr} offset0:{o+6} offset1:{o+7}
    s_waitcnt lgkmcnt(0)
    v_add_f32 v{Rr}, v{Rr}, v{Rr+1}
    v_add_f32 v{Rr+2}, v{Rr+2}, v{Rr+3}
    v_add_f32 v{Rr+4}, v{Rr+4}, v{Rr+5}
    v_add_f32 v{Rr+6}, v{Rr+6}, v{Rr+7}
    v_add_f32 v{Rr}, v{Rr}, v{Rr+2}
    v_add_f32 v{Rr+4}, v{Rr+4}, v{Rr+6}
    v_add_f32 v{Rr}, v{Rr}, v{Rr+4}
    v_add_u32 v{Rr}, v{Rr}, v{vaddP}
    v_bfi_b32 v{Rr}, s70, v{vtagP}, v{Rr}
    """)
    nk = k0 + k1 + k2
    for t in range(8):
        a(f"    s_waitcnt vmcnt({7 - t + nk})")
        srcc = "0" if t == 0 else vr(D1, 4)
        a(f"    v_mfma_f32_16x16x32_bf16 {vr(D1,4)}, {vr(A+4*t,4)}, {vr(WQ+4*t,4)}, {srcc}")
        while nk < 8 and t < 7 and (7 - t) + nk < Dt:
            kv_issue(nk); nk += 1
    kpre = nk
    a(f"""
    s_nop 7
    ds_write_b128 v{vred}, {vr(D1,4)} offset:{L_RED}
    s_waitcnt lgkmcnt(0)
    s_barrier
    s_cmp_lg_u32 s3, 0
    s_cbranch_scc1 L_nored
    """)
    red8(T, vl4, L_RED // 256)
    a(f"""
    buffer_store_dword v{T}, v{vl4}, s[40:43], s45 offen sc1
L_nored:
    """)
    stamp(3)
    a("""
    s_and_b32 s64, s34, 7
    s_cmp_eq_u32 s64, 3
    s_cbranch_scc1 L_light
    """)

    def merge2(X, Y):
        a(f"""
    v_mov_b32 v{Y+1}, v{Y}
    s_nop 0
    v_permlane32_swap_b32 v{X}, v{X+2}
    v_permlane32_swap_b32 v{X+1}, v{X+3}
    v_permlane32_swap_b32 v{Y+1}, v{Y}
    v_add_f32 v{X}, v{X}, v{X+2}
    v_add_f32 v{X+1}, v{X+1}, v{X+3}
    v_add_f32 v{Y}, v{Y}, v{Y+1}
    s_nop 0
    v_mov_b32 v{Y+1}, v{Y}
    v_permlane16_swap_b32 v{X}, v{X+1}
    s_nop 0
    v_permlane16_swap_b32 v{Y+1}, v{Y}
    v_add_f32 v{X}, v{X}, v{X+1}
    v_add_f32 v{Y}, v{Y}, v{Y+1}
    """)
        for s_ in (8, 4):
            a(f"""
    s_nop 0
    v_add_f32_dpp v{X}, v{X}, v{X} row_ror:{s_} row_mask:0xf bank_mask:0xf
    v_add_f32_dpp v{Y}, v{Y}, v{Y} row_ror:{s_} row_mask:0xf bank_mask:0xf
    """)

    def path(ffn, P):
        S = Sched(a)
        def seg_end():
            if warm: a(f"    s_cbranch_execz {P}W_ret")
        def gsprk(n):
            with guard(): S.sprk(n)
        def gwait(name, sub=0):
            with guard(): S.wait(name, sub)
        for t in range(8):
            S.items.append((f"wq{t}", None, 1)); S.nops += 1; S.pos[f"wq{t}"] = S.nops; S.issued += 1
        base = []
        for i in range(8): base.append((f"kv{i}", (lambda i=i: kv_issue(i)), 1))
        def mk_gu(i):
            t, mat = i // 2, i % 2
            def f():
                so = "0"
                if t: a(f"    s_mov_b32 s99, {t*7168}"); so = "s99"
                a(f"    buffer_load_dwordx4 {ar(GW+4*i,4)}, v{vGU2 if mat else vGU}, s[{4+4*mat}:{7+4*mat}], {so} offen{NT}")
            return f
        def mk_wo(k):
            u, c = k // 2, k % 2
            def f():
                so = "0"
                if u: a(f"    s_mov_b32 s99, {u*0x40000}"); so = "s99"
                a(f"    buffer_load_dwordx4 {vr(WO+4*k,4)}, v{vWO}, s[56:59], {so} offen offset:{c*256}{NT}")
            return f
        def mk_wd(k):
            def f():
                so = "0"
                if k >= 2: a(f"    s_movk_i32 s99, {(k & ~1)*2048}"); so = "s99"
                a(f"    buffer_load_dwordx4 {ar(WD+4*k,4)}, v{vWD}, s[12:15], {so} offen offset:{(k&1)*2048}{NT}")
            return f
        def pollq():
            if oracle_q:
                for k in range(4): a(f"    buffer_load_dwordx4 {vr(G0+4*k,4)}, v6, s[36:39], 0 offen")
                return
            a(f"    buffer_load_dwordx4 {vr(G0,4)}, v6, s[40:43], s20 offen sc1")
            for k in range(1, 4):
                a(f"    s_add_u32 s99, s20, {4096*k}")
                a(f"    buffer_load_dwordx4 {vr(G0+4*k,4)}, v6, s[40:43], s99 offen sc1")
        def pollo():
            if not ffn and lo_sleep: a(f"    s_waitcnt vmcnt(0)\n    s_sleep {lo_sleep}")
            pollo2()
        def pollo2():
            a(f"    buffer_load_dwordx4 {vr(G0,4)}, v{vPO}, s[40:43], s22 offen sc1")
            for k in range(1, 4):
                a(f"    s_add_u32 s99, s22, {0x10000*k}")
                a(f"    buffer_load_dwordx4 {vr(G0+4*k,4)}, v{vPO}, s[40:43], s99 offen sc1")
        def pollh():
            for k in range(4): a(f"    buffer_load_dword v{HG+k}, v{vPH}, s[40:43], s61 offen offset:{512*k} sc1")
        if ffn:
            for i in range(16): base.append((f"gu{i}", mk_gu(i), 1))
        for k in range(8): base.append((f"wo{k}", mk_wo(k), 1))
        if ffn:
            for k in range(8): base.append((f"wd{k}", mk_wd(k), 1))
        Pl = [(pq, ("pq", pollq, 4)), (po, ("po", pollo, 4)), (ph, ("ph", pollh, 4))] if ffn else [(lq, ("pq", pollq, 4)), (99, ("po", pollo, 4))]
        for i, it in enumerate(base):
            for p, pit in Pl:
                if p == i + 8: S.add(*pit)
            S.add(*it)
        for p, pit in Pl:
            if p >= len(base) + 8: S.add(*pit)
        for i in range(kpre):
            name = S.items[S.issued][0]; assert name == f"kv{i}"
            S.nops += 1; S.pos[name] = S.nops; S.issued += 1
        names = [it[0] for it in S.items]
        S.blocked |= {"po", "ph"}
        def retry(lab, fn, check):
            if oracle_q and lab.endswith("rq"): return
            if cnt:
                bit = {"rq": 100, "ro": 1000, "rh": 10000}[lab[-2:]]
                a(f"""
    s_nop 1
    s_cbranch_vccz {lab}_c
    s_add_u32 s94, s94, {bit}
    s_addc_u32 s95, s95, 0
{lab}_c:
    """)
            a(f"""
    s_nop 1
    s_cbranch_vccz {lab}_ok
    s_mov_b32 s71, {spin_max}
{lab}:
    """)
            fn()
            a("    s_waitcnt vmcnt(0)")
            check(True)
            a(f"""
    s_sub_u32 s71, s71, 1
    s_cmp_eq_u32 s71, 0
    s_cbranch_scc1 {lab}_ok
    s_cbranch_vccnz {lab}
{lab}_ok:
    """)
        S.blocked.add("pq"); S.sprk(warm_extra); S.blocked.discard("pq")
        if warm:
            a(f"""
    s_mov_b64 exec, 0
    s_cmp_eq_u32 s3, 0
    s_cbranch_scc1 {P}SEG0
    s_cmp_eq_u32 s3, 1
    s_cbranch_scc1 {P}SEG1
    s_cmp_eq_u32 s3, 2
    s_cbranch_scc1 {P}SEG2
    s_branch {P}SEG3
{P}W_ret:
    s_mov_b64 exec, -1
    """)
        if cnt: a('    s_waitcnt lgkmcnt(0)\n    s_mov_b64 s[94:95], s[72:73]')
        else: stamp(11)
        t3_done = False; have_o = False; have_h = False
        DD = D if ffn else Dl
        def mf_wo(k):
            u, c = k // 2, k % 2
            srcc = "0" if u == 0 else vr(PD + 4 * c, 4)
            a(f"    v_mfma_f32_16x16x32_bf16 {vr(PD+4*c,4)}, {vr(A3+4*u,4)}, {vr(WO+4*k,4)}, {srcc}")
        def mf_wd(k):
            srcc = "0" if k == 0 else vr(DG, 4)
            a(f"    v_mfma_f32_16x16x32_bf16 {vr(DG,4)}, {vr(A2+4*k,4)}, {ar(WD+4*k,4)}, {srcc}")
        for name in names:
            depth = DD
            if dmap and ffn:
                for k_, v_ in dmap:
                    if names.index(name) >= k_: depth = v_
            def std():
                with guard():
                    S.wait(name)
                    if ffn and tail_step and "po" in S.pos: S.sprk(tail_step)
                    else: S.topup(name, depth)
            if name.startswith("wq"):
                pass
            elif name.startswith("kv"):
                std()
                if name == "kv7":
                    a("    s_barrier")
                    for s_ in range(2):
                        for c in range(2):
                            for h in range(2):
                                a(f"    ds_read_b64_tr_b16 {vr(VO+(s_*2+c)*4+2*h,2)}, v{vTR} offset:{L_V + s_*8192 + h*1024 + c*32}")
            elif name.startswith("gu"):
                i = int(name[2:]); t, mat = i // 2, i % 2
                with guard(): S.wait(name)
                srcc = "0" if t == 0 else vr(DG + 4 * mat, 4)
                a(f"    v_mfma_f32_16x16x32_bf16 {vr(DG+4*mat,4)}, {vr(A+4*t,4)}, {ar(GW+4*i,4)}, {srcc}")
                with guard(): S.topup(name, depth + (sprg if i == 15 else 0))
                if i == 15:
                    a(f"""
    s_nop 6
{P}SEG3:
    ds_write_b128 v{vred}, {vr(DG,4)} offset:{L_G}
    ds_write_b128 v{vred}, {vr(DG+4,4)} offset:{L_G+2048}
    s_waitcnt lgkmcnt(0)
    """)
                    with guard():
                        a(f"""
    s_barrier
    s_cmp_ge_u32 s3, 2
    s_cbranch_scc1 {P}nogu
    """)
                    red8(T, vGR, L_G // 256)
                    if warm: a(f"    s_cbranch_execz {P}SEG3b")
                    a(f"""
    buffer_store_dword v{T}, v{vl4}, s[40:43], s60 offen sc1
{P}nogu:
    """)
                    stamp(8)
                    if not ph_after_o: S.blocked -= {"ph"}
            elif name == "pq":
                acc = T
                def chk(re):
                    a(f"""
    v_mov_b32 v{acc}, 0
    v_mov_b32 v{acc+1}, 0
    """)
                    for k in range(4):
                        if not re: gwait("pq", 3 - k)
                        for e in range(4): a(f"    v_msad_u8 v{acc+(e&1)}, v{G0+4*k+e}, s{28+e}, v{acc+(e&1)}")
                    a(f"""
    v_or_b32 v{acc}, v{acc}, v{acc+1}
    v_cmp_ne_u32 vcc, 0, v{acc}
    """)
                while "pq" not in S.pos: S.issue()
                a(f"{P}SEG0:")
                chk(False)
                retry(f"{P}rq", pollq, chk)
                with guard(): stamp(4)
                QS = T + 4
                a(f"""
    v_pk_add_f32 {vr(QS,2)}, {vr(G0,2)}, {vr(G0+4,2)}
    v_pk_add_f32 {vr(QS+2,2)}, {vr(G0+2,2)}, {vr(G0+6,2)}
    v_pk_add_f32 {vr(QS+4,2)}, {vr(G0+8,2)}, {vr(G0+12,2)}
    v_pk_add_f32 {vr(QS+6,2)}, {vr(G0+10,2)}, {vr(G0+14,2)}
    v_pk_add_f32 {vr(QS,2)}, {vr(QS,2)}, {vr(QS+4,2)}
    v_pk_add_f32 {vr(QS+2,2)}, {vr(QS+2,2)}, {vr(QS+6,2)}
    v_cvt_pk_bf16_f32 v{QS}, v{QS}, v{QS+1}
    v_cvt_pk_bf16_f32 v{QS+1}, v{QS+2}, v{QS+3}
    ds_write_b64 v{vQW}, {vr(QS,2)} offset:{L_Q}
    """)
                with guard(): S.topup(name, depth)
                a("    s_waitcnt lgkmcnt(0)")
                barrier()
                a(f"""
    ds_read_b128 {vr(QB,4)}, v{vQR} offset:{L_Q}
    ds_read_b128 {vr(QB+4,4)}, v{vQR} offset:{L_Q+64}
    ds_read_b128 {vr(QB+8,4)}, v{vQR} offset:{L_Q+128}
    ds_read_b128 {vr(QB+12,4)}, v{vQR} offset:{L_Q+192}
    """)
                gsprk(sprinkle[0])
                for t in range(4):
                    srcc = "0" if t == 0 else vr(D1, 4)
                    a(f"    s_waitcnt lgkmcnt({3-t})")
                    a(f"    v_mfma_f32_16x16x32_bf16 {vr(D1,4)}, {vr(KK+4*t,4)}, {vr(QB+4*t,4)}, {srcc}")
                Sx = T + 4
                a(f"""
    s_nop 7
    v_cvt_pk_bf16_f32 v{T}, v{D1}, v{D1+1}
    v_cvt_pk_bf16_f32 v{T+1}, v{D1+2}, v{D1+3}
    v_lshlrev_b32 v{Sx}, 16, v{T}
    v_and_b32 v{Sx+1}, 0xffff0000, v{T}
    v_lshlrev_b32 v{Sx+2}, 16, v{T+1}
    v_and_b32 v{Sx+3}, 0xffff0000, v{T+1}
    v_mul_f32 v{Sx}, s24, v{Sx}
    v_mul_f32 v{Sx+1}, s24, v{Sx+1}
    v_mul_f32 v{Sx+2}, s24, v{Sx+2}
    v_mul_f32 v{Sx+3}, s24, v{Sx+3}
    v_cvt_pk_bf16_f32 v{T}, v{Sx}, v{Sx+1}
    v_cvt_pk_bf16_f32 v{T+1}, v{Sx+2}, v{Sx+3}
    ds_write_b64 v{vSW}, {vr(T,2)} offset:{L_S}
    s_waitcnt lgkmcnt(0)
    """)
                seg_end()
                mx, tmp, lsum, wv, rl = T + 12, T + 13, T + 14, T + 15, T + 16
                Pp = T + 20
                a(f"""
    s_barrier
{P}SEG1:
    ds_read_b128 {vr(T,4)}, v{vSR} offset:{L_S}
    """)
                gsprk(sprinkle[1])
                a("    s_waitcnt lgkmcnt(0)")
                for k in range(4):
                    a(f"""
    v_lshlrev_b32 v{Sx+2*k}, 16, v{T+k}
    v_and_b32 v{Sx+2*k+1}, 0xffff0000, v{T+k}
    """)
                a(f"""
    v_max3_f32 v{mx}, v{Sx}, v{Sx+1}, v{Sx+2}
    v_max3_f32 v{tmp}, v{Sx+3}, v{Sx+4}, v{Sx+5}
    v_max3_f32 v{mx}, v{Sx+6}, v{Sx+7}, v{mx}
    v_max_f32 v{mx}, v{mx}, v{tmp}
    """)
                allreduce1(mx, tmp, op="v_max_f32", steps=(8,))
                a(f"    v_mul_f32 v{mx}, s25, v{mx}")
                for k in range(8): a(f"    v_fma_f32 v{Sx+k}, v{Sx+k}, s25, -v{mx}")
                for k in range(8): a(f"    v_exp_f32 v{Sx+k}, v{Sx+k}")
                for k in range(4): a(f"    v_cvt_pk_bf16_f32 v{Pp+k}, v{Sx+2*k}, v{Sx+2*k+1}")
                a(f"""
    v_pk_add_f32 {vr(T,2)}, {vr(Sx,2)}, {vr(Sx+2,2)}
    v_pk_add_f32 {vr(T+2,2)}, {vr(Sx+4,2)}, {vr(Sx+6,2)}
    """)
                for sc in (0, 2, 1, 3):
                    a(f"    v_mfma_f32_16x16x32_bf16 {vr(PD+4*sc,4)}, {vr(VO+4*sc,4)}, {vr(Pp,4)}, 0")
                gsprk(sprinkle[2])
                a(f"""
    v_pk_add_f32 {vr(T,2)}, {vr(T,2)}, {vr(T+2,2)}
    v_add_f32 v{lsum}, v{T}, v{T+1}
    """)
                allreduce1(lsum, tmp, steps=(8,))
                X = D1
                a(f"""
    v_log_f32 v{wv}, v{lsum}
    v_rcp_f32 v{rl}, v{lsum}
    """)
                for e in range(4): a(f"    v_add_f32_dpp v{X+e}, v{PD+8+e}, v{PD+e} row_ror:8 row_mask:0xf bank_mask:0x3")
                a(f"    v_add_f32 v{wv}, v{wv}, v{mx}")
                for e in range(4): a(f"    v_add_f32_dpp v{X+e}, v{PD+4+e}, v{PD+12+e} row_ror:8 row_mask:0xf bank_mask:0xc")
                a(f"""
    v_add_u32 v{wv}, 0x80, v{wv}
    v_bfi_b32 v{wv}, s70, v{vtag0}, v{wv}
    """)
                for e in range(4): a(f"    v_mul_f32 v{X+e}, v{X+e}, v{rl}")
                for e in range(4): a(f"    v_perm_b32 v{X+e}, v{X+e}, v{wv}, s{PSEL[e]}")
                seg_end()
                a(f"    buffer_store_dwordx4 {vr(X,4)}, v6, s[40:43], s23 offen sc1")
                S.extra(1)
                stamp(5)
                S.blocked -= {"po"}
                S.sprk(sprinkle[3])
            elif name == "po":
                F = T + 8
                def chk(re):
                    a(f"    v_mov_b32 v{T+3}, 0")
                    for k in range(4):
                        if not re: gwait("po", 3 - k)
                        a(f"""
    v_msad_u8 v{T+3}, v{G0+4*k}, s28, v{T+3}
    v_perm_b32 v{F+k}, v{G0+4*k+2}, v{G0+4*k+1}, s68
    v_lshl_or_b32 v{F+k}, v{G0+4*k+3}, 24, v{F+k}
    """)
                    a(f"    v_cmp_ne_u32 vcc, 0, v{T+3}")
                while "po" not in S.pos: S.issue()
                a(f"{P}SEG2:")
                chk(False)
                retry(f"{P}ro", pollo2, chk)
                with guard():
                    stamp(6); S.blocked -= {"ph"}; S.topup(name, depth + spr3)
                a(f"""
    v_max_f32 v{T+4}, v{F}, v{F+1}
    v_max3_f32 v{T+4}, v{F+2}, v{F+3}, v{T+4}
    """)
                allreduce1(T + 4, T + 5, op="v_max_f32", steps=(8, 4))
                for k in range(4): a(f"    v_sub_f32 v{F+k}, v{F+k}, v{T+4}")
                for k in range(4): a(f"    v_exp_f32 v{F+k}, v{F+k}")
                L_ = T + 6
                for e in range(4): a(f"    v_mul_f32 v{G0+e}, v{G0+e}, v{F}")
                a(f"""
    v_add_f32 v{L_}, v{F}, v{F+1}
    v_add_f32 v{L_+1}, v{F+2}, v{F+3}
    """)
                for t in range(1, 4):
                    for e in range(4): a(f"    v_fmac_f32 v{G0+e}, v{G0+4*t+e}, v{F+t}")
                    if t == 1: a(f"    v_add_f32 v{L_}, v{L_}, v{L_+1}")
                merge2(G0, L_)
                a(f"""
    v_rcp_f32 v{L_}, v{L_}
    s_nop 0
    v_mul_f32 v{G0}, v{G0}, v{L_}
    v_cvt_pk_bf16_f32 v{G0}, v{G0}, v{G0}
    s_nop 1
    """)
                for u in range(4):
                    for m_ in range(4):
                        a(f"    v_and_b32_dpp v{A3+4*u+m_}, v{G0}, v{2+m_} quad_perm:[{u},{u},{u},{u}] row_mask:0xf bank_mask:0xf")
                a("    s_nop 1")
                have_o = True
                for k in range(8):
                    if names.index(f"wo{k}") < names.index("po"): mf_wo(k)
            elif name.startswith("wo"):
                std()
                if have_o: mf_wo(int(name[2:]))
            elif name == "ph":
                def chk(re):
                    if not re: gwait("ph")
                    a(f"""
    v_msad_u8 v{T+8}, v{HG}, v{vtagP}, 0
    v_msad_u8 v{T+9}, v{HG+1}, v{vtagP}, 0
    v_msad_u8 v{T+8}, v{HG+2}, v{vtagP}, v{T+8}
    v_msad_u8 v{T+9}, v{HG+3}, v{vtagP}, v{T+9}
    v_or_b32 v{T+8}, v{T+8}, v{T+9}
    v_cmp_ne_u32 vcc, 0, v{T+8}
    """)
                while "ph" not in S.pos: S.issue()
                a(f"{P}SEG3b:")
                chk(False)
                retry(f"{P}rh", pollh, chk)
                with guard():
                    stamp(9); S.topup(name, depth + 1)
                G_, U_ = HG, HG + 2
                a(f"""
    v_add_f32 v{G_}, v{HG}, v{HG+1}
    v_add_f32 v{U_}, v{HG+2}, v{HG+3}
    s_nop 0
    v_add_f32_dpp v{G_}, v{G_}, v{G_} row_ror:8 row_mask:0xf bank_mask:0xf
    v_add_f32_dpp v{U_}, v{U_}, v{U_} row_ror:8 row_mask:0xf bank_mask:0xf
    """)
                rbf16(G_, G_)
                a(f"""
    v_mul_f32 v{T+4}, {0x80000000 | LOG2E}, v{G_}
    v_exp_f32 v{T+4}, v{T+4}
    """)
                rbf16(U_, U_)
                a(f"""
    v_add_f32 v{T+4}, 1.0, v{T+4}
    v_rcp_f32 v{T+4}, v{T+4}
    s_nop 0
    v_mul_f32 v{G_}, v{G_}, v{T+4}
    """)
                rbf16(G_, G_)
                a(f"""
    v_mul_f32 v{G_}, v{G_}, v{U_}
    v_cvt_pk_bf16_f32 v{G_}, v{G_}, v{G_}
    s_nop 1
    """)
                have_h = True
                ready = [k for k in range(8) if names.index(f"wd{k}") < names.index("ph")]
                for u in range(8):
                    for m_ in range(4):
                        a(f"    v_and_b32_dpp v{A2+4*u+m_}, v{G_}, v{2+m_} row_newbcast:{u} row_mask:0xf bank_mask:0xf")
                    if u >= 1 and (u - 1) in ready: mf_wd(u - 1)
                a("    s_nop 1")
                if 7 in ready: mf_wd(7)
            elif name.startswith("wd"):
                std()
                if have_h: mf_wd(int(name[2:]))
            if not t3_done and have_o and names.index(name) >= max(names.index("wo7"), names.index("po")):
                o1 = L_OUT // 256
                a(f"""
    s_nop 6
    ds_write_b128 v{vOT}, {vr(PD,4)} offset:{L_OUT}
    ds_write_b128 v{vOT}, {vr(PD+4,4)} offset:{L_OUT+512}
    s_waitcnt lgkmcnt(0)
    """)
                barrier()
                a(f"""
    ds_read2st64_b32 {vr(T+2,2)}, v{vtid4} offset0:{o1} offset1:{o1+4}
    ds_read2st64_b32 {vr(T+4,2)}, v{vtid4} offset0:{o1+8} offset1:{o1+12}
    s_waitcnt lgkmcnt(0)
    v_add_f32 v{T+2}, v{T+2}, v{T+3}
    v_add_f32 v{T+4}, v{T+4}, v{T+5}
    v_add_f32 v{T+2}, v{T+2}, v{T+4}
    v_add_u32 v{T+2}, v{T+2}, v{vaddP}
    v_bfi_b32 v{T+2}, s70, v{vtagP}, v{T+2}
    """)
                seg_end()
                a(f"    buffer_store_dword v{T+2}, v{vtid4}, s[40:43], s69 offen sc1")
                S.extra(1)
                stamp(7)
                t3_done = True
                S.sprk(1)
        if ffn:
            assert names.index("ph") > max(names.index("wo7"), names.index("po"))
            o2 = L_OUT2 // 256
            a(f"""
    s_add_u32 s99, s62, {PBG-PBL}
    s_nop 6
    ds_write_b128 v{vOT2}, {vr(DG,4)} offset:{L_OUT2}
    s_waitcnt lgkmcnt(0)
    """)
            barrier()
            a(f"""
    ds_read2st64_b32 {vr(T,2)}, v{vt7} offset0:{o2} offset1:{o2+2}
    ds_read2st64_b32 {vr(T+2,2)}, v{vt7} offset0:{o2+4} offset1:{o2+6}
    s_cmp_ge_u32 s3, 2
    s_waitcnt lgkmcnt(0)
    v_add_f32 v{T}, v{T}, v{T+1}
    v_add_f32 v{T+2}, v{T+2}, v{T+3}
    v_add_f32 v{T}, v{T}, v{T+2}
    v_add_u32 v{T}, v{T}, v{vaddP}
    v_bfi_b32 v{T}, s70, v{vtagP}, v{T}
    """)
            seg_end()
            a(f"""
    s_cbranch_scc1 H_glob
    buffer_store_dword v{T}, v{vt7}, s[40:43], s62 offen
    s_branch H_fin
H_glob:
    buffer_store_dword v{T}, v{vt7}, s[40:43], s99 offen sc1
H_fin:
    """)
            stamp(10)

    path(True, "H")
    store_stamps()
    a("    s_endpgm")
    a("L_light:")
    path(False, "Lt")
    vA, vB, vkeep, vX, vO, vF = T + 8, T + 9, T + 10, T + 11, T + 12, T + 13
    RA = G0; RB = G0 + 8; ac = T + 6
    a(f"""
    s_lshr_b32 s64, s34, 3            ; k
    s_lshl_b32 s65, s33, 2
    s_add_u32 s65, s65, s64           ; c
    s_lshl_b32 s66, s65, 6
    v_lshlrev_b32 v{vO}, 1, v1
    v_add_u32 v{vO}, s66, v{vO}
    buffer_load_ushort v{vX}, v{vO}, s[36:39], 0 offen
    v_lshlrev_b32 v{vA}, 12, v7
    v_lshl_add_u32 v{vA}, v8, 4, v{vA}
    v_cmp_gt_u32 vcc, 56, v1
    v_min_u32 v{vB}, 6, v7
    v_lshlrev_b32 v{vB}, 9, v{vB}
    v_lshl_add_u32 v{vB}, v8, 4, v{vB}
    v_cndmask_b32 v{vkeep}, 0, 1.0, vcc
    v_lshlrev_b32 v{vF}, 2, v{vG}
    v_lshl_add_u32 v{vF}, v8, 4, v{vF}
    s_lshl_b32 s96, s3, 8
    v_add_u32 v{vF}, s96, v{vF}
    s_lshl_b32 s67, s65, 7
    s_lshl_b32 s96, s3, 16
    s_add_u32 s68, s67, s96
    s_add_u32 s68, s68, {PA}
    s_add_u32 s69, s68, {8*4096}
    s_mul_i32 s67, s33, 14336
    s_mul_i32 s96, s3, {7*512}
    s_add_u32 s67, s67, s96
    s_lshl_b32 s64, s64, 7
    s_add_u32 s67, s67, s64
    s_add_u32 s66, s67, {PBG}
    s_add_u32 s67, s67, {PBL if local else PBG}
    s_mov_b32 s71, {spin_max}
R_pa:
    buffer_load_dwordx4 {vr(RA,4)}, v{vA}, s[40:43], s68 offen sc1
    buffer_load_dwordx4 {vr(RA+4,4)}, v{vA}, s[40:43], s69 offen sc1
    buffer_load_dwordx4 {vr(RB,4)}, v{vB}, s[40:43], s67 offen sc1
    v_mov_b32 v{ac}, 0
    v_mov_b32 v{ac+1}, 0
    """)
    for k in range(2):
        a(f"    s_waitcnt vmcnt({2-k})")
        for e in range(4): a(f"    v_msad_u8 v{ac+(e&1)}, v{RA+4*k+e}, s{28+e}, v{ac+(e&1)}")
    a(f"""
    v_or_b32 v{ac}, v{ac}, v{ac+1}
    v_cmp_ne_u32 vcc, 0, v{ac}
    s_sub_u32 s71, s71, 1
    s_cmp_eq_u32 s71, 0
    s_cbranch_scc1 R_aok
    s_cbranch_vccnz R_pa
R_aok:
    s_mov_b32 s71, 0
    """)
    stamp(10)
    a("LtSEG3:")
    for e in range(4): a(f"    v_add_f32 v{RA+e}, v{RA+e}, v{RA+4+e}")
    def merge1(X):
        a(f"""
    s_nop 0
    v_permlane32_swap_b32 v{X}, v{X+2}
    v_permlane32_swap_b32 v{X+1}, v{X+3}
    v_add_f32 v{X}, v{X}, v{X+2}
    v_add_f32 v{X+1}, v{X+1}, v{X+3}
    s_nop 1
    v_permlane16_swap_b32 v{X}, v{X+1}
    v_add_f32 v{X}, v{X}, v{X+1}
    s_nop 1
    v_add_f32_dpp v{X}, v{X}, v{X} row_ror:8 row_mask:0xf bank_mask:0xf
    """)
    merge1(RA)
    a(f"""
    v_lshlrev_b32 v{vX}, 16, v{vX}
    ds_write_b32 v{vF}, v{RA} offset:{L_FIN}
    s_branch R_chk
R_pb:
    s_add_u32 s71, s71, 1
    s_and_b32 s96, s71, {gper}
    s_cmp_eq_u32 s96, 0
    s_cselect_b32 s96, s66, s67
    buffer_load_dwordx4 {vr(RB,4)}, v{vB}, s[40:43], s96 offen sc1
R_chk:
    """)
    with guard(): a("    s_waitcnt vmcnt(0)")
    a(f"""
    v_msad_u8 v{ac}, v{RB}, s28, 0
    v_msad_u8 v{ac+1}, v{RB+1}, s29, 0
    v_msad_u8 v{ac}, v{RB+2}, s30, v{ac}
    v_msad_u8 v{ac+1}, v{RB+3}, s31, v{ac+1}
    v_or_b32 v{ac}, v{ac}, v{ac+1}
    v_cmp_ne_u32 vcc, 0, v{ac}
    s_cmp_eq_u32 s71, {spin_max}
    s_cbranch_scc1 R_bok
    s_cbranch_vccnz R_pb
R_bok:
    """)
    with guard(): stamp(8)
    for e in range(4): a(f"    v_mul_f32 v{RB+e}, v{RB+e}, v{vkeep}")
    merge1(RB)
    a(f"""
    ds_write_b32 v{vF}, v{RB} offset:{L_FIN+128}
    s_waitcnt lgkmcnt(0)
    """)
    barrier()
    a(f"""
    ds_read2st64_b32 {vr(RA,2)}, v{vtid4} offset0:{L_FIN//256} offset1:{L_FIN//256+1}
    ds_read2st64_b32 {vr(RA+2,2)}, v{vtid4} offset0:{L_FIN//256+2} offset1:{L_FIN//256+3}
    s_waitcnt lgkmcnt(0)
    v_add_f32 v{RA}, v{RA}, v{RA+1}
    v_add_f32 v{RA+2}, v{RA+2}, v{RA+3}
    v_add_f32 v{RA}, v{RA}, v{RA+2}
    """)
    rbf16(RA, RA)
    a(f"""
    v_mov_b32 v{RB}, v{RA}
    v_add_f32 v{RA+1}, v{RA}, v{vX}
    s_nop 0
    v_permlane32_swap_b32 v{RA}, v{RB}
    """)
    rbf16(RA + 1, RA + 1)
    a(f"""
    v_add_f32 v{RA}, v{RA+1}, v{RB}
    v_cvt_pk_bf16_f32 v{RA}, v{RA}, v{RA}
    """)
    if warm: a("    s_cbranch_execz LtW_ret")
    a(f"""
    s_cmp_lg_u32 s3, 0
    s_cbranch_scc1 R_done
    s_mov_b32 exec_hi, 0
    buffer_store_short v{RA}, v{vO}, s[16:19], 0 offen
    s_cmp_lg_u32 s65, 0
    s_cbranch_scc1 R_done
    v_mov_b32 v{RB}, s35
    v_mov_b32 v{RB+1}, 0
    s_mov_b64 exec, 1
    buffer_store_dword v{RB}, v{RB+1}, s[40:43], 0 offen offset:{EPOCH}
R_done:
    s_mov_b64 exec, -1
    """)
    stamp(9)
    store_stamps()
    a("""
L_end:
    s_endpgm
L_code_end:
    """)
    print(out, "vgprs", nv, "agprs", nagpr, "lds", LDS_BYTES)
    open(out, "w").write(wrap(a.text(), 256, 256, LDS_BYTES, vgpr=accum + nagpr, accum=accum))

if __name__ == "__main__":
    gen("k9.s", stamps=True)
    gen("k9_ns.s", stamps=False)
```

```python
import gen11
b = dict(stamps=False, gper=63)
gen11.gen("o_a.s", lq=19, pf_late=True, lo_sleep=22, **b)
gen11.gen("o_b.s", lq=19, pf_late=True, lo_sleep=38, **b)
gen11.gen("o_c.s", lq=19, pf_late=False, lo_sleep=30, **b)
gen11.gen("o_d.s", lq=19, pf_late=True, lo_sleep=30, ph=47, **b)
gen11.gen("o_e.s", lq=19, pf_late=True, lo_sleep=26, pq=22, **b)
gen11.gen("o_f.s", lq=19, pf_late=True, lo_sleep=30, **b)
```

```python
import sys
from asmgen import *

STAMP_OFF = 128 << 20
NST = 12
EPOCH = 0
QP = 0x1000
OP = 0x40000
GU = 0x180000
OF = 0x20000
PL = 0x200000
PG = 0x240000
WS_SIZE = 256 << 20

L_RED = 0
L_G = 2048
L_TRASH = 6144
L_Q = 11264
L_S = 13440
L_OUT = 14848
L_OUT2 = 18944
L_FIN = 20992
L_V = 23040
LDS_BYTES = L_V + 16384

LOG2E = 0x3FB8AA3B
SCALE = 0x3DB504F3

class R:
    def __init__(self, start): self.n = start
    def a(self, k=1, al=1):
        self.n = (self.n + al - 1) // al * al
        r = self.n; self.n += k
        return r
def vr(b, n): return f"v[{b}:{b+n-1}]"
def ar(b, n): return f"a[{b}:{b+n-1}]"

class Sched:
    def __init__(self, a): self.a = a; self.items = []; self.issued = 0; self.nops = 0; self.pos = {}; self.blocked = set()
    def add(self, name, fn, n=1): self.items.append((name, fn, n))
    def issue(self):
        name, fn, n = self.items[self.issued]
        fn(); self.nops += n; self.pos[name] = self.nops; self.issued += 1
    def can(self): return self.issued < len(self.items) and self.items[self.issued][0] not in self.blocked
    def extra(self, n=1): self.nops += n
    def wait(self, name, sub=0):
        while name not in self.pos:
            assert self.can(), (name, self.items[self.issued][0])
            self.issue()
        cnt = self.nops - self.pos[name] + sub
        assert cnt <= 63
        self.a(f"    s_waitcnt vmcnt({cnt})")
    def index(self, name): return [i for i, it in enumerate(self.items) if it[0] == name][0]
    def topup(self, name, depth):
        i = self.index(name)
        while self.can() and self.issued - (i + 1) < depth: self.issue()
    def sprk(self, n):
        for _ in range(n):
            if self.can(): self.issue()

def gen(out, stamps=True, nt=True, D=5, Dl=5, pq=23, pf=48, ph=45, lq=22, lo_sleep=48, spin_max=1 << 20, warm=True,
        k0=2, k1=0, k2=2, Dt=7, sprinkle=(2, 2, 1, 1), spr3=3, dmap=None, warm_extra=3, cnt=False, gper=7, local=True, sprg=1, mixU=True, oracle_q=False, ph_after_o=False, tail_step=0, wq_flags=" nt", nobar=False, kvs=False, lf_sleep=12, masked=True, c_bet=0, pf_late=False, hf_sleep=0, pure=False, pf_at=None):
    a = Asm()
    NT = " nt" if nt else ""
    def stamp(i):
        if stamps: a(f"    s_memrealtime s[{72+2*i}:{73+2*i}]")
    def store_stamps():
        if not stamps: return
        lab = a.label("nost")
        a(f"""
    s_waitcnt lgkmcnt(0)
    s_cmp_lg_u32 s3, 0
    s_cbranch_scc1 {lab}
    s_mul_i32 s64, s2, {NST*8}
    s_add_u32 s64, s64, {STAMP_OFF}
    v_mov_b32 v20, 0
    s_mov_b64 exec, 1
    """)
        for i in range(NST):
            a(f"""
    v_mov_b32 v22, s{72+2*i}
    v_mov_b32 v23, s{73+2*i}
    buffer_store_dwordx2 v[22:23], v20, s[40:43], s64 offen offset:{8*i}
    s_nop 1
    """)
        a(f"{lab}:")
    def srd(base, lo, size):
        a(f"""
    s_mov_b32 s{base}, s{lo}
    s_mov_b32 s{base+1}, s{lo+1}
    s_mov_b32 s{base+2}, {size}
    s_mov_b32 s{base+3}, 0x20000
    """)
    class guard:
        def __enter__(self):
            self.l = a.label("G"); self.n = len(a.lines)
            if warm: a(f"    s_cbranch_execz {self.l}")
        def __exit__(self, *x):
            if warm:
                if len(a.lines) == self.n + 1: a.lines.pop()
                else: a(f"{self.l}:")
    def barrier():
        with guard(): a("    s_barrier")

    r = R(10)
    (vtagP, vaddP, vOT, vtid4, vPF, vG4, vWQ, vK, vWO, vPO, vQW, vQR, vSW, vSR, vTR, vred, vtag0, vGU, vGU2, vWD, vPH, vJ, vG,
     vOT2, vl4, vt7, vV) = [r.a() for _ in range(27)]
    XA = r.a(8, 4); XS = r.a(4, 4); T = r.a(24, 4); A = r.a(32, 4); QB = r.a(16, 4)
    D1 = r.a(4, 4); PD = r.a(16, 4); DG = r.a(8, 4); WQ = r.a(32, 4); KK = r.a(16, 4); VO = r.a(16, 4); G0 = r.a(16, 4); HG = r.a(4, 4)
    nv = r.n
    assert nv <= 256, nv
    accum = (nv + 3) // 4 * 4
    GW = 0; WD = 64; nagpr = 96
    A3 = KK; A2 = A; WO = WQ; OG = A; FF = QB
    assert VO == KK + 16

    a(f"""
    s_cmp_ge_u32 s2, 256
    s_cbranch_scc1 L_end
    s_load_dwordx16 s[4:19], s[0:1], 0
    s_load_dwordx8 s[20:27], s[0:1], 64
    """)
    if stamps:
        for i in range(1, NST): a(f"    s_mov_b64 s[{72+2*i}:{73+2*i}], 0")
    stamp(0)
    a(f"""
    v_lshrrev_b32 v6, 6, v0
    v_and_b32 v1, 63, v0
    s_and_b32 s33, s2, 7            ; xcd
    v_readfirstlane_b32 s3, v6
    s_lshr_b32 s34, s2, 3           ; idx
    s_getpc_b64 s[96:97]
L_pc:
    s_lshl_b32 s64, s34, 2
    s_add_u32 s64, s64, s3
    s_lshl_b32 s64, s64, 7
    s_min_u32 s64, s64, L_code_end - L_pc - 4
    v_mov_b32 v9, s64
    global_load_dword v{vPF}, v9, s[96:97]
    v_lshlrev_b32 v6, 4, v1          ; lane*16
    v_lshrrev_b32 v7, 3, v1          ; l>>3
    v_and_b32 v8, 7, v1              ; l&7
    s_lshr_b32 s65, s33, 1           ; g
    s_and_b32 s66, s33, 1
    s_lshl_b32 s66, s66, 5
    s_add_u32 s66, s66, s34          ; m
    s_and_b32 s67, s66, 15           ; cb
    s_lshr_b32 s68, s66, 4           ; rq
    s_lshl_b32 s69, s68, 8
    s_lshl_b32 s64, s3, 6
    s_add_u32 s69, s69, s64          ; R0
    s_lshl_b32 s97, s69, 1
    v_lshlrev_b32 v9, 4, v7
    s_lshl_b32 s64, s69, 13
    s_lshl_b32 s96, s65, 11
    s_add_u32 s64, s64, s96
    s_lshl_b32 s96, s67, 7
    s_add_u32 s64, s64, s96
    v_lshlrev_b32 v{vWQ}, 16, v7
    v_lshl_add_u32 v{vWQ}, v8, 4, v{vWQ}
    v_add_u32 v{vWQ}, s64, v{vWQ}
    v_lshrrev_b32 v{vG}, 4, v1
    v_and_b32 v{vJ}, 15, v1
    s_mov_b32 s38, 2048
    s_mov_b32 s39, 0x20000
    s_mov_b32 s46, {8<<20}
    s_mov_b32 s47, 0x20000
    s_mov_b32 s64, 0
    s_waitcnt lgkmcnt(0)
    s_mov_b32 s36, s4
    s_mov_b32 s37, s5
    buffer_load_dwordx4 {vr(XA,4)}, v6, s[36:39], 0 offen
    buffer_load_dwordx4 {vr(XA+4,4)}, v6, s[36:39], 0 offen offset:1024
    buffer_load_dwordx4 {vr(XS,4)}, v9, s[36:39], s97 offen
    s_load_dword s28, s[26:27], {EPOCH}
    s_mov_b32 s44, s10
    s_mov_b32 s45, s11
    {"" if nobar else "s_barrier"}
    """)
    for t in range(8):
        a(f"    buffer_load_dwordx4 {vr(WQ+4*t,4)}, v{vWQ}, s[44:47], s64 offen{wq_flags}")
        if t < 7: a(f"    s_add_u32 s64, s64, 8192")
    a(f"""
    v_bfe_u32 v{T}, v0, 1, 2
    v_and_b32 v{T+1}, 1, v0
    v_lshlrev_b32 v{T+1}, 4, v{T+1}
    v_mov_b32 v9, 0xffff
    v_lshlrev_b32 v9, v{T+1}, v9
    v_cmp_eq_u32 vcc, 0, v{T}
    v_cmp_eq_u32 s[96:97], 1, v{T}
    v_cmp_eq_u32 s[98:99], 2, v{T}
    v_cmp_eq_u32 s[100:101], 3, v{T}
    v_cndmask_b32 v2, 0, v9, vcc
    v_cndmask_b32 v3, 0, v9, s[96:97]
    v_cndmask_b32 v4, 0, v9, s[98:99]
    v_cndmask_b32 v5, 0, v9, s[100:101]
    s_lshl_b32 s63, s65, 23
    s_lshl_b32 s96, s66, {8 if kvs else 14}
    s_add_u32 s63, s63, s96
    s_lshl_b32 s96, s3, {18 if kvs else 12}
    s_add_u32 s63, s63, s96
    s_add_u32 s63, s63, {28672*256}
    s_lshl_b32 s96, s3, 12
    s_add_u32 s96, s96, {L_V}
    s_mov_b32 m0, s96
    v_lshlrev_b32 v{vK}, {14 if kvs else 8}, v{vJ}
    v_lshl_add_u32 v{vK}, v{vG}, 4, v{vK}
    v_lshlrev_b32 v{vV}, {14 if kvs else 8}, v{vG}
    v_lshl_add_u32 v{vV}, v{vJ}, 4, v{vV}
    """)
    srd(48, 6, 32 << 20)
    srd(52, 8, 32 << 20)
    srd(40, 26, WS_SIZE)

    def allreduce2(x, y, t1, t2):
        for s_ in (8, 4, 2, 1):
            a(f"""
    s_nop 0
    v_add_f32_dpp v{x}, v{x}, v{x} row_ror:{s_} row_mask:0xf bank_mask:0xf
    v_add_f32_dpp v{y}, v{y}, v{y} row_ror:{s_} row_mask:0xf bank_mask:0xf
    """)
        for sw in ("v_permlane16_swap_b32", "v_permlane32_swap_b32"):
            a(f"""
    v_mov_b32 v{t1}, v{x}
    v_mov_b32 v{t2}, v{y}
    s_nop 0
    {sw} v{t1}, v{x}
    {sw} v{t2}, v{y}
    v_add_f32 v{x}, v{x}, v{t1}
    v_add_f32 v{y}, v{y}, v{t2}
    """)
    def allreduce1(x, t1, op="v_add_f32", steps=(8, 4, 2, 1)):
        for s_ in steps:
            a(f"""
    s_nop 1
    {op}_dpp v{x}, v{x}, v{x} row_ror:{s_} row_mask:0xf bank_mask:0xf
    """)
        for sw in ("v_permlane16_swap_b32", "v_permlane32_swap_b32"):
            a(f"""
    v_mov_b32 v{t1}, v{x}
    s_nop 1
    {sw} v{t1}, v{x}
    {op} v{x}, v{x}, v{t1}
    """)
    def rbf16(d, s_):
        a(f"""
    v_cvt_pk_bf16_f32 v{d}, v{s_}, v{s_}
    v_and_b32 v{d}, 0xffff0000, v{d}
    """)
    a(f"""
    v_lshrrev_b32 v{vred}, 2, v1
    v_xor_b32 v{vred}, v{vred}, v1
    v_and_b32 v{vred}, 8, v{vred}
    v_cmp_eq_u32 vcc, 0, v{vred}
    v_lshlrev_b32 v{vred}, 5, v8
    v_bfe_u32 v9, v1, 4, 1
    v_lshl_add_u32 v{vred}, v9, 4, v{vred}
    v_lshrrev_b32 v9, 5, v1
    v_lshl_add_u32 v{vred}, v9, 8, v{vred}
    s_lshl_b32 s64, s3, 9
    v_add_u32 v{vred}, s64, v{vred}
    v_add_u32 v9, {L_TRASH}, v6
    v_cndmask_b32 v{vred}, v9, v{vred}, vcc
    v_lshlrev_b32 v{vtid4}, 2, v0
    v_and_b32 v{vG4}, 3, v1
    v_lshlrev_b32 v{vtagP}, 3, v{vG4}
    s_lshl_b32 s44, s65, 14
    s_add_u32 s44, s44, {QP}
    s_lshl_b32 s45, s68, 12
    s_add_u32 s45, s45, s44
    s_lshl_b32 s96, s67, 8
    s_add_u32 s45, s45, s96
    s_waitcnt lgkmcnt(0)
    s_and_b32 s28, s28, 0x7f
    s_cmp_eq_u32 s28, 127
    s_cselect_b32 s28, 0, s28
    s_add_u32 s35, s28, 1
    s_add_u32 s29, s28, 33
    s_sub_u32 s64, s29, 127
    s_cmp_gt_u32 s29, 127
    s_cselect_b32 s29, s64, s29
    s_add_u32 s30, s28, 65
    s_sub_u32 s64, s30, 127
    s_cmp_gt_u32 s30, 127
    s_cselect_b32 s30, s64, s30
    s_add_u32 s31, s28, 97
    s_sub_u32 s64, s31, 127
    s_cmp_gt_u32 s31, 127
    s_cselect_b32 s31, s64, s31
    s_add_u32 s28, s28, 1
    s_lshl_b32 s32, s29, 8
    s_or_b32 s32, s32, s28
    s_lshl_b32 s64, s30, 16
    s_or_b32 s32, s32, s64
    s_lshl_b32 s64, s31, 24
    s_or_b32 s32, s32, s64
    s_movk_i32 s70, 0xff
    v_bfe_u32 v{vtagP}, s32, v{vtagP}, 8
    v_sub_u32 v{vaddP}, 0x80, v{vtagP}
    """)
    def kv_issue(i):
        if i < 4: a(f"    buffer_load_dwordx4 {vr(KK+4*i,4)}, v{vK}, s[48:51], s63 offen offset:{64*i}{NT}")
        else:
            so = "s63"
            if kvs and i > 4:
                a(f"    s_add_u32 s99, s63, {(i-4)*(65536-1024)}"); so = "s99"
            a(f"    buffer_load_dwordx4 v{vV}, s[52:55], {so} offen offset:{1024*(i-4)}{NT} lds")
    a(f"    s_waitcnt vmcnt(9)")
    stamp(1)
    for i in range(k0): kv_issue(i)
    for k in range(8):
        a(f"""
    v_lshlrev_b32 v{T+2*k}, 16, v{XA+k}
    v_and_b32 v{T+2*k+1}, 0xffff0000, v{XA+k}
    """)
    a(f"""
    v_readfirstlane_b32 s64, v{T}
    s_nop 1
    """)
    for k in range(16): a(f"    v_subrev_f32 v{T+k}, s64, v{T+k}")
    a(f"""
    v_pk_add_f32 {vr(T+16,2)}, {vr(T,2)}, {vr(T+2,2)}
    v_pk_mul_f32 {vr(T+18,2)}, {vr(T,2)}, {vr(T,2)}
    """)
    for k in range(1, 8):
        a(f"    v_pk_fma_f32 {vr(T+18,2)}, {vr(T+2*k,2)}, {vr(T+2*k,2)}, {vr(T+18,2)}")
        if k >= 2: a(f"    v_pk_add_f32 {vr(T+16,2)}, {vr(T+16,2)}, {vr(T+2*k,2)}")
    S1, S2, t1, t2 = T + 16, T + 18, T + 17, T + 19
    a(f"""
    v_add_f32 v{S1}, v{S1}, v{t1}
    v_add_f32 v{S2}, v{S2}, v{t2}
    s_nop 0
    """)
    allreduce2(S1, S2, t1, t2)
    mean, var, rs, sd = T, T + 1, T + 2, T + 3
    a(f"""
    v_mul_f32 v{S1}, 0x3a800000, v{S1}
    v_mul_f32 v{S2}, 0x3a800000, v{S2}
    v_add_f32 v{mean}, s64, v{S1}
    v_fma_f32 v{var}, -v{S1}, v{S1}, v{S2}
    v_max_f32 v{var}, 0, v{var}
    """)
    rbf16(mean, mean); rbf16(var, var)
    a(f"    v_add_f32 v{var}, 0x3727c5ac, v{var}")
    rbf16(var, var)
    a(f"""
    v_sqrt_f32 v{sd}, v{var}
    s_waitcnt vmcnt({8+k0})
    """)
    for i in range(k0, k0 + k1): kv_issue(i)
    rbf16(sd, sd)
    a(f"    v_rcp_f32 v{rs}, v{sd}")
    Dd = T + 4; Q = T + 12
    for k in range(4):
        a(f"""
    v_lshlrev_b32 v{Dd+2*k}, 16, v{XS+k}
    v_and_b32 v{Dd+2*k+1}, 0xffff0000, v{XS+k}
    """)
    for k in range(8): a(f"    v_sub_f32 v{Dd+k}, v{Dd+k}, v{mean}")
    for k in range(4): a(f"    v_cvt_pk_bf16_f32 v{XS+k}, v{Dd+2*k}, v{Dd+2*k+1}")
    for k in range(4):
        a(f"""
    v_lshlrev_b32 v{Dd+2*k}, 16, v{XS+k}
    v_and_b32 v{Dd+2*k+1}, 0xffff0000, v{XS+k}
    """)
    for k in range(8): a(f"    v_mul_f32 v{Q+k}, v{Dd+k}, v{rs}")
    for k in range(8): a(f"    v_fma_f32 v{Dd+k}, -v{Q+k}, v{sd}, v{Dd+k}")
    for k in range(8): a(f"    v_fmac_f32 v{Q+k}, v{Dd+k}, v{rs}")
    for k in range(8): a(f"    v_cvt_pk_bf16_f32 v{Q+k}, v{Q+k}, v{Q+k}")
    for k in range(8):
        for m_ in range(4): a(f"    v_and_b32 v{A+4*k+m_}, v{Q+k}, v{2+m_}")
    stamp(2)
    for i in range(k0 + k1, k0 + k1 + k2): kv_issue(i)
    srd(56, 12, 8 << 20)
    srd(4, 16, 7 << 20)
    srd(8, 18, 7 << 20)
    srd(12, 20, 7 << 20)
    srd(16, 22, 2048)
    a(f"""
    s_add_u32 s64, s67, 4
    s_lshr_b32 s64, s64, 3
    s_mul_i32 s60, s65, 14
    s_add_u32 s60, s60, s67
    s_sub_u32 s60, s60, s64
    s_add_u32 s61, s60, {28 if mixU else 0}
    s_sub_u32 s64, s61, 56
    s_cmp_ge_u32 s61, 56
    s_cselect_b32 s61, s64, s61
    s_add_u32 s64, s34, 4
    s_lshr_b32 s64, s64, 3
    s_sub_u32 s62, s34, s64
    s_mul_i32 s64, s69, 7168
    v_mul_u32_u24 v{vGU}, {8*7168}, v7
    v_lshl_add_u32 v{vGU}, v8, 4, v{vGU}
    s_lshl_b32 s96, s61, 7
    s_add_u32 s96, s96, s64
    v_add_u32 v{vGU2}, s96, v{vGU}
    s_lshl_b32 s96, s60, 7
    s_add_u32 s96, s96, s64
    v_add_u32 v{vGU}, s96, v{vGU}
    s_lshl_b32 s60, s60, 11
    s_lshl_b32 s61, s61, 11
    s_add_u32 s61, s61, 1024
    s_cmp_eq_u32 s3, 0
    s_cselect_b32 s60, s60, s61
    s_lshl_b32 s64, s68, 8
    s_add_u32 s60, s60, s64
    s_add_u32 s60, s60, {GU}
    s_lshl_b32 s61, s62, 12
    s_lshr_b32 s64, s3, 1
    s_lshl_b32 s64, s64, 11
    s_add_u32 s61, s61, s64
    s_and_b32 s64, s3, 1
    s_lshl_b32 s64, s64, 7
    s_add_u32 s61, s61, s64
    s_add_u32 s61, s61, {GU}
    v_bfe_u32 v9, v1, 3, 1
    v_lshlrev_b32 v{vPH}, 8, v9
    v_lshl_add_u32 v{vPH}, v{vG}, 5, v{vPH}
    v_lshl_add_u32 v{vPH}, v8, 2, v{vPH}
    ; wd voffset = (128j + 32w + 8G)*2048 + 256x + 16jj
    s_lshl_b32 s64, s62, 18
    s_lshl_b32 s96, s3, 16
    s_add_u32 s64, s64, s96
    s_lshl_b32 s96, s33, 8
    s_add_u32 s64, s64, s96
    v_lshlrev_b32 v{vWD}, 14, v{vG}
    v_lshl_add_u32 v{vWD}, v{vJ}, 4, v{vWD}
    v_add_u32 v{vWD}, s64, v{vWD}
    s_lshl_b32 s62, s33, 5
    s_add_u32 s62, s62, s34
    s_lshl_b32 s62, s62, 10
    s_add_u32 s62, s62, {PL}
    v_and_b32 v{vt7}, 511, v{vtid4}
    s_lshr_b32 s64, s3, 1
    s_lshl_b32 s64, s64, 11
    v_add_u32 v{vt7}, s64, v{vt7}
    v_lshlrev_b32 v{vl4}, 2, v1
    v_mul_u32_u24 v{vSW}, 144, v8
    v_lshl_add_u32 v{vSR}, v{vG}, 4, v{vSW}
    v_lshl_add_u32 v{vSR}, v9, 6, v{vSR}
    v_bfe_u32 v9, v1, 4, 1
    v_lshlrev_b32 v{vOT}, 5, v{vJ}
    v_lshl_add_u32 v{vOT}, v9, 4, v{vOT}
    s_lshl_b32 s64, s3, 9
    v_add_u32 v{vOT}, s64, v{vOT}
    s_lshl_b32 s67, s34, 2
    s_add_u32 s67, s67, s3
    s_lshr_b32 s64, s67, 5
    s_lshl_b32 s64, s64, 10
    s_bfe_u32 s96, s67, 0x20003
    s_lshl_b32 s96, s96, 5
    s_add_u32 s64, s64, s96
    s_and_b32 s96, s67, 1
    s_lshl_b32 s96, s96, 4
    s_add_u32 s64, s64, s96
    s_bfe_u32 s96, s67, 0x20001
    s_lshl_b32 s96, s96, 2
    s_add_u32 s64, s64, s96
    s_lshl_b32 s64, s64, 11
    s_lshl_b32 s96, s33, 8
    s_add_u32 s64, s64, s96
    v_lshlrev_b32 v{vWO}, 11, v{vG}
    v_lshl_add_u32 v{vWO}, v{vJ}, 4, v{vWO}
    v_add_u32 v{vWO}, s64, v{vWO}
    s_lshl_b32 s69, s67, 7
    s_add_u32 s69, s69, {OF}
    v_lshlrev_b32 v{vOT2}, 5, v{vG}
    v_lshl_add_u32 v{vOT2}, v8, 2, v{vOT2}   ; vOF = (8G + (l&7))*4
    v_mul_u32_u24 v{vQR}, 272, v8
    v_lshl_add_u32 v{vQR}, v{vG}, 4, v{vQR}
    v_lshl_add_u32 v{vSW}, v{vG}, 3, v{vSW}
    s_lshl_b32 s96, s3, 5
    v_add_u32 v{vSW}, s96, v{vSW}
    v_bfe_u32 v9, v1, 2, 2
    v_lshl_add_u32 v{vTR}, v{vG}, 3, v9
    v_lshlrev_b32 v{vTR}, 8, v{vTR}
    v_lshlrev_b32 v9, 3, v{vG4}
    s_lshl_b32 s64, s3, 6
    v_add3_u32 v{vTR}, v{vTR}, v9, s64
    v_lshrrev_b32 v{vQW}, 5, v0
    v_and_b32 v9, 31, v0
    v_mul_u32_u24 v{vQW}, 272, v{vQW}
    v_lshl_add_u32 v{vQW}, v9, 3, v{vQW}
    s_lshl_b32 s97, s3, 10
    s_add_u32 s20, s44, s97
    s_lshl_b32 s22, s65, 18
    s_add_u32 s22, s22, {OP}
    s_lshl_b32 s96, s66, 12
    s_add_u32 s23, s22, s96
    s_add_u32 s23, s23, s97
    s_and_b32 s46, s32, 0xffff
    s_mov_b32 s47, 0x03020302
    s_mov_b32 s24, {SCALE}
    s_mov_b32 s25, {LOG2E}
    v_mov_b32 v{vtag0}, s28
    s_mov_b32 s26, 0x07060500
    s_mov_b32 s27, 0x07060501
    s_mov_b32 s66, 0x07060502
    s_mov_b32 s67, 0x07060503
    s_mov_b32 s68, 0x0c04000c
    s_lshl_b32 s21, s3, 11
    v_add_u32 v{vt7+0 if False else XS}, s21, v{vl4}
    """)
    vGR = XS; vOF = vOT2
    PSEL = (26, 27, 66, 67)
    def red8(Rr, vaddr, o):
        a(f"""
    ds_read2st64_b32 {vr(Rr,2)}, v{vaddr} offset0:{o} offset1:{o+1}
    ds_read2st64_b32 {vr(Rr+2,2)}, v{vaddr} offset0:{o+2} offset1:{o+3}
    ds_read2st64_b32 {vr(Rr+4,2)}, v{vaddr} offset0:{o+4} offset1:{o+5}
    ds_read2st64_b32 {vr(Rr+6,2)}, v{vaddr} offset0:{o+6} offset1:{o+7}
    s_waitcnt lgkmcnt(0)
    v_add_f32 v{Rr}, v{Rr}, v{Rr+1}
    v_add_f32 v{Rr+2}, v{Rr+2}, v{Rr+3}
    v_add_f32 v{Rr+4}, v{Rr+4}, v{Rr+5}
    v_add_f32 v{Rr+6}, v{Rr+6}, v{Rr+7}
    v_add_f32 v{Rr}, v{Rr}, v{Rr+2}
    v_add_f32 v{Rr+4}, v{Rr+4}, v{Rr+6}
    v_add_f32 v{Rr}, v{Rr}, v{Rr+4}
    v_add_u32 v{Rr}, v{Rr}, v{vaddP}
    v_bfi_b32 v{Rr}, s70, v{vtagP}, v{Rr}
    """)
    nk = k0 + k1 + k2
    for t in range(8):
        a(f"    s_waitcnt vmcnt({7 - t + nk})")
        srcc = "0" if t == 0 else vr(D1, 4)
        a(f"    v_mfma_f32_16x16x32_bf16 {vr(D1,4)}, {vr(A+4*t,4)}, {vr(WQ+4*t,4)}, {srcc}")
        while nk < 8 and t < 7 and (7 - t) + nk < Dt:
            kv_issue(nk); nk += 1
    kpre = nk
    a(f"""
    s_nop 7
    ds_write_b128 v{vred}, {vr(D1,4)} offset:{L_RED}
    s_waitcnt lgkmcnt(0)
    s_barrier
    s_cmp_lg_u32 s3, 0
    s_cbranch_scc1 L_nored
    """)
    red8(T, vl4, L_RED // 256)
    a(f"""
    buffer_store_dword v{T}, v{vl4}, s[40:43], s45 offen sc1
L_nored:
    """)
    stamp(3)
    a("""
    s_and_b32 s64, s34, 7
    s_cmp_eq_u32 s64, 3
    s_cbranch_scc1 L_light
    """)

    def merge2(X, Y, steps=(8, 4)):
        a(f"""
    v_mov_b32 v{Y+1}, v{Y}
    s_nop 0
    v_permlane32_swap_b32 v{X}, v{X+2}
    v_permlane32_swap_b32 v{X+1}, v{X+3}
    v_permlane32_swap_b32 v{Y+1}, v{Y}
    v_add_f32 v{X}, v{X}, v{X+2}
    v_add_f32 v{X+1}, v{X+1}, v{X+3}
    v_add_f32 v{Y}, v{Y}, v{Y+1}
    s_nop 0
    v_mov_b32 v{Y+1}, v{Y}
    v_permlane16_swap_b32 v{X}, v{X+1}
    s_nop 0
    v_permlane16_swap_b32 v{Y+1}, v{Y}
    v_add_f32 v{X}, v{X}, v{X+1}
    v_add_f32 v{Y}, v{Y}, v{Y+1}
    """)
        for s_ in steps:
            a(f"""
    s_nop 0
    v_add_f32_dpp v{X}, v{X}, v{X} row_ror:{s_} row_mask:0xf bank_mask:0xf
    v_add_f32_dpp v{Y}, v{Y}, v{Y} row_ror:{s_} row_mask:0xf bank_mask:0xf
    """)

    vA, vB, vkeep, vX, vO, vF = XA, XA + 1, XA + 2, XA + 3, XA + 4, XA + 5
    RA = G0; RB = G0 + 8; ac = T + 6
    def red_pre():
        a(f"""
    s_lshl_b32 s54, s65, 6
    v_lshlrev_b32 v{vO}, 1, v1
    v_add_u32 v{vO}, s54, v{vO}
    buffer_load_ushort v{vX}, v{vO}, s[36:39], 0 offen
    v_lshlrev_b32 v{vA}, 10, v7
    v_lshl_add_u32 v{vA}, v8, 4, v{vA}
    v_cmp_ne_u32 vcc, 3, v7
    v_add_u32 v{vB}, 512, v{vA}
    v_lshlrev_b32 v{vF}, 2, v{vG}
    v_cndmask_b32 v{vB}, v{vA}, v{vB}, vcc
    v_cndmask_b32 v{vkeep}, 0, 1.0, vcc
    v_lshl_add_u32 v{vF}, v8, 4, v{vF}
    s_lshl_b32 s96, s3, 8
    v_add_u32 v{vF}, s96, v{vF}
    s_lshl_b32 s55, s33, 15
    s_lshl_b32 s96, s3, 13
    s_add_u32 s55, s55, s96
    s_lshr_b32 s64, s34, 3
    s_lshl_b32 s64, s64, 7
    s_add_u32 s55, s55, s64
    s_add_u32 s54, s55, {PG}
    s_add_u32 s55, s55, {PL if local else PG}
    """)

    def path(ffn, P):
        S = Sched(a)
        def seg_end():
            if warm: a(f"    s_cbranch_execz {P}W_ret")
        def gsprk(n):
            with guard(): S.sprk(n)
        def gwait(name, sub=0):
            with guard(): S.wait(name, sub)
        for t in range(8):
            S.items.append((f"wq{t}", None, 1)); S.nops += 1; S.pos[f"wq{t}"] = S.nops; S.issued += 1
        base = []
        for i in range(8): base.append((f"kv{i}", (lambda i=i: kv_issue(i)), 1))
        def mk_gu(i):
            t, mat = i // 2, i % 2
            def f():
                so = "0"
                if t: a(f"    s_mov_b32 s99, {t*7168}"); so = "s99"
                a(f"    buffer_load_dwordx4 {ar(GW+4*i,4)}, v{vGU2 if mat else vGU}, s[{4+4*mat}:{7+4*mat}], {so} offen{NT}")
            return f
        def mk_wo(k):
            def f():
                so = "0"
                if k: a(f"    s_mov_b32 s99, {k*0x40000}"); so = "s99"
                a(f"    buffer_load_dwordx4 {vr(WO+4*k,4)}, v{vWO}, s[56:59], {so} offen{NT}")
            return f
        def mk_wd(k):
            def f():
                so = "0"
                if k >= 2: a(f"    s_movk_i32 s99, {(k & ~1)*2048}"); so = "s99"
                a(f"    buffer_load_dwordx4 {ar(WD+4*k,4)}, v{vWD}, s[12:15], {so} offen offset:{(k&1)*2048}{NT}")
            return f
        def pollq():
            if oracle_q:
                for k in range(4): a(f"    buffer_load_dwordx4 {vr(G0+4*k,4)}, v6, s[36:39], 0 offen")
                return
            a(f"    buffer_load_dwordx4 {vr(G0,4)}, v6, s[40:43], s20 offen sc1")
            for k in range(1, 4):
                a(f"    s_add_u32 s99, s20, {4096*k}")
                a(f"    buffer_load_dwordx4 {vr(G0+4*k,4)}, v6, s[40:43], s99 offen sc1")
        def pollf():
            a(f"    buffer_load_dword v{G0}, v{vOF}, s[40:43], s69 offen sc1")
        def pollh():
            for k in range(4): a(f"    buffer_load_dword v{HG+k}, v{vPH}, s[40:43], s61 offen offset:{512*k} sc1")
        if ffn:
            for i in range(16): base.append((f"gu{i}", mk_gu(i), 1))
        for k in range(8): base.append((f"wo{k}", mk_wo(k), 1))
        if ffn:
            for k in range(8): base.append((f"wd{k}", mk_wd(k), 1))
        Pl = [] if pure else [(pq, ("pq", pollq, 4)), (ph, ("ph", pollh, 4)), (pf, ("pf", pollf, 1))] if ffn else [(lq, ("pq", pollq, 4)), (98, ("comb", lambda: None, 0)), (99, ("pf", pollf, 1))]
        for i, it in enumerate(base):
            for p, pit in Pl:
                if p == i + 8: S.add(*pit)
            S.add(*it)
        for p, pit in Pl:
            if p >= len(base) + 8: S.add(*pit)
        for i in range(kpre):
            name = S.items[S.issued][0]; assert name == f"kv{i}"
            S.nops += 1; S.pos[name] = S.nops; S.issued += 1
        names = [it[0] for it in S.items]
        S.blocked |= {"ph"} | (set() if (ffn and not pf_late) else {"pf"})
        def retry(lab, fn, check):
            if oracle_q and lab.endswith("rq"): return
            if cnt:
                bit = {"rq": 100, "rf": 1000, "rh": 10000}[lab[-2:]]
                a(f"""
    s_nop 1
    s_cbranch_vccz {lab}_c
    s_add_u32 s94, s94, {bit}
    s_addc_u32 s95, s95, 0
{lab}_c:
    """)
            a(f"""
    s_nop 1
    s_cbranch_vccz {lab}_ok
    s_mov_b32 s71, {spin_max}
{lab}:
    """)
            fn()
            a("    s_waitcnt vmcnt(0)")
            check(True)
            a(f"""
    s_sub_u32 s71, s71, 1
    s_cmp_eq_u32 s71, 0
    s_cbranch_scc1 {lab}_ok
    s_cbranch_vccnz {lab}
{lab}_ok:
    """)
        if pure:
            for name in names:
                if name.startswith("wq"): continue
                S.wait(name); S.topup(name, D if ffn else Dl)
                if name == "kv7": stamp(4)
                if name == "gu7": stamp(5)
                if name == "gu15": stamp(8)
                if name == "wo7": stamp(7)
                if name == "wd7": stamp(10)
            if not ffn:
                stamp(9); store_stamps(); a("    s_endpgm\nLtW_ret:")
                red_pre()
            return
        S.blocked.add("pq"); S.sprk(warm_extra); S.blocked.discard("pq")
        if warm:
            a(f"""
    s_mov_b64 exec, 0
    s_cmp_eq_u32 s3, 0
    s_cbranch_scc1 {P}SEG0
    s_cmp_eq_u32 s3, 1
    s_cbranch_scc1 {P}SEG1
    s_cmp_eq_u32 s3, 2
    s_cbranch_scc1 {P}SEG2
    s_branch {P}SEG3
{P}W_ret:
    s_mov_b64 exec, -1
    """)
        if cnt: a('    s_waitcnt lgkmcnt(0)\n    s_mov_b64 s[94:95], s[72:73]')
        else: stamp(11)
        have_o = False; have_h = False; st_b = [False]
        DD = D if ffn else Dl
        def mf_wo(k):
            srcc = "0" if k == 0 else vr(PD, 4)
            a(f"    v_mfma_f32_16x16x32_bf16 {vr(PD,4)}, {vr(A3+4*k,4)}, {vr(WO+4*k,4)}, {srcc}")
        def mf_wd(k):
            srcc = "0" if k == 0 else vr(DG, 4)
            a(f"    v_mfma_f32_16x16x32_bf16 {vr(DG,4)}, {vr(A2+4*k,4)}, {ar(WD+4*k,4)}, {srcc}")
        for name in names:
            depth = DD
            if dmap and ffn:
                for k_, v_ in dmap:
                    if names.index(name) >= k_: depth = v_
            def std():
                with guard():
                    S.wait(name)
                    if ffn and pf_at == name: S.blocked -= {"pf"}
                    S.topup(name, depth)
            if name.startswith("wq"):
                pass
            elif name.startswith("kv"):
                std()
                if name == "kv7":
                    a("    s_barrier")
                    for s_ in range(2):
                        for c in range(2):
                            for h in range(2):
                                a(f"    ds_read_b64_tr_b16 {vr(VO+(s_*2+c)*4+2*h,2)}, v{vTR} offset:{L_V + s_*8192 + h*1024 + c*32}")
            elif name.startswith("gu"):
                i = int(name[2:]); t, mat = i // 2, i % 2
                with guard(): S.wait(name)
                srcc = "0" if t == 0 else vr(DG + 4 * mat, 4)
                a(f"    v_mfma_f32_16x16x32_bf16 {vr(DG+4*mat,4)}, {vr(A+4*t,4)}, {ar(GW+4*i,4)}, {srcc}")
                with guard(): S.topup(name, depth + (sprg if i == 15 else 0))
                if i == 15:
                    a(f"""
    s_nop 6
{P}SEG3:
    ds_write_b128 v{vred}, {vr(DG,4)} offset:{L_G}
    ds_write_b128 v{vred}, {vr(DG+4,4)} offset:{L_G+2048}
    s_waitcnt lgkmcnt(0)
    """)
                    with guard():
                        a(f"""
    s_barrier
    s_cmp_ge_u32 s3, 2
    s_cbranch_scc1 {P}nogu
    """)
                    red8(T, vGR, L_G // 256)
                    if warm: a(f"    s_cbranch_execz {P}SEG3b")
                    a(f"""
    buffer_store_dword v{T}, v{vl4}, s[40:43], s60 offen sc1
{P}nogu:
    """)
                    stamp(8)
                    S.blocked -= {"ph"}
            elif name == "pq":
                acc = T
                def chk(re):
                    a(f"""
    v_mov_b32 v{acc}, 0
    v_mov_b32 v{acc+1}, 0
    """)
                    for k in range(4):
                        if not re: gwait("pq", 3 - k)
                        for e in range(4): a(f"    v_msad_u8 v{acc+(e&1)}, v{G0+4*k+e}, s{28+e}, v{acc+(e&1)}")
                    a(f"""
    v_or_b32 v{acc}, v{acc}, v{acc+1}
    v_cmp_ne_u32 vcc, 0, v{acc}
    """)
                while "pq" not in S.pos: S.issue()
                a(f"{P}SEG0:")
                chk(False)
                retry(f"{P}rq", pollq, chk)
                with guard(): stamp(4)
                QS = T + 4
                a(f"""
    v_pk_add_f32 {vr(QS,2)}, {vr(G0,2)}, {vr(G0+4,2)}
    v_pk_add_f32 {vr(QS+2,2)}, {vr(G0+2,2)}, {vr(G0+6,2)}
    v_pk_add_f32 {vr(QS+4,2)}, {vr(G0+8,2)}, {vr(G0+12,2)}
    v_pk_add_f32 {vr(QS+6,2)}, {vr(G0+10,2)}, {vr(G0+14,2)}
    v_pk_add_f32 {vr(QS,2)}, {vr(QS,2)}, {vr(QS+4,2)}
    v_pk_add_f32 {vr(QS+2,2)}, {vr(QS+2,2)}, {vr(QS+6,2)}
    v_cvt_pk_bf16_f32 v{QS}, v{QS}, v{QS+1}
    v_cvt_pk_bf16_f32 v{QS+1}, v{QS+2}, v{QS+3}
    ds_write_b64 v{vQW}, {vr(QS,2)} offset:{L_Q}
    """)
                with guard(): S.topup(name, depth)
                a("    s_waitcnt lgkmcnt(0)")
                barrier()
                a(f"""
    ds_read_b128 {vr(QB,4)}, v{vQR} offset:{L_Q}
    ds_read_b128 {vr(QB+4,4)}, v{vQR} offset:{L_Q+64}
    ds_read_b128 {vr(QB+8,4)}, v{vQR} offset:{L_Q+128}
    ds_read_b128 {vr(QB+12,4)}, v{vQR} offset:{L_Q+192}
    """)
                gsprk(sprinkle[0])
                for t in range(4):
                    srcc = "0" if t == 0 else vr(D1, 4)
                    a(f"    s_waitcnt lgkmcnt({3-t})")
                    a(f"    v_mfma_f32_16x16x32_bf16 {vr(D1,4)}, {vr(KK+4*t,4)}, {vr(QB+4*t,4)}, {srcc}")
                Sx = T + 4
                a(f"""
    s_nop 7
    v_cvt_pk_bf16_f32 v{T}, v{D1}, v{D1+1}
    v_cvt_pk_bf16_f32 v{T+1}, v{D1+2}, v{D1+3}
    v_lshlrev_b32 v{Sx}, 16, v{T}
    v_and_b32 v{Sx+1}, 0xffff0000, v{T}
    v_lshlrev_b32 v{Sx+2}, 16, v{T+1}
    v_and_b32 v{Sx+3}, 0xffff0000, v{T+1}
    v_mul_f32 v{Sx}, s24, v{Sx}
    v_mul_f32 v{Sx+1}, s24, v{Sx+1}
    v_mul_f32 v{Sx+2}, s24, v{Sx+2}
    v_mul_f32 v{Sx+3}, s24, v{Sx+3}
    v_cvt_pk_bf16_f32 v{T}, v{Sx}, v{Sx+1}
    v_cvt_pk_bf16_f32 v{T+1}, v{Sx+2}, v{Sx+3}
    ds_write_b64 v{vSW}, {vr(T,2)} offset:{L_S}
    s_waitcnt lgkmcnt(0)
    """)
                seg_end()
                mx, tmp, lsum, wv, rl = T + 12, T + 13, T + 14, T + 15, T + 16
                Pp = T + 20
                a(f"""
    s_barrier
{P}SEG1:
    ds_read_b128 {vr(T,4)}, v{vSR} offset:{L_S}
    """)
                gsprk(sprinkle[1])
                a("    s_waitcnt lgkmcnt(0)")
                for k in range(4):
                    a(f"""
    v_lshlrev_b32 v{Sx+2*k}, 16, v{T+k}
    v_and_b32 v{Sx+2*k+1}, 0xffff0000, v{T+k}
    """)
                a(f"""
    v_max3_f32 v{mx}, v{Sx}, v{Sx+1}, v{Sx+2}
    v_max3_f32 v{tmp}, v{Sx+3}, v{Sx+4}, v{Sx+5}
    v_max3_f32 v{mx}, v{Sx+6}, v{Sx+7}, v{mx}
    v_max_f32 v{mx}, v{mx}, v{tmp}
    """)
                allreduce1(mx, tmp, op="v_max_f32", steps=(8,))
                a(f"    v_mul_f32 v{mx}, s25, v{mx}")
                for k in range(8): a(f"    v_fma_f32 v{Sx+k}, v{Sx+k}, s25, -v{mx}")
                for k in range(8): a(f"    v_exp_f32 v{Sx+k}, v{Sx+k}")
                for k in range(4): a(f"    v_cvt_pk_bf16_f32 v{Pp+k}, v{Sx+2*k}, v{Sx+2*k+1}")
                a(f"""
    v_pk_add_f32 {vr(T,2)}, {vr(Sx,2)}, {vr(Sx+2,2)}
    v_pk_add_f32 {vr(T+2,2)}, {vr(Sx+4,2)}, {vr(Sx+6,2)}
    """)
                for sc in (0, 2, 1, 3):
                    a(f"    v_mfma_f32_16x16x32_bf16 {vr(PD+4*sc,4)}, {vr(VO+4*sc,4)}, {vr(Pp,4)}, 0")
                gsprk(sprinkle[2])
                a(f"""
    v_pk_add_f32 {vr(T,2)}, {vr(T,2)}, {vr(T+2,2)}
    v_add_f32 v{lsum}, v{T}, v{T+1}
    """)
                allreduce1(lsum, tmp, steps=(8,))
                X = D1
                a(f"""
    v_log_f32 v{wv}, v{lsum}
    v_rcp_f32 v{rl}, v{lsum}
    """)
                for e in range(4): a(f"    v_add_f32_dpp v{X+e}, v{PD+8+e}, v{PD+e} row_ror:8 row_mask:0xf bank_mask:0x3")
                a(f"    v_add_f32 v{wv}, v{wv}, v{mx}")
                for e in range(4): a(f"    v_add_f32_dpp v{X+e}, v{PD+4+e}, v{PD+12+e} row_ror:8 row_mask:0xf bank_mask:0xc")
                a(f"""
    v_add_u32 v{wv}, 0x80, v{wv}
    v_bfi_b32 v{wv}, s70, v{vtag0}, v{wv}
    """)
                for e in range(4): a(f"    v_mul_f32 v{X+e}, v{X+e}, v{rl}")
                for e in range(4): a(f"    v_perm_b32 v{X+e}, v{X+e}, v{wv}, s{PSEL[e]}")
                seg_end()
                a(f"    buffer_store_dwordx4 {vr(X,4)}, v6, s[40:43], s23 offen sc1")
                S.extra(1)
                stamp(5)
                S.sprk(sprinkle[3])
            elif name == "comb":
                a(f"""
    v_lshlrev_b32 v{vPO}, 12, v7
    v_lshl_add_u32 v{vPO}, v8, 4, v{vPO}
    s_lshr_b32 s64, s34, 3
    s_lshl_b32 s65, s33, 2
    s_add_u32 s65, s65, s64           ; lam
    s_lshl_b32 s64, s65, 2
    s_add_u32 s64, s64, s3
    s_lshl_b32 s60, s64, 7
    s_add_u32 s60, s60, {OF}
    s_and_b32 s64, s64, 31
    s_lshl_b32 s64, s64, 7
    s_add_u32 s22, s22, s64
    s_mov_b32 s71, {spin_max}
    s_mov_b32 s52, 0x01010101
    s_mov_b32 s53, 0x01010101
    """)
                MS = [4, 6, 8, 10, 12, 14, 48, 50]
                for t in range(8): a(f"    s_mov_b64 s[{MS[t]}:{MS[t]+1}], -1")
                red_pre()
                a(f"""
    s_waitcnt vmcnt(0)
    {f"s_sleep {lo_sleep}" if lo_sleep else ""}
C_poll:
    """)
                for t in range(8):
                    a(f"""
    s_mov_b64 exec, s[{MS[t]}:{MS[t]+1}]
    s_cbranch_execz C_i{t}
    s_add_u32 s99, s22, {t*32768}
    buffer_load_dwordx4 {vr(OG+4*t,4)}, v{vPO}, s[40:43], s99 offen sc1
C_i{t}:
    """)
                a("    s_mov_b64 exec, -1\n    s_waitcnt vmcnt(0)")
                a(f"{P}SEG2:")
                for t in range(8):
                    a(f"""
    v_msad_u8 v{T+t}, v{OG+4*t}, s28, 0
    v_perm_b32 v{FF+t}, v{OG+4*t+2}, v{OG+4*t+1}, s68
    v_lshl_or_b32 v{FF+t}, v{OG+4*t+3}, 24, v{FF+t}
    """)
                a(f"""
    v_or3_b32 v{T+8}, v{T}, v{T+1}, v{T+2}
    v_or3_b32 v{T+9}, v{T+3}, v{T+4}, v{T+5}
    v_or3_b32 v{T+8}, v{T+6}, v{T+7}, v{T+8}
    v_or_b32 v{T+8}, v{T+8}, v{T+9}
    v_cmp_ne_u32 vcc, 0, v{T+8}
    v_max3_f32 v{T+10}, v{FF}, v{FF+1}, v{FF+2}
    v_max3_f32 v{T+11}, v{FF+3}, v{FF+4}, v{FF+5}
    s_cbranch_vccz C_ok
    """)
                for t in range(8): a(f"    v_cmp_ne_u32 s[{MS[t]}:{MS[t]+1}], 0, v{T+t}")
                a("    s_nop 1")
                for t in range(8):
                    m = f"s[{MS[t]}:{MS[t]+1}]"
                    if masked:
                        a(f"""
    s_lshr_b64 s[96:97], {m}, 4
    s_or_b64 {m}, {m}, s[96:97]
    s_lshr_b64 s[96:97], {m}, 2
    s_or_b64 {m}, {m}, s[96:97]
    s_lshr_b64 s[96:97], {m}, 1
    s_or_b64 {m}, {m}, s[96:97]
    s_and_b64 {m}, {m}, s[52:53]
    s_mul_i32 s{MS[t]}, s{MS[t]}, 0xff
    s_mul_i32 s{MS[t]+1}, s{MS[t]+1}, 0xff
    """)
                    else:
                        a(f"""
    s_cmp_lg_u64 {m}, 0
    s_cselect_b64 {m}, -1, 0
    """)
                if c_bet: a(f"    s_sleep {c_bet}")
                if cnt: a("    s_add_u32 s94, s94, 1000\n    s_addc_u32 s95, s95, 0")
                a(f"""
    s_sub_u32 s71, s71, 1
    s_cmp_lg_u32 s71, 0
    s_cbranch_scc1 C_poll
C_ok:
    """)
                with guard(): stamp(6)
                M_ = T + 10
                a(f"""
    v_max3_f32 v{M_}, v{FF+6}, v{FF+7}, v{M_}
    v_max_f32 v{M_}, v{M_}, v{T+11}
    """)
                allreduce1(M_, T + 11, op="v_max_f32", steps=(8,))
                for t in range(8): a(f"    v_sub_f32 v{FF+t}, v{FF+t}, v{M_}")
                for t in range(8): a(f"    v_exp_f32 v{FF+t}, v{FF+t}")
                for e in range(4): a(f"    v_mul_f32 v{OG+e}, v{OG+e}, v{FF}")
                for e in range(4): a(f"    v_mul_f32 v{OG+4+e}, v{OG+4+e}, v{FF+1}")
                for t in range(2, 8):
                    for e in range(4): a(f"    v_fmac_f32 v{OG+4*(t&1)+e}, v{OG+4*t+e}, v{FF+t}")
                L_ = T + 6
                a(f"""
    v_pk_add_f32 {vr(FF,2)}, {vr(FF,2)}, {vr(FF+2,2)}
    v_pk_add_f32 {vr(FF+4,2)}, {vr(FF+4,2)}, {vr(FF+6,2)}
    v_pk_add_f32 {vr(OG,2)}, {vr(OG,2)}, {vr(OG+4,2)}
    v_pk_add_f32 {vr(OG+2,2)}, {vr(OG+2,2)}, {vr(OG+6,2)}
    v_pk_add_f32 {vr(FF,2)}, {vr(FF,2)}, {vr(FF+4,2)}
    v_add_f32 v{L_}, v{FF}, v{FF+1}
    """)
                merge2(OG, L_, steps=(8,))
                a(f"""
    v_rcp_f32 v{L_}, v{L_}
    s_nop 0
    v_mul_f32 v{OG}, v{OG}, v{L_}
    v_cvt_pk_bf16_f32 v{OG}, v{OG}, v{OG}
    v_and_b32 v{OG}, 0xffff0000, v{OG}
    v_or_b32 v{OG}, s46, v{OG}
    """)
                with guard():
                    a(f"    buffer_store_dword v{OG}, v{vOF}, s[40:43], s60 offen sc1")
                    stamp(8)
                    if lf_sleep: a(f"    s_sleep {lf_sleep}")
                S.extra(1)
                S.blocked -= {"pf"}
            elif name == "pf":
                def chk(re):
                    if not re: gwait("pf")
                    a(f"""
    v_msad_u8 v{T+3}, v{G0}, s46, 0
    v_cmp_ne_u32 vcc, 0, v{T+3}
    """)
                with guard():
                    if ffn and hf_sleep: a(f"    s_sleep {hf_sleep}")
                    while "pf" not in S.pos: S.issue()
                if ffn: a(f"{P}SEG2:")
                chk(False)
                retry(f"{P}rf", pollf, chk)
                with guard():
                    stamp(7); S.topup(name, depth + 2)
                a(f"""
    v_perm_b32 v{G0}, v{G0}, v{G0}, s47
    s_nop 1
    """)
                have_o = True
                ready = [k for k in range(8) if names.index(f"wo{k}") < names.index("pf")]
                for u in range(8):
                    for m_ in range(4):
                        a(f"    v_and_b32_dpp v{A3+4*u+m_}, v{G0}, v{2+m_} row_newbcast:{u} row_mask:0xf bank_mask:0xf")
                    if u >= 1 and (u - 1) in ready: mf_wo(u - 1)
                a("    s_nop 1")
                if 7 in ready: mf_wo(7)
            elif name.startswith("wo"):
                std()
                if have_o: mf_wo(int(name[2:]))
            elif name == "ph":
                def chk(re):
                    if not re: gwait("ph")
                    a(f"""
    v_msad_u8 v{T+8}, v{HG}, v{vtagP}, 0
    v_msad_u8 v{T+9}, v{HG+1}, v{vtagP}, 0
    v_msad_u8 v{T+8}, v{HG+2}, v{vtagP}, v{T+8}
    v_msad_u8 v{T+9}, v{HG+3}, v{vtagP}, v{T+9}
    v_or_b32 v{T+8}, v{T+8}, v{T+9}
    v_cmp_ne_u32 vcc, 0, v{T+8}
    """)
                while "ph" not in S.pos: S.issue()
                a(f"{P}SEG3b:")
                chk(False)
                retry(f"{P}rh", pollh, chk)
                with guard():
                    stamp(9)
                    if pf_at == "ph": S.blocked -= {"pf"}
                    S.topup(name, depth + 4)
                G_, U_ = HG, HG + 2
                a(f"""
    v_add_f32 v{G_}, v{HG}, v{HG+1}
    v_add_f32 v{U_}, v{HG+2}, v{HG+3}
    s_nop 0
    v_add_f32_dpp v{G_}, v{G_}, v{G_} row_ror:8 row_mask:0xf bank_mask:0xf
    v_add_f32_dpp v{U_}, v{U_}, v{U_} row_ror:8 row_mask:0xf bank_mask:0xf
    """)
                rbf16(G_, G_)
                a(f"""
    v_mul_f32 v{T+4}, {0x80000000 | LOG2E}, v{G_}
    v_exp_f32 v{T+4}, v{T+4}
    """)
                rbf16(U_, U_)
                a(f"""
    v_add_f32 v{T+4}, 1.0, v{T+4}
    v_rcp_f32 v{T+4}, v{T+4}
    s_nop 0
    v_mul_f32 v{G_}, v{G_}, v{T+4}
    """)
                rbf16(G_, G_)
                a(f"""
    v_mul_f32 v{G_}, v{G_}, v{U_}
    v_cvt_pk_bf16_f32 v{G_}, v{G_}, v{G_}
    s_nop 1
    """)
                have_h = True
                ready = [k for k in range(8) if names.index(f"wd{k}") < names.index("ph")]
                for u in range(8):
                    for m_ in range(4):
                        a(f"    v_and_b32_dpp v{A2+4*u+m_}, v{G_}, v{2+m_} row_newbcast:{u} row_mask:0xf bank_mask:0xf")
                    if u >= 1 and (u - 1) in ready: mf_wd(u - 1)
                a("    s_nop 1")
                if 7 in ready: mf_wd(7)
                seg_end()
            elif name.startswith("wd"):
                std()
                if have_h: mf_wd(int(name[2:]))
            if ffn and name == max(("ph", "wd7"), key=names.index) and name != names[-1]:
                a(f"""
    s_nop 7
    ds_write_b128 v{vOT}, {vr(DG,4)} offset:{L_OUT+2048}
    """)
                st_b[0] = True
        o1 = L_OUT // 256
        a(f"""
    s_add_u32 s99, s62, {PG-PL}
    s_nop 6
    ds_write_b128 v{vOT}, {vr(PD,4)} offset:{L_OUT}
    """)
        if ffn and not st_b[0]: a(f"    ds_write_b128 v{vOT}, {vr(DG,4)} offset:{L_OUT+2048}")
        a("    s_waitcnt lgkmcnt(0)")
        barrier()
        a(f"""
    ds_read2st64_b32 {vr(T,2)}, v{vt7} offset0:{o1} offset1:{o1+2}
    ds_read2st64_b32 {vr(T+2,2)}, v{vt7} offset0:{o1+4} offset1:{o1+6}
    s_cmp_ge_u32 s3, 2
    s_waitcnt lgkmcnt(0)
    v_add_f32 v{T}, v{T}, v{T+1}
    v_add_f32 v{T+2}, v{T+2}, v{T+3}
    v_add_f32 v{T}, v{T}, v{T+2}
    v_add_u32 v{T}, v{T}, v{vaddP}
    v_bfi_b32 v{T}, s70, v{vtagP}, v{T}
    """)
        seg_end()
        if not ffn: a("    s_cbranch_scc1 Lt_nopub")
        a(f"""
    buffer_store_dword v{T}, v{vtid4}, s[40:43], s62 offen
    buffer_store_dword v{T}, v{vtid4}, s[40:43], s99 offen sc1
    """)
        if not ffn: a("Lt_nopub:")
        stamp(10)

    path(True, "H")
    store_stamps()
    a("    s_endpgm")
    a("L_light:")
    path(False, "Lt")
    a(f"""
LtSEG3:
    s_mov_b32 s71, 0
R_p:
    s_add_u32 s71, s71, 1
    s_and_b32 s96, s71, {gper}
    s_cmp_eq_u32 s96, 0
    s_cselect_b32 s96, s54, s55
    """)
    with guard():
        a(f"""
    buffer_load_dwordx4 {vr(RA,4)}, v{vA}, s[40:43], s96 offen sc1
    buffer_load_dwordx4 {vr(RB,4)}, v{vB}, s[40:43], s96 offen sc1
    s_waitcnt vmcnt(0)
    """)
    a(f"""
    v_msad_u8 v{ac}, v{RA}, s28, 0
    v_msad_u8 v{ac+1}, v{RA+1}, s29, 0
    v_msad_u8 v{ac}, v{RA+2}, s30, v{ac}
    v_msad_u8 v{ac+1}, v{RA+3}, s31, v{ac+1}
    v_msad_u8 v{ac}, v{RB}, s28, v{ac}
    v_msad_u8 v{ac+1}, v{RB+1}, s29, v{ac+1}
    v_msad_u8 v{ac}, v{RB+2}, s30, v{ac}
    v_msad_u8 v{ac+1}, v{RB+3}, s31, v{ac+1}
    v_or_b32 v{ac}, v{ac}, v{ac+1}
    v_cmp_ne_u32 vcc, 0, v{ac}
    s_cmp_eq_u32 s71, {spin_max}
    s_cbranch_scc1 R_ok
    s_cbranch_vccnz R_p
R_ok:
    """)
    for e in range(4): a(f"    v_mul_f32 v{RB+e}, v{RB+e}, v{vkeep}")
    a(f"""
    v_permlane32_swap_b32 v{RA}, v{RA+2}
    v_permlane32_swap_b32 v{RA+1}, v{RA+3}
    v_permlane32_swap_b32 v{RB}, v{RB+2}
    v_permlane32_swap_b32 v{RB+1}, v{RB+3}
    v_add_f32 v{RA}, v{RA}, v{RA+2}
    v_add_f32 v{RA+1}, v{RA+1}, v{RA+3}
    v_add_f32 v{RB}, v{RB}, v{RB+2}
    v_add_f32 v{RB+1}, v{RB+1}, v{RB+3}
    v_lshlrev_b32 v{vX}, 16, v{vX}
    v_permlane16_swap_b32 v{RA}, v{RA+1}
    v_permlane16_swap_b32 v{RB}, v{RB+1}
    v_add_f32 v{RA}, v{RA}, v{RA+1}
    v_add_f32 v{RB}, v{RB}, v{RB+1}
    s_nop 0
    v_add_f32_dpp v{RA}, v{RA}, v{RA} row_ror:8 row_mask:0xf bank_mask:0xf
    v_add_f32_dpp v{RB}, v{RB}, v{RB} row_ror:8 row_mask:0xf bank_mask:0xf
    ds_write_b32 v{vF}, v{RA} offset:{L_FIN}
    ds_write_b32 v{vF}, v{RB} offset:{L_FIN+128}
    s_waitcnt lgkmcnt(0)
    """)
    barrier()
    a(f"""
    ds_read2st64_b32 {vr(RA,2)}, v{vtid4} offset0:{L_FIN//256} offset1:{L_FIN//256+1}
    ds_read2st64_b32 {vr(RA+2,2)}, v{vtid4} offset0:{L_FIN//256+2} offset1:{L_FIN//256+3}
    s_waitcnt lgkmcnt(0)
    v_add_f32 v{RA}, v{RA}, v{RA+1}
    v_add_f32 v{RA+2}, v{RA+2}, v{RA+3}
    v_add_f32 v{RA}, v{RA}, v{RA+2}
    """)
    rbf16(RA, RA)
    a(f"""
    v_mov_b32 v{RB}, v{RA}
    v_add_f32 v{RA+1}, v{RA}, v{vX}
    s_nop 0
    v_permlane32_swap_b32 v{RA}, v{RB}
    """)
    rbf16(RA + 1, RA + 1)
    a(f"""
    v_add_f32 v{RA}, v{RA+1}, v{RB}
    v_cvt_pk_bf16_f32 v{RA}, v{RA}, v{RA}
    """)
    if warm: a("    s_cbranch_execz LtW_ret")
    a(f"""
    s_cmp_lg_u32 s3, 0
    s_cbranch_scc1 R_done
    s_mov_b32 exec_hi, 0
    buffer_store_short v{RA}, v{vO}, s[16:19], 0 offen
    s_cmp_lg_u32 s65, 0
    s_cbranch_scc1 R_done
    v_mov_b32 v{RB}, s35
    v_mov_b32 v{RB+1}, 0
    s_mov_b64 exec, 1
    buffer_store_dword v{RB}, v{RB+1}, s[40:43], 0 offen offset:{EPOCH}
R_done:
    s_mov_b64 exec, -1
    """)
    stamp(9)
    store_stamps()
    a("""
L_end:
    s_endpgm
L_code_end:
    """)
    print(out, "vgprs", nv, "agprs", nagpr, "lds", LDS_BYTES)
    open(out, "w").write(wrap(a.text(), 256, 256, LDS_BYTES, vgpr=accum + nagpr, accum=accum))

if __name__ == "__main__":
    gen("k11.s", stamps=True)
    gen("k11_ns.s", stamps=False)
```

```python
import sys
from asmgen import *

STAMP_OFF = 128 << 20
NST = 12
EPOCH = 0
QP = 0x1000
OP = 0x40000
GU = 0x180000
OF = 0x20000
PL = 0x200000
PG = 0x240000
WS_SIZE = 256 << 20

L_RED = 0
L_G = 2048
L_TRASH = 6144
L_Q = 11264
L_S = 13440
L_OUT = 14848
L_OUT2 = 18944
L_FIN = 20992
L_V = 23040
LDS_BYTES = L_V + 16384

LOG2E = 0x3FB8AA3B
SCALE = 0x3DB504F3

class R:
    def __init__(self, start): self.n = start
    def a(self, k=1, al=1):
        self.n = (self.n + al - 1) // al * al
        r = self.n; self.n += k
        return r
def vr(b, n): return f"v[{b}:{b+n-1}]"
def ar(b, n): return f"a[{b}:{b+n-1}]"

class Sched:
    def __init__(self, a): self.a = a; self.items = []; self.issued = 0; self.nops = 0; self.pos = {}; self.blocked = set()
    def add(self, name, fn, n=1): self.items.append((name, fn, n))
    def issue(self):
        name, fn, n = self.items[self.issued]
        fn(); self.nops += n; self.pos[name] = self.nops; self.issued += 1
    def can(self): return self.issued < len(self.items) and self.items[self.issued][0] not in self.blocked
    def extra(self, n=1): self.nops += n
    def wait(self, name, sub=0):
        while name not in self.pos:
            assert self.can(), (name, self.items[self.issued][0])
            self.issue()
        cnt = self.nops - self.pos[name] + sub
        assert cnt <= 63
        self.a(f"    s_waitcnt vmcnt({cnt})")
    def index(self, name): return [i for i, it in enumerate(self.items) if it[0] == name][0]
    def topup(self, name, depth):
        i = self.index(name)
        while self.can() and self.issued - (i + 1) < depth: self.issue()
    def sprk(self, n):
        for _ in range(n):
            if self.can(): self.issue()

def gen(out, stamps=True, nt=True, D=5, Dl=5, pq=23, pf=48, ph=45, lq=22, lo_sleep=48, spin_max=1 << 20, warm=True,
        k0=2, k1=0, k2=2, Dt=7, sprinkle=(2, 2, 1, 1), spr3=3, dmap=None, warm_extra=3, cnt=False, gper=7, local=True, sprg=1, mixU=True, oracle_q=False, ph_after_o=False, tail_step=0, wq_flags=" nt", nobar=False, kvs=False, lf_sleep=12, masked=True, c_bet=0, pf_late=False, hf_sleep=0, pure=False, pf_at=None, trlate=False, red1=True, lazyg=True):
    a = Asm()
    NT = " nt" if nt else ""
    def stamp(i):
        if stamps: a(f"    s_memrealtime s[{72+2*i}:{73+2*i}]")
    def store_stamps():
        if not stamps: return
        lab = a.label("nost")
        a(f"""
    s_waitcnt lgkmcnt(0)
    s_cmp_lg_u32 s3, 0
    s_cbranch_scc1 {lab}
    s_mul_i32 s64, s2, {NST*8}
    s_add_u32 s64, s64, {STAMP_OFF}
    v_mov_b32 v20, 0
    s_mov_b64 exec, 1
    """)
        for i in range(NST):
            a(f"""
    v_mov_b32 v22, s{72+2*i}
    v_mov_b32 v23, s{73+2*i}
    buffer_store_dwordx2 v[22:23], v20, s[40:43], s64 offen offset:{8*i}
    s_nop 1
    """)
        a(f"{lab}:")
    def srd(base, lo, size):
        a(f"""
    s_mov_b32 s{base}, s{lo}
    s_mov_b32 s{base+1}, s{lo+1}
    s_mov_b32 s{base+2}, {size}
    s_mov_b32 s{base+3}, 0x20000
    """)
    class guard:
        def __enter__(self):
            self.l = a.label("G"); self.n = len(a.lines)
            if warm: a(f"    s_cbranch_execz {self.l}")
        def __exit__(self, *x):
            if warm:
                if len(a.lines) == self.n + 1: a.lines.pop()
                else: a(f"{self.l}:")
    def barrier():
        with guard(): a("    s_barrier")

    r = R(10)
    (vtagP, vaddP, vOT, vtid4, vPF, vG4, vWQ, vK, vWO, vPO, vQW, vQR, vSW, vSR, vTR, vred, vtag0, vGU, vGU2, vWD, vPH, vJ, vG,
     vOT2, vl4, vt7, vV) = [r.a() for _ in range(27)]
    XA = r.a(8, 4); XS = r.a(4, 4); T = r.a(24, 4); A = r.a(32, 4); QB = r.a(16, 4)
    D1 = r.a(4, 4); PD = r.a(16, 4); DG = r.a(8, 4); WQ = r.a(32, 4); KK = r.a(16, 4); VO = r.a(16, 4); G0 = r.a(16, 4); HG = r.a(4, 4)
    nv = r.n
    assert nv <= 256, nv
    accum = (nv + 3) // 4 * 4
    GW = 0; WD = 64; nagpr = 96
    A3 = KK; A2 = A; WO = WQ; OG = A; FF = QB
    assert VO == KK + 16

    a(f"""
    s_cmp_ge_u32 s2, 256
    s_cbranch_scc1 L_end
    s_load_dwordx16 s[4:19], s[0:1], 0
    s_load_dwordx8 s[20:27], s[0:1], 64
    """)
    if stamps:
        for i in range(1, NST): a(f"    s_mov_b64 s[{72+2*i}:{73+2*i}], 0")
    stamp(0)
    a(f"""
    v_lshrrev_b32 v6, 6, v0
    v_and_b32 v1, 63, v0
    s_and_b32 s33, s2, 7            ; xcd
    v_readfirstlane_b32 s3, v6
    s_lshr_b32 s34, s2, 3           ; idx
    s_getpc_b64 s[96:97]
L_pc:
    s_lshl_b32 s64, s34, 2
    s_add_u32 s64, s64, s3
    s_lshl_b32 s64, s64, 7
    s_min_u32 s64, s64, L_code_end - L_pc - 4
    v_mov_b32 v9, s64
    global_load_dword v{vPF}, v9, s[96:97]
    v_lshlrev_b32 v6, 4, v1          ; lane*16
    v_lshrrev_b32 v7, 3, v1          ; l>>3
    v_and_b32 v8, 7, v1              ; l&7
    s_lshr_b32 s65, s33, 1           ; g
    s_and_b32 s66, s33, 1
    s_lshl_b32 s66, s66, 5
    s_add_u32 s66, s66, s34          ; m
    s_and_b32 s67, s66, 15           ; cb
    s_lshr_b32 s68, s66, 4           ; rq
    s_lshl_b32 s69, s68, 8
    s_lshl_b32 s64, s3, 6
    s_add_u32 s69, s69, s64          ; R0
    s_lshl_b32 s97, s69, 1
    v_lshlrev_b32 v9, 4, v7
    s_lshl_b32 s64, s69, 13
    s_lshl_b32 s96, s65, 11
    s_add_u32 s64, s64, s96
    s_lshl_b32 s96, s67, 7
    s_add_u32 s64, s64, s96
    v_lshlrev_b32 v{vWQ}, 16, v7
    v_lshl_add_u32 v{vWQ}, v8, 4, v{vWQ}
    v_add_u32 v{vWQ}, s64, v{vWQ}
    v_lshrrev_b32 v{vG}, 4, v1
    v_and_b32 v{vJ}, 15, v1
    s_mov_b32 s38, 2048
    s_mov_b32 s39, 0x20000
    s_mov_b32 s46, {8<<20}
    s_mov_b32 s47, 0x20000
    s_mov_b32 s64, 0
    s_waitcnt lgkmcnt(0)
    s_mov_b32 s36, s4
    s_mov_b32 s37, s5
    buffer_load_dwordx4 {vr(XA,4)}, v6, s[36:39], 0 offen
    buffer_load_dwordx4 {vr(XA+4,4)}, v6, s[36:39], 0 offen offset:1024
    buffer_load_dwordx4 {vr(XS,4)}, v9, s[36:39], s97 offen
    s_load_dword s28, s[26:27], {EPOCH}
    s_mov_b32 s44, s10
    s_mov_b32 s45, s11
    {"" if nobar else "s_barrier"}
    """)
    for t in range(8):
        a(f"    buffer_load_dwordx4 {vr(WQ+4*t,4)}, v{vWQ}, s[44:47], s64 offen{wq_flags}")
        if t < 7: a(f"    s_add_u32 s64, s64, 8192")
    a(f"""
    v_bfe_u32 v{T}, v0, 1, 2
    v_and_b32 v{T+1}, 1, v0
    v_lshlrev_b32 v{T+1}, 4, v{T+1}
    v_mov_b32 v9, 0xffff
    v_lshlrev_b32 v9, v{T+1}, v9
    v_cmp_eq_u32 vcc, 0, v{T}
    v_cmp_eq_u32 s[96:97], 1, v{T}
    v_cmp_eq_u32 s[98:99], 2, v{T}
    v_cmp_eq_u32 s[100:101], 3, v{T}
    v_cndmask_b32 v2, 0, v9, vcc
    v_cndmask_b32 v3, 0, v9, s[96:97]
    v_cndmask_b32 v4, 0, v9, s[98:99]
    v_cndmask_b32 v5, 0, v9, s[100:101]
    s_lshl_b32 s63, s65, 23
    s_lshl_b32 s96, s66, {8 if kvs else 14}
    s_add_u32 s63, s63, s96
    s_lshl_b32 s96, s3, {18 if kvs else 12}
    s_add_u32 s63, s63, s96
    s_add_u32 s63, s63, {28672*256}
    s_lshl_b32 s96, s3, 12
    s_add_u32 s96, s96, {L_V}
    s_mov_b32 m0, s96
    v_lshlrev_b32 v{vK}, {14 if kvs else 8}, v{vJ}
    v_lshl_add_u32 v{vK}, v{vG}, 4, v{vK}
    v_lshlrev_b32 v{vV}, {14 if kvs else 8}, v{vG}
    v_lshl_add_u32 v{vV}, v{vJ}, 4, v{vV}
    """)
    srd(48, 6, 32 << 20)
    srd(52, 8, 32 << 20)
    srd(40, 26, WS_SIZE)

    def allreduce2(x, y, t1, t2):
        for s_ in (8, 4, 2, 1):
            a(f"""
    s_nop 0
    v_add_f32_dpp v{x}, v{x}, v{x} row_ror:{s_} row_mask:0xf bank_mask:0xf
    v_add_f32_dpp v{y}, v{y}, v{y} row_ror:{s_} row_mask:0xf bank_mask:0xf
    """)
        for sw in ("v_permlane16_swap_b32", "v_permlane32_swap_b32"):
            a(f"""
    v_mov_b32 v{t1}, v{x}
    v_mov_b32 v{t2}, v{y}
    s_nop 0
    {sw} v{t1}, v{x}
    {sw} v{t2}, v{y}
    v_add_f32 v{x}, v{x}, v{t1}
    v_add_f32 v{y}, v{y}, v{t2}
    """)
    def allreduce1(x, t1, op="v_add_f32", steps=(8, 4, 2, 1)):
        for s_ in steps:
            a(f"""
    s_nop 1
    {op}_dpp v{x}, v{x}, v{x} row_ror:{s_} row_mask:0xf bank_mask:0xf
    """)
        for sw in ("v_permlane16_swap_b32", "v_permlane32_swap_b32"):
            a(f"""
    v_mov_b32 v{t1}, v{x}
    s_nop 1
    {sw} v{t1}, v{x}
    {op} v{x}, v{x}, v{t1}
    """)
    def rbf16(d, s_):
        a(f"""
    v_cvt_pk_bf16_f32 v{d}, v{s_}, v{s_}
    v_and_b32 v{d}, 0xffff0000, v{d}
    """)
    a(f"""
    v_lshrrev_b32 v{vred}, 2, v1
    v_xor_b32 v{vred}, v{vred}, v1
    v_and_b32 v{vred}, 8, v{vred}
    v_cmp_eq_u32 vcc, 0, v{vred}
    v_lshlrev_b32 v{vred}, 5, v8
    v_bfe_u32 v9, v1, 4, 1
    v_lshl_add_u32 v{vred}, v9, 4, v{vred}
    v_lshrrev_b32 v9, 5, v1
    v_lshl_add_u32 v{vred}, v9, 8, v{vred}
    s_lshl_b32 s64, s3, 9
    v_add_u32 v{vred}, s64, v{vred}
    v_add_u32 v9, {L_TRASH}, v6
    v_cndmask_b32 v{vred}, v9, v{vred}, vcc
    v_lshlrev_b32 v{vtid4}, 2, v0
    v_and_b32 v{vG4}, 3, v1
    v_lshlrev_b32 v{vtagP}, 3, v{vG4}
    s_lshl_b32 s44, s65, 14
    s_add_u32 s44, s44, {QP}
    s_lshl_b32 s45, s68, 12
    s_add_u32 s45, s45, s44
    s_lshl_b32 s96, s67, 8
    s_add_u32 s45, s45, s96
    s_waitcnt lgkmcnt(0)
    s_and_b32 s28, s28, 0x7f
    s_cmp_eq_u32 s28, 127
    s_cselect_b32 s28, 0, s28
    s_add_u32 s35, s28, 1
    s_add_u32 s29, s28, 33
    s_sub_u32 s64, s29, 127
    s_cmp_gt_u32 s29, 127
    s_cselect_b32 s29, s64, s29
    s_add_u32 s30, s28, 65
    s_sub_u32 s64, s30, 127
    s_cmp_gt_u32 s30, 127
    s_cselect_b32 s30, s64, s30
    s_add_u32 s31, s28, 97
    s_sub_u32 s64, s31, 127
    s_cmp_gt_u32 s31, 127
    s_cselect_b32 s31, s64, s31
    s_add_u32 s28, s28, 1
    s_lshl_b32 s32, s29, 8
    s_or_b32 s32, s32, s28
    s_lshl_b32 s64, s30, 16
    s_or_b32 s32, s32, s64
    s_lshl_b32 s64, s31, 24
    s_or_b32 s32, s32, s64
    s_movk_i32 s70, 0xff
    v_bfe_u32 v{vtagP}, s32, v{vtagP}, 8
    v_sub_u32 v{vaddP}, 0x80, v{vtagP}
    """)
    def kv_issue(i):
        if i < 4: a(f"    buffer_load_dwordx4 {vr(KK+4*i,4)}, v{vK}, s[48:51], s63 offen offset:{64*i}{NT}")
        else:
            so = "s63"
            if kvs and i > 4:
                a(f"    s_add_u32 s99, s63, {(i-4)*(65536-1024)}"); so = "s99"
            a(f"    buffer_load_dwordx4 v{vV}, s[52:55], {so} offen offset:{1024*(i-4)}{NT} lds")
    a(f"    s_waitcnt vmcnt(9)")
    stamp(1)
    for i in range(k0): kv_issue(i)
    for k in range(8):
        a(f"""
    v_lshlrev_b32 v{T+2*k}, 16, v{XA+k}
    v_and_b32 v{T+2*k+1}, 0xffff0000, v{XA+k}
    """)
    a(f"""
    v_readfirstlane_b32 s64, v{T}
    s_nop 1
    """)
    for k in range(16): a(f"    v_subrev_f32 v{T+k}, s64, v{T+k}")
    a(f"""
    v_pk_add_f32 {vr(T+16,2)}, {vr(T,2)}, {vr(T+2,2)}
    v_pk_mul_f32 {vr(T+18,2)}, {vr(T,2)}, {vr(T,2)}
    """)
    for k in range(1, 8):
        a(f"    v_pk_fma_f32 {vr(T+18,2)}, {vr(T+2*k,2)}, {vr(T+2*k,2)}, {vr(T+18,2)}")
        if k >= 2: a(f"    v_pk_add_f32 {vr(T+16,2)}, {vr(T+16,2)}, {vr(T+2*k,2)}")
    S1, S2, t1, t2 = T + 16, T + 18, T + 17, T + 19
    a(f"""
    v_add_f32 v{S1}, v{S1}, v{t1}
    v_add_f32 v{S2}, v{S2}, v{t2}
    s_nop 0
    """)
    allreduce2(S1, S2, t1, t2)
    mean, var, rs, sd = T, T + 1, T + 2, T + 3
    a(f"""
    v_mul_f32 v{S1}, 0x3a800000, v{S1}
    v_mul_f32 v{S2}, 0x3a800000, v{S2}
    v_add_f32 v{mean}, s64, v{S1}
    v_fma_f32 v{var}, -v{S1}, v{S1}, v{S2}
    v_max_f32 v{var}, 0, v{var}
    """)
    rbf16(mean, mean); rbf16(var, var)
    a(f"    v_add_f32 v{var}, 0x3727c5ac, v{var}")
    rbf16(var, var)
    a(f"""
    v_sqrt_f32 v{sd}, v{var}
    s_waitcnt vmcnt({8+k0})
    """)
    for i in range(k0, k0 + k1): kv_issue(i)
    rbf16(sd, sd)
    a(f"    v_rcp_f32 v{rs}, v{sd}")
    Dd = T + 4; Q = T + 12
    for k in range(4):
        a(f"""
    v_lshlrev_b32 v{Dd+2*k}, 16, v{XS+k}
    v_and_b32 v{Dd+2*k+1}, 0xffff0000, v{XS+k}
    """)
    for k in range(8): a(f"    v_sub_f32 v{Dd+k}, v{Dd+k}, v{mean}")
    for k in range(4): a(f"    v_cvt_pk_bf16_f32 v{XS+k}, v{Dd+2*k}, v{Dd+2*k+1}")
    for k in range(4):
        a(f"""
    v_lshlrev_b32 v{Dd+2*k}, 16, v{XS+k}
    v_and_b32 v{Dd+2*k+1}, 0xffff0000, v{XS+k}
    """)
    for k in range(8): a(f"    v_mul_f32 v{Q+k}, v{Dd+k}, v{rs}")
    for k in range(8): a(f"    v_fma_f32 v{Dd+k}, -v{Q+k}, v{sd}, v{Dd+k}")
    for k in range(8): a(f"    v_fmac_f32 v{Q+k}, v{Dd+k}, v{rs}")
    for k in range(8): a(f"    v_cvt_pk_bf16_f32 v{Q+k}, v{Q+k}, v{Q+k}")
    for k in range(8):
        for m_ in range(4): a(f"    v_and_b32 v{A+4*k+m_}, v{Q+k}, v{2+m_}")
    stamp(2)
    for i in range(k0 + k1, k0 + k1 + k2): kv_issue(i)
    srd(56, 12, 8 << 20)
    srd(4, 16, 7 << 20)
    srd(8, 18, 7 << 20)
    srd(12, 20, 7 << 20)
    srd(16, 22, 2048)
    a(f"""
    s_add_u32 s64, s67, 4
    s_lshr_b32 s64, s64, 3
    s_mul_i32 s60, s65, 14
    s_add_u32 s60, s60, s67
    s_sub_u32 s60, s60, s64
    s_add_u32 s61, s60, {28 if mixU else 0}
    s_sub_u32 s64, s61, 56
    s_cmp_ge_u32 s61, 56
    s_cselect_b32 s61, s64, s61
    s_add_u32 s64, s34, 4
    s_lshr_b32 s64, s64, 3
    s_sub_u32 s62, s34, s64
    s_mul_i32 s64, s69, 7168
    v_mul_u32_u24 v{vGU}, {8*7168}, v7
    v_lshl_add_u32 v{vGU}, v8, 4, v{vGU}
    s_lshl_b32 s96, s61, 7
    s_add_u32 s96, s96, s64
    v_add_u32 v{vGU2}, s96, v{vGU}
    s_lshl_b32 s96, s60, 7
    s_add_u32 s96, s96, s64
    v_add_u32 v{vGU}, s96, v{vGU}
    s_lshl_b32 s60, s60, 11
    s_lshl_b32 s61, s61, 11
    s_add_u32 s61, s61, 1024
    s_cmp_eq_u32 s3, 0
    s_cselect_b32 s60, s60, s61
    s_lshl_b32 s64, s68, 8
    s_add_u32 s60, s60, s64
    s_add_u32 s60, s60, {GU}
    s_lshl_b32 s61, s62, 12
    s_lshr_b32 s64, s3, 1
    s_lshl_b32 s64, s64, 11
    s_add_u32 s61, s61, s64
    s_and_b32 s64, s3, 1
    s_lshl_b32 s64, s64, 7
    s_add_u32 s61, s61, s64
    s_add_u32 s61, s61, {GU}
    v_bfe_u32 v9, v1, 3, 1
    v_lshlrev_b32 v{vPH}, 8, v9
    v_lshl_add_u32 v{vPH}, v{vG}, 5, v{vPH}
    v_lshl_add_u32 v{vPH}, v8, 2, v{vPH}
    ; wd voffset = (128j + 32w + 8G)*2048 + 256x + 16jj
    s_lshl_b32 s64, s62, 18
    s_lshl_b32 s96, s3, 16
    s_add_u32 s64, s64, s96
    s_lshl_b32 s96, s33, 8
    s_add_u32 s64, s64, s96
    v_lshlrev_b32 v{vWD}, 14, v{vG}
    v_lshl_add_u32 v{vWD}, v{vJ}, 4, v{vWD}
    v_add_u32 v{vWD}, s64, v{vWD}
    s_lshl_b32 s62, s33, 5
    s_add_u32 s62, s62, s34
    s_lshl_b32 s62, s62, 10
    s_add_u32 s62, s62, {PL}
    v_and_b32 v{vt7}, 511, v{vtid4}
    s_lshr_b32 s64, s3, 1
    s_lshl_b32 s64, s64, 11
    v_add_u32 v{vt7}, s64, v{vt7}
    v_lshlrev_b32 v{vl4}, 2, v1
    v_mul_u32_u24 v{vSW}, 144, v8
    v_lshl_add_u32 v{vSR}, v{vG}, 4, v{vSW}
    v_lshl_add_u32 v{vSR}, v9, 6, v{vSR}
    v_bfe_u32 v9, v1, 4, 1
    v_lshlrev_b32 v{vOT}, 5, v{vJ}
    v_lshl_add_u32 v{vOT}, v9, 4, v{vOT}
    s_lshl_b32 s64, s3, 9
    v_add_u32 v{vOT}, s64, v{vOT}
    s_lshl_b32 s67, s34, 2
    s_add_u32 s67, s67, s3
    s_lshr_b32 s64, s67, 5
    s_lshl_b32 s64, s64, 10
    s_bfe_u32 s96, s67, 0x20003
    s_lshl_b32 s96, s96, 5
    s_add_u32 s64, s64, s96
    s_and_b32 s96, s67, 1
    s_lshl_b32 s96, s96, 4
    s_add_u32 s64, s64, s96
    s_bfe_u32 s96, s67, 0x20001
    s_lshl_b32 s96, s96, 2
    s_add_u32 s64, s64, s96
    s_lshl_b32 s64, s64, 11
    s_lshl_b32 s96, s33, 8
    s_add_u32 s64, s64, s96
    v_lshlrev_b32 v{vWO}, 11, v{vG}
    v_lshl_add_u32 v{vWO}, v{vJ}, 4, v{vWO}
    v_add_u32 v{vWO}, s64, v{vWO}
    s_lshl_b32 s69, s67, 7
    s_add_u32 s69, s69, {OF}
    v_lshlrev_b32 v{vOT2}, 5, v{vG}
    v_lshl_add_u32 v{vOT2}, v8, 2, v{vOT2}   ; vOF = (8G + (l&7))*4
    v_mul_u32_u24 v{vQR}, 272, v8
    v_lshl_add_u32 v{vQR}, v{vG}, 4, v{vQR}
    v_lshl_add_u32 v{vSW}, v{vG}, 3, v{vSW}
    s_lshl_b32 s96, s3, 5
    v_add_u32 v{vSW}, s96, v{vSW}
    v_bfe_u32 v9, v1, 2, 2
    v_lshl_add_u32 v{vTR}, v{vG}, 3, v9
    v_lshlrev_b32 v{vTR}, 8, v{vTR}
    v_lshlrev_b32 v9, 3, v{vG4}
    s_lshl_b32 s64, s3, 6
    v_add3_u32 v{vTR}, v{vTR}, v9, s64
    v_lshrrev_b32 v{vQW}, 5, v0
    v_and_b32 v9, 31, v0
    v_mul_u32_u24 v{vQW}, 272, v{vQW}
    v_lshl_add_u32 v{vQW}, v9, 3, v{vQW}
    s_lshl_b32 s97, s3, 10
    s_add_u32 s20, s44, s97
    s_lshl_b32 s22, s65, 18
    s_add_u32 s22, s22, {OP}
    s_lshl_b32 s96, s66, 12
    s_add_u32 s23, s22, s96
    s_add_u32 s23, s23, s97
    s_and_b32 s46, s32, 0xffff
    s_mov_b32 s47, 0x03020302
    s_mov_b32 s24, {SCALE}
    s_mov_b32 s25, {LOG2E}
    v_mov_b32 v{vtag0}, s28
    s_mov_b32 s26, 0x07060500
    s_mov_b32 s27, 0x07060501
    s_mov_b32 s66, 0x07060502
    s_mov_b32 s67, 0x07060503
    s_mov_b32 s68, 0x0c04000c
    s_lshl_b32 s21, s3, 11
    v_add_u32 v{vt7+0 if False else XS}, s21, v{vl4}
    """)
    vGR = XS; vOF = vOT2
    PSEL = (26, 27, 66, 67)
    def red8(Rr, vaddr, o):
        a(f"""
    ds_read2st64_b32 {vr(Rr,2)}, v{vaddr} offset0:{o} offset1:{o+1}
    ds_read2st64_b32 {vr(Rr+2,2)}, v{vaddr} offset0:{o+2} offset1:{o+3}
    ds_read2st64_b32 {vr(Rr+4,2)}, v{vaddr} offset0:{o+4} offset1:{o+5}
    ds_read2st64_b32 {vr(Rr+6,2)}, v{vaddr} offset0:{o+6} offset1:{o+7}
    s_waitcnt lgkmcnt(0)
    v_add_f32 v{Rr}, v{Rr}, v{Rr+1}
    v_add_f32 v{Rr+2}, v{Rr+2}, v{Rr+3}
    v_add_f32 v{Rr+4}, v{Rr+4}, v{Rr+5}
    v_add_f32 v{Rr+6}, v{Rr+6}, v{Rr+7}
    v_add_f32 v{Rr}, v{Rr}, v{Rr+2}
    v_add_f32 v{Rr+4}, v{Rr+4}, v{Rr+6}
    v_add_f32 v{Rr}, v{Rr}, v{Rr+4}
    v_add_u32 v{Rr}, v{Rr}, v{vaddP}
    v_bfi_b32 v{Rr}, s70, v{vtagP}, v{Rr}
    """)
    nk = k0 + k1 + k2
    for t in range(8):
        a(f"    s_waitcnt vmcnt({7 - t + nk})")
        srcc = "0" if t == 0 else vr(D1, 4)
        a(f"    v_mfma_f32_16x16x32_bf16 {vr(D1,4)}, {vr(A+4*t,4)}, {vr(WQ+4*t,4)}, {srcc}")
        while nk < 8 and t < 7 and (7 - t) + nk < Dt:
            kv_issue(nk); nk += 1
    kpre = nk
    a(f"""
    s_nop 7
    ds_write_b128 v{vred}, {vr(D1,4)} offset:{L_RED}
    s_waitcnt lgkmcnt(0)
    s_barrier
    s_cmp_lg_u32 s3, 0
    s_cbranch_scc1 L_nored
    """)
    red8(T, vl4, L_RED // 256)
    a(f"""
    buffer_store_dword v{T}, v{vl4}, s[40:43], s45 offen sc1
L_nored:
    """)
    stamp(3)
    a("""
    s_and_b32 s64, s34, 7
    s_cmp_eq_u32 s64, 3
    s_cbranch_scc1 L_light
    """)

    def merge2(X, Y, steps=(8, 4)):
        a(f"""
    v_mov_b32 v{Y+1}, v{Y}
    s_nop 0
    v_permlane32_swap_b32 v{X}, v{X+2}
    v_permlane32_swap_b32 v{X+1}, v{X+3}
    v_permlane32_swap_b32 v{Y+1}, v{Y}
    v_add_f32 v{X}, v{X}, v{X+2}
    v_add_f32 v{X+1}, v{X+1}, v{X+3}
    v_add_f32 v{Y}, v{Y}, v{Y+1}
    s_nop 0
    v_mov_b32 v{Y+1}, v{Y}
    v_permlane16_swap_b32 v{X}, v{X+1}
    s_nop 0
    v_permlane16_swap_b32 v{Y+1}, v{Y}
    v_add_f32 v{X}, v{X}, v{X+1}
    v_add_f32 v{Y}, v{Y}, v{Y+1}
    """)
        for s_ in steps:
            a(f"""
    s_nop 0
    v_add_f32_dpp v{X}, v{X}, v{X} row_ror:{s_} row_mask:0xf bank_mask:0xf
    v_add_f32_dpp v{Y}, v{Y}, v{Y} row_ror:{s_} row_mask:0xf bank_mask:0xf
    """)

    vA, vB, vkeep, vX, vO, vF = XA, XA + 1, XA + 2, XA + 3, XA + 4, XA + 5
    RA = G0; RB = G0 + 8; ac = T + 6
    def red_pre():
        if red1: return red_pre1()
        a(f"""
    s_lshl_b32 s54, s65, 6
    v_lshlrev_b32 v{vO}, 1, v1
    v_add_u32 v{vO}, s54, v{vO}
    buffer_load_ushort v{vX}, v{vO}, s[36:39], 0 offen
    v_lshlrev_b32 v{vA}, 10, v7
    v_lshl_add_u32 v{vA}, v8, 4, v{vA}
    v_cmp_ne_u32 vcc, 3, v7
    v_add_u32 v{vB}, 512, v{vA}
    v_lshlrev_b32 v{vF}, 2, v{vG}
    v_cndmask_b32 v{vB}, v{vA}, v{vB}, vcc
    v_cndmask_b32 v{vkeep}, 0, 1.0, vcc
    v_lshl_add_u32 v{vF}, v8, 4, v{vF}
    s_lshl_b32 s96, s3, 8
    v_add_u32 v{vF}, s96, v{vF}
    s_lshl_b32 s55, s33, 15
    s_lshl_b32 s96, s3, 13
    s_add_u32 s55, s55, s96
    s_lshr_b32 s64, s34, 3
    s_lshl_b32 s64, s64, 7
    s_add_u32 s55, s55, s64
    s_add_u32 s54, s55, {PG}
    s_add_u32 s55, s55, {PL if local else PG}
    """)

    def red_pre1():
        a(f"""
    s_lshl_b32 s54, s65, 5
    s_lshl_b32 s96, s3, 3
    s_add_u32 s54, s54, s96
    v_and_b32 v{vF}, 1, v1
    v_lshl_add_u32 v{vO}, v{vF}, 2, v{vG}
    v_add_u32 v{vO}, s54, v{vO}
    v_lshlrev_b32 v{vO}, 1, v{vO}
    buffer_load_ushort v{vX}, v{vO}, s[36:39], 0 offen
    v_lshrrev_b32 v{vA}, 1, v1
    v_and_b32 v{vB}, 7, v{vA}
    v_cmp_ne_u32 vcc, 3, v{vB}
    v_lshlrev_b32 v{vA}, 10, v{vA}
    v_lshl_add_u32 v{vA}, v{vF}, 4, v{vA}
    v_add_u32 v{vB}, 512, v{vA}
    v_cndmask_b32 v{vB}, v{vA}, v{vB}, vcc
    v_cndmask_b32 v{vkeep}, 0, 1.0, vcc
    v_and_b32 v{vF}, 14, v1
    v_cmp_eq_u32 s[56:57], 0, v{vF}
    s_lshl_b32 s55, s33, 15
    s_lshr_b32 s64, s34, 3
    s_lshl_b32 s64, s64, 7
    s_add_u32 s55, s55, s64
    s_lshl_b32 s96, s3, 5
    s_add_u32 s55, s55, s96
    s_add_u32 s54, s55, {PG}
    s_add_u32 s55, s55, {PL if local else PG}
    """)

    def path(ffn, P):
        S = Sched(a)
        def seg_end():
            if warm: a(f"    s_cbranch_execz {P}W_ret")
        def gsprk(n):
            with guard(): S.sprk(n)
        def gwait(name, sub=0):
            with guard(): S.wait(name, sub)
        for t in range(8):
            S.items.append((f"wq{t}", None, 1)); S.nops += 1; S.pos[f"wq{t}"] = S.nops; S.issued += 1
        base = []
        for i in range(8): base.append((f"kv{i}", (lambda i=i: kv_issue(i)), 1))
        def mk_gu(i):
            t, mat = i // 2, i % 2
            def f():
                so = "0"
                if t: a(f"    s_mov_b32 s99, {t*7168}"); so = "s99"
                a(f"    buffer_load_dwordx4 {ar(GW+4*i,4)}, v{vGU2 if mat else vGU}, s[{4+4*mat}:{7+4*mat}], {so} offen{NT}")
            return f
        def mk_wo(k):
            def f():
                so = "0"
                if k: a(f"    s_mov_b32 s99, {k*0x40000}"); so = "s99"
                a(f"    buffer_load_dwordx4 {vr(WO+4*k,4)}, v{vWO}, s[56:59], {so} offen{NT}")
            return f
        def mk_wd(k):
            def f():
                so = "0"
                if k >= 2: a(f"    s_movk_i32 s99, {(k & ~1)*2048}"); so = "s99"
                a(f"    buffer_load_dwordx4 {ar(WD+4*k,4)}, v{vWD}, s[12:15], {so} offen offset:{(k&1)*2048}{NT}")
            return f
        def pollq():
            if oracle_q:
                for k in range(4): a(f"    buffer_load_dwordx4 {vr(G0+4*k,4)}, v6, s[36:39], 0 offen")
                return
            a(f"    buffer_load_dwordx4 {vr(G0,4)}, v6, s[40:43], s20 offen sc1")
            for k in range(1, 4):
                a(f"    s_add_u32 s99, s20, {4096*k}")
                a(f"    buffer_load_dwordx4 {vr(G0+4*k,4)}, v6, s[40:43], s99 offen sc1")
        def pollf():
            a(f"    buffer_load_dword v{G0}, v{vOF}, s[40:43], s69 offen sc1")
        def pollh():
            for k in range(4): a(f"    buffer_load_dword v{HG+k}, v{vPH}, s[40:43], s61 offen offset:{512*k} sc1")
        if ffn:
            for i in range(16): base.append((f"gu{i}", mk_gu(i), 1))
        for k in range(8): base.append((f"wo{k}", mk_wo(k), 1))
        if ffn:
            for k in range(8): base.append((f"wd{k}", mk_wd(k), 1))
        Pl = [] if pure else [(pq, ("pq", pollq, 4)), (ph, ("ph", pollh, 4)), (pf, ("pf", pollf, 1))] if ffn else [(lq, ("pq", pollq, 4)), (98, ("comb", lambda: None, 0)), (99, ("pf", pollf, 1))]
        for i, it in enumerate(base):
            for p, pit in Pl:
                if p == i + 8: S.add(*pit)
            S.add(*it)
        for p, pit in Pl:
            if p >= len(base) + 8: S.add(*pit)
        for i in range(kpre):
            name = S.items[S.issued][0]; assert name == f"kv{i}"
            S.nops += 1; S.pos[name] = S.nops; S.issued += 1
        names = [it[0] for it in S.items]
        S.blocked |= {"ph"} | (set() if (ffn and not pf_late) else {"pf"})
        def retry(lab, fn, check):
            if oracle_q and lab.endswith("rq"): return
            if cnt:
                bit = {"rq": 100, "rf": 1000, "rh": 10000}[lab[-2:]]
                a(f"""
    s_nop 1
    s_cbranch_vccz {lab}_c
    s_add_u32 s94, s94, {bit}
    s_addc_u32 s95, s95, 0
{lab}_c:
    """)
            a(f"""
    s_nop 1
    s_cbranch_vccz {lab}_ok
    s_mov_b32 s71, {spin_max}
{lab}:
    """)
            fn()
            a("    s_waitcnt vmcnt(0)")
            check(True)
            a(f"""
    s_sub_u32 s71, s71, 1
    s_cmp_eq_u32 s71, 0
    s_cbranch_scc1 {lab}_ok
    s_cbranch_vccnz {lab}
{lab}_ok:
    """)
        if pure:
            for name in names:
                if name.startswith("wq"): continue
                S.wait(name); S.topup(name, D if ffn else Dl)
                if name == "kv7": stamp(4)
                if name == "gu7": stamp(5)
                if name == "gu15": stamp(8)
                if name == "wo7": stamp(7)
                if name == "wd7": stamp(10)
            if not ffn:
                stamp(9); store_stamps(); a("    s_endpgm\nLtW_ret:")
                red_pre()
            return
        S.blocked.add("pq"); S.sprk(warm_extra); S.blocked.discard("pq")
        if warm:
            a(f"""
    s_mov_b64 exec, 0
    s_cmp_eq_u32 s3, 0
    s_cbranch_scc1 {P}SEG0
    s_cmp_eq_u32 s3, 1
    s_cbranch_scc1 {P}SEG1
    s_cmp_eq_u32 s3, 2
    s_cbranch_scc1 {P}SEG2
    s_branch {P}SEG3
{P}W_ret:
    s_mov_b64 exec, -1
    """)
        if cnt: a('    s_waitcnt lgkmcnt(0)\n    s_mov_b64 s[94:95], s[72:73]')
        else: stamp(11)
        have_o = False; have_h = False; st_b = [False]
        DD = D if ffn else Dl
        def tr_reads():
            for s_ in range(2):
                for c in range(2):
                    for h in range(2):
                        a(f"    ds_read_b64_tr_b16 {vr(VO+(s_*2+c)*4+2*h,2)}, v{vTR} offset:{L_V + s_*8192 + h*1024 + c*32}")
        def mf_wo(k):
            srcc = "0" if k == 0 else vr(PD, 4)
            a(f"    v_mfma_f32_16x16x32_bf16 {vr(PD,4)}, {vr(A3+4*k,4)}, {vr(WO+4*k,4)}, {srcc}")
        def mf_wd(k):
            srcc = "0" if k == 0 else vr(DG, 4)
            a(f"    v_mfma_f32_16x16x32_bf16 {vr(DG,4)}, {vr(A2+4*k,4)}, {ar(WD+4*k,4)}, {srcc}")
        for name in names:
            depth = DD
            if dmap and ffn:
                for k_, v_ in dmap:
                    if names.index(name) >= k_: depth = v_
            def std():
                with guard():
                    S.wait(name)
                    if ffn and pf_at == name: S.blocked -= {"pf"}
                    S.topup(name, depth)
            if name.startswith("wq"):
                pass
            elif name.startswith("kv"):
                std()
                if name == "kv7" and not trlate:
                    a("    s_barrier")
                    tr_reads()
            elif name.startswith("gu"):
                i = int(name[2:]); t, mat = i // 2, i % 2
                with guard(): S.wait(name)
                srcc = "0" if t == 0 else vr(DG + 4 * mat, 4)
                a(f"    v_mfma_f32_16x16x32_bf16 {vr(DG+4*mat,4)}, {vr(A+4*t,4)}, {ar(GW+4*i,4)}, {srcc}")
                with guard(): S.topup(name, depth + (sprg if i == 15 else 0))
                if i == 15:
                    a(f"""
    s_nop 6
{P}SEG3:
    ds_write_b128 v{vred}, {vr(DG,4)} offset:{L_G}
    ds_write_b128 v{vred}, {vr(DG+4,4)} offset:{L_G+2048}
    s_waitcnt lgkmcnt(0)
    """)
                    with guard():
                        a(f"""
    s_barrier
    s_cmp_ge_u32 s3, 2
    s_cbranch_scc1 {P}nogu
    """)
                    red8(T, vGR, L_G // 256)
                    if warm: a(f"    s_cbranch_execz {P}SEG3b")
                    a(f"""
    buffer_store_dword v{T}, v{vl4}, s[40:43], s60 offen sc1
{P}nogu:
    """)
                    stamp(8)
                    S.blocked -= {"ph"}
            elif name == "pq":
                acc = T
                def chk(re):
                    a(f"""
    v_mov_b32 v{acc}, 0
    v_mov_b32 v{acc+1}, 0
    """)
                    for k in range(4):
                        if not re: gwait("pq", 3 - k)
                        for e in range(4): a(f"    v_msad_u8 v{acc+(e&1)}, v{G0+4*k+e}, s{28+e}, v{acc+(e&1)}")
                    a(f"""
    v_or_b32 v{acc}, v{acc}, v{acc+1}
    v_cmp_ne_u32 vcc, 0, v{acc}
    """)
                while "pq" not in S.pos: S.issue()
                a(f"{P}SEG0:")
                chk(False)
                retry(f"{P}rq", pollq, chk)
                with guard(): stamp(4)
                QS = T + 4
                a(f"""
    v_pk_add_f32 {vr(QS,2)}, {vr(G0,2)}, {vr(G0+4,2)}
    v_pk_add_f32 {vr(QS+2,2)}, {vr(G0+2,2)}, {vr(G0+6,2)}
    v_pk_add_f32 {vr(QS+4,2)}, {vr(G0+8,2)}, {vr(G0+12,2)}
    v_pk_add_f32 {vr(QS+6,2)}, {vr(G0+10,2)}, {vr(G0+14,2)}
    v_pk_add_f32 {vr(QS,2)}, {vr(QS,2)}, {vr(QS+4,2)}
    v_pk_add_f32 {vr(QS+2,2)}, {vr(QS+2,2)}, {vr(QS+6,2)}
    v_cvt_pk_bf16_f32 v{QS}, v{QS}, v{QS+1}
    v_cvt_pk_bf16_f32 v{QS+1}, v{QS+2}, v{QS+3}
    ds_write_b64 v{vQW}, {vr(QS,2)} offset:{L_Q}
    """)
                with guard(): S.topup(name, depth)
                a("    s_waitcnt lgkmcnt(0)")
                barrier()
                a(f"""
    ds_read_b128 {vr(QB,4)}, v{vQR} offset:{L_Q}
    ds_read_b128 {vr(QB+4,4)}, v{vQR} offset:{L_Q+64}
    ds_read_b128 {vr(QB+8,4)}, v{vQR} offset:{L_Q+128}
    ds_read_b128 {vr(QB+12,4)}, v{vQR} offset:{L_Q+192}
    """)
                with guard():
                    if trlate: tr_reads()
                    S.sprk(sprinkle[0])
                for t in range(4):
                    srcc = "0" if t == 0 else vr(D1, 4)
                    a(f"    s_waitcnt lgkmcnt({3-t+(8 if trlate else 0)})")
                    a(f"    v_mfma_f32_16x16x32_bf16 {vr(D1,4)}, {vr(KK+4*t,4)}, {vr(QB+4*t,4)}, {srcc}")
                Sx = T + 4
                a(f"""
    s_nop 7
    v_cvt_pk_bf16_f32 v{T}, v{D1}, v{D1+1}
    v_cvt_pk_bf16_f32 v{T+1}, v{D1+2}, v{D1+3}
    v_lshlrev_b32 v{Sx}, 16, v{T}
    v_and_b32 v{Sx+1}, 0xffff0000, v{T}
    v_lshlrev_b32 v{Sx+2}, 16, v{T+1}
    v_and_b32 v{Sx+3}, 0xffff0000, v{T+1}
    v_mul_f32 v{Sx}, s24, v{Sx}
    v_mul_f32 v{Sx+1}, s24, v{Sx+1}
    v_mul_f32 v{Sx+2}, s24, v{Sx+2}
    v_mul_f32 v{Sx+3}, s24, v{Sx+3}
    v_cvt_pk_bf16_f32 v{T}, v{Sx}, v{Sx+1}
    v_cvt_pk_bf16_f32 v{T+1}, v{Sx+2}, v{Sx+3}
    ds_write_b64 v{vSW}, {vr(T,2)} offset:{L_S}
    s_waitcnt lgkmcnt(0)
    """)
                seg_end()
                mx, tmp, lsum, wv, rl = T + 12, T + 13, T + 14, T + 15, T + 16
                Pp = T + 20
                a(f"""
    s_barrier
{P}SEG1:
    ds_read_b128 {vr(T,4)}, v{vSR} offset:{L_S}
    """)
                gsprk(sprinkle[1])
                a("    s_waitcnt lgkmcnt(0)")
                for k in range(4):
                    a(f"""
    v_lshlrev_b32 v{Sx+2*k}, 16, v{T+k}
    v_and_b32 v{Sx+2*k+1}, 0xffff0000, v{T+k}
    """)
                a(f"""
    v_max3_f32 v{mx}, v{Sx}, v{Sx+1}, v{Sx+2}
    v_max3_f32 v{tmp}, v{Sx+3}, v{Sx+4}, v{Sx+5}
    v_max3_f32 v{mx}, v{Sx+6}, v{Sx+7}, v{mx}
    v_max_f32 v{mx}, v{mx}, v{tmp}
    """)
                allreduce1(mx, tmp, op="v_max_f32", steps=(8,))
                a(f"    v_mul_f32 v{mx}, s25, v{mx}")
                for k in range(8): a(f"    v_fma_f32 v{Sx+k}, v{Sx+k}, s25, -v{mx}")
                for k in range(8): a(f"    v_exp_f32 v{Sx+k}, v{Sx+k}")
                for k in range(4): a(f"    v_cvt_pk_bf16_f32 v{Pp+k}, v{Sx+2*k}, v{Sx+2*k+1}")
                a(f"""
    v_pk_add_f32 {vr(T,2)}, {vr(Sx,2)}, {vr(Sx+2,2)}
    v_pk_add_f32 {vr(T+2,2)}, {vr(Sx+4,2)}, {vr(Sx+6,2)}
    """)
                for sc in (0, 2, 1, 3):
                    a(f"    v_mfma_f32_16x16x32_bf16 {vr(PD+4*sc,4)}, {vr(VO+4*sc,4)}, {vr(Pp,4)}, 0")
                gsprk(sprinkle[2])
                a(f"""
    v_pk_add_f32 {vr(T,2)}, {vr(T,2)}, {vr(T+2,2)}
    v_add_f32 v{lsum}, v{T}, v{T+1}
    """)
                allreduce1(lsum, tmp, steps=(8,))
                X = D1
                a(f"""
    v_log_f32 v{wv}, v{lsum}
    v_rcp_f32 v{rl}, v{lsum}
    """)
                for e in range(4): a(f"    v_add_f32_dpp v{X+e}, v{PD+8+e}, v{PD+e} row_ror:8 row_mask:0xf bank_mask:0x3")
                a(f"    v_add_f32 v{wv}, v{wv}, v{mx}")
                for e in range(4): a(f"    v_add_f32_dpp v{X+e}, v{PD+4+e}, v{PD+12+e} row_ror:8 row_mask:0xf bank_mask:0xc")
                a(f"""
    v_add_u32 v{wv}, 0x80, v{wv}
    v_bfi_b32 v{wv}, s70, v{vtag0}, v{wv}
    """)
                for e in range(4): a(f"    v_mul_f32 v{X+e}, v{X+e}, v{rl}")
                for e in range(4): a(f"    v_perm_b32 v{X+e}, v{X+e}, v{wv}, s{PSEL[e]}")
                seg_end()
                a(f"    buffer_store_dwordx4 {vr(X,4)}, v6, s[40:43], s23 offen sc1")
                S.extra(1)
                stamp(5)
                S.sprk(sprinkle[3])
            elif name == "comb":
                a(f"""
    v_lshlrev_b32 v{vPO}, 12, v7
    v_lshl_add_u32 v{vPO}, v8, 4, v{vPO}
    s_lshr_b32 s64, s34, 3
    s_lshl_b32 s65, s33, 2
    s_add_u32 s65, s65, s64           ; lam
    s_lshl_b32 s64, s65, 2
    s_add_u32 s64, s64, s3
    s_lshl_b32 s60, s64, 7
    s_add_u32 s60, s60, {OF}
    s_and_b32 s64, s64, 31
    s_lshl_b32 s64, s64, 7
    s_add_u32 s22, s22, s64
    s_mov_b32 s71, {spin_max}
    s_mov_b32 s52, 0x01010101
    s_mov_b32 s53, 0x01010101
    """)
                MS = [4, 6, 8, 10, 12, 14, 48, 50]
                for t in range(8): a(f"    s_mov_b64 s[{MS[t]}:{MS[t]+1}], -1")
                red_pre()
                a(f"""
    s_waitcnt vmcnt(0)
    {f"s_sleep {lo_sleep}" if lo_sleep else ""}
C_poll:
    """)
                for t in range(8):
                    a(f"""
    s_mov_b64 exec, s[{MS[t]}:{MS[t]+1}]
    s_cbranch_execz C_i{t}
    s_add_u32 s99, s22, {t*32768}
    buffer_load_dwordx4 {vr(OG+4*t,4)}, v{vPO}, s[40:43], s99 offen sc1
C_i{t}:
    """)
                a("    s_mov_b64 exec, -1\n    s_waitcnt vmcnt(0)")
                a(f"{P}SEG2:")
                for t in range(8):
                    a(f"""
    v_msad_u8 v{T+t}, v{OG+4*t}, s28, 0
    v_perm_b32 v{FF+t}, v{OG+4*t+2}, v{OG+4*t+1}, s68
    v_lshl_or_b32 v{FF+t}, v{OG+4*t+3}, 24, v{FF+t}
    """)
                a(f"""
    v_or3_b32 v{T+8}, v{T}, v{T+1}, v{T+2}
    v_or3_b32 v{T+9}, v{T+3}, v{T+4}, v{T+5}
    v_or3_b32 v{T+8}, v{T+6}, v{T+7}, v{T+8}
    v_or_b32 v{T+8}, v{T+8}, v{T+9}
    v_cmp_ne_u32 vcc, 0, v{T+8}
    v_max3_f32 v{T+10}, v{FF}, v{FF+1}, v{FF+2}
    v_max3_f32 v{T+11}, v{FF+3}, v{FF+4}, v{FF+5}
    s_cbranch_vccz C_ok
    """)
                for t in range(8): a(f"    v_cmp_ne_u32 s[{MS[t]}:{MS[t]+1}], 0, v{T+t}")
                a("    s_nop 1")
                for t in range(8):
                    m = f"s[{MS[t]}:{MS[t]+1}]"
                    if masked:
                        a(f"""
    s_lshr_b64 s[96:97], {m}, 4
    s_or_b64 {m}, {m}, s[96:97]
    s_lshr_b64 s[96:97], {m}, 2
    s_or_b64 {m}, {m}, s[96:97]
    s_lshr_b64 s[96:97], {m}, 1
    s_or_b64 {m}, {m}, s[96:97]
    s_and_b64 {m}, {m}, s[52:53]
    s_mul_i32 s{MS[t]}, s{MS[t]}, 0xff
    s_mul_i32 s{MS[t]+1}, s{MS[t]+1}, 0xff
    """)
                    else:
                        a(f"""
    s_cmp_lg_u64 {m}, 0
    s_cselect_b64 {m}, -1, 0
    """)
                if c_bet: a(f"    s_sleep {c_bet}")
                if cnt: a("    s_add_u32 s94, s94, 1000\n    s_addc_u32 s95, s95, 0")
                a(f"""
    s_sub_u32 s71, s71, 1
    s_cmp_lg_u32 s71, 0
    s_cbranch_scc1 C_poll
C_ok:
    """)
                with guard(): stamp(6)
                M_ = T + 10
                a(f"""
    v_max3_f32 v{M_}, v{FF+6}, v{FF+7}, v{M_}
    v_max_f32 v{M_}, v{M_}, v{T+11}
    """)
                allreduce1(M_, T + 11, op="v_max_f32", steps=(8,))
                for t in range(8): a(f"    v_sub_f32 v{FF+t}, v{FF+t}, v{M_}")
                for t in range(8): a(f"    v_exp_f32 v{FF+t}, v{FF+t}")
                for e in range(4): a(f"    v_mul_f32 v{OG+e}, v{OG+e}, v{FF}")
                for e in range(4): a(f"    v_mul_f32 v{OG+4+e}, v{OG+4+e}, v{FF+1}")
                for t in range(2, 8):
                    for e in range(4): a(f"    v_fmac_f32 v{OG+4*(t&1)+e}, v{OG+4*t+e}, v{FF+t}")
                L_ = T + 6
                a(f"""
    v_pk_add_f32 {vr(FF,2)}, {vr(FF,2)}, {vr(FF+2,2)}
    v_pk_add_f32 {vr(FF+4,2)}, {vr(FF+4,2)}, {vr(FF+6,2)}
    v_pk_add_f32 {vr(OG,2)}, {vr(OG,2)}, {vr(OG+4,2)}
    v_pk_add_f32 {vr(OG+2,2)}, {vr(OG+2,2)}, {vr(OG+6,2)}
    v_pk_add_f32 {vr(FF,2)}, {vr(FF,2)}, {vr(FF+4,2)}
    v_add_f32 v{L_}, v{FF}, v{FF+1}
    """)
                merge2(OG, L_, steps=(8,))
                a(f"""
    v_rcp_f32 v{L_}, v{L_}
    s_nop 0
    v_mul_f32 v{OG}, v{OG}, v{L_}
    v_cvt_pk_bf16_f32 v{OG}, v{OG}, v{OG}
    v_and_b32 v{OG}, 0xffff0000, v{OG}
    v_or_b32 v{OG}, s46, v{OG}
    """)
                with guard():
                    a(f"    buffer_store_dword v{OG}, v{vOF}, s[40:43], s60 offen sc1")
                    stamp(8)
                    if lf_sleep: a(f"    s_sleep {lf_sleep}")
                S.extra(1)
                S.blocked -= {"pf"}
            elif name == "pf":
                def chk(re):
                    if not re: gwait("pf")
                    a(f"""
    v_msad_u8 v{T+3}, v{G0}, s46, 0
    v_cmp_ne_u32 vcc, 0, v{T+3}
    """)
                with guard():
                    if ffn and hf_sleep: a(f"    s_sleep {hf_sleep}")
                    while "pf" not in S.pos: S.issue()
                if ffn: a(f"{P}SEG2:")
                chk(False)
                retry(f"{P}rf", pollf, chk)
                with guard():
                    stamp(7); S.topup(name, depth + 2)
                a(f"""
    v_perm_b32 v{G0}, v{G0}, v{G0}, s47
    s_nop 1
    """)
                have_o = True
                ready = [k for k in range(8) if names.index(f"wo{k}") < names.index("pf")]
                for u in range(8):
                    for m_ in range(4):
                        a(f"    v_and_b32_dpp v{A3+4*u+m_}, v{G0}, v{2+m_} row_newbcast:{u} row_mask:0xf bank_mask:0xf")
                    if u >= 1 and (u - 1) in ready: mf_wo(u - 1)
                a("    s_nop 1")
                if 7 in ready: mf_wo(7)
            elif name.startswith("wo"):
                std()
                if have_o: mf_wo(int(name[2:]))
            elif name == "ph":
                def chk(re):
                    if not re: gwait("ph")
                    a(f"""
    v_msad_u8 v{T+8}, v{HG}, v{vtagP}, 0
    v_msad_u8 v{T+9}, v{HG+1}, v{vtagP}, 0
    v_msad_u8 v{T+8}, v{HG+2}, v{vtagP}, v{T+8}
    v_msad_u8 v{T+9}, v{HG+3}, v{vtagP}, v{T+9}
    v_or_b32 v{T+8}, v{T+8}, v{T+9}
    v_cmp_ne_u32 vcc, 0, v{T+8}
    """)
                while "ph" not in S.pos: S.issue()
                a(f"{P}SEG3b:")
                chk(False)
                retry(f"{P}rh", pollh, chk)
                with guard():
                    stamp(9)
                    if pf_at == "ph": S.blocked -= {"pf"}
                    S.topup(name, depth + 4)
                G_, U_ = HG, HG + 2
                a(f"""
    v_add_f32 v{G_}, v{HG}, v{HG+1}
    v_add_f32 v{U_}, v{HG+2}, v{HG+3}
    s_nop 0
    v_add_f32_dpp v{G_}, v{G_}, v{G_} row_ror:8 row_mask:0xf bank_mask:0xf
    v_add_f32_dpp v{U_}, v{U_}, v{U_} row_ror:8 row_mask:0xf bank_mask:0xf
    """)
                rbf16(G_, G_)
                a(f"""
    v_mul_f32 v{T+4}, {0x80000000 | LOG2E}, v{G_}
    v_exp_f32 v{T+4}, v{T+4}
    """)
                rbf16(U_, U_)
                a(f"""
    v_add_f32 v{T+4}, 1.0, v{T+4}
    v_rcp_f32 v{T+4}, v{T+4}
    s_nop 0
    v_mul_f32 v{G_}, v{G_}, v{T+4}
    """)
                rbf16(G_, G_)
                a(f"""
    v_mul_f32 v{G_}, v{G_}, v{U_}
    v_cvt_pk_bf16_f32 v{G_}, v{G_}, v{G_}
    s_nop 1
    """)
                have_h = True
                ready = [k for k in range(8) if names.index(f"wd{k}") < names.index("ph")]
                for u in range(8):
                    for m_ in range(4):
                        a(f"    v_and_b32_dpp v{A2+4*u+m_}, v{G_}, v{2+m_} row_newbcast:{u} row_mask:0xf bank_mask:0xf")
                    if u >= 1 and (u - 1) in ready: mf_wd(u - 1)
                a("    s_nop 1")
                if 7 in ready: mf_wd(7)
                seg_end()
            elif name.startswith("wd"):
                std()
                if have_h: mf_wd(int(name[2:]))
            if ffn and name == max(("ph", "wd7"), key=names.index) and name != names[-1]:
                a(f"""
    s_nop 7
    ds_write_b128 v{vOT}, {vr(DG,4)} offset:{L_OUT+2048}
    """)
                st_b[0] = True
        o1 = L_OUT // 256
        a(f"""
    s_add_u32 s99, s62, {PG-PL}
    s_nop 6
    ds_write_b128 v{vOT}, {vr(PD,4)} offset:{L_OUT}
    """)
        if ffn and not st_b[0]: a(f"    ds_write_b128 v{vOT}, {vr(DG,4)} offset:{L_OUT+2048}")
        a("    s_waitcnt lgkmcnt(0)")
        barrier()
        a(f"""
    ds_read2st64_b32 {vr(T,2)}, v{vt7} offset0:{o1} offset1:{o1+2}
    ds_read2st64_b32 {vr(T+2,2)}, v{vt7} offset0:{o1+4} offset1:{o1+6}
    s_cmp_ge_u32 s3, 2
    s_waitcnt lgkmcnt(0)
    v_add_f32 v{T}, v{T}, v{T+1}
    v_add_f32 v{T+2}, v{T+2}, v{T+3}
    v_add_f32 v{T}, v{T}, v{T+2}
    v_add_u32 v{T}, v{T}, v{vaddP}
    v_bfi_b32 v{T}, s70, v{vtagP}, v{T}
    """)
        seg_end()
        if ffn or not lazyg:
            if not ffn: a("    s_cbranch_scc1 Lt_nopub")
            a(f"""
    buffer_store_dword v{T}, v{vtid4}, s[40:43], s62 offen
    buffer_store_dword v{T}, v{vtid4}, s[40:43], s99 offen sc1
    """)
            if not ffn: a("Lt_nopub:")
        else:
            a(f"""
    s_mov_b32 s71, 1
    s_cbranch_scc1 R_p
    buffer_store_dword v{T}, v{vtid4}, s[40:43], s62 offen
    buffer_load_dwordx4 {vr(RA,4)}, v{vA}, s[40:43], s55 offen sc1
    buffer_load_dwordx4 {vr(RB,4)}, v{vB}, s[40:43], s55 offen sc1
    buffer_store_dword v{T}, v{vtid4}, s[40:43], s99 offen sc1
    """)
            stamp(10)
            a("""
    s_waitcnt vmcnt(1)
    s_branch R_c
    """)
            return
        stamp(10)

    path(True, "H")
    store_stamps()
    a("    s_endpgm")
    a("L_light:")
    path(False, "Lt")
    a(f"""
LtSEG3:
    s_mov_b32 s71, 0
R_p:
    s_add_u32 s71, s71, 1
    s_and_b32 s96, s71, {gper}
    s_cmp_eq_u32 s96, 0
    s_cselect_b32 s96, s54, s55
    """)
    with guard():
        a(f"""
    buffer_load_dwordx4 {vr(RA,4)}, v{vA}, s[40:43], s96 offen sc1
    buffer_load_dwordx4 {vr(RB,4)}, v{vB}, s[40:43], s96 offen sc1
    s_waitcnt vmcnt(0)
    """)
    a(f"""
R_c:
    v_msad_u8 v{ac}, v{RA}, s28, 0
    v_msad_u8 v{ac+1}, v{RA+1}, s29, 0
    v_msad_u8 v{ac}, v{RA+2}, s30, v{ac}
    v_msad_u8 v{ac+1}, v{RA+3}, s31, v{ac+1}
    v_msad_u8 v{ac}, v{RB}, s28, v{ac}
    v_msad_u8 v{ac+1}, v{RB+1}, s29, v{ac+1}
    v_msad_u8 v{ac}, v{RB+2}, s30, v{ac}
    v_msad_u8 v{ac+1}, v{RB+3}, s31, v{ac+1}
    v_or_b32 v{ac}, v{ac}, v{ac+1}
    v_cmp_ne_u32 vcc, 0, v{ac}
    s_cmp_eq_u32 s71, {spin_max}
    s_cbranch_scc1 R_ok
    s_cbranch_vccnz R_p
R_ok:
    """)
    for e in range(4): a(f"    v_mul_f32 v{RB+e}, v{RB+e}, v{vkeep}")
    a(f"""
    v_permlane32_swap_b32 v{RA}, v{RA+2}
    v_permlane32_swap_b32 v{RA+1}, v{RA+3}
    v_permlane32_swap_b32 v{RB}, v{RB+2}
    v_permlane32_swap_b32 v{RB+1}, v{RB+3}
    v_add_f32 v{RA}, v{RA}, v{RA+2}
    v_add_f32 v{RA+1}, v{RA+1}, v{RA+3}
    v_add_f32 v{RB}, v{RB}, v{RB+2}
    v_add_f32 v{RB+1}, v{RB+1}, v{RB+3}
    v_lshlrev_b32 v{vX}, 16, v{vX}
    v_permlane16_swap_b32 v{RA}, v{RA+1}
    v_permlane16_swap_b32 v{RB}, v{RB+1}
    v_add_f32 v{RA}, v{RA}, v{RA+1}
    v_add_f32 v{RB}, v{RB}, v{RB+1}
    s_nop 0
    v_add_f32_dpp v{RA}, v{RA}, v{RA} row_ror:8 row_mask:0xf bank_mask:0xf
    v_add_f32_dpp v{RB}, v{RB}, v{RB} row_ror:8 row_mask:0xf bank_mask:0xf
    """)
    if red1:
        a(f"""
    s_nop 0
    v_add_f32_dpp v{RA}, v{RA}, v{RA} row_ror:4 row_mask:0xf bank_mask:0xf
    v_add_f32_dpp v{RB}, v{RB}, v{RB} row_ror:4 row_mask:0xf bank_mask:0xf
    s_nop 0
    v_add_f32_dpp v{RA}, v{RA}, v{RA} row_ror:2 row_mask:0xf bank_mask:0xf
    v_add_f32_dpp v{RB}, v{RB}, v{RB} row_ror:2 row_mask:0xf bank_mask:0xf
    v_cvt_pk_bf16_f32 v{RA}, v{RA}, v{RB}
    v_lshlrev_b32 v{RB}, 16, v{RA}
    v_and_b32 v{RA}, 0xffff0000, v{RA}
    v_add_f32 v{RB}, v{RB}, v{vX}
    v_cvt_pk_bf16_f32 v{RB}, v{RB}, v{RB}
    v_and_b32 v{RB}, 0xffff0000, v{RB}
    v_add_f32 v{RA}, v{RA}, v{RB}
    v_cvt_pk_bf16_f32 v{RA}, v{RA}, v{RA}
    """)
        if warm: a("    s_cbranch_execz LtW_ret")
        a(f"""
    s_mov_b64 exec, s[56:57]
    buffer_store_short v{RA}, v{vO}, s[16:19], 0 offen
    s_or_b32 s96, s65, s3
    s_cmp_lg_u32 s96, 0
    s_cbranch_scc1 R_done
    v_mov_b32 v{RB}, s35
    v_mov_b32 v{RB+1}, 0
    s_mov_b64 exec, 1
    buffer_store_dword v{RB}, v{RB+1}, s[40:43], 0 offen offset:{EPOCH}
    """)
    else:
        raise NotImplementedError
    a(f"""
R_done:
    s_mov_b64 exec, -1
    """)
    stamp(9)
    store_stamps()
    a("""
L_end:
    s_endpgm
L_code_end:
    """)
    print(out, "vgprs", nv, "agprs", nagpr, "lds", LDS_BYTES)
    open(out, "w").write(wrap(a.text(), 256, 256, LDS_BYTES, vgpr=accum + nagpr, accum=accum))

if __name__ == "__main__":
    gen("k12.s", stamps=True)
    gen("k12_ns.s", stamps=False)
```

```python
import sys
from asmgen import *

STAMP_OFF = 128 << 20
NST = 12
EPOCH = 0
QP = 0x1000
OP = 0x40000
GU = 0x180000
OF = 0x20000
PL = 0x200000
PG = 0x240000
WS_SIZE = 256 << 20

L_RED = 0
L_G = 2048
L_TRASH = 6144
L_Q = 11264
L_S = 13440
L_OUT = 14848
L_OUT2 = 18944
L_FIN = 20992
L_V = 23040
LDS_BYTES = L_V + 16384

LOG2E = 0x3FB8AA3B
SCALE = 0x3DB504F3

class R:
    def __init__(self, start): self.n = start
    def a(self, k=1, al=1):
        self.n = (self.n + al - 1) // al * al
        r = self.n; self.n += k
        return r
def vr(b, n): return f"v[{b}:{b+n-1}]"
def ar(b, n): return f"a[{b}:{b+n-1}]"

class Sched:
    def __init__(self, a): self.a = a; self.items = []; self.issued = 0; self.nops = 0; self.pos = {}; self.blocked = set()
    def add(self, name, fn, n=1): self.items.append((name, fn, n))
    def issue(self):
        name, fn, n = self.items[self.issued]
        fn(); self.nops += n; self.pos[name] = self.nops; self.issued += 1
    def can(self): return self.issued < len(self.items) and self.items[self.issued][0] not in self.blocked
    def extra(self, n=1): self.nops += n
    def wait(self, name, sub=0):
        while name not in self.pos:
            assert self.can(), (name, self.items[self.issued][0])
            self.issue()
        cnt = self.nops - self.pos[name] + sub
        assert cnt <= 63
        self.a(f"    s_waitcnt vmcnt({cnt})")
    def index(self, name): return [i for i, it in enumerate(self.items) if it[0] == name][0]
    def topup(self, name, depth):
        i = self.index(name)
        while self.can() and self.issued - (i + 1) < depth: self.issue()
    def sprk(self, n):
        for _ in range(n):
            if self.can(): self.issue()
    def fork(self):
        o = Sched(self.a); o.items = list(self.items); o.issued = self.issued; o.nops = self.nops; o.pos = dict(self.pos); o.blocked = set(self.blocked)
        return o

class Proxy:
    def __init__(self, cur): object.__setattr__(self, "cur", cur)
    def __getattr__(self, k): return getattr(self.cur, k)
    def __setattr__(self, k, v):
        if k == "cur": object.__setattr__(self, k, v)
        else: setattr(self.cur, k, v)

def gen(out, stamps=True, nt=True, D=5, Dl=5, pq=23, pf=48, ph=45, lq=22, lo_sleep=48, spin_max=1 << 20, warm=True,
        k0=2, k1=0, k2=2, Dt=7, sprinkle=(2, 2, 1, 1), spr3=3, dmap=None, warm_extra=3, cnt=False, gper=7, local=True, sprg=1, mixU=True, oracle_q=False, ph_after_o=False, tail_step=0, wq_flags=" nt", nobar=False, kvs=False, lf_sleep=12, masked=True, c_bet=0, pf_late=False, hf_sleep=0, pure=False, pf_at=None, trlate=False, red1=True, lazyg=True, cps=(), dq=340, join="gu14", spr=(2, 2, 1)):
    a = Asm()
    NT = " nt" if nt else ""
    def stamp(i):
        if stamps: a(f"    s_memrealtime s[{72+2*i}:{73+2*i}]")
    def store_stamps():
        if not stamps: return
        lab = a.label("nost")
        a(f"""
    s_waitcnt lgkmcnt(0)
    s_cmp_lg_u32 s3, 0
    s_cbranch_scc1 {lab}
    s_mul_i32 s64, s2, {NST*8}
    s_add_u32 s64, s64, {STAMP_OFF}
    v_mov_b32 v20, 0
    s_mov_b64 exec, 1
    """)
        for i in range(NST):
            a(f"""
    v_mov_b32 v22, s{72+2*i}
    v_mov_b32 v23, s{73+2*i}
    buffer_store_dwordx2 v[22:23], v20, s[40:43], s64 offen offset:{8*i}
    s_nop 1
    """)
        a(f"{lab}:")
    def srd(base, lo, size):
        a(f"""
    s_mov_b32 s{base}, s{lo}
    s_mov_b32 s{base+1}, s{lo+1}
    s_mov_b32 s{base+2}, {size}
    s_mov_b32 s{base+3}, 0x20000
    """)
    class guard:
        def __enter__(self):
            self.l = a.label("G"); self.n = len(a.lines)
            if warm: a(f"    s_cbranch_execz {self.l}")
        def __exit__(self, *x):
            if warm:
                if len(a.lines) == self.n + 1: a.lines.pop()
                else: a(f"{self.l}:")
    def barrier():
        with guard(): a("    s_barrier")

    r = R(10)
    (vtagP, vaddP, vOT, vtid4, vPF, vG4, vWQ, vK, vWO, vPO, vQW, vQR, vSW, vSR, vTR, vred, vtag0, vGU, vGU2, vWD, vPH, vJ, vG,
     vOT2, vl4, vt7, vV) = [r.a() for _ in range(27)]
    XA = r.a(8, 4); XS = r.a(4, 4); T = r.a(24, 4); A = r.a(32, 4); QB = r.a(16, 4)
    D1 = r.a(4, 4); PD = r.a(16, 4); DG = r.a(8, 4); WQ = r.a(32, 4); KK = r.a(16, 4); VO = r.a(16, 4); G0 = r.a(16, 4); HG = r.a(4, 4)
    nv = r.n
    assert nv <= 256, nv
    accum = (nv + 3) // 4 * 4
    GW = 0; WD = 64; nagpr = 96
    A3 = KK; A2 = A; WO = WQ; OG = A; FF = QB
    assert VO == KK + 16

    a(f"""
    s_cmp_ge_u32 s2, 256
    s_cbranch_scc1 L_end
    s_load_dwordx16 s[4:19], s[0:1], 0
    s_load_dwordx8 s[20:27], s[0:1], 64
    """)
    if stamps:
        for i in range(1, NST): a(f"    s_mov_b64 s[{72+2*i}:{73+2*i}], 0")
    stamp(0)
    a("    s_memrealtime s[76:77]")
    a(f"""
    v_lshrrev_b32 v6, 6, v0
    v_and_b32 v1, 63, v0
    s_and_b32 s33, s2, 7            ; xcd
    v_readfirstlane_b32 s3, v6
    s_lshr_b32 s34, s2, 3           ; idx
    s_getpc_b64 s[96:97]
L_pc:
    s_lshl_b32 s64, s34, 2
    s_add_u32 s64, s64, s3
    s_lshl_b32 s64, s64, 7
    s_min_u32 s64, s64, L_code_end - L_pc - 4
    v_mov_b32 v9, s64
    global_load_dword v{vPF}, v9, s[96:97]
    v_lshlrev_b32 v6, 4, v1          ; lane*16
    v_lshrrev_b32 v7, 3, v1          ; l>>3
    v_and_b32 v8, 7, v1              ; l&7
    s_lshr_b32 s65, s33, 1           ; g
    s_and_b32 s66, s33, 1
    s_lshl_b32 s66, s66, 5
    s_add_u32 s66, s66, s34          ; m
    s_and_b32 s67, s66, 15           ; cb
    s_lshr_b32 s68, s66, 4           ; rq
    s_lshl_b32 s69, s68, 8
    s_lshl_b32 s64, s3, 6
    s_add_u32 s69, s69, s64          ; R0
    s_lshl_b32 s97, s69, 1
    v_lshlrev_b32 v9, 4, v7
    s_lshl_b32 s64, s69, 13
    s_lshl_b32 s96, s65, 11
    s_add_u32 s64, s64, s96
    s_lshl_b32 s96, s67, 7
    s_add_u32 s64, s64, s96
    v_lshlrev_b32 v{vWQ}, 16, v7
    v_lshl_add_u32 v{vWQ}, v8, 4, v{vWQ}
    v_add_u32 v{vWQ}, s64, v{vWQ}
    v_lshrrev_b32 v{vG}, 4, v1
    v_and_b32 v{vJ}, 15, v1
    s_mov_b32 s38, 2048
    s_mov_b32 s39, 0x20000
    s_mov_b32 s46, {8<<20}
    s_mov_b32 s47, 0x20000
    s_mov_b32 s64, 0
    s_waitcnt lgkmcnt(0)
    s_mov_b32 s36, s4
    s_mov_b32 s37, s5
    buffer_load_dwordx4 {vr(XA,4)}, v6, s[36:39], 0 offen
    buffer_load_dwordx4 {vr(XA+4,4)}, v6, s[36:39], 0 offen offset:1024
    buffer_load_dwordx4 {vr(XS,4)}, v9, s[36:39], s97 offen
    s_load_dword s28, s[26:27], {EPOCH}
    s_mov_b32 s44, s10
    s_mov_b32 s45, s11
    {"" if nobar else "s_barrier"}
    """)
    for t in range(8):
        a(f"    buffer_load_dwordx4 {vr(WQ+4*t,4)}, v{vWQ}, s[44:47], s64 offen{wq_flags}")
        if t < 7: a(f"    s_add_u32 s64, s64, 8192")
    a(f"""
    v_bfe_u32 v{T}, v0, 1, 2
    v_and_b32 v{T+1}, 1, v0
    v_lshlrev_b32 v{T+1}, 4, v{T+1}
    v_mov_b32 v9, 0xffff
    v_lshlrev_b32 v9, v{T+1}, v9
    v_cmp_eq_u32 vcc, 0, v{T}
    v_cmp_eq_u32 s[96:97], 1, v{T}
    v_cmp_eq_u32 s[98:99], 2, v{T}
    v_cmp_eq_u32 s[100:101], 3, v{T}
    v_cndmask_b32 v2, 0, v9, vcc
    v_cndmask_b32 v3, 0, v9, s[96:97]
    v_cndmask_b32 v4, 0, v9, s[98:99]
    v_cndmask_b32 v5, 0, v9, s[100:101]
    s_lshl_b32 s63, s65, 23
    s_lshl_b32 s96, s66, {8 if kvs else 14}
    s_add_u32 s63, s63, s96
    s_lshl_b32 s96, s3, {18 if kvs else 12}
    s_add_u32 s63, s63, s96
    s_add_u32 s63, s63, {28672*256}
    s_lshl_b32 s96, s3, 12
    s_add_u32 s96, s96, {L_V}
    s_mov_b32 m0, s96
    v_lshlrev_b32 v{vK}, {14 if kvs else 8}, v{vJ}
    v_lshl_add_u32 v{vK}, v{vG}, 4, v{vK}
    v_lshlrev_b32 v{vV}, {14 if kvs else 8}, v{vG}
    v_lshl_add_u32 v{vV}, v{vJ}, 4, v{vV}
    """)
    srd(48, 6, 32 << 20)
    srd(52, 8, 32 << 20)
    srd(40, 26, WS_SIZE)

    def allreduce2(x, y, t1, t2):
        for s_ in (8, 4, 2, 1):
            a(f"""
    s_nop 0
    v_add_f32_dpp v{x}, v{x}, v{x} row_ror:{s_} row_mask:0xf bank_mask:0xf
    v_add_f32_dpp v{y}, v{y}, v{y} row_ror:{s_} row_mask:0xf bank_mask:0xf
    """)
        for sw in ("v_permlane16_swap_b32", "v_permlane32_swap_b32"):
            a(f"""
    v_mov_b32 v{t1}, v{x}
    v_mov_b32 v{t2}, v{y}
    s_nop 0
    {sw} v{t1}, v{x}
    {sw} v{t2}, v{y}
    v_add_f32 v{x}, v{x}, v{t1}
    v_add_f32 v{y}, v{y}, v{t2}
    """)
    def allreduce1(x, t1, op="v_add_f32", steps=(8, 4, 2, 1)):
        for s_ in steps:
            a(f"""
    s_nop 1
    {op}_dpp v{x}, v{x}, v{x} row_ror:{s_} row_mask:0xf bank_mask:0xf
    """)
        for sw in ("v_permlane16_swap_b32", "v_permlane32_swap_b32"):
            a(f"""
    v_mov_b32 v{t1}, v{x}
    s_nop 1
    {sw} v{t1}, v{x}
    {op} v{x}, v{x}, v{t1}
    """)
    def rbf16(d, s_):
        a(f"""
    v_cvt_pk_bf16_f32 v{d}, v{s_}, v{s_}
    v_and_b32 v{d}, 0xffff0000, v{d}
    """)
    a(f"""
    v_lshrrev_b32 v{vred}, 2, v1
    v_xor_b32 v{vred}, v{vred}, v1
    v_and_b32 v{vred}, 8, v{vred}
    v_cmp_eq_u32 vcc, 0, v{vred}
    v_lshlrev_b32 v{vred}, 5, v8
    v_bfe_u32 v9, v1, 4, 1
    v_lshl_add_u32 v{vred}, v9, 4, v{vred}
    v_lshrrev_b32 v9, 5, v1
    v_lshl_add_u32 v{vred}, v9, 8, v{vred}
    s_lshl_b32 s64, s3, 9
    v_add_u32 v{vred}, s64, v{vred}
    v_add_u32 v9, {L_TRASH}, v6
    v_cndmask_b32 v{vred}, v9, v{vred}, vcc
    v_lshlrev_b32 v{vtid4}, 2, v0
    v_and_b32 v{vG4}, 3, v1
    v_lshlrev_b32 v{vtagP}, 3, v{vG4}
    s_lshl_b32 s44, s65, 14
    s_add_u32 s44, s44, {QP}
    s_lshl_b32 s45, s68, 12
    s_add_u32 s45, s45, s44
    s_lshl_b32 s96, s67, 8
    s_add_u32 s45, s45, s96
    s_waitcnt lgkmcnt(0)
    s_and_b32 s28, s28, 0x7f
    s_cmp_eq_u32 s28, 127
    s_cselect_b32 s28, 0, s28
    s_add_u32 s35, s28, 1
    s_add_u32 s29, s28, 33
    s_sub_u32 s64, s29, 127
    s_cmp_gt_u32 s29, 127
    s_cselect_b32 s29, s64, s29
    s_add_u32 s30, s28, 65
    s_sub_u32 s64, s30, 127
    s_cmp_gt_u32 s30, 127
    s_cselect_b32 s30, s64, s30
    s_add_u32 s31, s28, 97
    s_sub_u32 s64, s31, 127
    s_cmp_gt_u32 s31, 127
    s_cselect_b32 s31, s64, s31
    s_add_u32 s28, s28, 1
    s_lshl_b32 s32, s29, 8
    s_or_b32 s32, s32, s28
    s_lshl_b32 s64, s30, 16
    s_or_b32 s32, s32, s64
    s_lshl_b32 s64, s31, 24
    s_or_b32 s32, s32, s64
    s_movk_i32 s70, 0xff
    v_bfe_u32 v{vtagP}, s32, v{vtagP}, 8
    v_sub_u32 v{vaddP}, 0x80, v{vtagP}
    """)
    def kv_issue(i):
        if i < 4: a(f"    buffer_load_dwordx4 {vr(KK+4*i,4)}, v{vK}, s[48:51], s63 offen offset:{64*i}{NT}")
        else:
            so = "s63"
            if kvs and i > 4:
                a(f"    s_add_u32 s99, s63, {(i-4)*(65536-1024)}"); so = "s99"
            a(f"    buffer_load_dwordx4 v{vV}, s[52:55], {so} offen offset:{1024*(i-4)}{NT} lds")
    a(f"    s_waitcnt vmcnt(9)")
    stamp(1)
    for i in range(k0): kv_issue(i)
    for k in range(8):
        a(f"""
    v_lshlrev_b32 v{T+2*k}, 16, v{XA+k}
    v_and_b32 v{T+2*k+1}, 0xffff0000, v{XA+k}
    """)
    a(f"""
    v_readfirstlane_b32 s64, v{T}
    s_nop 1
    """)
    for k in range(16): a(f"    v_subrev_f32 v{T+k}, s64, v{T+k}")
    a(f"""
    v_pk_add_f32 {vr(T+16,2)}, {vr(T,2)}, {vr(T+2,2)}
    v_pk_mul_f32 {vr(T+18,2)}, {vr(T,2)}, {vr(T,2)}
    """)
    for k in range(1, 8):
        a(f"    v_pk_fma_f32 {vr(T+18,2)}, {vr(T+2*k,2)}, {vr(T+2*k,2)}, {vr(T+18,2)}")
        if k >= 2: a(f"    v_pk_add_f32 {vr(T+16,2)}, {vr(T+16,2)}, {vr(T+2*k,2)}")
    S1, S2, t1, t2 = T + 16, T + 18, T + 17, T + 19
    a(f"""
    v_add_f32 v{S1}, v{S1}, v{t1}
    v_add_f32 v{S2}, v{S2}, v{t2}
    s_nop 0
    """)
    allreduce2(S1, S2, t1, t2)
    mean, var, rs, sd = T, T + 1, T + 2, T + 3
    a(f"""
    v_mul_f32 v{S1}, 0x3a800000, v{S1}
    v_mul_f32 v{S2}, 0x3a800000, v{S2}
    v_add_f32 v{mean}, s64, v{S1}
    v_fma_f32 v{var}, -v{S1}, v{S1}, v{S2}
    v_max_f32 v{var}, 0, v{var}
    """)
    rbf16(mean, mean); rbf16(var, var)
    a(f"    v_add_f32 v{var}, 0x3727c5ac, v{var}")
    rbf16(var, var)
    a(f"""
    v_sqrt_f32 v{sd}, v{var}
    s_waitcnt vmcnt({8+k0})
    """)
    for i in range(k0, k0 + k1): kv_issue(i)
    rbf16(sd, sd)
    a(f"    v_rcp_f32 v{rs}, v{sd}")
    Dd = T + 4; Q = T + 12
    for k in range(4):
        a(f"""
    v_lshlrev_b32 v{Dd+2*k}, 16, v{XS+k}
    v_and_b32 v{Dd+2*k+1}, 0xffff0000, v{XS+k}
    """)
    for k in range(8): a(f"    v_sub_f32 v{Dd+k}, v{Dd+k}, v{mean}")
    for k in range(4): a(f"    v_cvt_pk_bf16_f32 v{XS+k}, v{Dd+2*k}, v{Dd+2*k+1}")
    for k in range(4):
        a(f"""
    v_lshlrev_b32 v{Dd+2*k}, 16, v{XS+k}
    v_and_b32 v{Dd+2*k+1}, 0xffff0000, v{XS+k}
    """)
    for k in range(8): a(f"    v_mul_f32 v{Q+k}, v{Dd+k}, v{rs}")
    for k in range(8): a(f"    v_fma_f32 v{Dd+k}, -v{Q+k}, v{sd}, v{Dd+k}")
    for k in range(8): a(f"    v_fmac_f32 v{Q+k}, v{Dd+k}, v{rs}")
    for k in range(8): a(f"    v_cvt_pk_bf16_f32 v{Q+k}, v{Q+k}, v{Q+k}")
    for k in range(8):
        for m_ in range(4): a(f"    v_and_b32 v{A+4*k+m_}, v{Q+k}, v{2+m_}")
    a(f"    s_add_u32 s76, s76, {dq}")
    for i in range(k0 + k1, k0 + k1 + k2): kv_issue(i)
    srd(56, 12, 8 << 20)
    srd(4, 16, 7 << 20)
    srd(8, 18, 7 << 20)
    srd(12, 20, 7 << 20)
    srd(16, 22, 2048)
    a(f"""
    s_add_u32 s64, s67, 4
    s_lshr_b32 s64, s64, 3
    s_mul_i32 s60, s65, 14
    s_add_u32 s60, s60, s67
    s_sub_u32 s60, s60, s64
    s_add_u32 s61, s60, {28 if mixU else 0}
    s_sub_u32 s64, s61, 56
    s_cmp_ge_u32 s61, 56
    s_cselect_b32 s61, s64, s61
    s_add_u32 s64, s34, 4
    s_lshr_b32 s64, s64, 3
    s_sub_u32 s62, s34, s64
    s_mul_i32 s64, s69, 7168
    v_mul_u32_u24 v{vGU}, {8*7168}, v7
    v_lshl_add_u32 v{vGU}, v8, 4, v{vGU}
    s_lshl_b32 s96, s61, 7
    s_add_u32 s96, s96, s64
    v_add_u32 v{vGU2}, s96, v{vGU}
    s_lshl_b32 s96, s60, 7
    s_add_u32 s96, s96, s64
    v_add_u32 v{vGU}, s96, v{vGU}
    s_lshl_b32 s60, s60, 11
    s_lshl_b32 s61, s61, 11
    s_add_u32 s61, s61, 1024
    s_cmp_eq_u32 s3, 0
    s_cselect_b32 s60, s60, s61
    s_lshl_b32 s64, s68, 8
    s_add_u32 s60, s60, s64
    s_add_u32 s60, s60, {GU}
    s_lshl_b32 s61, s62, 12
    s_lshr_b32 s64, s3, 1
    s_lshl_b32 s64, s64, 11
    s_add_u32 s61, s61, s64
    s_and_b32 s64, s3, 1
    s_lshl_b32 s64, s64, 7
    s_add_u32 s61, s61, s64
    s_add_u32 s61, s61, {GU}
    v_bfe_u32 v9, v1, 3, 1
    v_lshlrev_b32 v{vPH}, 8, v9
    v_lshl_add_u32 v{vPH}, v{vG}, 5, v{vPH}
    v_lshl_add_u32 v{vPH}, v8, 2, v{vPH}
    ; wd voffset = (128j + 32w + 8G)*2048 + 256x + 16jj
    s_lshl_b32 s64, s62, 18
    s_lshl_b32 s96, s3, 16
    s_add_u32 s64, s64, s96
    s_lshl_b32 s96, s33, 8
    s_add_u32 s64, s64, s96
    v_lshlrev_b32 v{vWD}, 14, v{vG}
    v_lshl_add_u32 v{vWD}, v{vJ}, 4, v{vWD}
    v_add_u32 v{vWD}, s64, v{vWD}
    s_lshl_b32 s62, s33, 5
    s_add_u32 s62, s62, s34
    s_lshl_b32 s62, s62, 10
    s_add_u32 s62, s62, {PL}
    v_and_b32 v{vt7}, 511, v{vtid4}
    s_lshr_b32 s64, s3, 1
    s_lshl_b32 s64, s64, 11
    v_add_u32 v{vt7}, s64, v{vt7}
    v_lshlrev_b32 v{vl4}, 2, v1
    v_mul_u32_u24 v{vSW}, 144, v8
    v_lshl_add_u32 v{vSR}, v{vG}, 4, v{vSW}
    v_lshl_add_u32 v{vSR}, v9, 6, v{vSR}
    v_bfe_u32 v9, v1, 4, 1
    v_lshlrev_b32 v{vOT}, 5, v{vJ}
    v_lshl_add_u32 v{vOT}, v9, 4, v{vOT}
    s_lshl_b32 s64, s3, 9
    v_add_u32 v{vOT}, s64, v{vOT}
    s_lshl_b32 s67, s34, 2
    s_add_u32 s67, s67, s3
    s_lshr_b32 s64, s67, 5
    s_lshl_b32 s64, s64, 10
    s_bfe_u32 s96, s67, 0x20003
    s_lshl_b32 s96, s96, 5
    s_add_u32 s64, s64, s96
    s_and_b32 s96, s67, 1
    s_lshl_b32 s96, s96, 4
    s_add_u32 s64, s64, s96
    s_bfe_u32 s96, s67, 0x20001
    s_lshl_b32 s96, s96, 2
    s_add_u32 s64, s64, s96
    s_lshl_b32 s64, s64, 11
    s_lshl_b32 s96, s33, 8
    s_add_u32 s64, s64, s96
    v_lshlrev_b32 v{vWO}, 11, v{vG}
    v_lshl_add_u32 v{vWO}, v{vJ}, 4, v{vWO}
    v_add_u32 v{vWO}, s64, v{vWO}
    s_lshl_b32 s69, s67, 7
    s_add_u32 s69, s69, {OF}
    v_lshlrev_b32 v{vOT2}, 5, v{vG}
    v_lshl_add_u32 v{vOT2}, v8, 2, v{vOT2}   ; vOF = (8G + (l&7))*4
    v_mul_u32_u24 v{vQR}, 272, v8
    v_lshl_add_u32 v{vQR}, v{vG}, 4, v{vQR}
    v_lshl_add_u32 v{vSW}, v{vG}, 3, v{vSW}
    s_lshl_b32 s96, s3, 5
    v_add_u32 v{vSW}, s96, v{vSW}
    v_bfe_u32 v9, v1, 2, 2
    v_lshl_add_u32 v{vTR}, v{vG}, 3, v9
    v_lshlrev_b32 v{vTR}, 8, v{vTR}
    v_lshlrev_b32 v9, 3, v{vG4}
    s_lshl_b32 s64, s3, 6
    v_add3_u32 v{vTR}, v{vTR}, v9, s64
    v_lshrrev_b32 v{vQW}, 5, v0
    v_and_b32 v9, 31, v0
    v_mul_u32_u24 v{vQW}, 272, v{vQW}
    v_lshl_add_u32 v{vQW}, v9, 3, v{vQW}
    s_lshl_b32 s97, s3, 10
    s_add_u32 s20, s44, s97
    s_lshl_b32 s22, s65, 18
    s_add_u32 s22, s22, {OP}
    s_lshl_b32 s96, s66, 12
    s_add_u32 s23, s22, s96
    s_add_u32 s23, s23, s97
    s_and_b32 s46, s32, 0xffff
    s_mov_b32 s47, 0x03020302
    s_mov_b32 s24, {SCALE}
    s_mov_b32 s25, {LOG2E}
    s_mov_b32 s26, 0x07060500
    s_mov_b32 s27, 0x07060501
    s_mov_b32 s66, 0x07060502
    s_mov_b32 s67, 0x07060503
    s_mov_b32 s68, 0x0c04000c
    s_lshl_b32 s21, s3, 11
    v_add_u32 v{vt7+0 if False else XS}, s21, v{vl4}
    """)
    vGR = XS; vOF = vOT2
    PSEL = (26, 27, 66, 67)
    def red8(Rr, vaddr, o):
        a(f"""
    ds_read2st64_b32 {vr(Rr,2)}, v{vaddr} offset0:{o} offset1:{o+1}
    ds_read2st64_b32 {vr(Rr+2,2)}, v{vaddr} offset0:{o+2} offset1:{o+3}
    ds_read2st64_b32 {vr(Rr+4,2)}, v{vaddr} offset0:{o+4} offset1:{o+5}
    ds_read2st64_b32 {vr(Rr+6,2)}, v{vaddr} offset0:{o+6} offset1:{o+7}
    s_waitcnt lgkmcnt(0)
    v_add_f32 v{Rr}, v{Rr}, v{Rr+1}
    v_add_f32 v{Rr+2}, v{Rr+2}, v{Rr+3}
    v_add_f32 v{Rr+4}, v{Rr+4}, v{Rr+5}
    v_add_f32 v{Rr+6}, v{Rr+6}, v{Rr+7}
    v_add_f32 v{Rr}, v{Rr}, v{Rr+2}
    v_add_f32 v{Rr+4}, v{Rr+4}, v{Rr+6}
    v_add_f32 v{Rr}, v{Rr}, v{Rr+4}
    v_add_u32 v{Rr}, v{Rr}, v{vaddP}
    v_bfi_b32 v{Rr}, s70, v{vtagP}, v{Rr}
    """)
    nk = k0 + k1 + k2
    for t in range(8):
        a(f"    s_waitcnt vmcnt({7 - t + nk})")
        srcc = "0" if t == 0 else vr(D1, 4)
        a(f"    v_mfma_f32_16x16x32_bf16 {vr(D1,4)}, {vr(A+4*t,4)}, {vr(WQ+4*t,4)}, {srcc}")
        while nk < 8 and t < 7 and (7 - t) + nk < Dt:
            kv_issue(nk); nk += 1
    kpre = nk
    a(f"""
    s_nop 7
    ds_write_b128 v{vred}, {vr(D1,4)} offset:{L_RED}
    s_waitcnt lgkmcnt(0)
    s_barrier
    s_cmp_lg_u32 s3, 0
    s_cbranch_scc1 L_nored
    """)
    red8(T, vl4, L_RED // 256)
    a(f"""
    buffer_store_dword v{T}, v{vl4}, s[40:43], s45 offen sc1
L_nored:
    """)
    stamp(3)
    a("""
    s_and_b32 s64, s34, 7
    s_cmp_eq_u32 s64, 3
    s_cbranch_scc1 L_light
    """)

    def merge2(X, Y, steps=(8, 4)):
        a(f"""
    v_mov_b32 v{Y+1}, v{Y}
    s_nop 0
    v_permlane32_swap_b32 v{X}, v{X+2}
    v_permlane32_swap_b32 v{X+1}, v{X+3}
    v_permlane32_swap_b32 v{Y+1}, v{Y}
    v_add_f32 v{X}, v{X}, v{X+2}
    v_add_f32 v{X+1}, v{X+1}, v{X+3}
    v_add_f32 v{Y}, v{Y}, v{Y+1}
    s_nop 0
    v_mov_b32 v{Y+1}, v{Y}
    v_permlane16_swap_b32 v{X}, v{X+1}
    s_nop 0
    v_permlane16_swap_b32 v{Y+1}, v{Y}
    v_add_f32 v{X}, v{X}, v{X+1}
    v_add_f32 v{Y}, v{Y}, v{Y+1}
    """)
        for s_ in steps:
            a(f"""
    s_nop 0
    v_add_f32_dpp v{X}, v{X}, v{X} row_ror:{s_} row_mask:0xf bank_mask:0xf
    v_add_f32_dpp v{Y}, v{Y}, v{Y} row_ror:{s_} row_mask:0xf bank_mask:0xf
    """)

    vA, vB, vkeep, vX, vO, vF = XA, XA + 1, XA + 2, XA + 3, XA + 4, XA + 5
    RA = G0; RB = G0 + 8; ac = T + 6
    def red_pre():
        if red1: return red_pre1()
        a(f"""
    s_lshl_b32 s54, s65, 6
    v_lshlrev_b32 v{vO}, 1, v1
    v_add_u32 v{vO}, s54, v{vO}
    buffer_load_ushort v{vX}, v{vO}, s[36:39], 0 offen
    v_lshlrev_b32 v{vA}, 10, v7
    v_lshl_add_u32 v{vA}, v8, 4, v{vA}
    v_cmp_ne_u32 vcc, 3, v7
    v_add_u32 v{vB}, 512, v{vA}
    v_lshlrev_b32 v{vF}, 2, v{vG}
    v_cndmask_b32 v{vB}, v{vA}, v{vB}, vcc
    v_cndmask_b32 v{vkeep}, 0, 1.0, vcc
    v_lshl_add_u32 v{vF}, v8, 4, v{vF}
    s_lshl_b32 s96, s3, 8
    v_add_u32 v{vF}, s96, v{vF}
    s_lshl_b32 s55, s33, 15
    s_lshl_b32 s96, s3, 13
    s_add_u32 s55, s55, s96
    s_lshr_b32 s64, s34, 3
    s_lshl_b32 s64, s64, 7
    s_add_u32 s55, s55, s64
    s_add_u32 s54, s55, {PG}
    s_add_u32 s55, s55, {PL if local else PG}
    """)

    def red_pre1():
        a(f"""
    s_lshl_b32 s54, s65, 5
    s_lshl_b32 s96, s3, 3
    s_add_u32 s54, s54, s96
    v_and_b32 v{vF}, 1, v1
    v_lshl_add_u32 v{vO}, v{vF}, 2, v{vG}
    v_add_u32 v{vO}, s54, v{vO}
    v_lshlrev_b32 v{vO}, 1, v{vO}
    buffer_load_ushort v{vX}, v{vO}, s[36:39], 0 offen
    v_lshrrev_b32 v{vA}, 1, v1
    v_and_b32 v{vB}, 7, v{vA}
    v_cmp_ne_u32 vcc, 3, v{vB}
    v_lshlrev_b32 v{vA}, 10, v{vA}
    v_lshl_add_u32 v{vA}, v{vF}, 4, v{vA}
    v_add_u32 v{vB}, 512, v{vA}
    v_cndmask_b32 v{vB}, v{vA}, v{vB}, vcc
    v_cndmask_b32 v{vkeep}, 0, 1.0, vcc
    v_and_b32 v{vF}, 14, v1
    v_cmp_eq_u32 s[56:57], 0, v{vF}
    s_lshl_b32 s55, s33, 15
    s_lshr_b32 s64, s34, 3
    s_lshl_b32 s64, s64, 7
    s_add_u32 s55, s55, s64
    s_lshl_b32 s96, s3, 5
    s_add_u32 s55, s55, s96
    s_add_u32 s54, s55, {PG}
    s_add_u32 s55, s55, {PL if local else PG}
    """)

    def pollq0():
        a(f"    buffer_load_dwordx4 {vr(G0,4)}, v6, s[40:43], s20 offen sc1")
        for k in range(1, 4):
            a(f"    s_add_u32 s99, s20, {4096*k}")
            a(f"    buffer_load_dwordx4 {vr(G0+4*k,4)}, v6, s[40:43], s99 offen sc1")
    def retry0(lab, fn, check):
        if cnt:
            a(f"""
    s_nop 1
    s_cbranch_vccz {lab}_c
    s_add_u32 s94, s94, 100
    s_addc_u32 s95, s95, 0
{lab}_c:
    """)
        a(f"""
    s_nop 1
    s_cbranch_vccz {lab}_ok
    s_mov_b32 s71, {spin_max}
{lab}:
    """)
        fn()
        a("    s_waitcnt vmcnt(0)")
        check(True)
        a(f"""
    s_sub_u32 s71, s71, 1
    s_cmp_eq_u32 s71, 0
    s_cbranch_scc1 {lab}_ok
    s_cbranch_vccnz {lab}
{lab}_ok:
    """)
    def t2_subs():
        acc = T
        def chk(re):
            a(f"""
    v_mov_b32 v{acc}, 0
    v_mov_b32 v{acc+1}, 0
    """)
            for k in range(4):
                for e in range(4): a(f"    v_msad_u8 v{acc+(e&1)}, v{G0+4*k+e}, s{28+e}, v{acc+(e&1)}")
            a(f"""
    v_or_b32 v{acc}, v{acc}, v{acc+1}
    v_cmp_ne_u32 vcc, 0, v{acc}
    """)
        a("T2A:")
        chk(False)
        retry0("T2rq", pollq0, chk)
        with guard(): stamp(4)
        QS = T + 4
        a(f"""
    v_pk_add_f32 {vr(QS,2)}, {vr(G0,2)}, {vr(G0+4,2)}
    v_pk_add_f32 {vr(QS+2,2)}, {vr(G0+2,2)}, {vr(G0+6,2)}
    v_pk_add_f32 {vr(QS+4,2)}, {vr(G0+8,2)}, {vr(G0+12,2)}
    v_pk_add_f32 {vr(QS+6,2)}, {vr(G0+10,2)}, {vr(G0+14,2)}
    v_pk_add_f32 {vr(QS,2)}, {vr(QS,2)}, {vr(QS+4,2)}
    v_pk_add_f32 {vr(QS+2,2)}, {vr(QS+2,2)}, {vr(QS+6,2)}
    v_cvt_pk_bf16_f32 v{QS}, v{QS}, v{QS+1}
    v_cvt_pk_bf16_f32 v{QS+1}, v{QS+2}, v{QS+3}
    ds_write_b64 v{vQW}, {vr(QS,2)} offset:{L_Q}
    """)
        a("    s_waitcnt lgkmcnt(0)")
        barrier()
        a(f"""
    ds_read_b128 {vr(QB,4)}, v{vQR} offset:{L_Q}
    ds_read_b128 {vr(QB+4,4)}, v{vQR} offset:{L_Q+64}
    ds_read_b128 {vr(QB+8,4)}, v{vQR} offset:{L_Q+128}
    ds_read_b128 {vr(QB+12,4)}, v{vQR} offset:{L_Q+192}
    """)
        for t in range(4):
            srcc = "0" if t == 0 else vr(D1, 4)
            a(f"    s_waitcnt lgkmcnt({3-t})")
            a(f"    v_mfma_f32_16x16x32_bf16 {vr(D1,4)}, {vr(KK+4*t,4)}, {vr(QB+4*t,4)}, {srcc}")
        Sx = T + 4
        a(f"""
    s_nop 7
    v_cvt_pk_bf16_f32 v{T}, v{D1}, v{D1+1}
    v_cvt_pk_bf16_f32 v{T+1}, v{D1+2}, v{D1+3}
    v_lshlrev_b32 v{Sx}, 16, v{T}
    v_and_b32 v{Sx+1}, 0xffff0000, v{T}
    v_lshlrev_b32 v{Sx+2}, 16, v{T+1}
    v_and_b32 v{Sx+3}, 0xffff0000, v{T+1}
    v_mul_f32 v{Sx}, s24, v{Sx}
    v_mul_f32 v{Sx+1}, s24, v{Sx+1}
    v_mul_f32 v{Sx+2}, s24, v{Sx+2}
    v_mul_f32 v{Sx+3}, s24, v{Sx+3}
    v_cvt_pk_bf16_f32 v{T}, v{Sx}, v{Sx+1}
    v_cvt_pk_bf16_f32 v{T+1}, v{Sx+2}, v{Sx+3}
    ds_write_b64 v{vSW}, {vr(T,2)} offset:{L_S}
    s_setpc_b64 s[100:101]
T2B:
    s_waitcnt lgkmcnt(0)
    """)
        barrier()
        mx, tmp, lsum, wv, rl = T + 12, T + 13, T + 14, T + 15, T + 16
        Pp = T + 20
        a(f"""
    ds_read_b128 {vr(T,4)}, v{vSR} offset:{L_S}
    """)
        a("    s_waitcnt lgkmcnt(0)")
        for k in range(4):
            a(f"""
    v_lshlrev_b32 v{Sx+2*k}, 16, v{T+k}
    v_and_b32 v{Sx+2*k+1}, 0xffff0000, v{T+k}
    """)
        a(f"""
    v_max3_f32 v{mx}, v{Sx}, v{Sx+1}, v{Sx+2}
    v_max3_f32 v{tmp}, v{Sx+3}, v{Sx+4}, v{Sx+5}
    v_max3_f32 v{mx}, v{Sx+6}, v{Sx+7}, v{mx}
    v_max_f32 v{mx}, v{mx}, v{tmp}
    """)
        allreduce1(mx, tmp, op="v_max_f32", steps=(8,))
        a(f"    v_mul_f32 v{mx}, s25, v{mx}")
        for k in range(8): a(f"    v_fma_f32 v{Sx+k}, v{Sx+k}, s25, -v{mx}")
        for k in range(8): a(f"    v_exp_f32 v{Sx+k}, v{Sx+k}")
        for k in range(4): a(f"    v_cvt_pk_bf16_f32 v{Pp+k}, v{Sx+2*k}, v{Sx+2*k+1}")
        a(f"""
    v_pk_add_f32 {vr(T,2)}, {vr(Sx,2)}, {vr(Sx+2,2)}
    v_pk_add_f32 {vr(T+2,2)}, {vr(Sx+4,2)}, {vr(Sx+6,2)}
    """)
        for sc in (0, 2, 1, 3):
            a(f"    v_mfma_f32_16x16x32_bf16 {vr(PD+4*sc,4)}, {vr(VO+4*sc,4)}, {vr(Pp,4)}, 0")
        a(f"""
    v_pk_add_f32 {vr(T,2)}, {vr(T,2)}, {vr(T+2,2)}
    v_add_f32 v{lsum}, v{T}, v{T+1}
    """)
        allreduce1(lsum, tmp, steps=(8,))
        X = D1
        a(f"""
    v_log_f32 v{wv}, v{lsum}
    v_rcp_f32 v{rl}, v{lsum}
    """)
        for e in range(4): a(f"    v_add_f32_dpp v{X+e}, v{PD+8+e}, v{PD+e} row_ror:8 row_mask:0xf bank_mask:0x3")
        a(f"    v_add_f32 v{wv}, v{wv}, v{mx}")
        for e in range(4): a(f"    v_add_f32_dpp v{X+e}, v{PD+4+e}, v{PD+12+e} row_ror:8 row_mask:0xf bank_mask:0xc")
        a(f"""
    v_add_u32 v{wv}, 0x80, v{wv}
    v_bfi_b32 v{wv}, s70, v{vtagP}, v{wv}
    """)
        for e in range(4): a(f"    v_mul_f32 v{X+e}, v{X+e}, v{rl}")
        for e in range(4): a(f"    v_perm_b32 v{X+e}, v{X+e}, v{wv}, s{PSEL[e]}")
        with guard():
            a(f"    buffer_store_dwordx4 {vr(X,4)}, v6, s[40:43], s23 offen sc1")
            stamp(5)
        a("    s_setpc_b64 s[100:101]")

    def path(ffn, P):
        S = Proxy(Sched(a))
        def seg_end():
            if warm: a(f"    s_cbranch_execz {P}W_ret")
        def gsprk(n):
            with guard(): S.sprk(n)
        def gwait(name, sub=0):
            with guard(): S.wait(name, sub)
        for t in range(8):
            S.items.append((f"wq{t}", None, 1)); S.nops += 1; S.pos[f"wq{t}"] = S.nops; S.issued += 1
        base = []
        for i in range(8): base.append((f"kv{i}", (lambda i=i: kv_issue(i)), 1))
        def mk_gu(i):
            t, mat = i // 2, i % 2
            def f():
                so = "0"
                if t: a(f"    s_mov_b32 s99, {t*7168}"); so = "s99"
                a(f"    buffer_load_dwordx4 {ar(GW+4*i,4)}, v{vGU2 if mat else vGU}, s[{4+4*mat}:{7+4*mat}], {so} offen{NT}")
            return f
        def mk_wo(k):
            def f():
                so = "0"
                if k: a(f"    s_mov_b32 s99, {k*0x40000}"); so = "s99"
                a(f"    buffer_load_dwordx4 {vr(WO+4*k,4)}, v{vWO}, s[56:59], {so} offen{NT}")
            return f
        def mk_wd(k):
            def f():
                so = "0"
                if k >= 2: a(f"    s_movk_i32 s99, {(k & ~1)*2048}"); so = "s99"
                a(f"    buffer_load_dwordx4 {ar(WD+4*k,4)}, v{vWD}, s[12:15], {so} offen offset:{(k&1)*2048}{NT}")
            return f
        def pollq():
            if oracle_q:
                for k in range(4): a(f"    buffer_load_dwordx4 {vr(G0+4*k,4)}, v6, s[36:39], 0 offen")
                return
            a(f"    buffer_load_dwordx4 {vr(G0,4)}, v6, s[40:43], s20 offen sc1")
            for k in range(1, 4):
                a(f"    s_add_u32 s99, s20, {4096*k}")
                a(f"    buffer_load_dwordx4 {vr(G0+4*k,4)}, v6, s[40:43], s99 offen sc1")
        def pollf():
            a(f"    buffer_load_dword v{G0}, v{vOF}, s[40:43], s69 offen sc1")
        def pollh():
            for k in range(4): a(f"    buffer_load_dword v{HG+k}, v{vPH}, s[40:43], s61 offen offset:{512*k} sc1")
        if ffn:
            for i in range(16): base.append((f"gu{i}", mk_gu(i), 1))
        for k in range(8): base.append((f"wo{k}", mk_wo(k), 1))
        if ffn:
            for k in range(8): base.append((f"wd{k}", mk_wd(k), 1))
        Pl = [] if pure else [(pq, ("pq", pollq, 4)), (ph, ("ph", pollh, 4)), (pf, ("pf", pollf, 1))] if ffn else [(lq, ("pq", pollq, 4)), (98, ("comb", lambda: None, 0)), (99, ("pf", pollf, 1))]
        for i, it in enumerate(base):
            for p, pit in Pl:
                if p == i + 8: S.add(*pit)
            S.add(*it)
        for p, pit in Pl:
            if p >= len(base) + 8: S.add(*pit)
        for i in range(kpre):
            name = S.items[S.issued][0]; assert name == f"kv{i}"
            S.nops += 1; S.pos[name] = S.nops; S.issued += 1
        names = [it[0] for it in S.items]
        S.blocked |= {"ph"} | (set() if (ffn and not pf_late) else {"pf"})
        def retry(lab, fn, check):
            if oracle_q and lab.endswith("rq"): return
            if cnt:
                bit = {"rq": 100, "rf": 1000, "rh": 10000}[lab[-2:]]
                a(f"""
    s_nop 1
    s_cbranch_vccz {lab}_c
    s_add_u32 s94, s94, {bit}
    s_addc_u32 s95, s95, 0
{lab}_c:
    """)
            a(f"""
    s_nop 1
    s_cbranch_vccz {lab}_ok
    s_mov_b32 s71, {spin_max}
{lab}:
    """)
            fn()
            a("    s_waitcnt vmcnt(0)")
            check(True)
            a(f"""
    s_sub_u32 s71, s71, 1
    s_cmp_eq_u32 s71, 0
    s_cbranch_scc1 {lab}_ok
    s_cbranch_vccnz {lab}
{lab}_ok:
    """)
        if pure:
            for name in names:
                if name.startswith("wq"): continue
                S.wait(name); S.topup(name, D if ffn else Dl)
                if name == "kv7": stamp(4)
                if name == "gu7": stamp(5)
                if name == "gu15": stamp(8)
                if name == "wo7": stamp(7)
                if name == "wd7": stamp(10)
            if not ffn:
                stamp(9); store_stamps(); a("    s_endpgm\nLtW_ret:")
                red_pre()
            return
        S.blocked.add("pq"); S.sprk(warm_extra); S.blocked.discard("pq")
        if warm:
            a(f"""
    s_mov_b64 exec, 0
    s_cmp_eq_u32 s3, 2
    s_cbranch_scc1 {P}SEG2
    s_cmp_eq_u32 s3, 3
    s_cbranch_scc1 {P}SEG3
    s_cmp_eq_u32 s3, 1
    s_cbranch_scc1 {P}W_1
    s_call_b64 s[100:101], T2A
    s_branch {P}W_ret
{P}W_1:
    s_call_b64 s[100:101], T2B
{P}W_ret:
    s_mov_b64 exec, -1
    """)
        if cnt: a('    s_waitcnt lgkmcnt(0)\n    s_mov_b64 s[94:95], s[72:73]')
        else: stamp(11)
        st_b = [False]; skipwait = [False]
        DD = D if ffn else Dl
        def tr_reads():
            for s_ in range(2):
                for c in range(2):
                    for h in range(2):
                        a(f"    ds_read_b64_tr_b16 {vr(VO+(s_*2+c)*4+2*h,2)}, v{vTR} offset:{L_V + s_*8192 + h*1024 + c*32}")
        def mf_wo(k):
            srcc = "0" if k == 0 else vr(PD, 4)
            a(f"    v_mfma_f32_16x16x32_bf16 {vr(PD,4)}, {vr(A3+4*k,4)}, {vr(WO+4*k,4)}, {srcc}")
        def mf_wd(k):
            srcc = "0" if k == 0 else vr(DG, 4)
            a(f"    v_mfma_f32_16x16x32_bf16 {vr(DG,4)}, {vr(A2+4*k,4)}, {ar(WD+4*k,4)}, {srcc}")
        st = dict(o=False, h=False); forks = []
        def step(name, main=True):
            depth = DD
            if dmap and ffn:
                for k_, v_ in dmap:
                    if names.index(name) >= k_: depth = v_
            def cp():
                if ffn and main and name in cps:
                    assert "pq" not in S.pos
                    a(f"""
    s_memrealtime s[96:97]
    s_waitcnt lgkmcnt(0)
    s_sub_u32 s96, s96, s76
    s_cmp_ge_i32 s96, 0
    s_cbranch_scc1 V_{name}
    """)
                    forks.append((name, S.fork()))
            def std():
                with guard():
                    if not skipwait[0]: S.wait(name)
                    cp()
                    if ffn and pf_at == name: S.blocked -= {"pf"}
                    S.topup(name, depth)
            if name.startswith("wq"):
                pass
            elif name.startswith("kv"):
                std()
                if name == "kv7" and not trlate:
                    a("    s_barrier")
                    tr_reads()
            elif name.startswith("gu"):
                i = int(name[2:]); t, mat = i // 2, i % 2
                with guard():
                    if not skipwait[0]: S.wait(name)
                cp()
                srcc = "0" if t == 0 else vr(DG + 4 * mat, 4)
                a(f"    v_mfma_f32_16x16x32_bf16 {vr(DG+4*mat,4)}, {vr(A+4*t,4)}, {ar(GW+4*i,4)}, {srcc}")
                with guard(): S.topup(name, depth + (sprg if i == 15 else 0))
                if i == 15:
                    a(f"""
    s_nop 6
{P}SEG3:
    ds_write_b128 v{vred}, {vr(DG,4)} offset:{L_G}
    ds_write_b128 v{vred}, {vr(DG+4,4)} offset:{L_G+2048}
    s_waitcnt lgkmcnt(0)
    """)
                    with guard():
                        a(f"""
    s_barrier
    s_cmp_ge_u32 s3, 2
    s_cbranch_scc1 {P}nogu
    """)
                    red8(T, vGR, L_G // 256)
                    if warm: a(f"    s_cbranch_execz {P}SEG3b")
                    a(f"""
    buffer_store_dword v{T}, v{vl4}, s[40:43], s60 offen sc1
{P}nogu:
    """)
                    stamp(8)
                    S.blocked -= {"ph"}
            elif name == "pq":
                S.wait("pq")
                S.topup(name, depth); S.sprk(spr[0])
                a("    s_call_b64 s[100:101], T2A")
                S.sprk(spr[1])
                a("    s_call_b64 s[100:101], T2B")
                S.extra(1)
                S.sprk(spr[2])
            elif name == "comb":
                a(f"""
    v_lshlrev_b32 v{vPO}, 12, v7
    v_lshl_add_u32 v{vPO}, v8, 4, v{vPO}
    s_lshr_b32 s64, s34, 3
    s_lshl_b32 s65, s33, 2
    s_add_u32 s65, s65, s64           ; lam
    s_lshl_b32 s64, s65, 2
    s_add_u32 s64, s64, s3
    s_lshl_b32 s60, s64, 7
    s_add_u32 s60, s60, {OF}
    s_and_b32 s64, s64, 31
    s_lshl_b32 s64, s64, 7
    s_add_u32 s22, s22, s64
    s_mov_b32 s71, {spin_max}
    s_mov_b32 s52, 0x01010101
    s_mov_b32 s53, 0x01010101
    """)
                MS = [4, 6, 8, 10, 12, 14, 48, 50]
                for t in range(8): a(f"    s_mov_b64 s[{MS[t]}:{MS[t]+1}], -1")
                red_pre()
                a(f"""
    s_waitcnt vmcnt(0)
    {f"s_sleep {lo_sleep}" if lo_sleep else ""}
C_poll:
    """)
                for t in range(8):
                    a(f"""
    s_mov_b64 exec, s[{MS[t]}:{MS[t]+1}]
    s_cbranch_execz C_i{t}
    s_add_u32 s99, s22, {t*32768}
    buffer_load_dwordx4 {vr(OG+4*t,4)}, v{vPO}, s[40:43], s99 offen sc1
C_i{t}:
    """)
                a("    s_mov_b64 exec, -1\n    s_waitcnt vmcnt(0)")
                a(f"{P}SEG2:")
                for t in range(8):
                    a(f"""
    v_msad_u8 v{T+t}, v{OG+4*t}, v{vtagP}, 0
    v_perm_b32 v{FF+t}, v{OG+4*t+2}, v{OG+4*t+1}, s68
    v_lshl_or_b32 v{FF+t}, v{OG+4*t+3}, 24, v{FF+t}
    """)
                a(f"""
    v_or3_b32 v{T+8}, v{T}, v{T+1}, v{T+2}
    v_or3_b32 v{T+9}, v{T+3}, v{T+4}, v{T+5}
    v_or3_b32 v{T+8}, v{T+6}, v{T+7}, v{T+8}
    v_or_b32 v{T+8}, v{T+8}, v{T+9}
    v_cmp_ne_u32 vcc, 0, v{T+8}
    v_max3_f32 v{T+10}, v{FF}, v{FF+1}, v{FF+2}
    v_max3_f32 v{T+11}, v{FF+3}, v{FF+4}, v{FF+5}
    s_cbranch_vccz C_ok
    """)
                for t in range(8): a(f"    v_cmp_ne_u32 s[{MS[t]}:{MS[t]+1}], 0, v{T+t}")
                a("    s_nop 1")
                for t in range(8):
                    m = f"s[{MS[t]}:{MS[t]+1}]"
                    if masked:
                        a(f"""
    s_lshr_b64 s[96:97], {m}, 4
    s_or_b64 {m}, {m}, s[96:97]
    s_lshr_b64 s[96:97], {m}, 2
    s_or_b64 {m}, {m}, s[96:97]
    s_lshr_b64 s[96:97], {m}, 1
    s_or_b64 {m}, {m}, s[96:97]
    s_and_b64 {m}, {m}, s[52:53]
    s_mul_i32 s{MS[t]}, s{MS[t]}, 0xff
    s_mul_i32 s{MS[t]+1}, s{MS[t]+1}, 0xff
    """)
                    else:
                        a(f"""
    s_cmp_lg_u64 {m}, 0
    s_cselect_b64 {m}, -1, 0
    """)
                if c_bet: a(f"    s_sleep {c_bet}")
                if cnt: a("    s_add_u32 s94, s94, 1000\n    s_addc_u32 s95, s95, 0")
                a(f"""
    s_sub_u32 s71, s71, 1
    s_cmp_lg_u32 s71, 0
    s_cbranch_scc1 C_poll
C_ok:
    """)
                with guard(): stamp(6)
                M_ = T + 10
                a(f"""
    v_max3_f32 v{M_}, v{FF+6}, v{FF+7}, v{M_}
    v_max_f32 v{M_}, v{M_}, v{T+11}
    """)
                allreduce1(M_, T + 11, op="v_max_f32", steps=(8,))
                for t in range(8): a(f"    v_sub_f32 v{FF+t}, v{FF+t}, v{M_}")
                for t in range(8): a(f"    v_exp_f32 v{FF+t}, v{FF+t}")
                for e in range(4): a(f"    v_mul_f32 v{OG+e}, v{OG+e}, v{FF}")
                for e in range(4): a(f"    v_mul_f32 v{OG+4+e}, v{OG+4+e}, v{FF+1}")
                for t in range(2, 8):
                    for e in range(4): a(f"    v_fmac_f32 v{OG+4*(t&1)+e}, v{OG+4*t+e}, v{FF+t}")
                L_ = T + 6
                a(f"""
    v_pk_add_f32 {vr(FF,2)}, {vr(FF,2)}, {vr(FF+2,2)}
    v_pk_add_f32 {vr(FF+4,2)}, {vr(FF+4,2)}, {vr(FF+6,2)}
    v_pk_add_f32 {vr(OG,2)}, {vr(OG,2)}, {vr(OG+4,2)}
    v_pk_add_f32 {vr(OG+2,2)}, {vr(OG+2,2)}, {vr(OG+6,2)}
    v_pk_add_f32 {vr(FF,2)}, {vr(FF,2)}, {vr(FF+4,2)}
    v_add_f32 v{L_}, v{FF}, v{FF+1}
    """)
                merge2(OG, L_, steps=(8,))
                a(f"""
    v_rcp_f32 v{L_}, v{L_}
    s_nop 0
    v_mul_f32 v{OG}, v{OG}, v{L_}
    v_cvt_pk_bf16_f32 v{OG}, v{OG}, v{OG}
    v_and_b32 v{OG}, 0xffff0000, v{OG}
    v_or_b32 v{OG}, s46, v{OG}
    """)
                with guard():
                    a(f"    buffer_store_dword v{OG}, v{vOF}, s[40:43], s60 offen sc1")
                    stamp(8)
                    if lf_sleep: a(f"    s_sleep {lf_sleep}")
                S.extra(1)
                S.blocked -= {"pf"}
            elif name == "pf":
                def chk(re):
                    if not re: gwait("pf")
                    a(f"""
    v_msad_u8 v{T+3}, v{G0}, s46, 0
    v_cmp_ne_u32 vcc, 0, v{T+3}
    """)
                with guard():
                    if ffn and hf_sleep: a(f"    s_sleep {hf_sleep}")
                    while "pf" not in S.pos: S.issue()
                if ffn: a(f"{P}SEG2:")
                chk(False)
                retry(f"{P}rf", pollf, chk)
                with guard():
                    stamp(7); S.topup(name, depth + 2)
                a(f"""
    v_perm_b32 v{G0}, v{G0}, v{G0}, s47
    s_nop 1
    """)
                st['o'] = True
                ready = [k for k in range(8) if names.index(f"wo{k}") < names.index("pf")]
                for u in range(8):
                    for m_ in range(4):
                        a(f"    v_and_b32_dpp v{A3+4*u+m_}, v{G0}, v{2+m_} row_newbcast:{u} row_mask:0xf bank_mask:0xf")
                    if u >= 1 and (u - 1) in ready: mf_wo(u - 1)
                a("    s_nop 1")
                if 7 in ready: mf_wo(7)
            elif name.startswith("wo"):
                std()
                if st['o']: mf_wo(int(name[2:]))
            elif name == "ph":
                def chk(re):
                    if not re: gwait("ph")
                    a(f"""
    v_msad_u8 v{T+8}, v{HG}, v{vtagP}, 0
    v_msad_u8 v{T+9}, v{HG+1}, v{vtagP}, 0
    v_msad_u8 v{T+8}, v{HG+2}, v{vtagP}, v{T+8}
    v_msad_u8 v{T+9}, v{HG+3}, v{vtagP}, v{T+9}
    v_or_b32 v{T+8}, v{T+8}, v{T+9}
    v_cmp_ne_u32 vcc, 0, v{T+8}
    """)
                while "ph" not in S.pos: S.issue()
                a(f"{P}SEG3b:")
                chk(False)
                retry(f"{P}rh", pollh, chk)
                with guard():
                    stamp(9)
                    if pf_at == "ph": S.blocked -= {"pf"}
                    S.topup(name, depth + 4)
                G_, U_ = HG, HG + 2
                a(f"""
    v_add_f32 v{G_}, v{HG}, v{HG+1}
    v_add_f32 v{U_}, v{HG+2}, v{HG+3}
    s_nop 0
    v_add_f32_dpp v{G_}, v{G_}, v{G_} row_ror:8 row_mask:0xf bank_mask:0xf
    v_add_f32_dpp v{U_}, v{U_}, v{U_} row_ror:8 row_mask:0xf bank_mask:0xf
    """)
                rbf16(G_, G_)
                a(f"""
    v_mul_f32 v{T+4}, {0x80000000 | LOG2E}, v{G_}
    v_exp_f32 v{T+4}, v{T+4}
    """)
                rbf16(U_, U_)
                a(f"""
    v_add_f32 v{T+4}, 1.0, v{T+4}
    v_rcp_f32 v{T+4}, v{T+4}
    s_nop 0
    v_mul_f32 v{G_}, v{G_}, v{T+4}
    """)
                rbf16(G_, G_)
                a(f"""
    v_mul_f32 v{G_}, v{G_}, v{U_}
    v_cvt_pk_bf16_f32 v{G_}, v{G_}, v{G_}
    s_nop 1
    """)
                st['h'] = True
                ready = [k for k in range(8) if names.index(f"wd{k}") < names.index("ph")]
                for u in range(8):
                    for m_ in range(4):
                        a(f"    v_and_b32_dpp v{A2+4*u+m_}, v{G_}, v{2+m_} row_newbcast:{u} row_mask:0xf bank_mask:0xf")
                    if u >= 1 and (u - 1) in ready: mf_wd(u - 1)
                a("    s_nop 1")
                if 7 in ready: mf_wd(7)
                seg_end()
            elif name.startswith("wd"):
                std()
                if st['h']: mf_wd(int(name[2:]))
            if ffn and name == max(("ph", "wd7"), key=names.index) and name != names[-1]:
                a(f"""
    s_nop 7
    ds_write_b128 v{vOT}, {vr(DG,4)} offset:{L_OUT+2048}
    """)
                st_b[0] = True
        late_lines = []
        for name in names:
            if forks and name == join:
                SE = S.cur; main_lines = a.lines; bufs = []
                for cname, SL in forks:
                    a.lines = []; S.cur = SL
                    a(f"V_{cname}:")
                    pit = [it for it in SL.items if it[0] == "pq"][0]
                    SL.items.remove(pit); SL.items.insert(SL.issued, pit); SL.issue()
                    nl = [it[0] for it in SL.items]
                    assert nl.index("pq") < nl.index(join)
                    skipwait[0] = True; step(cname, False); skipwait[0] = False
                    for n2 in nl[nl.index(cname) + 1:nl.index(join)]: step(n2, False)
                    bufs.append(a.lines)
                tgt = max([SE.issued] + [SL.issued for _, SL in forks])
                for (cname, SL), b_ in zip(forks, bufs):
                    a.lines = b_; S.cur = SL
                    while SL.issued < tgt: SL.issue()
                    a(f"    s_branch {P}JOIN")
                    late_lines.extend(b_)
                a.lines = main_lines; S.cur = SE
                while SE.issued < tgt: SE.issue()
                a(f"{P}JOIN:")
                for k_ in list(SE.pos):
                    aft = min([SE.nops - SE.pos[k_]] + [SL.nops - SL.pos[k_] for _, SL in forks])
                    SE.pos[k_] = SE.nops - aft
                extra_code.extend(late_lines)
            step(name)
        o1 = L_OUT // 256
        a(f"""
    s_add_u32 s99, s62, {PG-PL}
    s_nop 6
    ds_write_b128 v{vOT}, {vr(PD,4)} offset:{L_OUT}
    """)
        if ffn and not st_b[0]: a(f"    ds_write_b128 v{vOT}, {vr(DG,4)} offset:{L_OUT+2048}")
        a("    s_waitcnt lgkmcnt(0)")
        barrier()
        a(f"""
    ds_read2st64_b32 {vr(T,2)}, v{vt7} offset0:{o1} offset1:{o1+2}
    ds_read2st64_b32 {vr(T+2,2)}, v{vt7} offset0:{o1+4} offset1:{o1+6}
    s_cmp_ge_u32 s3, 2
    s_waitcnt lgkmcnt(0)
    v_add_f32 v{T}, v{T}, v{T+1}
    v_add_f32 v{T+2}, v{T+2}, v{T+3}
    v_add_f32 v{T}, v{T}, v{T+2}
    v_add_u32 v{T}, v{T}, v{vaddP}
    v_bfi_b32 v{T}, s70, v{vtagP}, v{T}
    """)
        seg_end()
        if ffn or not lazyg:
            if not ffn: a("    s_cbranch_scc1 Lt_nopub")
            a(f"""
    buffer_store_dword v{T}, v{vtid4}, s[40:43], s62 offen
    buffer_store_dword v{T}, v{vtid4}, s[40:43], s99 offen sc1
    """)
            if not ffn: a("Lt_nopub:")
        else:
            a(f"""
    s_mov_b32 s71, 1
    s_cbranch_scc1 R_p
    buffer_store_dword v{T}, v{vtid4}, s[40:43], s62 offen
    buffer_load_dwordx4 {vr(RA,4)}, v{vA}, s[40:43], s55 offen sc1
    buffer_load_dwordx4 {vr(RB,4)}, v{vB}, s[40:43], s55 offen sc1
    buffer_store_dword v{T}, v{vtid4}, s[40:43], s99 offen sc1
    """)
            stamp(10)
            a("""
    s_waitcnt vmcnt(1)
    s_branch R_c
    """)
            return
        stamp(10)

    extra_code = []
    path(True, "H")
    store_stamps()
    a("    s_endpgm")
    t2_subs()
    a.lines.extend(extra_code)
    a("L_light:")
    path(False, "Lt")
    a(f"""
LtSEG3:
    s_mov_b32 s71, 0
R_p:
    s_add_u32 s71, s71, 1
    s_and_b32 s96, s71, {gper}
    s_cmp_eq_u32 s96, 0
    s_cselect_b32 s96, s54, s55
    """)
    with guard():
        a(f"""
    buffer_load_dwordx4 {vr(RA,4)}, v{vA}, s[40:43], s96 offen sc1
    buffer_load_dwordx4 {vr(RB,4)}, v{vB}, s[40:43], s96 offen sc1
    s_waitcnt vmcnt(0)
    """)
    a(f"""
R_c:
    v_msad_u8 v{ac}, v{RA}, s28, 0
    v_msad_u8 v{ac+1}, v{RA+1}, s29, 0
    v_msad_u8 v{ac}, v{RA+2}, s30, v{ac}
    v_msad_u8 v{ac+1}, v{RA+3}, s31, v{ac+1}
    v_msad_u8 v{ac}, v{RB}, s28, v{ac}
    v_msad_u8 v{ac+1}, v{RB+1}, s29, v{ac+1}
    v_msad_u8 v{ac}, v{RB+2}, s30, v{ac}
    v_msad_u8 v{ac+1}, v{RB+3}, s31, v{ac+1}
    v_or_b32 v{ac}, v{ac}, v{ac+1}
    v_cmp_ne_u32 vcc, 0, v{ac}
    s_cmp_eq_u32 s71, {spin_max}
    s_cbranch_scc1 R_ok
    s_cbranch_vccnz R_p
R_ok:
    """)
    for e in range(4): a(f"    v_mul_f32 v{RB+e}, v{RB+e}, v{vkeep}")
    a(f"""
    v_permlane32_swap_b32 v{RA}, v{RA+2}
    v_permlane32_swap_b32 v{RA+1}, v{RA+3}
    v_permlane32_swap_b32 v{RB}, v{RB+2}
    v_permlane32_swap_b32 v{RB+1}, v{RB+3}
    v_add_f32 v{RA}, v{RA}, v{RA+2}
    v_add_f32 v{RA+1}, v{RA+1}, v{RA+3}
    v_add_f32 v{RB}, v{RB}, v{RB+2}
    v_add_f32 v{RB+1}, v{RB+1}, v{RB+3}
    v_lshlrev_b32 v{vX}, 16, v{vX}
    v_permlane16_swap_b32 v{RA}, v{RA+1}
    v_permlane16_swap_b32 v{RB}, v{RB+1}
    v_add_f32 v{RA}, v{RA}, v{RA+1}
    v_add_f32 v{RB}, v{RB}, v{RB+1}
    s_nop 0
    v_add_f32_dpp v{RA}, v{RA}, v{RA} row_ror:8 row_mask:0xf bank_mask:0xf
    v_add_f32_dpp v{RB}, v{RB}, v{RB} row_ror:8 row_mask:0xf bank_mask:0xf
    """)
    if red1:
        a(f"""
    s_nop 0
    v_add_f32_dpp v{RA}, v{RA}, v{RA} row_ror:4 row_mask:0xf bank_mask:0xf
    v_add_f32_dpp v{RB}, v{RB}, v{RB} row_ror:4 row_mask:0xf bank_mask:0xf
    s_nop 0
    v_add_f32_dpp v{RA}, v{RA}, v{RA} row_ror:2 row_mask:0xf bank_mask:0xf
    v_add_f32_dpp v{RB}, v{RB}, v{RB} row_ror:2 row_mask:0xf bank_mask:0xf
    v_cvt_pk_bf16_f32 v{RA}, v{RA}, v{RB}
    v_lshlrev_b32 v{RB}, 16, v{RA}
    v_and_b32 v{RA}, 0xffff0000, v{RA}
    v_add_f32 v{RB}, v{RB}, v{vX}
    v_cvt_pk_bf16_f32 v{RB}, v{RB}, v{RB}
    v_and_b32 v{RB}, 0xffff0000, v{RB}
    v_add_f32 v{RA}, v{RA}, v{RB}
    v_cvt_pk_bf16_f32 v{RA}, v{RA}, v{RA}
    """)
        if warm: a("    s_cbranch_execz LtW_ret")
        a(f"""
    s_mov_b64 exec, s[56:57]
    buffer_store_short v{RA}, v{vO}, s[16:19], 0 offen
    s_or_b32 s96, s65, s3
    s_cmp_lg_u32 s96, 0
    s_cbranch_scc1 R_done
    v_mov_b32 v{RB}, s35
    v_mov_b32 v{RB+1}, 0
    s_mov_b64 exec, 1
    buffer_store_dword v{RB}, v{RB+1}, s[40:43], 0 offen offset:{EPOCH}
    """)
    else:
        raise NotImplementedError
    a(f"""
R_done:
    s_mov_b64 exec, -1
    """)
    stamp(9)
    store_stamps()
    a("""
L_end:
    s_endpgm
L_code_end:
    """)
    print(out, "vgprs", nv, "agprs", nagpr, "lds", LDS_BYTES)
    open(out, "w").write(wrap(a.text(), 256, 256, LDS_BYTES, vgpr=accum + nagpr, accum=accum))

if __name__ == "__main__":
    gen("k13.s", stamps=True)
    gen("k13_ns.s", stamps=False)
```

```python
import gen12, gen13
cfg = dict(gper=63, lq=19, lo_sleep=22, pq=22, pf_late=True, pf_at="ph", dmap=[(28,4),(38,6)])
gen12.gen("fin.s", stamps=False, **cfg)
C = ("kv4","kv5","kv6","kv7","gu0","gu1","gu2")
gen13.gen("fin13.s", stamps=False, gper=63, lq=19, lo_sleep=22, pq=24, cps=C, dq=325, pf_late=True, pf_at="wd3")
```

```python
import sys
from asmgen import *

STAMP_OFF = 128 << 20
NST = 12
EPOCH = 0
QP = 0x1000
OP = 0x40000
GU = 0x180000
OF = 0x20000
PL = 0x200000
PG = 0x240000
WS_SIZE = 256 << 20

L_RED = 0
L_G = 2048
L_TRASH = 6144
L_Q = 11264
L_S = 13440
L_OUT = 14848
L_OUT2 = 18944
L_FIN = 20992
L_V = 23040
LDS_BYTES = L_V + 16384

LOG2E = 0x3FB8AA3B
SCALE = 0x3DB504F3

class R:
    def __init__(self, start): self.n = start
    def a(self, k=1, al=1):
        self.n = (self.n + al - 1) // al * al
        r = self.n; self.n += k
        return r
def vr(b, n): return f"v[{b}:{b+n-1}]"
def ar(b, n): return f"a[{b}:{b+n-1}]"

class Sched:
    def __init__(self, a): self.a = a; self.items = []; self.issued = 0; self.nops = 0; self.pos = {}; self.blocked = set()
    def add(self, name, fn, n=1): self.items.append((name, fn, n))
    def issue(self):
        name, fn, n = self.items[self.issued]
        fn(); self.nops += n; self.pos[name] = self.nops; self.issued += 1
    def can(self): return self.issued < len(self.items) and self.items[self.issued][0] not in self.blocked
    def extra(self, n=1): self.nops += n
    def wait(self, name, sub=0):
        while name not in self.pos:
            assert self.can(), (name, self.items[self.issued][0])
            self.issue()
        cnt = self.nops - self.pos[name] + sub
        assert cnt <= 63
        self.a(f"    s_waitcnt vmcnt({cnt})")
    def index(self, name): return [i for i, it in enumerate(self.items) if it[0] == name][0]
    def topup(self, name, depth):
        i = self.index(name)
        while self.can() and self.issued - (i + 1) < depth: self.issue()
    def sprk(self, n):
        for _ in range(n):
            if self.can(): self.issue()

def gen(out, stamps=True, nt=True, D=5, Dl=5, pq=23, pf=48, ph=45, lq=22, lo_sleep=48, spin_max=1 << 20, warm=True,
        k0=2, k1=0, k2=2, Dt=7, sprinkle=(2, 2, 1, 1), spr3=3, dmap=None, warm_extra=3, cnt=False, gper=7, local=True, sprg=1, mixU=True, oracle_q=False, ph_after_o=False, tail_step=0, wq_flags=" nt", nobar=False, kvs=False, lf_sleep=12, masked=True, c_bet=0, pf_late=False, hf_sleep=0, pure=False, pf_at=None, trlate=False, red1=True, lazyg=True, late_tags=False):
    a = Asm()
    NT = " nt" if nt else ""
    def stamp(i):
        if stamps: a(f"    s_memrealtime s[{72+2*i}:{73+2*i}]")
    def store_stamps():
        if not stamps: return
        lab = a.label("nost")
        a(f"""
    s_waitcnt lgkmcnt(0)
    s_cmp_lg_u32 s3, 0
    s_cbranch_scc1 {lab}
    s_mul_i32 s64, s2, {NST*8}
    s_add_u32 s64, s64, {STAMP_OFF}
    v_mov_b32 v20, 0
    s_mov_b64 exec, 1
    """)
        for i in range(NST):
            a(f"""
    v_mov_b32 v22, s{72+2*i}
    v_mov_b32 v23, s{73+2*i}
    buffer_store_dwordx2 v[22:23], v20, s[40:43], s64 offen offset:{8*i}
    s_nop 1
    """)
        a(f"{lab}:")
    def srd(base, lo, size):
        a(f"""
    s_mov_b32 s{base}, s{lo}
    s_mov_b32 s{base+1}, s{lo+1}
    s_mov_b32 s{base+2}, {size}
    s_mov_b32 s{base+3}, 0x20000
    """)
    class guard:
        def __enter__(self):
            self.l = a.label("G"); self.n = len(a.lines)
            if warm: a(f"    s_cbranch_execz {self.l}")
        def __exit__(self, *x):
            if warm:
                if len(a.lines) == self.n + 1: a.lines.pop()
                else: a(f"{self.l}:")
    def barrier():
        with guard(): a("    s_barrier")

    r = R(10)
    (vtagP, vaddP, vOT, vtid4, vPF, vG4, vWQ, vK, vWO, vPO, vQW, vQR, vSW, vSR, vTR, vred, vtag0, vGU, vGU2, vWD, vPH, vJ, vG,
     vOT2, vl4, vt7, vV) = [r.a() for _ in range(27)]
    XA = r.a(8, 4); XS = r.a(4, 4); T = r.a(24, 4); A = r.a(32, 4); QB = r.a(16, 4)
    D1 = r.a(4, 4); PD = r.a(16, 4); DG = r.a(8, 4); WQ = r.a(32, 4); KK = r.a(16, 4); VO = r.a(16, 4); G0 = r.a(16, 4); HG = r.a(4, 4)
    nv = r.n
    assert nv <= 256, nv
    accum = (nv + 3) // 4 * 4
    GW = 0; WD = 64; nagpr = 96
    A3 = KK; A2 = A; WO = WQ; OG = A; FF = QB
    assert VO == KK + 16

    a(f"""
    s_cmp_ge_u32 s2, 256
    s_cbranch_scc1 L_end
    s_load_dwordx16 s[4:19], s[0:1], 0
    s_load_dwordx8 s[20:27], s[0:1], 64
    """)
    if stamps:
        for i in range(1, NST): a(f"    s_mov_b64 s[{72+2*i}:{73+2*i}], 0")
    stamp(0)
    a(f"""
    v_lshrrev_b32 v6, 6, v0
    v_and_b32 v1, 63, v0
    s_and_b32 s33, s2, 7            ; xcd
    v_readfirstlane_b32 s3, v6
    s_lshr_b32 s34, s2, 3           ; idx
    s_getpc_b64 s[96:97]
L_pc:
    s_lshl_b32 s64, s34, 2
    s_add_u32 s64, s64, s3
    s_lshl_b32 s64, s64, 7
    s_min_u32 s64, s64, L_code_end - L_pc - 4
    v_mov_b32 v9, s64
    global_load_dword v{vPF}, v9, s[96:97]
    v_lshlrev_b32 v6, 4, v1          ; lane*16
    v_lshrrev_b32 v7, 3, v1          ; l>>3
    v_and_b32 v8, 7, v1              ; l&7
    s_lshr_b32 s65, s33, 1           ; g
    s_and_b32 s66, s33, 1
    s_lshl_b32 s66, s66, 5
    s_add_u32 s66, s66, s34          ; m
    s_and_b32 s67, s66, 15           ; cb
    s_lshr_b32 s68, s66, 4           ; rq
    s_lshl_b32 s69, s68, 8
    s_lshl_b32 s64, s3, 6
    s_add_u32 s69, s69, s64          ; R0
    s_lshl_b32 s97, s69, 1
    v_lshlrev_b32 v9, 4, v7
    s_lshl_b32 s64, s69, 13
    s_lshl_b32 s96, s65, 11
    s_add_u32 s64, s64, s96
    s_lshl_b32 s96, s67, 7
    s_add_u32 s64, s64, s96
    v_lshlrev_b32 v{vWQ}, 16, v7
    v_lshl_add_u32 v{vWQ}, v8, 4, v{vWQ}
    v_add_u32 v{vWQ}, s64, v{vWQ}
    v_lshrrev_b32 v{vG}, 4, v1
    v_and_b32 v{vJ}, 15, v1
    s_mov_b32 s38, 2048
    s_mov_b32 s39, 0x20000
    s_mov_b32 s46, {8<<20}
    s_mov_b32 s47, 0x20000
    s_mov_b32 s64, 0
    s_waitcnt lgkmcnt(0)
    s_mov_b32 s36, s4
    s_mov_b32 s37, s5
    buffer_load_dwordx4 {vr(XA,4)}, v6, s[36:39], 0 offen
    buffer_load_dwordx4 {vr(XA+4,4)}, v6, s[36:39], 0 offen offset:1024
    buffer_load_dwordx4 {vr(XS,4)}, v9, s[36:39], s97 offen
    s_load_dword s28, s[26:27], {EPOCH}
    s_mov_b32 s44, s10
    s_mov_b32 s45, s11
    {"" if nobar else "s_barrier"}
    """)
    for t in range(8):
        a(f"    buffer_load_dwordx4 {vr(WQ+4*t,4)}, v{vWQ}, s[44:47], s64 offen{wq_flags}")
        if t < 7: a(f"    s_add_u32 s64, s64, 8192")
    a(f"""
    v_bfe_u32 v{T}, v0, 1, 2
    v_and_b32 v{T+1}, 1, v0
    v_lshlrev_b32 v{T+1}, 4, v{T+1}
    v_mov_b32 v9, 0xffff
    v_lshlrev_b32 v9, v{T+1}, v9
    v_cmp_eq_u32 vcc, 0, v{T}
    v_cmp_eq_u32 s[96:97], 1, v{T}
    v_cmp_eq_u32 s[98:99], 2, v{T}
    v_cmp_eq_u32 s[100:101], 3, v{T}
    v_cndmask_b32 v2, 0, v9, vcc
    v_cndmask_b32 v3, 0, v9, s[96:97]
    v_cndmask_b32 v4, 0, v9, s[98:99]
    v_cndmask_b32 v5, 0, v9, s[100:101]
    s_lshl_b32 s63, s65, 23
    s_lshl_b32 s96, s66, {8 if kvs else 14}
    s_add_u32 s63, s63, s96
    s_lshl_b32 s96, s3, {18 if kvs else 12}
    s_add_u32 s63, s63, s96
    s_add_u32 s63, s63, {28672*256}
    s_lshl_b32 s96, s3, 12
    s_add_u32 s96, s96, {L_V}
    s_mov_b32 m0, s96
    v_lshlrev_b32 v{vK}, {14 if kvs else 8}, v{vJ}
    v_lshl_add_u32 v{vK}, v{vG}, 4, v{vK}
    v_lshlrev_b32 v{vV}, {14 if kvs else 8}, v{vG}
    v_lshl_add_u32 v{vV}, v{vJ}, 4, v{vV}
    """)
    srd(48, 6, 32 << 20)
    srd(52, 8, 32 << 20)
    srd(40, 26, WS_SIZE)

    def allreduce2(x, y, t1, t2):
        for s_ in (8, 4, 2, 1):
            a(f"""
    s_nop 0
    v_add_f32_dpp v{x}, v{x}, v{x} row_ror:{s_} row_mask:0xf bank_mask:0xf
    v_add_f32_dpp v{y}, v{y}, v{y} row_ror:{s_} row_mask:0xf bank_mask:0xf
    """)
        for sw in ("v_permlane16_swap_b32", "v_permlane32_swap_b32"):
            a(f"""
    v_mov_b32 v{t1}, v{x}
    v_mov_b32 v{t2}, v{y}
    s_nop 0
    {sw} v{t1}, v{x}
    {sw} v{t2}, v{y}
    v_add_f32 v{x}, v{x}, v{t1}
    v_add_f32 v{y}, v{y}, v{t2}
    """)
    def allreduce1(x, t1, op="v_add_f32", steps=(8, 4, 2, 1)):
        for s_ in steps:
            a(f"""
    s_nop 1
    {op}_dpp v{x}, v{x}, v{x} row_ror:{s_} row_mask:0xf bank_mask:0xf
    """)
        for sw in ("v_permlane16_swap_b32", "v_permlane32_swap_b32"):
            a(f"""
    v_mov_b32 v{t1}, v{x}
    s_nop 1
    {sw} v{t1}, v{x}
    {op} v{x}, v{x}, v{t1}
    """)
    def rbf16(d, s_):
        a(f"""
    v_cvt_pk_bf16_f32 v{d}, v{s_}, v{s_}
    v_and_b32 v{d}, 0xffff0000, v{d}
    """)
    a(f"""
    v_lshrrev_b32 v{vred}, 2, v1
    v_xor_b32 v{vred}, v{vred}, v1
    v_and_b32 v{vred}, 8, v{vred}
    v_cmp_eq_u32 vcc, 0, v{vred}
    v_lshlrev_b32 v{vred}, 5, v8
    v_bfe_u32 v9, v1, 4, 1
    v_lshl_add_u32 v{vred}, v9, 4, v{vred}
    v_lshrrev_b32 v9, 5, v1
    v_lshl_add_u32 v{vred}, v9, 8, v{vred}
    s_lshl_b32 s64, s3, 9
    v_add_u32 v{vred}, s64, v{vred}
    v_add_u32 v9, {L_TRASH}, v6
    v_cndmask_b32 v{vred}, v9, v{vred}, vcc
    v_lshlrev_b32 v{vtid4}, 2, v0
    v_and_b32 v{vG4}, 3, v1
    v_lshlrev_b32 v{vtagP}, 3, v{vG4}
    s_lshl_b32 s44, s65, 14
    s_add_u32 s44, s44, {QP}
    s_lshl_b32 s45, s68, 12
    s_add_u32 s45, s45, s44
    s_lshl_b32 s96, s67, 8
    s_add_u32 s45, s45, s96
    """)
    def tags_block():
        a(f"""
    s_waitcnt lgkmcnt(0)
    s_and_b32 s28, s28, 0x7f
    s_cmp_eq_u32 s28, 127
    s_cselect_b32 s28, 0, s28
    s_add_u32 s35, s28, 1
    s_add_u32 s29, s28, 33
    s_sub_u32 s64, s29, 127
    s_cmp_gt_u32 s29, 127
    s_cselect_b32 s29, s64, s29
    s_add_u32 s30, s28, 65
    s_sub_u32 s64, s30, 127
    s_cmp_gt_u32 s30, 127
    s_cselect_b32 s30, s64, s30
    s_add_u32 s31, s28, 97
    s_sub_u32 s64, s31, 127
    s_cmp_gt_u32 s31, 127
    s_cselect_b32 s31, s64, s31
    s_add_u32 s28, s28, 1
    s_lshl_b32 s32, s29, 8
    s_or_b32 s32, s32, s28
    s_lshl_b32 s64, s30, 16
    s_or_b32 s32, s32, s64
    s_lshl_b32 s64, s31, 24
    s_or_b32 s32, s32, s64
    s_movk_i32 s70, 0xff
    v_bfe_u32 v{vtagP}, s32, v{vtagP}, 8
    v_sub_u32 v{vaddP}, 0x80, v{vtagP}
    s_and_b32 s46, s32, 0xffff
    """)
    if not late_tags: tags_block()
    a(f"""
    """)
    def kv_issue(i):
        if i < 4: a(f"    buffer_load_dwordx4 {vr(KK+4*i,4)}, v{vK}, s[48:51], s63 offen offset:{64*i}{NT}")
        else:
            so = "s63"
            if kvs and i > 4:
                a(f"    s_add_u32 s99, s63, {(i-4)*(65536-1024)}"); so = "s99"
            a(f"    buffer_load_dwordx4 v{vV}, s[52:55], {so} offen offset:{1024*(i-4)}{NT} lds")
    a(f"    s_waitcnt vmcnt(9)")
    stamp(1)
    for i in range(k0): kv_issue(i)
    for k in range(8):
        a(f"""
    v_lshlrev_b32 v{T+2*k}, 16, v{XA+k}
    v_and_b32 v{T+2*k+1}, 0xffff0000, v{XA+k}
    """)
    a(f"""
    v_readfirstlane_b32 s64, v{T}
    s_nop 1
    """)
    for k in range(16): a(f"    v_subrev_f32 v{T+k}, s64, v{T+k}")
    a(f"""
    v_pk_add_f32 {vr(T+16,2)}, {vr(T,2)}, {vr(T+2,2)}
    v_pk_mul_f32 {vr(T+18,2)}, {vr(T,2)}, {vr(T,2)}
    """)
    for k in range(1, 8):
        a(f"    v_pk_fma_f32 {vr(T+18,2)}, {vr(T+2*k,2)}, {vr(T+2*k,2)}, {vr(T+18,2)}")
        if k >= 2: a(f"    v_pk_add_f32 {vr(T+16,2)}, {vr(T+16,2)}, {vr(T+2*k,2)}")
    S1, S2, t1, t2 = T + 16, T + 18, T + 17, T + 19
    a(f"""
    v_add_f32 v{S1}, v{S1}, v{t1}
    v_add_f32 v{S2}, v{S2}, v{t2}
    s_nop 0
    """)
    allreduce2(S1, S2, t1, t2)
    mean, var, rs, sd = T, T + 1, T + 2, T + 3
    a(f"""
    v_mul_f32 v{S1}, 0x3a800000, v{S1}
    v_mul_f32 v{S2}, 0x3a800000, v{S2}
    v_add_f32 v{mean}, s64, v{S1}
    v_fma_f32 v{var}, -v{S1}, v{S1}, v{S2}
    v_max_f32 v{var}, 0, v{var}
    """)
    rbf16(mean, mean); rbf16(var, var)
    a(f"    v_add_f32 v{var}, 0x3727c5ac, v{var}")
    rbf16(var, var)
    a(f"""
    v_sqrt_f32 v{sd}, v{var}
    s_waitcnt vmcnt({8+k0})
    """)
    for i in range(k0, k0 + k1): kv_issue(i)
    rbf16(sd, sd)
    a(f"    v_rcp_f32 v{rs}, v{sd}")
    Dd = T + 4; Q = T + 12
    for k in range(4):
        a(f"""
    v_lshlrev_b32 v{Dd+2*k}, 16, v{XS+k}
    v_and_b32 v{Dd+2*k+1}, 0xffff0000, v{XS+k}
    """)
    for k in range(8): a(f"    v_sub_f32 v{Dd+k}, v{Dd+k}, v{mean}")
    for k in range(4): a(f"    v_cvt_pk_bf16_f32 v{XS+k}, v{Dd+2*k}, v{Dd+2*k+1}")
    for k in range(4):
        a(f"""
    v_lshlrev_b32 v{Dd+2*k}, 16, v{XS+k}
    v_and_b32 v{Dd+2*k+1}, 0xffff0000, v{XS+k}
    """)
    for k in range(8): a(f"    v_mul_f32 v{Q+k}, v{Dd+k}, v{rs}")
    for k in range(8): a(f"    v_fma_f32 v{Dd+k}, -v{Q+k}, v{sd}, v{Dd+k}")
    for k in range(8): a(f"    v_fmac_f32 v{Q+k}, v{Dd+k}, v{rs}")
    for k in range(8): a(f"    v_cvt_pk_bf16_f32 v{Q+k}, v{Q+k}, v{Q+k}")
    for k in range(8):
        for m_ in range(4): a(f"    v_and_b32 v{A+4*k+m_}, v{Q+k}, v{2+m_}")
    stamp(2)
    for i in range(k0 + k1, k0 + k1 + k2): kv_issue(i)
    srd(56, 12, 8 << 20)
    srd(4, 16, 7 << 20)
    srd(8, 18, 7 << 20)
    srd(12, 20, 7 << 20)
    srd(16, 22, 2048)
    a(f"""
    s_add_u32 s64, s67, 4
    s_lshr_b32 s64, s64, 3
    s_mul_i32 s60, s65, 14
    s_add_u32 s60, s60, s67
    s_sub_u32 s60, s60, s64
    s_add_u32 s61, s60, {28 if mixU else 0}
    s_sub_u32 s64, s61, 56
    s_cmp_ge_u32 s61, 56
    s_cselect_b32 s61, s64, s61
    s_add_u32 s64, s34, 4
    s_lshr_b32 s64, s64, 3
    s_sub_u32 s62, s34, s64
    s_mul_i32 s64, s69, 7168
    v_mul_u32_u24 v{vGU}, {8*7168}, v7
    v_lshl_add_u32 v{vGU}, v8, 4, v{vGU}
    s_lshl_b32 s96, s61, 7
    s_add_u32 s96, s96, s64
    v_add_u32 v{vGU2}, s96, v{vGU}
    s_lshl_b32 s96, s60, 7
    s_add_u32 s96, s96, s64
    v_add_u32 v{vGU}, s96, v{vGU}
    s_lshl_b32 s60, s60, 11
    s_lshl_b32 s61, s61, 11
    s_add_u32 s61, s61, 1024
    s_cmp_eq_u32 s3, 0
    s_cselect_b32 s60, s60, s61
    s_lshl_b32 s64, s68, 8
    s_add_u32 s60, s60, s64
    s_add_u32 s60, s60, {GU}
    s_lshl_b32 s61, s62, 12
    s_lshr_b32 s64, s3, 1
    s_lshl_b32 s64, s64, 11
    s_add_u32 s61, s61, s64
    s_and_b32 s64, s3, 1
    s_lshl_b32 s64, s64, 7
    s_add_u32 s61, s61, s64
    s_add_u32 s61, s61, {GU}
    v_bfe_u32 v9, v1, 3, 1
    v_lshlrev_b32 v{vPH}, 8, v9
    v_lshl_add_u32 v{vPH}, v{vG}, 5, v{vPH}
    v_lshl_add_u32 v{vPH}, v8, 2, v{vPH}
    ; wd voffset = (128j + 32w + 8G)*2048 + 256x + 16jj
    s_lshl_b32 s64, s62, 18
    s_lshl_b32 s96, s3, 16
    s_add_u32 s64, s64, s96
    s_lshl_b32 s96, s33, 8
    s_add_u32 s64, s64, s96
    v_lshlrev_b32 v{vWD}, 14, v{vG}
    v_lshl_add_u32 v{vWD}, v{vJ}, 4, v{vWD}
    v_add_u32 v{vWD}, s64, v{vWD}
    s_lshl_b32 s62, s33, 5
    s_add_u32 s62, s62, s34
    s_lshl_b32 s62, s62, 10
    s_add_u32 s62, s62, {PL}
    v_and_b32 v{vt7}, 511, v{vtid4}
    s_lshr_b32 s64, s3, 1
    s_lshl_b32 s64, s64, 11
    v_add_u32 v{vt7}, s64, v{vt7}
    v_lshlrev_b32 v{vl4}, 2, v1
    v_mul_u32_u24 v{vSW}, 144, v8
    v_lshl_add_u32 v{vSR}, v{vG}, 4, v{vSW}
    v_lshl_add_u32 v{vSR}, v9, 6, v{vSR}
    v_bfe_u32 v9, v1, 4, 1
    v_lshlrev_b32 v{vOT}, 5, v{vJ}
    v_lshl_add_u32 v{vOT}, v9, 4, v{vOT}
    s_lshl_b32 s64, s3, 9
    v_add_u32 v{vOT}, s64, v{vOT}
    s_lshl_b32 s67, s34, 2
    s_add_u32 s67, s67, s3
    s_lshr_b32 s64, s67, 5
    s_lshl_b32 s64, s64, 10
    s_bfe_u32 s96, s67, 0x20003
    s_lshl_b32 s96, s96, 5
    s_add_u32 s64, s64, s96
    s_and_b32 s96, s67, 1
    s_lshl_b32 s96, s96, 4
    s_add_u32 s64, s64, s96
    s_bfe_u32 s96, s67, 0x20001
    s_lshl_b32 s96, s96, 2
    s_add_u32 s64, s64, s96
    s_lshl_b32 s64, s64, 11
    s_lshl_b32 s96, s33, 8
    s_add_u32 s64, s64, s96
    v_lshlrev_b32 v{vWO}, 11, v{vG}
    v_lshl_add_u32 v{vWO}, v{vJ}, 4, v{vWO}
    v_add_u32 v{vWO}, s64, v{vWO}
    s_lshl_b32 s69, s67, 7
    s_add_u32 s69, s69, {OF}
    v_lshlrev_b32 v{vOT2}, 5, v{vG}
    v_lshl_add_u32 v{vOT2}, v8, 2, v{vOT2}   ; vOF = (8G + (l&7))*4
    v_mul_u32_u24 v{vQR}, 272, v8
    v_lshl_add_u32 v{vQR}, v{vG}, 4, v{vQR}
    v_lshl_add_u32 v{vSW}, v{vG}, 3, v{vSW}
    s_lshl_b32 s96, s3, 5
    v_add_u32 v{vSW}, s96, v{vSW}
    v_bfe_u32 v9, v1, 2, 2
    v_lshl_add_u32 v{vTR}, v{vG}, 3, v9
    v_lshlrev_b32 v{vTR}, 8, v{vTR}
    v_lshlrev_b32 v9, 3, v{vG4}
    s_lshl_b32 s64, s3, 6
    v_add3_u32 v{vTR}, v{vTR}, v9, s64
    v_lshrrev_b32 v{vQW}, 5, v0
    v_and_b32 v9, 31, v0
    v_mul_u32_u24 v{vQW}, 272, v{vQW}
    v_lshl_add_u32 v{vQW}, v9, 3, v{vQW}
    s_lshl_b32 s97, s3, 10
    s_add_u32 s20, s44, s97
    s_lshl_b32 s22, s65, 18
    s_add_u32 s22, s22, {OP}
    s_lshl_b32 s96, s66, 12
    s_add_u32 s23, s22, s96
    s_add_u32 s23, s23, s97
    s_mov_b32 s47, 0x03020302
    s_mov_b32 s24, {SCALE}
    s_mov_b32 s25, {LOG2E}
    """)
    if late_tags: tags_block()
    a(f"""
    s_mov_b32 s26, 0x07060500
    s_mov_b32 s27, 0x07060501
    s_mov_b32 s66, 0x07060502
    s_mov_b32 s67, 0x07060503
    s_mov_b32 s68, 0x0c04000c
    s_lshl_b32 s21, s3, 11
    v_add_u32 v{vt7+0 if False else XS}, s21, v{vl4}
    """)
    vGR = XS; vOF = vOT2
    PSEL = (26, 27, 66, 67)
    def red8(Rr, vaddr, o):
        a(f"""
    ds_read2st64_b32 {vr(Rr,2)}, v{vaddr} offset0:{o} offset1:{o+1}
    ds_read2st64_b32 {vr(Rr+2,2)}, v{vaddr} offset0:{o+2} offset1:{o+3}
    ds_read2st64_b32 {vr(Rr+4,2)}, v{vaddr} offset0:{o+4} offset1:{o+5}
    ds_read2st64_b32 {vr(Rr+6,2)}, v{vaddr} offset0:{o+6} offset1:{o+7}
    s_waitcnt lgkmcnt(0)
    v_add_f32 v{Rr}, v{Rr}, v{Rr+1}
    v_add_f32 v{Rr+2}, v{Rr+2}, v{Rr+3}
    v_add_f32 v{Rr+4}, v{Rr+4}, v{Rr+5}
    v_add_f32 v{Rr+6}, v{Rr+6}, v{Rr+7}
    v_add_f32 v{Rr}, v{Rr}, v{Rr+2}
    v_add_f32 v{Rr+4}, v{Rr+4}, v{Rr+6}
    v_add_f32 v{Rr}, v{Rr}, v{Rr+4}
    v_add_u32 v{Rr}, v{Rr}, v{vaddP}
    v_bfi_b32 v{Rr}, s70, v{vtagP}, v{Rr}
    """)
    nk = k0 + k1 + k2
    for t in range(8):
        a(f"    s_waitcnt vmcnt({7 - t + nk})")
        srcc = "0" if t == 0 else vr(D1, 4)
        a(f"    v_mfma_f32_16x16x32_bf16 {vr(D1,4)}, {vr(A+4*t,4)}, {vr(WQ+4*t,4)}, {srcc}")
        while nk < 8 and t < 7 and (7 - t) + nk < Dt:
            kv_issue(nk); nk += 1
    kpre = nk
    a(f"""
    s_nop 7
    ds_write_b128 v{vred}, {vr(D1,4)} offset:{L_RED}
    s_waitcnt lgkmcnt(0)
    s_barrier
    s_cmp_lg_u32 s3, 0
    s_cbranch_scc1 L_nored
    """)
    red8(T, vl4, L_RED // 256)
    a(f"""
    buffer_store_dword v{T}, v{vl4}, s[40:43], s45 offen sc1
L_nored:
    """)
    stamp(3)
    a("""
    s_and_b32 s64, s34, 7
    s_cmp_eq_u32 s64, 3
    s_cbranch_scc1 L_light
    """)

    def merge2(X, Y, steps=(8, 4)):
        a(f"""
    v_mov_b32 v{Y+1}, v{Y}
    s_nop 0
    v_permlane32_swap_b32 v{X}, v{X+2}
    v_permlane32_swap_b32 v{X+1}, v{X+3}
    v_permlane32_swap_b32 v{Y+1}, v{Y}
    v_add_f32 v{X}, v{X}, v{X+2}
    v_add_f32 v{X+1}, v{X+1}, v{X+3}
    v_add_f32 v{Y}, v{Y}, v{Y+1}
    s_nop 0
    v_mov_b32 v{Y+1}, v{Y}
    v_permlane16_swap_b32 v{X}, v{X+1}
    s_nop 0
    v_permlane16_swap_b32 v{Y+1}, v{Y}
    v_add_f32 v{X}, v{X}, v{X+1}
    v_add_f32 v{Y}, v{Y}, v{Y+1}
    """)
        for s_ in steps:
            a(f"""
    s_nop 0
    v_add_f32_dpp v{X}, v{X}, v{X} row_ror:{s_} row_mask:0xf bank_mask:0xf
    v_add_f32_dpp v{Y}, v{Y}, v{Y} row_ror:{s_} row_mask:0xf bank_mask:0xf
    """)

    vA, vB, vkeep, vX, vO, vF = XA, XA + 1, XA + 2, XA + 3, XA + 4, XA + 5
    RA = G0; RB = G0 + 8; ac = T + 6
    def red_pre():
        if red1: return red_pre1()
        a(f"""
    s_lshl_b32 s54, s65, 6
    v_lshlrev_b32 v{vO}, 1, v1
    v_add_u32 v{vO}, s54, v{vO}
    buffer_load_ushort v{vX}, v{vO}, s[36:39], 0 offen
    v_lshlrev_b32 v{vA}, 10, v7
    v_lshl_add_u32 v{vA}, v8, 4, v{vA}
    v_cmp_ne_u32 vcc, 3, v7
    v_add_u32 v{vB}, 512, v{vA}
    v_lshlrev_b32 v{vF}, 2, v{vG}
    v_cndmask_b32 v{vB}, v{vA}, v{vB}, vcc
    v_cndmask_b32 v{vkeep}, 0, 1.0, vcc
    v_lshl_add_u32 v{vF}, v8, 4, v{vF}
    s_lshl_b32 s96, s3, 8
    v_add_u32 v{vF}, s96, v{vF}
    s_lshl_b32 s55, s33, 15
    s_lshl_b32 s96, s3, 13
    s_add_u32 s55, s55, s96
    s_lshr_b32 s64, s34, 3
    s_lshl_b32 s64, s64, 7
    s_add_u32 s55, s55, s64
    s_add_u32 s54, s55, {PG}
    s_add_u32 s55, s55, {PL if local else PG}
    """)

    def red_pre1():
        a(f"""
    s_lshl_b32 s54, s65, 5
    s_lshl_b32 s96, s3, 3
    s_add_u32 s54, s54, s96
    v_and_b32 v{vF}, 1, v1
    v_lshl_add_u32 v{vO}, v{vF}, 2, v{vG}
    v_add_u32 v{vO}, s54, v{vO}
    v_lshlrev_b32 v{vO}, 1, v{vO}
    buffer_load_ushort v{vX}, v{vO}, s[36:39], 0 offen
    v_lshrrev_b32 v{vA}, 1, v1
    v_and_b32 v{vB}, 7, v{vA}
    v_cmp_ne_u32 vcc, 3, v{vB}
    v_lshlrev_b32 v{vA}, 10, v{vA}
    v_lshl_add_u32 v{vA}, v{vF}, 4, v{vA}
    v_add_u32 v{vB}, 512, v{vA}
    v_cndmask_b32 v{vB}, v{vA}, v{vB}, vcc
    v_cndmask_b32 v{vkeep}, 0, 1.0, vcc
    v_and_b32 v{vF}, 14, v1
    v_cmp_eq_u32 s[56:57], 0, v{vF}
    s_lshl_b32 s55, s33, 15
    s_lshr_b32 s64, s34, 3
    s_lshl_b32 s64, s64, 7
    s_add_u32 s55, s55, s64
    s_lshl_b32 s96, s3, 5
    s_add_u32 s55, s55, s96
    s_add_u32 s54, s55, {PG}
    s_add_u32 s55, s55, {PL if local else PG}
    """)

    def path(ffn, P):
        S = Sched(a)
        def seg_end():
            if warm: a(f"    s_cbranch_execz {P}W_ret")
        def gsprk(n):
            with guard(): S.sprk(n)
        def gwait(name, sub=0):
            with guard(): S.wait(name, sub)
        for t in range(8):
            S.items.append((f"wq{t}", None, 1)); S.nops += 1; S.pos[f"wq{t}"] = S.nops; S.issued += 1
        base = []
        for i in range(8): base.append((f"kv{i}", (lambda i=i: kv_issue(i)), 1))
        def mk_gu(i):
            t, mat = i // 2, i % 2
            def f():
                so = "0"
                if t: a(f"    s_mov_b32 s99, {t*7168}"); so = "s99"
                a(f"    buffer_load_dwordx4 {ar(GW+4*i,4)}, v{vGU2 if mat else vGU}, s[{4+4*mat}:{7+4*mat}], {so} offen{NT}")
            return f
        def mk_wo(k):
            def f():
                so = "0"
                if k: a(f"    s_mov_b32 s99, {k*0x40000}"); so = "s99"
                a(f"    buffer_load_dwordx4 {vr(WO+4*k,4)}, v{vWO}, s[56:59], {so} offen{NT}")
            return f
        def mk_wd(k):
            def f():
                so = "0"
                if k >= 2: a(f"    s_movk_i32 s99, {(k & ~1)*2048}"); so = "s99"
                a(f"    buffer_load_dwordx4 {ar(WD+4*k,4)}, v{vWD}, s[12:15], {so} offen offset:{(k&1)*2048}{NT}")
            return f
        def pollq():
            if oracle_q:
                for k in range(4): a(f"    buffer_load_dwordx4 {vr(G0+4*k,4)}, v6, s[36:39], 0 offen")
                return
            a(f"    buffer_load_dwordx4 {vr(G0,4)}, v6, s[40:43], s20 offen sc1")
            for k in range(1, 4):
                a(f"    s_add_u32 s99, s20, {4096*k}")
                a(f"    buffer_load_dwordx4 {vr(G0+4*k,4)}, v6, s[40:43], s99 offen sc1")
        def pollf():
            a(f"    buffer_load_dword v{G0}, v{vOF}, s[40:43], s69 offen sc1")
        def pollh():
            for k in range(4): a(f"    buffer_load_dword v{HG+k}, v{vPH}, s[40:43], s61 offen offset:{512*k} sc1")
        if ffn:
            for i in range(16): base.append((f"gu{i}", mk_gu(i), 1))
        for k in range(8): base.append((f"wo{k}", mk_wo(k), 1))
        if ffn:
            for k in range(8): base.append((f"wd{k}", mk_wd(k), 1))
        Pl = [] if pure else [(pq, ("pq", pollq, 4)), (ph, ("ph", pollh, 4)), (pf, ("pf", pollf, 1))] if ffn else [(lq, ("pq", pollq, 4)), (98, ("comb", lambda: None, 0)), (99, ("pf", pollf, 1))]
        for i, it in enumerate(base):
            for p, pit in Pl:
                if p == i + 8: S.add(*pit)
            S.add(*it)
        for p, pit in Pl:
            if p >= len(base) + 8: S.add(*pit)
        for i in range(kpre):
            name = S.items[S.issued][0]; assert name == f"kv{i}"
            S.nops += 1; S.pos[name] = S.nops; S.issued += 1
        names = [it[0] for it in S.items]
        S.blocked |= {"ph"} | (set() if (ffn and not pf_late) else {"pf"})
        def retry(lab, fn, check):
            if oracle_q and lab.endswith("rq"): return
            if cnt:
                bit = {"rq": 100, "rf": 1000, "rh": 10000}[lab[-2:]]
                a(f"""
    s_nop 1
    s_cbranch_vccz {lab}_c
    s_add_u32 s94, s94, {bit}
    s_addc_u32 s95, s95, 0
{lab}_c:
    """)
            a(f"""
    s_nop 1
    s_cbranch_vccz {lab}_ok
    s_mov_b32 s71, {spin_max}
{lab}:
    """)
            fn()
            a("    s_waitcnt vmcnt(0)")
            check(True)
            a(f"""
    s_sub_u32 s71, s71, 1
    s_cmp_eq_u32 s71, 0
    s_cbranch_scc1 {lab}_ok
    s_cbranch_vccnz {lab}
{lab}_ok:
    """)
        if pure:
            for name in names:
                if name.startswith("wq"): continue
                S.wait(name); S.topup(name, D if ffn else Dl)
                if name == "kv7": stamp(4)
                if name == "gu7": stamp(5)
                if name == "gu15": stamp(8)
                if name == "wo7": stamp(7)
                if name == "wd7": stamp(10)
            if not ffn:
                stamp(9); store_stamps(); a("    s_endpgm\nLtW_ret:")
                red_pre()
            return
        S.blocked.add("pq"); S.sprk(warm_extra); S.blocked.discard("pq")
        if warm:
            a(f"""
    s_mov_b64 exec, 0
    s_cmp_eq_u32 s3, 0
    s_cbranch_scc1 {P}SEG0
    s_cmp_eq_u32 s3, 1
    s_cbranch_scc1 {P}SEG1
    s_cmp_eq_u32 s3, 2
    s_cbranch_scc1 {P}SEG2
    s_branch {P}SEG3
{P}W_ret:
    s_mov_b64 exec, -1
    """)
        if cnt: a('    s_waitcnt lgkmcnt(0)\n    s_mov_b64 s[94:95], s[72:73]')
        else: stamp(11)
        have_o = False; have_h = False; st_b = [False]
        DD = D if ffn else Dl
        def tr_reads():
            for s_ in range(2):
                for c in range(2):
                    for h in range(2):
                        a(f"    ds_read_b64_tr_b16 {vr(VO+(s_*2+c)*4+2*h,2)}, v{vTR} offset:{L_V + s_*8192 + h*1024 + c*32}")
        def mf_wo(k):
            srcc = "0" if k == 0 else vr(PD, 4)
            a(f"    v_mfma_f32_16x16x32_bf16 {vr(PD,4)}, {vr(A3+4*k,4)}, {vr(WO+4*k,4)}, {srcc}")
        def mf_wd(k):
            srcc = "0" if k == 0 else vr(DG, 4)
            a(f"    v_mfma_f32_16x16x32_bf16 {vr(DG,4)}, {vr(A2+4*k,4)}, {ar(WD+4*k,4)}, {srcc}")
        for name in names:
            depth = DD
            if dmap and ffn:
                for k_, v_ in dmap:
                    if names.index(name) >= k_: depth = v_
            def std():
                with guard():
                    S.wait(name)
                    if ffn and pf_at == name: S.blocked -= {"pf"}
                    S.topup(name, depth)
            if name.startswith("wq"):
                pass
            elif name.startswith("kv"):
                std()
                if name == "kv7" and not trlate:
                    a("    s_barrier")
                    tr_reads()
            elif name.startswith("gu"):
                i = int(name[2:]); t, mat = i // 2, i % 2
                with guard(): S.wait(name)
                srcc = "0" if t == 0 else vr(DG + 4 * mat, 4)
                a(f"    v_mfma_f32_16x16x32_bf16 {vr(DG+4*mat,4)}, {vr(A+4*t,4)}, {ar(GW+4*i,4)}, {srcc}")
                with guard(): S.topup(name, depth + (sprg if i == 15 else 0))
                if i == 15:
                    a(f"""
    s_nop 6
{P}SEG3:
    ds_write_b128 v{vred}, {vr(DG,4)} offset:{L_G}
    ds_write_b128 v{vred}, {vr(DG+4,4)} offset:{L_G+2048}
    s_waitcnt lgkmcnt(0)
    """)
                    with guard():
                        a(f"""
    s_barrier
    s_cmp_ge_u32 s3, 2
    s_cbranch_scc1 {P}nogu
    """)
                    red8(T, vGR, L_G // 256)
                    if warm: a(f"    s_cbranch_execz {P}SEG3b")
                    a(f"""
    buffer_store_dword v{T}, v{vl4}, s[40:43], s60 offen sc1
{P}nogu:
    """)
                    stamp(8)
                    S.blocked -= {"ph"}
            elif name == "pq":
                acc = T
                def chk(re):
                    a(f"""
    v_mov_b32 v{acc}, 0
    v_mov_b32 v{acc+1}, 0
    """)
                    for k in range(4):
                        if not re: gwait("pq", 3 - k)
                        for e in range(4): a(f"    v_msad_u8 v{acc+(e&1)}, v{G0+4*k+e}, s{28+e}, v{acc+(e&1)}")
                    a(f"""
    v_or_b32 v{acc}, v{acc}, v{acc+1}
    v_cmp_ne_u32 vcc, 0, v{acc}
    """)
                while "pq" not in S.pos: S.issue()
                a(f"{P}SEG0:")
                chk(False)
                retry(f"{P}rq", pollq, chk)
                with guard(): stamp(4)
                QS = T + 4
                a(f"""
    v_pk_add_f32 {vr(QS,2)}, {vr(G0,2)}, {vr(G0+4,2)}
    v_pk_add_f32 {vr(QS+2,2)}, {vr(G0+2,2)}, {vr(G0+6,2)}
    v_pk_add_f32 {vr(QS+4,2)}, {vr(G0+8,2)}, {vr(G0+12,2)}
    v_pk_add_f32 {vr(QS+6,2)}, {vr(G0+10,2)}, {vr(G0+14,2)}
    v_pk_add_f32 {vr(QS,2)}, {vr(QS,2)}, {vr(QS+4,2)}
    v_pk_add_f32 {vr(QS+2,2)}, {vr(QS+2,2)}, {vr(QS+6,2)}
    v_cvt_pk_bf16_f32 v{QS}, v{QS}, v{QS+1}
    v_cvt_pk_bf16_f32 v{QS+1}, v{QS+2}, v{QS+3}
    ds_write_b64 v{vQW}, {vr(QS,2)} offset:{L_Q}
    """)
                with guard(): S.topup(name, depth)
                a("    s_waitcnt lgkmcnt(0)")
                barrier()
                a(f"""
    ds_read_b128 {vr(QB,4)}, v{vQR} offset:{L_Q}
    ds_read_b128 {vr(QB+4,4)}, v{vQR} offset:{L_Q+64}
    ds_read_b128 {vr(QB+8,4)}, v{vQR} offset:{L_Q+128}
    ds_read_b128 {vr(QB+12,4)}, v{vQR} offset:{L_Q+192}
    """)
                with guard():
                    if trlate: tr_reads()
                    S.sprk(sprinkle[0])
                for t in range(4):
                    srcc = "0" if t == 0 else vr(D1, 4)
                    a(f"    s_waitcnt lgkmcnt({3-t+(8 if trlate else 0)})")
                    a(f"    v_mfma_f32_16x16x32_bf16 {vr(D1,4)}, {vr(KK+4*t,4)}, {vr(QB+4*t,4)}, {srcc}")
                Sx = T + 4
                a(f"""
    s_nop 7
    v_cvt_pk_bf16_f32 v{T}, v{D1}, v{D1+1}
    v_cvt_pk_bf16_f32 v{T+1}, v{D1+2}, v{D1+3}
    v_lshlrev_b32 v{Sx}, 16, v{T}
    v_and_b32 v{Sx+1}, 0xffff0000, v{T}
    v_lshlrev_b32 v{Sx+2}, 16, v{T+1}
    v_and_b32 v{Sx+3}, 0xffff0000, v{T+1}
    v_mul_f32 v{Sx}, s24, v{Sx}
    v_mul_f32 v{Sx+1}, s24, v{Sx+1}
    v_mul_f32 v{Sx+2}, s24, v{Sx+2}
    v_mul_f32 v{Sx+3}, s24, v{Sx+3}
    v_cvt_pk_bf16_f32 v{T}, v{Sx}, v{Sx+1}
    v_cvt_pk_bf16_f32 v{T+1}, v{Sx+2}, v{Sx+3}
    ds_write_b64 v{vSW}, {vr(T,2)} offset:{L_S}
    s_waitcnt lgkmcnt(0)
    """)
                seg_end()
                mx, tmp, lsum, wv, rl = T + 12, T + 13, T + 14, T + 15, T + 16
                Pp = T + 20
                a(f"""
    s_barrier
{P}SEG1:
    ds_read_b128 {vr(T,4)}, v{vSR} offset:{L_S}
    """)
                gsprk(sprinkle[1])
                a("    s_waitcnt lgkmcnt(0)")
                for k in range(4):
                    a(f"""
    v_lshlrev_b32 v{Sx+2*k}, 16, v{T+k}
    v_and_b32 v{Sx+2*k+1}, 0xffff0000, v{T+k}
    """)
                a(f"""
    v_max3_f32 v{mx}, v{Sx}, v{Sx+1}, v{Sx+2}
    v_max3_f32 v{tmp}, v{Sx+3}, v{Sx+4}, v{Sx+5}
    v_max3_f32 v{mx}, v{Sx+6}, v{Sx+7}, v{mx}
    v_max_f32 v{mx}, v{mx}, v{tmp}
    """)
                allreduce1(mx, tmp, op="v_max_f32", steps=(8,))
                a(f"    v_mul_f32 v{mx}, s25, v{mx}")
                for k in range(8): a(f"    v_fma_f32 v{Sx+k}, v{Sx+k}, s25, -v{mx}")
                for k in range(8): a(f"    v_exp_f32 v{Sx+k}, v{Sx+k}")
                for k in range(4): a(f"    v_cvt_pk_bf16_f32 v{Pp+k}, v{Sx+2*k}, v{Sx+2*k+1}")
                a(f"""
    v_pk_add_f32 {vr(T,2)}, {vr(Sx,2)}, {vr(Sx+2,2)}
    v_pk_add_f32 {vr(T+2,2)}, {vr(Sx+4,2)}, {vr(Sx+6,2)}
    """)
                for sc in (0, 2, 1, 3):
                    a(f"    v_mfma_f32_16x16x32_bf16 {vr(PD+4*sc,4)}, {vr(VO+4*sc,4)}, {vr(Pp,4)}, 0")
                gsprk(sprinkle[2])
                a(f"""
    v_pk_add_f32 {vr(T,2)}, {vr(T,2)}, {vr(T+2,2)}
    v_add_f32 v{lsum}, v{T}, v{T+1}
    """)
                allreduce1(lsum, tmp, steps=(8,))
                X = D1
                a(f"""
    v_log_f32 v{wv}, v{lsum}
    v_rcp_f32 v{rl}, v{lsum}
    """)
                for e in range(4): a(f"    v_add_f32_dpp v{X+e}, v{PD+8+e}, v{PD+e} row_ror:8 row_mask:0xf bank_mask:0x3")
                a(f"    v_add_f32 v{wv}, v{wv}, v{mx}")
                for e in range(4): a(f"    v_add_f32_dpp v{X+e}, v{PD+4+e}, v{PD+12+e} row_ror:8 row_mask:0xf bank_mask:0xc")
                a(f"""
    v_add_u32 v{wv}, 0x80, v{wv}
    v_bfi_b32 v{wv}, s70, v{vtagP}, v{wv}
    """)
                for e in range(4): a(f"    v_mul_f32 v{X+e}, v{X+e}, v{rl}")
                for e in range(4): a(f"    v_perm_b32 v{X+e}, v{X+e}, v{wv}, s{PSEL[e]}")
                seg_end()
                a(f"    buffer_store_dwordx4 {vr(X,4)}, v6, s[40:43], s23 offen sc1")
                S.extra(1)
                stamp(5)
                S.sprk(sprinkle[3])
            elif name == "comb":
                a(f"""
    v_lshlrev_b32 v{vPO}, 12, v7
    v_lshl_add_u32 v{vPO}, v8, 4, v{vPO}
    s_lshr_b32 s64, s34, 3
    s_lshl_b32 s65, s33, 2
    s_add_u32 s65, s65, s64           ; lam
    s_lshl_b32 s64, s65, 2
    s_add_u32 s64, s64, s3
    s_lshl_b32 s60, s64, 7
    s_add_u32 s60, s60, {OF}
    s_and_b32 s64, s64, 31
    s_lshl_b32 s64, s64, 7
    s_add_u32 s22, s22, s64
    s_mov_b32 s71, {spin_max}
    s_mov_b32 s52, 0x01010101
    s_mov_b32 s53, 0x01010101
    """)
                MS = [4, 6, 8, 10, 12, 14, 48, 50]
                for t in range(8): a(f"    s_mov_b64 s[{MS[t]}:{MS[t]+1}], -1")
                red_pre()
                a(f"""
    s_waitcnt vmcnt(0)
    {f"s_sleep {lo_sleep}" if lo_sleep else ""}
C_poll:
    """)
                for t in range(8):
                    a(f"""
    s_mov_b64 exec, s[{MS[t]}:{MS[t]+1}]
    s_cbranch_execz C_i{t}
    s_add_u32 s99, s22, {t*32768}
    buffer_load_dwordx4 {vr(OG+4*t,4)}, v{vPO}, s[40:43], s99 offen sc1
C_i{t}:
    """)
                a("    s_mov_b64 exec, -1\n    s_waitcnt vmcnt(0)")
                a(f"{P}SEG2:")
                for t in range(8):
                    a(f"""
    v_msad_u8 v{T+t}, v{OG+4*t}, v{vtagP}, 0
    v_perm_b32 v{FF+t}, v{OG+4*t+2}, v{OG+4*t+1}, s68
    v_lshl_or_b32 v{FF+t}, v{OG+4*t+3}, 24, v{FF+t}
    """)
                a(f"""
    v_or3_b32 v{T+8}, v{T}, v{T+1}, v{T+2}
    v_or3_b32 v{T+9}, v{T+3}, v{T+4}, v{T+5}
    v_or3_b32 v{T+8}, v{T+6}, v{T+7}, v{T+8}
    v_or_b32 v{T+8}, v{T+8}, v{T+9}
    v_cmp_ne_u32 vcc, 0, v{T+8}
    v_max3_f32 v{T+10}, v{FF}, v{FF+1}, v{FF+2}
    v_max3_f32 v{T+11}, v{FF+3}, v{FF+4}, v{FF+5}
    s_cbranch_vccz C_ok
    """)
                for t in range(8): a(f"    v_cmp_ne_u32 s[{MS[t]}:{MS[t]+1}], 0, v{T+t}")
                a("    s_nop 1")
                for t in range(8):
                    m = f"s[{MS[t]}:{MS[t]+1}]"
                    if masked:
                        a(f"""
    s_lshr_b64 s[96:97], {m}, 4
    s_or_b64 {m}, {m}, s[96:97]
    s_lshr_b64 s[96:97], {m}, 2
    s_or_b64 {m}, {m}, s[96:97]
    s_lshr_b64 s[96:97], {m}, 1
    s_or_b64 {m}, {m}, s[96:97]
    s_and_b64 {m}, {m}, s[52:53]
    s_mul_i32 s{MS[t]}, s{MS[t]}, 0xff
    s_mul_i32 s{MS[t]+1}, s{MS[t]+1}, 0xff
    """)
                    else:
                        a(f"""
    s_cmp_lg_u64 {m}, 0
    s_cselect_b64 {m}, -1, 0
    """)
                if c_bet: a(f"    s_sleep {c_bet}")
                if cnt: a("    s_add_u32 s94, s94, 1000\n    s_addc_u32 s95, s95, 0")
                a(f"""
    s_sub_u32 s71, s71, 1
    s_cmp_lg_u32 s71, 0
    s_cbranch_scc1 C_poll
C_ok:
    """)
                with guard(): stamp(6)
                M_ = T + 10
                a(f"""
    v_max3_f32 v{M_}, v{FF+6}, v{FF+7}, v{M_}
    v_max_f32 v{M_}, v{M_}, v{T+11}
    """)
                allreduce1(M_, T + 11, op="v_max_f32", steps=(8,))
                for t in range(8): a(f"    v_sub_f32 v{FF+t}, v{FF+t}, v{M_}")
                for t in range(8): a(f"    v_exp_f32 v{FF+t}, v{FF+t}")
                for e in range(4): a(f"    v_mul_f32 v{OG+e}, v{OG+e}, v{FF}")
                for e in range(4): a(f"    v_mul_f32 v{OG+4+e}, v{OG+4+e}, v{FF+1}")
                for t in range(2, 8):
                    for e in range(4): a(f"    v_fmac_f32 v{OG+4*(t&1)+e}, v{OG+4*t+e}, v{FF+t}")
                L_ = T + 6
                a(f"""
    v_pk_add_f32 {vr(FF,2)}, {vr(FF,2)}, {vr(FF+2,2)}
    v_pk_add_f32 {vr(FF+4,2)}, {vr(FF+4,2)}, {vr(FF+6,2)}
    v_pk_add_f32 {vr(OG,2)}, {vr(OG,2)}, {vr(OG+4,2)}
    v_pk_add_f32 {vr(OG+2,2)}, {vr(OG+2,2)}, {vr(OG+6,2)}
    v_pk_add_f32 {vr(FF,2)}, {vr(FF,2)}, {vr(FF+4,2)}
    v_add_f32 v{L_}, v{FF}, v{FF+1}
    """)
                merge2(OG, L_, steps=(8,))
                a(f"""
    v_rcp_f32 v{L_}, v{L_}
    s_nop 0
    v_mul_f32 v{OG}, v{OG}, v{L_}
    v_cvt_pk_bf16_f32 v{OG}, v{OG}, v{OG}
    v_and_b32 v{OG}, 0xffff0000, v{OG}
    v_or_b32 v{OG}, s46, v{OG}
    """)
                with guard():
                    a(f"    buffer_store_dword v{OG}, v{vOF}, s[40:43], s60 offen sc1")
                    stamp(8)
                    if lf_sleep: a(f"    s_sleep {lf_sleep}")
                S.extra(1)
                S.blocked -= {"pf"}
            elif name == "pf":
                def chk(re):
                    if not re: gwait("pf")
                    a(f"""
    v_msad_u8 v{T+3}, v{G0}, s46, 0
    v_cmp_ne_u32 vcc, 0, v{T+3}
    """)
                with guard():
                    if ffn and hf_sleep: a(f"    s_sleep {hf_sleep}")
                    while "pf" not in S.pos: S.issue()
                if ffn: a(f"{P}SEG2:")
                chk(False)
                retry(f"{P}rf", pollf, chk)
                with guard():
                    stamp(7); S.topup(name, depth + 2)
                a(f"""
    v_perm_b32 v{G0}, v{G0}, v{G0}, s47
    s_nop 1
    """)
                have_o = True
                ready = [k for k in range(8) if names.index(f"wo{k}") < names.index("pf")]
                for u in range(8):
                    for m_ in range(4):
                        a(f"    v_and_b32_dpp v{A3+4*u+m_}, v{G0}, v{2+m_} row_newbcast:{u} row_mask:0xf bank_mask:0xf")
                    if u >= 1 and (u - 1) in ready: mf_wo(u - 1)
                a("    s_nop 1")
                if 7 in ready: mf_wo(7)
            elif name.startswith("wo"):
                std()
                if have_o: mf_wo(int(name[2:]))
            elif name == "ph":
                def chk(re):
                    if not re: gwait("ph")
                    a(f"""
    v_msad_u8 v{T+8}, v{HG}, v{vtagP}, 0
    v_msad_u8 v{T+9}, v{HG+1}, v{vtagP}, 0
    v_msad_u8 v{T+8}, v{HG+2}, v{vtagP}, v{T+8}
    v_msad_u8 v{T+9}, v{HG+3}, v{vtagP}, v{T+9}
    v_or_b32 v{T+8}, v{T+8}, v{T+9}
    v_cmp_ne_u32 vcc, 0, v{T+8}
    """)
                while "ph" not in S.pos: S.issue()
                a(f"{P}SEG3b:")
                chk(False)
                retry(f"{P}rh", pollh, chk)
                with guard():
                    stamp(9)
                    if pf_at == "ph": S.blocked -= {"pf"}
                    S.topup(name, depth + 4)
                G_, U_ = HG, HG + 2
                a(f"""
    v_add_f32 v{G_}, v{HG}, v{HG+1}
    v_add_f32 v{U_}, v{HG+2}, v{HG+3}
    s_nop 0
    v_add_f32_dpp v{G_}, v{G_}, v{G_} row_ror:8 row_mask:0xf bank_mask:0xf
    v_add_f32_dpp v{U_}, v{U_}, v{U_} row_ror:8 row_mask:0xf bank_mask:0xf
    """)
                rbf16(G_, G_)
                a(f"""
    v_mul_f32 v{T+4}, {0x80000000 | LOG2E}, v{G_}
    v_exp_f32 v{T+4}, v{T+4}
    """)
                rbf16(U_, U_)
                a(f"""
    v_add_f32 v{T+4}, 1.0, v{T+4}
    v_rcp_f32 v{T+4}, v{T+4}
    s_nop 0
    v_mul_f32 v{G_}, v{G_}, v{T+4}
    """)
                rbf16(G_, G_)
                a(f"""
    v_mul_f32 v{G_}, v{G_}, v{U_}
    v_cvt_pk_bf16_f32 v{G_}, v{G_}, v{G_}
    s_nop 1
    """)
                have_h = True
                ready = [k for k in range(8) if names.index(f"wd{k}") < names.index("ph")]
                for u in range(8):
                    for m_ in range(4):
                        a(f"    v_and_b32_dpp v{A2+4*u+m_}, v{G_}, v{2+m_} row_newbcast:{u} row_mask:0xf bank_mask:0xf")
                    if u >= 1 and (u - 1) in ready: mf_wd(u - 1)
                a("    s_nop 1")
                if 7 in ready: mf_wd(7)
                seg_end()
            elif name.startswith("wd"):
                std()
                if have_h: mf_wd(int(name[2:]))
            if ffn and name == max(("ph", "wd7"), key=names.index) and name != names[-1]:
                a(f"""
    s_nop 7
    ds_write_b128 v{vOT}, {vr(DG,4)} offset:{L_OUT+2048}
    """)
                st_b[0] = True
        o1 = L_OUT // 256
        a(f"""
    s_add_u32 s99, s62, {PG-PL}
    s_nop 6
    ds_write_b128 v{vOT}, {vr(PD,4)} offset:{L_OUT}
    """)
        if ffn and not st_b[0]: a(f"    ds_write_b128 v{vOT}, {vr(DG,4)} offset:{L_OUT+2048}")
        a("    s_waitcnt lgkmcnt(0)")
        barrier()
        a(f"""
    ds_read2st64_b32 {vr(T,2)}, v{vt7} offset0:{o1} offset1:{o1+2}
    ds_read2st64_b32 {vr(T+2,2)}, v{vt7} offset0:{o1+4} offset1:{o1+6}
    s_cmp_ge_u32 s3, 2
    s_waitcnt lgkmcnt(0)
    v_add_f32 v{T}, v{T}, v{T+1}
    v_add_f32 v{T+2}, v{T+2}, v{T+3}
    v_add_f32 v{T}, v{T}, v{T+2}
    v_add_u32 v{T}, v{T}, v{vaddP}
    v_bfi_b32 v{T}, s70, v{vtagP}, v{T}
    """)
        seg_end()
        if ffn or not lazyg:
            if not ffn: a("    s_cbranch_scc1 Lt_nopub")
            a(f"""
    buffer_store_dword v{T}, v{vtid4}, s[40:43], s62 offen
    buffer_store_dword v{T}, v{vtid4}, s[40:43], s99 offen sc1
    """)
            if not ffn: a("Lt_nopub:")
        else:
            a(f"""
    s_mov_b32 s71, 1
    s_cbranch_scc1 R_p
    buffer_store_dword v{T}, v{vtid4}, s[40:43], s62 offen
    buffer_load_dwordx4 {vr(RA,4)}, v{vA}, s[40:43], s55 offen sc1
    buffer_load_dwordx4 {vr(RB,4)}, v{vB}, s[40:43], s55 offen sc1
    buffer_store_dword v{T}, v{vtid4}, s[40:43], s99 offen sc1
    """)
            stamp(10)
            a("""
    s_waitcnt vmcnt(1)
    s_branch R_c
    """)
            return
        stamp(10)

    path(True, "H")
    store_stamps()
    a("    s_endpgm")
    a("L_light:")
    path(False, "Lt")
    a(f"""
LtSEG3:
    s_mov_b32 s71, 0
R_p:
    s_add_u32 s71, s71, 1
    s_and_b32 s96, s71, {gper}
    s_cmp_eq_u32 s96, 0
    s_cselect_b32 s96, s54, s55
    """)
    with guard():
        a(f"""
    buffer_load_dwordx4 {vr(RA,4)}, v{vA}, s[40:43], s96 offen sc1
    buffer_load_dwordx4 {vr(RB,4)}, v{vB}, s[40:43], s96 offen sc1
    s_waitcnt vmcnt(0)
    """)
    a(f"""
R_c:
    v_msad_u8 v{ac}, v{RA}, s28, 0
    v_msad_u8 v{ac+1}, v{RA+1}, s29, 0
    v_msad_u8 v{ac}, v{RA+2}, s30, v{ac}
    v_msad_u8 v{ac+1}, v{RA+3}, s31, v{ac+1}
    v_msad_u8 v{ac}, v{RB}, s28, v{ac}
    v_msad_u8 v{ac+1}, v{RB+1}, s29, v{ac+1}
    v_msad_u8 v{ac}, v{RB+2}, s30, v{ac}
    v_msad_u8 v{ac+1}, v{RB+3}, s31, v{ac+1}
    v_or_b32 v{ac}, v{ac}, v{ac+1}
    v_cmp_ne_u32 vcc, 0, v{ac}
    s_cmp_eq_u32 s71, {spin_max}
    s_cbranch_scc1 R_ok
    s_cbranch_vccnz R_p
R_ok:
    """)
    for e in range(4): a(f"    v_mul_f32 v{RB+e}, v{RB+e}, v{vkeep}")
    a(f"""
    v_permlane32_swap_b32 v{RA}, v{RA+2}
    v_permlane32_swap_b32 v{RA+1}, v{RA+3}
    v_permlane32_swap_b32 v{RB}, v{RB+2}
    v_permlane32_swap_b32 v{RB+1}, v{RB+3}
    v_add_f32 v{RA}, v{RA}, v{RA+2}
    v_add_f32 v{RA+1}, v{RA+1}, v{RA+3}
    v_add_f32 v{RB}, v{RB}, v{RB+2}
    v_add_f32 v{RB+1}, v{RB+1}, v{RB+3}
    v_lshlrev_b32 v{vX}, 16, v{vX}
    v_permlane16_swap_b32 v{RA}, v{RA+1}
    v_permlane16_swap_b32 v{RB}, v{RB+1}
    v_add_f32 v{RA}, v{RA}, v{RA+1}
    v_add_f32 v{RB}, v{RB}, v{RB+1}
    s_nop 0
    v_add_f32_dpp v{RA}, v{RA}, v{RA} row_ror:8 row_mask:0xf bank_mask:0xf
    v_add_f32_dpp v{RB}, v{RB}, v{RB} row_ror:8 row_mask:0xf bank_mask:0xf
    """)
    if red1:
        a(f"""
    s_nop 0
    v_add_f32_dpp v{RA}, v{RA}, v{RA} row_ror:4 row_mask:0xf bank_mask:0xf
    v_add_f32_dpp v{RB}, v{RB}, v{RB} row_ror:4 row_mask:0xf bank_mask:0xf
    s_nop 0
    v_add_f32_dpp v{RA}, v{RA}, v{RA} row_ror:2 row_mask:0xf bank_mask:0xf
    v_add_f32_dpp v{RB}, v{RB}, v{RB} row_ror:2 row_mask:0xf bank_mask:0xf
    v_cvt_pk_bf16_f32 v{RA}, v{RA}, v{RB}
    v_lshlrev_b32 v{RB}, 16, v{RA}
    v_and_b32 v{RA}, 0xffff0000, v{RA}
    v_add_f32 v{RB}, v{RB}, v{vX}
    v_cvt_pk_bf16_f32 v{RB}, v{RB}, v{RB}
    v_and_b32 v{RB}, 0xffff0000, v{RB}
    v_add_f32 v{RA}, v{RA}, v{RB}
    v_cvt_pk_bf16_f32 v{RA}, v{RA}, v{RA}
    """)
        if warm: a("    s_cbranch_execz LtW_ret")
        a(f"""
    s_mov_b64 exec, s[56:57]
    buffer_store_short v{RA}, v{vO}, s[16:19], 0 offen
    s_or_b32 s96, s65, s3
    s_cmp_lg_u32 s96, 0
    s_cbranch_scc1 R_done
    v_mov_b32 v{RB}, s35
    v_mov_b32 v{RB+1}, 0
    s_mov_b64 exec, 1
    buffer_store_dword v{RB}, v{RB+1}, s[40:43], 0 offen offset:{EPOCH}
    """)
    else:
        raise NotImplementedError
    a(f"""
R_done:
    s_mov_b64 exec, -1
    """)
    stamp(9)
    store_stamps()
    a("""
L_end:
    s_endpgm
L_code_end:
    """)
    print(out, "vgprs", nv, "agprs", nagpr, "lds", LDS_BYTES)
    open(out, "w").write(wrap(a.text(), 256, 256, LDS_BYTES, vgpr=accum + nagpr, accum=accum))

if __name__ == "__main__":
    gen("k12.s", stamps=True)
    gen("k12_ns.s", stamps=False)
```

```python
import sys
from asmgen import *

STAMP_OFF = 128 << 20
NST = 12
EPOCH = 0
QP = 0x1000
OP = 0x40000
GU = 0x180000
OF = 0x20000
PL = 0x200000
PG = 0x240000
WS_SIZE = 256 << 20

L_RED = 0
L_G = 2048
L_TRASH = 6144
L_Q = 11264
L_S = 13440
L_OUT = 14848
L_OUT2 = 18944
L_FIN = 20992
L_V = 23040
LDS_BYTES = L_V + 16384

LOG2E = 0x3FB8AA3B
SCALE = 0x3DB504F3

class R:
    def __init__(self, start): self.n = start
    def a(self, k=1, al=1):
        self.n = (self.n + al - 1) // al * al
        r = self.n; self.n += k
        return r
def vr(b, n): return f"v[{b}:{b+n-1}]"
def ar(b, n): return f"a[{b}:{b+n-1}]"

class Sched:
    def __init__(self, a): self.a = a; self.items = []; self.issued = 0; self.nops = 0; self.pos = {}; self.blocked = set()
    def add(self, name, fn, n=1): self.items.append((name, fn, n))
    def issue(self):
        name, fn, n = self.items[self.issued]
        fn(); self.nops += n; self.pos[name] = self.nops; self.issued += 1
    def can(self): return self.issued < len(self.items) and self.items[self.issued][0] not in self.blocked
    def extra(self, n=1): self.nops += n
    def wait(self, name, sub=0):
        while name not in self.pos:
            assert self.can(), (name, self.items[self.issued][0])
            self.issue()
        cnt = self.nops - self.pos[name] + sub
        assert cnt <= 63
        self.a(f"    s_waitcnt vmcnt({cnt})")
    def index(self, name): return [i for i, it in enumerate(self.items) if it[0] == name][0]
    def topup(self, name, depth):
        i = self.index(name)
        while self.can() and self.issued - (i + 1) < depth: self.issue()
    def sprk(self, n):
        for _ in range(n):
            if self.can(): self.issue()

def gen(out, stamps=True, nt=True, D=5, Dl=5, pq=23, pf=48, ph=45, lq=22, lo_sleep=48, spin_max=1 << 20, warm=True,
        k0=2, k1=0, k2=2, Dt=7, sprinkle=(2, 2, 1, 1), spr3=3, dmap=None, warm_extra=3, cnt=False, gper=7, local=True, sprg=1, mixU=True, oracle_q=False, ph_after_o=False, tail_step=0, wq_flags=" nt", nobar=False, kvs=False, lf_sleep=12, masked=True, c_bet=0, pf_late=False, hf_sleep=0, pure=False, pf_at=None, trlate=False, red1=True, lazyg=True, late_tags=False, pf0=None):
    a = Asm()
    NT = nt if isinstance(nt, str) else (" nt" if nt else "")
    def stamp(i):
        if stamps: a(f"    s_memrealtime s[{72+2*i}:{73+2*i}]")
    def store_stamps():
        if not stamps: return
        lab = a.label("nost")
        a(f"""
    s_waitcnt lgkmcnt(0)
    s_cmp_lg_u32 s3, 0
    s_cbranch_scc1 {lab}
    s_mul_i32 s64, s2, {NST*8}
    s_add_u32 s64, s64, {STAMP_OFF}
    v_mov_b32 v20, 0
    s_mov_b64 exec, 1
    """)
        for i in range(NST):
            a(f"""
    v_mov_b32 v22, s{72+2*i}
    v_mov_b32 v23, s{73+2*i}
    buffer_store_dwordx2 v[22:23], v20, s[40:43], s64 offen offset:{8*i}
    s_nop 1
    """)
        a(f"{lab}:")
    def srd(base, lo, size):
        a(f"""
    s_mov_b32 s{base}, s{lo}
    s_mov_b32 s{base+1}, s{lo+1}
    s_mov_b32 s{base+2}, {size}
    s_mov_b32 s{base+3}, 0x20000
    """)
    class guard:
        def __enter__(self):
            self.l = a.label("G"); self.n = len(a.lines)
            if warm: a(f"    s_cbranch_execz {self.l}")
        def __exit__(self, *x):
            if warm:
                if len(a.lines) == self.n + 1: a.lines.pop()
                else: a(f"{self.l}:")
    def barrier():
        with guard(): a("    s_barrier")

    r = R(10)
    (vtagP, vaddP, vOT, vtid4, vPF, vG4, vWQ, vK, vWO, vPO, vQW, vQR, vSW, vSR, vTR, vred, vtag0, vGU, vGU2, vWD, vPH, vJ, vG,
     vOT2, vl4, vt7, vV) = [r.a() for _ in range(27)]
    XA = r.a(8, 4); XS = r.a(4, 4); T = r.a(24, 4); A = r.a(32, 4); QB = r.a(16, 4)
    D1 = r.a(4, 4); PD = r.a(16, 4); DG = r.a(8, 4); WQ = r.a(32, 4); KK = r.a(16, 4); VO = r.a(16, 4); G0 = r.a(16, 4); HG = r.a(4, 4)
    nv = r.n
    assert nv <= 256, nv
    accum = (nv + 3) // 4 * 4
    GW = 0; WD = 64; nagpr = 96
    A3 = KK; A2 = A; WO = WQ; OG = A; FF = QB
    assert VO == KK + 16

    a(f"""
    s_cmp_ge_u32 s2, 256
    s_cbranch_scc1 L_end
    s_load_dwordx16 s[4:19], s[0:1], 0
    s_load_dwordx8 s[20:27], s[0:1], 64
    """)
    if stamps:
        for i in range(1, NST): a(f"    s_mov_b64 s[{72+2*i}:{73+2*i}], 0")
    stamp(0)
    a(f"""
    v_lshrrev_b32 v6, 6, v0
    v_and_b32 v1, 63, v0
    s_and_b32 s33, s2, 7            ; xcd
    v_readfirstlane_b32 s3, v6
    s_lshr_b32 s34, s2, 3           ; idx
    s_getpc_b64 s[96:97]
L_pc:
    s_lshl_b32 s64, s34, 2
    s_add_u32 s64, s64, s3
    s_lshl_b32 s64, s64, 7
    s_min_u32 s64, s64, L_code_end - L_pc - 4
    v_mov_b32 v9, s64
    global_load_dword v{vPF}, v9, s[96:97]
    v_lshlrev_b32 v6, 4, v1          ; lane*16
    v_lshrrev_b32 v7, 3, v1          ; l>>3
    v_and_b32 v8, 7, v1              ; l&7
    s_lshr_b32 s65, s33, 1           ; g
    s_and_b32 s66, s33, 1
    s_lshl_b32 s66, s66, 5
    s_add_u32 s66, s66, s34          ; m
    s_and_b32 s67, s66, 15           ; cb
    s_lshr_b32 s68, s66, 4           ; rq
    s_lshl_b32 s69, s68, 8
    s_lshl_b32 s64, s3, 6
    s_add_u32 s69, s69, s64          ; R0
    s_lshl_b32 s97, s69, 1
    v_lshlrev_b32 v9, 4, v7
    s_lshl_b32 s64, s69, 13
    s_lshl_b32 s96, s65, 11
    s_add_u32 s64, s64, s96
    s_lshl_b32 s96, s67, 7
    s_add_u32 s64, s64, s96
    v_lshlrev_b32 v{vWQ}, 16, v7
    v_lshl_add_u32 v{vWQ}, v8, 4, v{vWQ}
    v_add_u32 v{vWQ}, s64, v{vWQ}
    v_lshrrev_b32 v{vG}, 4, v1
    v_and_b32 v{vJ}, 15, v1
    s_mov_b32 s38, 2048
    s_mov_b32 s39, 0x20000
    s_mov_b32 s46, {8<<20}
    s_mov_b32 s47, 0x20000
    s_mov_b32 s64, 0
    s_waitcnt lgkmcnt(0)
    s_mov_b32 s36, s4
    s_mov_b32 s37, s5
    buffer_load_dwordx4 {vr(XA,4)}, v6, s[36:39], 0 offen
    buffer_load_dwordx4 {vr(XA+4,4)}, v6, s[36:39], 0 offen offset:1024
    buffer_load_dwordx4 {vr(XS,4)}, v9, s[36:39], s97 offen
    s_load_dword s28, s[26:27], {EPOCH}
    s_mov_b32 s44, s10
    s_mov_b32 s45, s11
    {"" if nobar else "s_barrier"}
    """)
    for t in range(8):
        a(f"    buffer_load_dwordx4 {vr(WQ+4*t,4)}, v{vWQ}, s[44:47], s64 offen{wq_flags}")
        if t < 7: a(f"    s_add_u32 s64, s64, 8192")
    a(f"""
    v_bfe_u32 v{T}, v0, 1, 2
    v_and_b32 v{T+1}, 1, v0
    v_lshlrev_b32 v{T+1}, 4, v{T+1}
    v_mov_b32 v9, 0xffff
    v_lshlrev_b32 v9, v{T+1}, v9
    v_cmp_eq_u32 vcc, 0, v{T}
    v_cmp_eq_u32 s[96:97], 1, v{T}
    v_cmp_eq_u32 s[98:99], 2, v{T}
    v_cmp_eq_u32 s[100:101], 3, v{T}
    v_cndmask_b32 v2, 0, v9, vcc
    v_cndmask_b32 v3, 0, v9, s[96:97]
    v_cndmask_b32 v4, 0, v9, s[98:99]
    v_cndmask_b32 v5, 0, v9, s[100:101]
    s_lshl_b32 s63, s65, 23
    s_lshl_b32 s96, s66, {8 if kvs else 14}
    s_add_u32 s63, s63, s96
    s_lshl_b32 s96, s3, {18 if kvs else 12}
    s_add_u32 s63, s63, s96
    s_add_u32 s63, s63, {28672*256}
    s_lshl_b32 s96, s3, 12
    s_add_u32 s96, s96, {L_V}
    s_mov_b32 m0, s96
    v_lshlrev_b32 v{vK}, {14 if kvs else 8}, v{vJ}
    v_lshl_add_u32 v{vK}, v{vG}, 4, v{vK}
    v_lshlrev_b32 v{vV}, {14 if kvs else 8}, v{vG}
    v_lshl_add_u32 v{vV}, v{vJ}, 4, v{vV}
    """)
    srd(48, 6, 32 << 20)
    srd(52, 8, 32 << 20)
    srd(40, 26, WS_SIZE)

    def allreduce2(x, y, t1, t2):
        for s_ in (8, 4, 2, 1):
            a(f"""
    s_nop 0
    v_add_f32_dpp v{x}, v{x}, v{x} row_ror:{s_} row_mask:0xf bank_mask:0xf
    v_add_f32_dpp v{y}, v{y}, v{y} row_ror:{s_} row_mask:0xf bank_mask:0xf
    """)
        for sw in ("v_permlane16_swap_b32", "v_permlane32_swap_b32"):
            a(f"""
    v_mov_b32 v{t1}, v{x}
    v_mov_b32 v{t2}, v{y}
    s_nop 0
    {sw} v{t1}, v{x}
    {sw} v{t2}, v{y}
    v_add_f32 v{x}, v{x}, v{t1}
    v_add_f32 v{y}, v{y}, v{t2}
    """)
    def allreduce1(x, t1, op="v_add_f32", steps=(8, 4, 2, 1)):
        for s_ in steps:
            a(f"""
    s_nop 1
    {op}_dpp v{x}, v{x}, v{x} row_ror:{s_} row_mask:0xf bank_mask:0xf
    """)
        for sw in ("v_permlane16_swap_b32", "v_permlane32_swap_b32"):
            a(f"""
    v_mov_b32 v{t1}, v{x}
    s_nop 1
    {sw} v{t1}, v{x}
    {op} v{x}, v{x}, v{t1}
    """)
    def rbf16(d, s_):
        a(f"""
    v_cvt_pk_bf16_f32 v{d}, v{s_}, v{s_}
    v_and_b32 v{d}, 0xffff0000, v{d}
    """)
    a(f"""
    v_lshrrev_b32 v{vred}, 2, v1
    v_xor_b32 v{vred}, v{vred}, v1
    v_and_b32 v{vred}, 8, v{vred}
    v_cmp_eq_u32 vcc, 0, v{vred}
    v_lshlrev_b32 v{vred}, 5, v8
    v_bfe_u32 v9, v1, 4, 1
    v_lshl_add_u32 v{vred}, v9, 4, v{vred}
    v_lshrrev_b32 v9, 5, v1
    v_lshl_add_u32 v{vred}, v9, 8, v{vred}
    s_lshl_b32 s64, s3, 9
    v_add_u32 v{vred}, s64, v{vred}
    v_add_u32 v9, {L_TRASH}, v6
    v_cndmask_b32 v{vred}, v9, v{vred}, vcc
    v_lshlrev_b32 v{vtid4}, 2, v0
    v_and_b32 v{vG4}, 3, v1
    v_lshlrev_b32 v{vtagP}, 3, v{vG4}
    s_lshl_b32 s44, s65, 14
    s_add_u32 s44, s44, {QP}
    s_lshl_b32 s45, s68, 12
    s_add_u32 s45, s45, s44
    s_lshl_b32 s96, s67, 8
    s_add_u32 s45, s45, s96
    """)
    def tags_block():
        a(f"""
    s_waitcnt lgkmcnt(0)
    s_and_b32 s28, s28, 0x7f
    s_cmp_eq_u32 s28, 127
    s_cselect_b32 s28, 0, s28
    s_add_u32 s35, s28, 1
    s_add_u32 s29, s28, 33
    s_sub_u32 s64, s29, 127
    s_cmp_gt_u32 s29, 127
    s_cselect_b32 s29, s64, s29
    s_add_u32 s30, s28, 65
    s_sub_u32 s64, s30, 127
    s_cmp_gt_u32 s30, 127
    s_cselect_b32 s30, s64, s30
    s_add_u32 s31, s28, 97
    s_sub_u32 s64, s31, 127
    s_cmp_gt_u32 s31, 127
    s_cselect_b32 s31, s64, s31
    s_add_u32 s28, s28, 1
    s_lshl_b32 s32, s29, 8
    s_or_b32 s32, s32, s28
    s_lshl_b32 s64, s30, 16
    s_or_b32 s32, s32, s64
    s_lshl_b32 s64, s31, 24
    s_or_b32 s32, s32, s64
    s_movk_i32 s70, 0xff
    v_bfe_u32 v{vtagP}, s32, v{vtagP}, 8
    v_sub_u32 v{vaddP}, 0x80, v{vtagP}
    s_and_b32 s46, s32, 0xffff
    """)
    if not late_tags: tags_block()
    a(f"""
    """)
    def kv_issue(i):
        if i < 4: a(f"    buffer_load_dwordx4 {vr(KK+4*i,4)}, v{vK}, s[48:51], s63 offen offset:{64*i}{NT}")
        else:
            so = "s63"
            if kvs and i > 4:
                a(f"    s_add_u32 s99, s63, {(i-4)*(65536-1024)}"); so = "s99"
            a(f"    buffer_load_dwordx4 v{vV}, s[52:55], {so} offen offset:{1024*(i-4)}{NT} lds")
    a(f"    s_waitcnt vmcnt(9)")
    stamp(1)
    for i in range(k0): kv_issue(i)
    for k in range(8):
        a(f"""
    v_lshlrev_b32 v{T+2*k}, 16, v{XA+k}
    v_and_b32 v{T+2*k+1}, 0xffff0000, v{XA+k}
    """)
    a(f"""
    v_readfirstlane_b32 s64, v{T}
    s_nop 1
    """)
    for k in range(16): a(f"    v_subrev_f32 v{T+k}, s64, v{T+k}")
    a(f"""
    v_pk_add_f32 {vr(T+16,2)}, {vr(T,2)}, {vr(T+2,2)}
    v_pk_mul_f32 {vr(T+18,2)}, {vr(T,2)}, {vr(T,2)}
    """)
    for k in range(1, 8):
        a(f"    v_pk_fma_f32 {vr(T+18,2)}, {vr(T+2*k,2)}, {vr(T+2*k,2)}, {vr(T+18,2)}")
        if k >= 2: a(f"    v_pk_add_f32 {vr(T+16,2)}, {vr(T+16,2)}, {vr(T+2*k,2)}")
    S1, S2, t1, t2 = T + 16, T + 18, T + 17, T + 19
    a(f"""
    v_add_f32 v{S1}, v{S1}, v{t1}
    v_add_f32 v{S2}, v{S2}, v{t2}
    s_nop 0
    """)
    allreduce2(S1, S2, t1, t2)
    mean, var, rs, sd = T, T + 1, T + 2, T + 3
    a(f"""
    v_mul_f32 v{S1}, 0x3a800000, v{S1}
    v_mul_f32 v{S2}, 0x3a800000, v{S2}
    v_add_f32 v{mean}, s64, v{S1}
    v_fma_f32 v{var}, -v{S1}, v{S1}, v{S2}
    v_max_f32 v{var}, 0, v{var}
    """)
    rbf16(mean, mean); rbf16(var, var)
    a(f"    v_add_f32 v{var}, 0x3727c5ac, v{var}")
    rbf16(var, var)
    a(f"""
    v_sqrt_f32 v{sd}, v{var}
    s_waitcnt vmcnt({8+k0})
    """)
    for i in range(k0, k0 + k1): kv_issue(i)
    rbf16(sd, sd)
    a(f"    v_rcp_f32 v{rs}, v{sd}")
    Dd = T + 4; Q = T + 12
    for k in range(4):
        a(f"""
    v_lshlrev_b32 v{Dd+2*k}, 16, v{XS+k}
    v_and_b32 v{Dd+2*k+1}, 0xffff0000, v{XS+k}
    """)
    for k in range(8): a(f"    v_sub_f32 v{Dd+k}, v{Dd+k}, v{mean}")
    for k in range(4): a(f"    v_cvt_pk_bf16_f32 v{XS+k}, v{Dd+2*k}, v{Dd+2*k+1}")
    for k in range(4):
        a(f"""
    v_lshlrev_b32 v{Dd+2*k}, 16, v{XS+k}
    v_and_b32 v{Dd+2*k+1}, 0xffff0000, v{XS+k}
    """)
    for k in range(8): a(f"    v_mul_f32 v{Q+k}, v{Dd+k}, v{rs}")
    for k in range(8): a(f"    v_fma_f32 v{Dd+k}, -v{Q+k}, v{sd}, v{Dd+k}")
    for k in range(8): a(f"    v_fmac_f32 v{Q+k}, v{Dd+k}, v{rs}")
    for k in range(8): a(f"    v_cvt_pk_bf16_f32 v{Q+k}, v{Q+k}, v{Q+k}")
    for k in range(8):
        for m_ in range(4): a(f"    v_and_b32 v{A+4*k+m_}, v{Q+k}, v{2+m_}")
    stamp(2)
    for i in range(k0 + k1, k0 + k1 + k2): kv_issue(i)
    srd(56, 12, 8 << 20)
    srd(4, 16, 7 << 20)
    srd(8, 18, 7 << 20)
    srd(12, 20, 7 << 20)
    srd(16, 22, 2048)
    a(f"""
    s_add_u32 s64, s67, 4
    s_lshr_b32 s64, s64, 3
    s_mul_i32 s60, s65, 14
    s_add_u32 s60, s60, s67
    s_sub_u32 s60, s60, s64
    s_add_u32 s61, s60, {28 if mixU else 0}
    s_sub_u32 s64, s61, 56
    s_cmp_ge_u32 s61, 56
    s_cselect_b32 s61, s64, s61
    s_add_u32 s64, s34, 4
    s_lshr_b32 s64, s64, 3
    s_sub_u32 s62, s34, s64
    s_mul_i32 s64, s69, 7168
    v_mul_u32_u24 v{vGU}, {8*7168}, v7
    v_lshl_add_u32 v{vGU}, v8, 4, v{vGU}
    s_lshl_b32 s96, s61, 7
    s_add_u32 s96, s96, s64
    v_add_u32 v{vGU2}, s96, v{vGU}
    s_lshl_b32 s96, s60, 7
    s_add_u32 s96, s96, s64
    v_add_u32 v{vGU}, s96, v{vGU}
    s_lshl_b32 s60, s60, 11
    s_lshl_b32 s61, s61, 11
    s_add_u32 s61, s61, 1024
    s_cmp_eq_u32 s3, 0
    s_cselect_b32 s60, s60, s61
    s_lshl_b32 s64, s68, 8
    s_add_u32 s60, s60, s64
    s_add_u32 s60, s60, {GU}
    s_lshl_b32 s61, s62, 12
    s_lshr_b32 s64, s3, 1
    s_lshl_b32 s64, s64, 11
    s_add_u32 s61, s61, s64
    s_and_b32 s64, s3, 1
    s_lshl_b32 s64, s64, 7
    s_add_u32 s61, s61, s64
    s_add_u32 s61, s61, {GU}
    v_bfe_u32 v9, v1, 3, 1
    v_lshlrev_b32 v{vPH}, 8, v9
    v_lshl_add_u32 v{vPH}, v{vG}, 5, v{vPH}
    v_lshl_add_u32 v{vPH}, v8, 2, v{vPH}
    ; wd voffset = (128j + 32w + 8G)*2048 + 256x + 16jj
    s_lshl_b32 s64, s62, 18
    s_lshl_b32 s96, s3, 16
    s_add_u32 s64, s64, s96
    s_lshl_b32 s96, s33, 8
    s_add_u32 s64, s64, s96
    v_lshlrev_b32 v{vWD}, 14, v{vG}
    v_lshl_add_u32 v{vWD}, v{vJ}, 4, v{vWD}
    v_add_u32 v{vWD}, s64, v{vWD}
    s_lshl_b32 s62, s33, 5
    s_add_u32 s62, s62, s34
    s_lshl_b32 s62, s62, 10
    s_add_u32 s62, s62, {PL}
    v_and_b32 v{vt7}, 511, v{vtid4}
    s_lshr_b32 s64, s3, 1
    s_lshl_b32 s64, s64, 11
    v_add_u32 v{vt7}, s64, v{vt7}
    v_lshlrev_b32 v{vl4}, 2, v1
    v_mul_u32_u24 v{vSW}, 144, v8
    v_lshl_add_u32 v{vSR}, v{vG}, 4, v{vSW}
    v_lshl_add_u32 v{vSR}, v9, 6, v{vSR}
    v_bfe_u32 v9, v1, 4, 1
    v_lshlrev_b32 v{vOT}, 5, v{vJ}
    v_lshl_add_u32 v{vOT}, v9, 4, v{vOT}
    s_lshl_b32 s64, s3, 9
    v_add_u32 v{vOT}, s64, v{vOT}
    s_lshl_b32 s67, s34, 2
    s_add_u32 s67, s67, s3
    s_lshr_b32 s64, s67, 5
    s_lshl_b32 s64, s64, 10
    s_bfe_u32 s96, s67, 0x20003
    s_lshl_b32 s96, s96, 5
    s_add_u32 s64, s64, s96
    s_and_b32 s96, s67, 1
    s_lshl_b32 s96, s96, 4
    s_add_u32 s64, s64, s96
    s_bfe_u32 s96, s67, 0x20001
    s_lshl_b32 s96, s96, 2
    s_add_u32 s64, s64, s96
    s_lshl_b32 s64, s64, 11
    s_lshl_b32 s96, s33, 8
    s_add_u32 s64, s64, s96
    v_lshlrev_b32 v{vWO}, 11, v{vG}
    v_lshl_add_u32 v{vWO}, v{vJ}, 4, v{vWO}
    v_add_u32 v{vWO}, s64, v{vWO}
    s_lshl_b32 s69, s67, 7
    s_add_u32 s69, s69, {OF}
    v_lshlrev_b32 v{vOT2}, 5, v{vG}
    v_lshl_add_u32 v{vOT2}, v8, 2, v{vOT2}   ; vOF = (8G + (l&7))*4
    v_mul_u32_u24 v{vQR}, 272, v8
    v_lshl_add_u32 v{vQR}, v{vG}, 4, v{vQR}
    v_lshl_add_u32 v{vSW}, v{vG}, 3, v{vSW}
    s_lshl_b32 s96, s3, 5
    v_add_u32 v{vSW}, s96, v{vSW}
    v_bfe_u32 v9, v1, 2, 2
    v_lshl_add_u32 v{vTR}, v{vG}, 3, v9
    v_lshlrev_b32 v{vTR}, 8, v{vTR}
    v_lshlrev_b32 v9, 3, v{vG4}
    s_lshl_b32 s64, s3, 6
    v_add3_u32 v{vTR}, v{vTR}, v9, s64
    v_lshrrev_b32 v{vQW}, 5, v0
    v_and_b32 v9, 31, v0
    v_mul_u32_u24 v{vQW}, 272, v{vQW}
    v_lshl_add_u32 v{vQW}, v9, 3, v{vQW}
    s_lshl_b32 s97, s3, 10
    s_add_u32 s20, s44, s97
    s_lshl_b32 s22, s65, 18
    s_add_u32 s22, s22, {OP}
    s_lshl_b32 s96, s66, 12
    s_add_u32 s23, s22, s96
    s_add_u32 s23, s23, s97
    s_mov_b32 s47, 0x03020302
    s_mov_b32 s24, {SCALE}
    s_mov_b32 s25, {LOG2E}
    """)
    if late_tags: tags_block()
    a(f"""
    s_mov_b32 s26, 0x07060500
    s_mov_b32 s27, 0x07060501
    s_mov_b32 s66, 0x07060502
    s_mov_b32 s67, 0x07060503
    s_mov_b32 s68, 0x0c04000c
    s_lshl_b32 s21, s3, 11
    v_add_u32 v{vt7+0 if False else XS}, s21, v{vl4}
    """)
    vGR = XS; vOF = vOT2
    PSEL = (26, 27, 66, 67)
    def red8(Rr, vaddr, o):
        a(f"""
    ds_read2st64_b32 {vr(Rr,2)}, v{vaddr} offset0:{o} offset1:{o+1}
    ds_read2st64_b32 {vr(Rr+2,2)}, v{vaddr} offset0:{o+2} offset1:{o+3}
    ds_read2st64_b32 {vr(Rr+4,2)}, v{vaddr} offset0:{o+4} offset1:{o+5}
    ds_read2st64_b32 {vr(Rr+6,2)}, v{vaddr} offset0:{o+6} offset1:{o+7}
    s_waitcnt lgkmcnt(0)
    v_add_f32 v{Rr}, v{Rr}, v{Rr+1}
    v_add_f32 v{Rr+2}, v{Rr+2}, v{Rr+3}
    v_add_f32 v{Rr+4}, v{Rr+4}, v{Rr+5}
    v_add_f32 v{Rr+6}, v{Rr+6}, v{Rr+7}
    v_add_f32 v{Rr}, v{Rr}, v{Rr+2}
    v_add_f32 v{Rr+4}, v{Rr+4}, v{Rr+6}
    v_add_f32 v{Rr}, v{Rr}, v{Rr+4}
    v_add_u32 v{Rr}, v{Rr}, v{vaddP}
    v_bfi_b32 v{Rr}, s70, v{vtagP}, v{Rr}
    """)
    nk = k0 + k1 + k2
    for t in range(8):
        a(f"    s_waitcnt vmcnt({7 - t + nk})")
        srcc = "0" if t == 0 else vr(D1, 4)
        a(f"    v_mfma_f32_16x16x32_bf16 {vr(D1,4)}, {vr(A+4*t,4)}, {vr(WQ+4*t,4)}, {srcc}")
        while nk < 8 and t < 7 and (7 - t) + nk < Dt:
            kv_issue(nk); nk += 1
    kpre = nk
    a(f"""
    s_nop 7
    ds_write_b128 v{vred}, {vr(D1,4)} offset:{L_RED}
    s_waitcnt lgkmcnt(0)
    s_barrier
    s_cmp_lg_u32 s3, 0
    s_cbranch_scc1 L_nored
    """)
    red8(T, vl4, L_RED // 256)
    a(f"""
    buffer_store_dword v{T}, v{vl4}, s[40:43], s45 offen sc1
L_nored:
    """)
    stamp(3)
    a("""
    s_and_b32 s64, s34, 7
    s_cmp_eq_u32 s64, 3
    s_cbranch_scc1 L_light
    """)

    def merge2(X, Y, steps=(8, 4)):
        a(f"""
    v_mov_b32 v{Y+1}, v{Y}
    s_nop 0
    v_permlane32_swap_b32 v{X}, v{X+2}
    v_permlane32_swap_b32 v{X+1}, v{X+3}
    v_permlane32_swap_b32 v{Y+1}, v{Y}
    v_add_f32 v{X}, v{X}, v{X+2}
    v_add_f32 v{X+1}, v{X+1}, v{X+3}
    v_add_f32 v{Y}, v{Y}, v{Y+1}
    s_nop 0
    v_mov_b32 v{Y+1}, v{Y}
    v_permlane16_swap_b32 v{X}, v{X+1}
    s_nop 0
    v_permlane16_swap_b32 v{Y+1}, v{Y}
    v_add_f32 v{X}, v{X}, v{X+1}
    v_add_f32 v{Y}, v{Y}, v{Y+1}
    """)
        for s_ in steps:
            a(f"""
    s_nop 0
    v_add_f32_dpp v{X}, v{X}, v{X} row_ror:{s_} row_mask:0xf bank_mask:0xf
    v_add_f32_dpp v{Y}, v{Y}, v{Y} row_ror:{s_} row_mask:0xf bank_mask:0xf
    """)

    vA, vB, vkeep, vX, vO, vF = XA, XA + 1, XA + 2, XA + 3, XA + 4, XA + 5
    RA = G0; RB = G0 + 8; ac = T + 6
    def red_pre():
        if red1: return red_pre1()
        a(f"""
    s_lshl_b32 s54, s65, 6
    v_lshlrev_b32 v{vO}, 1, v1
    v_add_u32 v{vO}, s54, v{vO}
    buffer_load_ushort v{vX}, v{vO}, s[36:39], 0 offen
    v_lshlrev_b32 v{vA}, 10, v7
    v_lshl_add_u32 v{vA}, v8, 4, v{vA}
    v_cmp_ne_u32 vcc, 3, v7
    v_add_u32 v{vB}, 512, v{vA}
    v_lshlrev_b32 v{vF}, 2, v{vG}
    v_cndmask_b32 v{vB}, v{vA}, v{vB}, vcc
    v_cndmask_b32 v{vkeep}, 0, 1.0, vcc
    v_lshl_add_u32 v{vF}, v8, 4, v{vF}
    s_lshl_b32 s96, s3, 8
    v_add_u32 v{vF}, s96, v{vF}
    s_lshl_b32 s55, s33, 15
    s_lshl_b32 s96, s3, 13
    s_add_u32 s55, s55, s96
    s_lshr_b32 s64, s34, 3
    s_lshl_b32 s64, s64, 7
    s_add_u32 s55, s55, s64
    s_add_u32 s54, s55, {PG}
    s_add_u32 s55, s55, {PL if local else PG}
    """)

    def red_pre1():
        a(f"""
    s_lshl_b32 s54, s65, 5
    s_lshl_b32 s96, s3, 3
    s_add_u32 s54, s54, s96
    v_and_b32 v{vF}, 1, v1
    v_lshl_add_u32 v{vO}, v{vF}, 2, v{vG}
    v_add_u32 v{vO}, s54, v{vO}
    v_lshlrev_b32 v{vO}, 1, v{vO}
    buffer_load_ushort v{vX}, v{vO}, s[36:39], 0 offen
    v_lshrrev_b32 v{vA}, 1, v1
    v_and_b32 v{vB}, 7, v{vA}
    v_cmp_ne_u32 vcc, 3, v{vB}
    v_lshlrev_b32 v{vA}, 10, v{vA}
    v_lshl_add_u32 v{vA}, v{vF}, 4, v{vA}
    v_add_u32 v{vB}, 512, v{vA}
    v_cndmask_b32 v{vB}, v{vA}, v{vB}, vcc
    v_cndmask_b32 v{vkeep}, 0, 1.0, vcc
    v_and_b32 v{vF}, 14, v1
    v_cmp_eq_u32 s[56:57], 0, v{vF}
    s_lshl_b32 s55, s33, 15
    s_lshr_b32 s64, s34, 3
    s_lshl_b32 s64, s64, 7
    s_add_u32 s55, s55, s64
    s_lshl_b32 s96, s3, 5
    s_add_u32 s55, s55, s96
    s_add_u32 s54, s55, {PG}
    s_add_u32 s55, s55, {PL if local else PG}
    """)

    def path(ffn, P):
        S = Sched(a)
        def seg_end():
            if warm: a(f"    s_cbranch_execz {P}W_ret")
        def gsprk(n):
            with guard(): S.sprk(n)
        def gwait(name, sub=0):
            with guard(): S.wait(name, sub)
        for t in range(8):
            S.items.append((f"wq{t}", None, 1)); S.nops += 1; S.pos[f"wq{t}"] = S.nops; S.issued += 1
        base = []
        for i in range(8): base.append((f"kv{i}", (lambda i=i: kv_issue(i)), 1))
        def mk_gu(i):
            t, mat = i // 2, i % 2
            def f():
                so = "0"
                if t: a(f"    s_mov_b32 s99, {t*7168}"); so = "s99"
                a(f"    buffer_load_dwordx4 {ar(GW+4*i,4)}, v{vGU2 if mat else vGU}, s[{4+4*mat}:{7+4*mat}], {so} offen{NT}")
            return f
        def mk_wo(k):
            def f():
                so = "0"
                if k: a(f"    s_mov_b32 s99, {k*0x40000}"); so = "s99"
                a(f"    buffer_load_dwordx4 {vr(WO+4*k,4)}, v{vWO}, s[56:59], {so} offen{NT}")
            return f
        def mk_wd(k):
            def f():
                so = "0"
                if k >= 2: a(f"    s_movk_i32 s99, {(k & ~1)*2048}"); so = "s99"
                a(f"    buffer_load_dwordx4 {ar(WD+4*k,4)}, v{vWD}, s[12:15], {so} offen offset:{(k&1)*2048}{NT}")
            return f
        def pollq():
            if oracle_q:
                for k in range(4): a(f"    buffer_load_dwordx4 {vr(G0+4*k,4)}, v6, s[36:39], 0 offen")
                return
            a(f"    buffer_load_dwordx4 {vr(G0,4)}, v6, s[40:43], s20 offen sc1")
            for k in range(1, 4):
                a(f"    s_add_u32 s99, s20, {4096*k}")
                a(f"    buffer_load_dwordx4 {vr(G0+4*k,4)}, v6, s[40:43], s99 offen sc1")
        def pollf():
            a(f"    buffer_load_dword v{G0}, v{vOF}, s[40:43], s69 offen sc1")
        def pollf0():
            a(f"    buffer_load_dword v{G0+1}, v{vOF}, s[40:43], s69 offen sc1")
        def pollh():
            for k in range(4): a(f"    buffer_load_dword v{HG+k}, v{vPH}, s[40:43], s61 offen offset:{512*k} sc1")
        if ffn:
            for i in range(16): base.append((f"gu{i}", mk_gu(i), 1))
        for k in range(8): base.append((f"wo{k}", mk_wo(k), 1))
        if ffn:
            for k in range(8): base.append((f"wd{k}", mk_wd(k), 1))
        Pl = [] if pure else [(pq, ("pq", pollq, 4)), (ph, ("ph", pollh, 4))] + ([(pf0, ("pf0", pollf0, 1))] if pf0 else []) + [(pf, ("pf", pollf, 1))] if ffn else [(lq, ("pq", pollq, 4)), (98, ("comb", lambda: None, 0)), (99, ("pf", pollf, 1))]
        for i, it in enumerate(base):
            for p, pit in Pl:
                if p == i + 8: S.add(*pit)
            S.add(*it)
        for p, pit in Pl:
            if p >= len(base) + 8: S.add(*pit)
        for i in range(kpre):
            name = S.items[S.issued][0]; assert name == f"kv{i}"
            S.nops += 1; S.pos[name] = S.nops; S.issued += 1
        names = [it[0] for it in S.items]
        S.blocked |= {"ph"} | (set() if (ffn and not pf_late) else {"pf"})
        def retry(lab, fn, check):
            if oracle_q and lab.endswith("rq"): return
            if cnt:
                bit = {"rq": 100, "rf": 1000, "rh": 10000}[lab[-2:]]
                a(f"""
    s_nop 1
    s_cbranch_vccz {lab}_c
    s_add_u32 s94, s94, {bit}
    s_addc_u32 s95, s95, 0
{lab}_c:
    """)
            a(f"""
    s_nop 1
    s_cbranch_vccz {lab}_ok
    s_mov_b32 s71, {spin_max}
{lab}:
    """)
            fn()
            a("    s_waitcnt vmcnt(0)")
            check(True)
            a(f"""
    s_sub_u32 s71, s71, 1
    s_cmp_eq_u32 s71, 0
    s_cbranch_scc1 {lab}_ok
    s_cbranch_vccnz {lab}
{lab}_ok:
    """)
        if pure:
            for name in names:
                if name.startswith("wq"): continue
                S.wait(name); S.topup(name, D if ffn else Dl)
                if name == "kv7": stamp(4)
                if name == "gu7": stamp(5)
                if name == "gu15": stamp(8)
                if name == "wo7": stamp(7)
                if name == "wd7": stamp(10)
            if not ffn:
                stamp(9); store_stamps(); a("    s_endpgm\nLtW_ret:")
                red_pre()
            return
        S.blocked.add("pq"); S.sprk(warm_extra); S.blocked.discard("pq")
        if warm:
            a(f"""
    s_mov_b64 exec, 0
    s_cmp_eq_u32 s3, 0
    s_cbranch_scc1 {P}SEG0
    s_cmp_eq_u32 s3, 1
    s_cbranch_scc1 {P}SEG1
    s_cmp_eq_u32 s3, 2
    s_cbranch_scc1 {P}SEG2
    s_branch {P}SEG3
{P}W_ret:
    s_mov_b64 exec, -1
    """)
        if cnt: a('    s_waitcnt lgkmcnt(0)\n    s_mov_b64 s[94:95], s[72:73]')
        else: stamp(11)
        have_o = False; have_h = False; st_b = [False]
        DD = D if ffn else Dl
        def tr_reads():
            for s_ in range(2):
                for c in range(2):
                    for h in range(2):
                        a(f"    ds_read_b64_tr_b16 {vr(VO+(s_*2+c)*4+2*h,2)}, v{vTR} offset:{L_V + s_*8192 + h*1024 + c*32}")
        def mf_wo(k):
            srcc = "0" if k == 0 else vr(PD, 4)
            a(f"    v_mfma_f32_16x16x32_bf16 {vr(PD,4)}, {vr(A3+4*k,4)}, {vr(WO+4*k,4)}, {srcc}")
        def mf_wd(k):
            srcc = "0" if k == 0 else vr(DG, 4)
            a(f"    v_mfma_f32_16x16x32_bf16 {vr(DG,4)}, {vr(A2+4*k,4)}, {ar(WD+4*k,4)}, {srcc}")
        for name in names:
            depth = DD
            if dmap and ffn:
                for k_, v_ in dmap:
                    if names.index(name) >= k_: depth = v_
            def std():
                with guard():
                    S.wait(name)
                    if ffn and pf_at == name: S.blocked -= {"pf"}
                    S.topup(name, depth)
            if name.startswith("wq"):
                pass
            elif name.startswith("kv"):
                std()
                if name == "kv7" and not trlate:
                    a("    s_barrier")
                    tr_reads()
            elif name.startswith("gu"):
                i = int(name[2:]); t, mat = i // 2, i % 2
                with guard(): S.wait(name)
                srcc = "0" if t == 0 else vr(DG + 4 * mat, 4)
                a(f"    v_mfma_f32_16x16x32_bf16 {vr(DG+4*mat,4)}, {vr(A+4*t,4)}, {ar(GW+4*i,4)}, {srcc}")
                with guard(): S.topup(name, depth + (sprg if i == 15 else 0))
                if i == 15:
                    a(f"""
    s_nop 6
{P}SEG3:
    ds_write_b128 v{vred}, {vr(DG,4)} offset:{L_G}
    ds_write_b128 v{vred}, {vr(DG+4,4)} offset:{L_G+2048}
    s_waitcnt lgkmcnt(0)
    """)
                    with guard():
                        a(f"""
    s_barrier
    s_cmp_ge_u32 s3, 2
    s_cbranch_scc1 {P}nogu
    """)
                    red8(T, vGR, L_G // 256)
                    if warm: a(f"    s_cbranch_execz {P}SEG3b")
                    a(f"""
    buffer_store_dword v{T}, v{vl4}, s[40:43], s60 offen sc1
{P}nogu:
    """)
                    stamp(8)
                    S.blocked -= {"ph"}
            elif name == "pq":
                acc = T
                def chk(re):
                    a(f"""
    v_mov_b32 v{acc}, 0
    v_mov_b32 v{acc+1}, 0
    """)
                    for k in range(4):
                        if not re: gwait("pq", 3 - k)
                        for e in range(4): a(f"    v_msad_u8 v{acc+(e&1)}, v{G0+4*k+e}, s{28+e}, v{acc+(e&1)}")
                    a(f"""
    v_or_b32 v{acc}, v{acc}, v{acc+1}
    v_cmp_ne_u32 vcc, 0, v{acc}
    """)
                while "pq" not in S.pos: S.issue()
                a(f"{P}SEG0:")
                chk(False)
                retry(f"{P}rq", pollq, chk)
                with guard(): stamp(4)
                QS = T + 4
                a(f"""
    v_pk_add_f32 {vr(QS,2)}, {vr(G0,2)}, {vr(G0+4,2)}
    v_pk_add_f32 {vr(QS+2,2)}, {vr(G0+2,2)}, {vr(G0+6,2)}
    v_pk_add_f32 {vr(QS+4,2)}, {vr(G0+8,2)}, {vr(G0+12,2)}
    v_pk_add_f32 {vr(QS+6,2)}, {vr(G0+10,2)}, {vr(G0+14,2)}
    v_pk_add_f32 {vr(QS,2)}, {vr(QS,2)}, {vr(QS+4,2)}
    v_pk_add_f32 {vr(QS+2,2)}, {vr(QS+2,2)}, {vr(QS+6,2)}
    v_cvt_pk_bf16_f32 v{QS}, v{QS}, v{QS+1}
    v_cvt_pk_bf16_f32 v{QS+1}, v{QS+2}, v{QS+3}
    ds_write_b64 v{vQW}, {vr(QS,2)} offset:{L_Q}
    """)
                with guard(): S.topup(name, depth)
                a("    s_waitcnt lgkmcnt(0)")
                barrier()
                a(f"""
    ds_read_b128 {vr(QB,4)}, v{vQR} offset:{L_Q}
    ds_read_b128 {vr(QB+4,4)}, v{vQR} offset:{L_Q+64}
    ds_read_b128 {vr(QB+8,4)}, v{vQR} offset:{L_Q+128}
    ds_read_b128 {vr(QB+12,4)}, v{vQR} offset:{L_Q+192}
    """)
                with guard():
                    if trlate: tr_reads()
                    S.sprk(sprinkle[0])
                for t in range(4):
                    srcc = "0" if t == 0 else vr(D1, 4)
                    a(f"    s_waitcnt lgkmcnt({3-t+(8 if trlate else 0)})")
                    a(f"    v_mfma_f32_16x16x32_bf16 {vr(D1,4)}, {vr(KK+4*t,4)}, {vr(QB+4*t,4)}, {srcc}")
                Sx = T + 4
                a(f"""
    s_nop 7
    v_cvt_pk_bf16_f32 v{T}, v{D1}, v{D1+1}
    v_cvt_pk_bf16_f32 v{T+1}, v{D1+2}, v{D1+3}
    v_lshlrev_b32 v{Sx}, 16, v{T}
    v_and_b32 v{Sx+1}, 0xffff0000, v{T}
    v_lshlrev_b32 v{Sx+2}, 16, v{T+1}
    v_and_b32 v{Sx+3}, 0xffff0000, v{T+1}
    v_mul_f32 v{Sx}, s24, v{Sx}
    v_mul_f32 v{Sx+1}, s24, v{Sx+1}
    v_mul_f32 v{Sx+2}, s24, v{Sx+2}
    v_mul_f32 v{Sx+3}, s24, v{Sx+3}
    v_cvt_pk_bf16_f32 v{T}, v{Sx}, v{Sx+1}
    v_cvt_pk_bf16_f32 v{T+1}, v{Sx+2}, v{Sx+3}
    ds_write_b64 v{vSW}, {vr(T,2)} offset:{L_S}
    s_waitcnt lgkmcnt(0)
    """)
                seg_end()
                mx, tmp, lsum, wv, rl = T + 12, T + 13, T + 14, T + 15, T + 16
                Pp = T + 20
                a(f"""
    s_barrier
{P}SEG1:
    ds_read_b128 {vr(T,4)}, v{vSR} offset:{L_S}
    """)
                gsprk(sprinkle[1])
                a("    s_waitcnt lgkmcnt(0)")
                for k in range(4):
                    a(f"""
    v_lshlrev_b32 v{Sx+2*k}, 16, v{T+k}
    v_and_b32 v{Sx+2*k+1}, 0xffff0000, v{T+k}
    """)
                a(f"""
    v_max3_f32 v{mx}, v{Sx}, v{Sx+1}, v{Sx+2}
    v_max3_f32 v{tmp}, v{Sx+3}, v{Sx+4}, v{Sx+5}
    v_max3_f32 v{mx}, v{Sx+6}, v{Sx+7}, v{mx}
    v_max_f32 v{mx}, v{mx}, v{tmp}
    """)
                allreduce1(mx, tmp, op="v_max_f32", steps=(8,))
                a(f"    v_mul_f32 v{mx}, s25, v{mx}")
                for k in range(8): a(f"    v_fma_f32 v{Sx+k}, v{Sx+k}, s25, -v{mx}")
                for k in range(8): a(f"    v_exp_f32 v{Sx+k}, v{Sx+k}")
                for k in range(4): a(f"    v_cvt_pk_bf16_f32 v{Pp+k}, v{Sx+2*k}, v{Sx+2*k+1}")
                a(f"""
    v_pk_add_f32 {vr(T,2)}, {vr(Sx,2)}, {vr(Sx+2,2)}
    v_pk_add_f32 {vr(T+2,2)}, {vr(Sx+4,2)}, {vr(Sx+6,2)}
    """)
                for sc in (0, 2, 1, 3):
                    a(f"    v_mfma_f32_16x16x32_bf16 {vr(PD+4*sc,4)}, {vr(VO+4*sc,4)}, {vr(Pp,4)}, 0")
                gsprk(sprinkle[2])
                a(f"""
    v_pk_add_f32 {vr(T,2)}, {vr(T,2)}, {vr(T+2,2)}
    v_add_f32 v{lsum}, v{T}, v{T+1}
    """)
                allreduce1(lsum, tmp, steps=(8,))
                X = D1
                a(f"""
    v_log_f32 v{wv}, v{lsum}
    v_rcp_f32 v{rl}, v{lsum}
    """)
                for e in range(4): a(f"    v_add_f32_dpp v{X+e}, v{PD+8+e}, v{PD+e} row_ror:8 row_mask:0xf bank_mask:0x3")
                a(f"    v_add_f32 v{wv}, v{wv}, v{mx}")
                for e in range(4): a(f"    v_add_f32_dpp v{X+e}, v{PD+4+e}, v{PD+12+e} row_ror:8 row_mask:0xf bank_mask:0xc")
                a(f"""
    v_add_u32 v{wv}, 0x80, v{wv}
    v_bfi_b32 v{wv}, s70, v{vtagP}, v{wv}
    """)
                for e in range(4): a(f"    v_mul_f32 v{X+e}, v{X+e}, v{rl}")
                for e in range(4): a(f"    v_perm_b32 v{X+e}, v{X+e}, v{wv}, s{PSEL[e]}")
                seg_end()
                a(f"    buffer_store_dwordx4 {vr(X,4)}, v6, s[40:43], s23 offen sc1")
                S.extra(1)
                stamp(5)
                S.sprk(sprinkle[3])
            elif name == "comb":
                a(f"""
    v_lshlrev_b32 v{vPO}, 12, v7
    v_lshl_add_u32 v{vPO}, v8, 4, v{vPO}
    s_lshr_b32 s64, s34, 3
    s_lshl_b32 s65, s33, 2
    s_add_u32 s65, s65, s64           ; lam
    s_lshl_b32 s64, s65, 2
    s_add_u32 s64, s64, s3
    s_lshl_b32 s60, s64, 7
    s_add_u32 s60, s60, {OF}
    s_and_b32 s64, s64, 31
    s_lshl_b32 s64, s64, 7
    s_add_u32 s22, s22, s64
    s_mov_b32 s71, {spin_max}
    s_mov_b32 s52, 0x01010101
    s_mov_b32 s53, 0x01010101
    """)
                MS = [4, 6, 8, 10, 12, 14, 48, 50]
                for t in range(8): a(f"    s_mov_b64 s[{MS[t]}:{MS[t]+1}], -1")
                red_pre()
                a(f"""
    s_waitcnt vmcnt(0)
    {f"s_sleep {lo_sleep}" if lo_sleep else ""}
C_poll:
    """)
                for t in range(8):
                    a(f"""
    s_mov_b64 exec, s[{MS[t]}:{MS[t]+1}]
    s_cbranch_execz C_i{t}
    s_add_u32 s99, s22, {t*32768}
    buffer_load_dwordx4 {vr(OG+4*t,4)}, v{vPO}, s[40:43], s99 offen sc1
C_i{t}:
    """)
                a("    s_mov_b64 exec, -1\n    s_waitcnt vmcnt(0)")
                a(f"{P}SEG2:")
                for t in range(8):
                    a(f"""
    v_msad_u8 v{T+t}, v{OG+4*t}, v{vtagP}, 0
    v_perm_b32 v{FF+t}, v{OG+4*t+2}, v{OG+4*t+1}, s68
    v_lshl_or_b32 v{FF+t}, v{OG+4*t+3}, 24, v{FF+t}
    """)
                a(f"""
    v_or3_b32 v{T+8}, v{T}, v{T+1}, v{T+2}
    v_or3_b32 v{T+9}, v{T+3}, v{T+4}, v{T+5}
    v_or3_b32 v{T+8}, v{T+6}, v{T+7}, v{T+8}
    v_or_b32 v{T+8}, v{T+8}, v{T+9}
    v_cmp_ne_u32 vcc, 0, v{T+8}
    v_max3_f32 v{T+10}, v{FF}, v{FF+1}, v{FF+2}
    v_max3_f32 v{T+11}, v{FF+3}, v{FF+4}, v{FF+5}
    s_cbranch_vccz C_ok
    """)
                for t in range(8): a(f"    v_cmp_ne_u32 s[{MS[t]}:{MS[t]+1}], 0, v{T+t}")
                a("    s_nop 1")
                for t in range(8):
                    m = f"s[{MS[t]}:{MS[t]+1}]"
                    if masked:
                        a(f"""
    s_lshr_b64 s[96:97], {m}, 4
    s_or_b64 {m}, {m}, s[96:97]
    s_lshr_b64 s[96:97], {m}, 2
    s_or_b64 {m}, {m}, s[96:97]
    s_lshr_b64 s[96:97], {m}, 1
    s_or_b64 {m}, {m}, s[96:97]
    s_and_b64 {m}, {m}, s[52:53]
    s_mul_i32 s{MS[t]}, s{MS[t]}, 0xff
    s_mul_i32 s{MS[t]+1}, s{MS[t]+1}, 0xff
    """)
                    else:
                        a(f"""
    s_cmp_lg_u64 {m}, 0
    s_cselect_b64 {m}, -1, 0
    """)
                if c_bet: a(f"    s_sleep {c_bet}")
                if cnt: a("    s_add_u32 s94, s94, 1000\n    s_addc_u32 s95, s95, 0")
                a(f"""
    s_sub_u32 s71, s71, 1
    s_cmp_lg_u32 s71, 0
    s_cbranch_scc1 C_poll
C_ok:
    """)
                with guard(): stamp(6)
                M_ = T + 10
                a(f"""
    v_max3_f32 v{M_}, v{FF+6}, v{FF+7}, v{M_}
    v_max_f32 v{M_}, v{M_}, v{T+11}
    """)
                allreduce1(M_, T + 11, op="v_max_f32", steps=(8,))
                for t in range(8): a(f"    v_sub_f32 v{FF+t}, v{FF+t}, v{M_}")
                for t in range(8): a(f"    v_exp_f32 v{FF+t}, v{FF+t}")
                for e in range(4): a(f"    v_mul_f32 v{OG+e}, v{OG+e}, v{FF}")
                for e in range(4): a(f"    v_mul_f32 v{OG+4+e}, v{OG+4+e}, v{FF+1}")
                for t in range(2, 8):
                    for e in range(4): a(f"    v_fmac_f32 v{OG+4*(t&1)+e}, v{OG+4*t+e}, v{FF+t}")
                L_ = T + 6
                a(f"""
    v_pk_add_f32 {vr(FF,2)}, {vr(FF,2)}, {vr(FF+2,2)}
    v_pk_add_f32 {vr(FF+4,2)}, {vr(FF+4,2)}, {vr(FF+6,2)}
    v_pk_add_f32 {vr(OG,2)}, {vr(OG,2)}, {vr(OG+4,2)}
    v_pk_add_f32 {vr(OG+2,2)}, {vr(OG+2,2)}, {vr(OG+6,2)}
    v_pk_add_f32 {vr(FF,2)}, {vr(FF,2)}, {vr(FF+4,2)}
    v_add_f32 v{L_}, v{FF}, v{FF+1}
    """)
                merge2(OG, L_, steps=(8,))
                a(f"""
    v_rcp_f32 v{L_}, v{L_}
    s_nop 0
    v_mul_f32 v{OG}, v{OG}, v{L_}
    v_cvt_pk_bf16_f32 v{OG}, v{OG}, v{OG}
    v_and_b32 v{OG}, 0xffff0000, v{OG}
    v_or_b32 v{OG}, s46, v{OG}
    """)
                with guard():
                    a(f"    buffer_store_dword v{OG}, v{vOF}, s[40:43], s60 offen sc1")
                    stamp(8)
                    if lf_sleep: a(f"    s_sleep {lf_sleep}")
                S.extra(1)
                S.blocked -= {"pf"}
            elif name == "pf":
                def chk(re):
                    if not re: gwait("pf")
                    a(f"""
    v_msad_u8 v{T+3}, v{G0}, s46, 0
    v_cmp_ne_u32 vcc, 0, v{T+3}
    """)
                with guard():
                    if ffn and hf_sleep: a(f"    s_sleep {hf_sleep}")
                    while "pf" not in S.pos: S.issue()
                if ffn: a(f"{P}SEG2:")
                early = ffn and pf0
                if early:
                    gwait("pf0")
                    a(f"""
    v_msad_u8 v{T+3}, v{G0+1}, s46, 0
    v_cmp_ne_u32 vcc, 0, v{T+3}
    v_perm_b32 v{G0+2}, v{G0+1}, v{G0+1}, s47
    s_nop 0
    s_cbranch_vccz {P}f_go
    """)
                chk(False)
                retry(f"{P}rf", pollf, chk)
                a(f"""
    v_perm_b32 v{G0+2}, v{G0}, v{G0}, s47
    s_nop 1
{P}f_go:
    """)
                with guard():
                    stamp(7); S.topup(name, depth + 2)
                have_o = True
                ready = [k for k in range(8) if names.index(f"wo{k}") < names.index("pf")]
                for u in range(8):
                    for m_ in range(4):
                        a(f"    v_and_b32_dpp v{A3+4*u+m_}, v{G0+2}, v{2+m_} row_newbcast:{u} row_mask:0xf bank_mask:0xf")
                    if u >= 1 and (u - 1) in ready: mf_wo(u - 1)
                a("    s_nop 1")
                if 7 in ready: mf_wo(7)
            elif name.startswith("wo"):
                std()
                if have_o: mf_wo(int(name[2:]))
            elif name == "ph":
                def chk(re):
                    if not re: gwait("ph")
                    a(f"""
    v_msad_u8 v{T+8}, v{HG}, v{vtagP}, 0
    v_msad_u8 v{T+9}, v{HG+1}, v{vtagP}, 0
    v_msad_u8 v{T+8}, v{HG+2}, v{vtagP}, v{T+8}
    v_msad_u8 v{T+9}, v{HG+3}, v{vtagP}, v{T+9}
    v_or_b32 v{T+8}, v{T+8}, v{T+9}
    v_cmp_ne_u32 vcc, 0, v{T+8}
    """)
                while "ph" not in S.pos: S.issue()
                a(f"{P}SEG3b:")
                chk(False)
                retry(f"{P}rh", pollh, chk)
                with guard():
                    stamp(9)
                    if pf_at == "ph": S.blocked -= {"pf"}
                    S.topup(name, depth + 4)
                G_, U_ = HG, HG + 2
                a(f"""
    v_add_f32 v{G_}, v{HG}, v{HG+1}
    v_add_f32 v{U_}, v{HG+2}, v{HG+3}
    s_nop 0
    v_add_f32_dpp v{G_}, v{G_}, v{G_} row_ror:8 row_mask:0xf bank_mask:0xf
    v_add_f32_dpp v{U_}, v{U_}, v{U_} row_ror:8 row_mask:0xf bank_mask:0xf
    """)
                rbf16(G_, G_)
                a(f"""
    v_mul_f32 v{T+4}, {0x80000000 | LOG2E}, v{G_}
    v_exp_f32 v{T+4}, v{T+4}
    """)
                rbf16(U_, U_)
                a(f"""
    v_add_f32 v{T+4}, 1.0, v{T+4}
    v_rcp_f32 v{T+4}, v{T+4}
    s_nop 0
    v_mul_f32 v{G_}, v{G_}, v{T+4}
    """)
                rbf16(G_, G_)
                a(f"""
    v_mul_f32 v{G_}, v{G_}, v{U_}
    v_cvt_pk_bf16_f32 v{G_}, v{G_}, v{G_}
    s_nop 1
    """)
                have_h = True
                ready = [k for k in range(8) if names.index(f"wd{k}") < names.index("ph")]
                for u in range(8):
                    for m_ in range(4):
                        a(f"    v_and_b32_dpp v{A2+4*u+m_}, v{G_}, v{2+m_} row_newbcast:{u} row_mask:0xf bank_mask:0xf")
                    if u >= 1 and (u - 1) in ready: mf_wd(u - 1)
                a("    s_nop 1")
                if 7 in ready: mf_wd(7)
                seg_end()
            elif name.startswith("wd"):
                std()
                if have_h: mf_wd(int(name[2:]))
            if ffn and name == max(("ph", "wd7"), key=names.index) and name != names[-1]:
                a(f"""
    s_nop 7
    ds_write_b128 v{vOT}, {vr(DG,4)} offset:{L_OUT+2048}
    """)
                st_b[0] = True
        o1 = L_OUT // 256
        a(f"""
    s_add_u32 s99, s62, {PG-PL}
    s_nop 6
    ds_write_b128 v{vOT}, {vr(PD,4)} offset:{L_OUT}
    """)
        if ffn and not st_b[0]: a(f"    ds_write_b128 v{vOT}, {vr(DG,4)} offset:{L_OUT+2048}")
        a("    s_waitcnt lgkmcnt(0)")
        barrier()
        a(f"""
    ds_read2st64_b32 {vr(T,2)}, v{vt7} offset0:{o1} offset1:{o1+2}
    ds_read2st64_b32 {vr(T+2,2)}, v{vt7} offset0:{o1+4} offset1:{o1+6}
    s_cmp_ge_u32 s3, 2
    s_waitcnt lgkmcnt(0)
    v_add_f32 v{T}, v{T}, v{T+1}
    v_add_f32 v{T+2}, v{T+2}, v{T+3}
    v_add_f32 v{T}, v{T}, v{T+2}
    v_add_u32 v{T}, v{T}, v{vaddP}
    v_bfi_b32 v{T}, s70, v{vtagP}, v{T}
    """)
        seg_end()
        if ffn or not lazyg:
            if not ffn: a("    s_cbranch_scc1 Lt_nopub")
            a(f"""
    buffer_store_dword v{T}, v{vtid4}, s[40:43], s62 offen
    buffer_store_dword v{T}, v{vtid4}, s[40:43], s99 offen sc1
    """)
            if not ffn: a("Lt_nopub:")
        else:
            a(f"""
    s_mov_b32 s71, 1
    s_cbranch_scc1 R_p
    buffer_store_dword v{T}, v{vtid4}, s[40:43], s62 offen
    buffer_load_dwordx4 {vr(RA,4)}, v{vA}, s[40:43], s55 offen sc1
    buffer_load_dwordx4 {vr(RB,4)}, v{vB}, s[40:43], s55 offen sc1
    buffer_store_dword v{T}, v{vtid4}, s[40:43], s99 offen sc1
    """)
            stamp(10)
            a("""
    s_waitcnt vmcnt(1)
    s_branch R_c
    """)
            return
        stamp(10)

    path(True, "H")
    store_stamps()
    a("    s_endpgm")
    a("L_light:")
    path(False, "Lt")
    a(f"""
LtSEG3:
    s_mov_b32 s71, 0
R_p:
    s_add_u32 s71, s71, 1
    s_and_b32 s96, s71, {gper}
    s_cmp_eq_u32 s96, 0
    s_cselect_b32 s96, s54, s55
    """)
    with guard():
        a(f"""
    buffer_load_dwordx4 {vr(RA,4)}, v{vA}, s[40:43], s96 offen sc1
    buffer_load_dwordx4 {vr(RB,4)}, v{vB}, s[40:43], s96 offen sc1
    s_waitcnt vmcnt(0)
    """)
    a(f"""
R_c:
    v_msad_u8 v{ac}, v{RA}, s28, 0
    v_msad_u8 v{ac+1}, v{RA+1}, s29, 0
    v_msad_u8 v{ac}, v{RA+2}, s30, v{ac}
    v_msad_u8 v{ac+1}, v{RA+3}, s31, v{ac+1}
    v_msad_u8 v{ac}, v{RB}, s28, v{ac}
    v_msad_u8 v{ac+1}, v{RB+1}, s29, v{ac+1}
    v_msad_u8 v{ac}, v{RB+2}, s30, v{ac}
    v_msad_u8 v{ac+1}, v{RB+3}, s31, v{ac+1}
    v_or_b32 v{ac}, v{ac}, v{ac+1}
    v_cmp_ne_u32 vcc, 0, v{ac}
    s_cmp_eq_u32 s71, {spin_max}
    s_cbranch_scc1 R_ok
    s_cbranch_vccnz R_p
R_ok:
    """)
    for e in range(4): a(f"    v_mul_f32 v{RB+e}, v{RB+e}, v{vkeep}")
    a(f"""
    v_permlane32_swap_b32 v{RA}, v{RA+2}
    v_permlane32_swap_b32 v{RA+1}, v{RA+3}
    v_permlane32_swap_b32 v{RB}, v{RB+2}
    v_permlane32_swap_b32 v{RB+1}, v{RB+3}
    v_add_f32 v{RA}, v{RA}, v{RA+2}
    v_add_f32 v{RA+1}, v{RA+1}, v{RA+3}
    v_add_f32 v{RB}, v{RB}, v{RB+2}
    v_add_f32 v{RB+1}, v{RB+1}, v{RB+3}
    v_lshlrev_b32 v{vX}, 16, v{vX}
    v_permlane16_swap_b32 v{RA}, v{RA+1}
    v_permlane16_swap_b32 v{RB}, v{RB+1}
    v_add_f32 v{RA}, v{RA}, v{RA+1}
    v_add_f32 v{RB}, v{RB}, v{RB+1}
    s_nop 0
    v_add_f32_dpp v{RA}, v{RA}, v{RA} row_ror:8 row_mask:0xf bank_mask:0xf
    v_add_f32_dpp v{RB}, v{RB}, v{RB} row_ror:8 row_mask:0xf bank_mask:0xf
    """)
    if red1:
        a(f"""
    s_nop 0
    v_add_f32_dpp v{RA}, v{RA}, v{RA} row_ror:4 row_mask:0xf bank_mask:0xf
    v_add_f32_dpp v{RB}, v{RB}, v{RB} row_ror:4 row_mask:0xf bank_mask:0xf
    s_nop 0
    v_add_f32_dpp v{RA}, v{RA}, v{RA} row_ror:2 row_mask:0xf bank_mask:0xf
    v_add_f32_dpp v{RB}, v{RB}, v{RB} row_ror:2 row_mask:0xf bank_mask:0xf
    v_cvt_pk_bf16_f32 v{RA}, v{RA}, v{RB}
    v_lshlrev_b32 v{RB}, 16, v{RA}
    v_and_b32 v{RA}, 0xffff0000, v{RA}
    v_add_f32 v{RB}, v{RB}, v{vX}
    v_cvt_pk_bf16_f32 v{RB}, v{RB}, v{RB}
    v_and_b32 v{RB}, 0xffff0000, v{RB}
    v_add_f32 v{RA}, v{RA}, v{RB}
    v_cvt_pk_bf16_f32 v{RA}, v{RA}, v{RA}
    """)
        if warm: a("    s_cbranch_execz LtW_ret")
        a(f"""
    s_mov_b64 exec, s[56:57]
    buffer_store_short v{RA}, v{vO}, s[16:19], 0 offen
    s_or_b32 s96, s65, s3
    s_cmp_lg_u32 s96, 0
    s_cbranch_scc1 R_done
    v_mov_b32 v{RB}, s35
    v_mov_b32 v{RB+1}, 0
    s_mov_b64 exec, 1
    buffer_store_dword v{RB}, v{RB+1}, s[40:43], 0 offen offset:{EPOCH}
    """)
    else:
        raise NotImplementedError
    a(f"""
R_done:
    s_mov_b64 exec, -1
    """)
    stamp(9)
    store_stamps()
    a("""
L_end:
    s_endpgm
L_code_end:
    """)
    print(out, "vgprs", nv, "agprs", nagpr, "lds", LDS_BYTES)
    open(out, "w").write(wrap(a.text(), 256, 256, LDS_BYTES, vgpr=accum + nagpr, accum=accum))

if __name__ == "__main__":
    gen("k12.s", stamps=True)
    gen("k12_ns.s", stamps=False)
```

```python
import gen12
cfg = dict(cnt=True, gper=63, lq=19, lo_sleep=22, pf_late=True, pf_at="ph", pq=22, dmap=[(28,4),(38,6)])
gen12.gen("w_a.s", **cfg)
gen12.gen("w_b.s", pf0=45, **cfg)
gen12.gen("w_c.s", pf0=47, **cfg)
gen12.gen("w_d.s", pf0=48, **cfg)
gen12.gen("w_e.s", **cfg)
gen12.gen("w_f.s", pf0=45, **cfg)
gen12.gen("w_g.s", pf0=47, **cfg)
gen12.gen("w_h.s", pf0=48, **cfg)
```

```python
import sys
from asmgen import *

STAMP_OFF = 128 << 20
NST = 12
EPOCH = 0
QP = 0x1000
OP = 0x40000
GU = 0x180000
OF = 0x20000
PL = 0x200000
PG = 0x240000
WS_SIZE = 256 << 20

L_RED = 0
L_G = 2048
L_TRASH = 6144
L_Q = 11264
L_S = 13440
L_OUT = 14848
L_OUT2 = 18944
L_FIN = 20992
L_V = 23040
LDS_BYTES = L_V + 16384

LOG2E = 0x3FB8AA3B
SCALE = 0x3DB504F3

class R:
    def __init__(self, start): self.n = start
    def a(self, k=1, al=1):
        self.n = (self.n + al - 1) // al * al
        r = self.n; self.n += k
        return r
def vr(b, n): return f"v[{b}:{b+n-1}]"
def ar(b, n): return f"a[{b}:{b+n-1}]"

class Sched:
    def __init__(self, a): self.a = a; self.items = []; self.issued = 0; self.nops = 0; self.pos = {}; self.blocked = set()
    def add(self, name, fn, n=1): self.items.append((name, fn, n))
    def issue(self):
        name, fn, n = self.items[self.issued]
        fn(); self.nops += n; self.pos[name] = self.nops; self.issued += 1
    def can(self): return self.issued < len(self.items) and self.items[self.issued][0] not in self.blocked
    def extra(self, n=1): self.nops += n
    def wait(self, name, sub=0):
        while name not in self.pos:
            assert self.can(), (name, self.items[self.issued][0])
            self.issue()
        cnt = self.nops - self.pos[name] + sub
        assert cnt <= 63
        self.a(f"    s_waitcnt vmcnt({cnt})")
    def index(self, name): return [i for i, it in enumerate(self.items) if it[0] == name][0]
    def topup(self, name, depth):
        i = self.index(name)
        while self.can() and self.issued - (i + 1) < depth: self.issue()
    def sprk(self, n):
        for _ in range(n):
            if self.can(): self.issue()

def gen(out, stamps=True, nt=True, D=5, Dl=5, pq=23, pf=48, ph=45, lq=22, lo_sleep=48, spin_max=1 << 20, warm=True,
        k0=2, k1=0, k2=2, Dt=7, sprinkle=(2, 2, 1, 1), spr3=3, dmap=None, warm_extra=3, cnt=False, gper=7, local=True, sprg=1, mixU=True, oracle_q=False, ph_after_o=False, tail_step=0, wq_flags=" nt", nobar=False, kvs=False, lf_sleep=12, masked=True, c_bet=0, pf_late=False, hf_sleep=0, pure=False, pf_at=None, trlate=False, red1=True, lazyg=True, late_tags=False, pf0=None, lnat=False, lq_at="kv6", Dlw=4, lpre=0):
    a = Asm()
    NT = nt if isinstance(nt, str) else (" nt" if nt else "")
    def stamp(i):
        if stamps: a(f"    s_memrealtime s[{72+2*i}:{73+2*i}]")
    def store_stamps():
        if not stamps: return
        lab = a.label("nost")
        a(f"""
    s_waitcnt lgkmcnt(0)
    s_cmp_lg_u32 s3, 0
    s_cbranch_scc1 {lab}
    s_mul_i32 s64, s2, {NST*8}
    s_add_u32 s64, s64, {STAMP_OFF}
    v_mov_b32 v20, 0
    s_mov_b64 exec, 1
    """)
        for i in range(NST):
            a(f"""
    v_mov_b32 v22, s{72+2*i}
    v_mov_b32 v23, s{73+2*i}
    buffer_store_dwordx2 v[22:23], v20, s[40:43], s64 offen offset:{8*i}
    s_nop 1
    """)
        a(f"{lab}:")
    def srd(base, lo, size):
        a(f"""
    s_mov_b32 s{base}, s{lo}
    s_mov_b32 s{base+1}, s{lo+1}
    s_mov_b32 s{base+2}, {size}
    s_mov_b32 s{base+3}, 0x20000
    """)
    class guard:
        def __enter__(self):
            self.l = a.label("G"); self.n = len(a.lines)
            if warm: a(f"    s_cbranch_execz {self.l}")
        def __exit__(self, *x):
            if warm:
                if len(a.lines) == self.n + 1: a.lines.pop()
                else: a(f"{self.l}:")
    def barrier():
        with guard(): a("    s_barrier")

    r = R(10)
    (vtagP, vaddP, vOT, vtid4, vPF, vG4, vWQ, vK, vWO, vPO, vQW, vQR, vSW, vSR, vTR, vred, vtag0, vGU, vGU2, vWD, vPH, vJ, vG,
     vOT2, vl4, vt7, vV) = [r.a() for _ in range(27)]
    XA = r.a(8, 4); XS = r.a(4, 4); T = r.a(24, 4); A = r.a(32, 4); QB = r.a(16, 4)
    D1 = r.a(4, 4); PD = r.a(16, 4); DG = r.a(8, 4); WQ = r.a(32, 4); KK = r.a(16, 4); VO = r.a(16, 4); G0 = r.a(16, 4); HG = r.a(4, 4)
    nv = r.n
    assert nv <= 256, nv
    accum = (nv + 3) // 4 * 4
    GW = 0; WD = 64; nagpr = 96
    A3 = KK; A2 = A; WO = WQ; OG = A; FF = QB
    assert VO == KK + 16

    a(f"""
    s_cmp_ge_u32 s2, 256
    s_cbranch_scc1 L_end
    s_load_dwordx16 s[4:19], s[0:1], 0
    s_load_dwordx8 s[20:27], s[0:1], 64
    """)
    if stamps:
        for i in range(1, NST): a(f"    s_mov_b64 s[{72+2*i}:{73+2*i}], 0")
    stamp(0)
    a(f"""
    v_lshrrev_b32 v6, 6, v0
    v_and_b32 v1, 63, v0
    s_and_b32 s33, s2, 7            ; xcd
    v_readfirstlane_b32 s3, v6
    s_lshr_b32 s34, s2, 3           ; idx
    s_getpc_b64 s[96:97]
L_pc:
    s_lshl_b32 s64, s34, 2
    s_add_u32 s64, s64, s3
    s_lshl_b32 s64, s64, 7
    s_min_u32 s64, s64, L_code_end - L_pc - 4
    v_mov_b32 v9, s64
    global_load_dword v{vPF}, v9, s[96:97]
    v_lshlrev_b32 v6, 4, v1          ; lane*16
    v_lshrrev_b32 v7, 3, v1          ; l>>3
    v_and_b32 v8, 7, v1              ; l&7
    s_lshr_b32 s65, s33, 1           ; g
    s_and_b32 s66, s33, 1
    s_lshl_b32 s66, s66, 5
    s_add_u32 s66, s66, s34          ; m
    s_and_b32 s67, s66, 15           ; cb
    s_lshr_b32 s68, s66, 4           ; rq
    s_lshl_b32 s69, s68, 8
    s_lshl_b32 s64, s3, 6
    s_add_u32 s69, s69, s64          ; R0
    s_lshl_b32 s97, s69, 1
    v_lshlrev_b32 v9, 4, v7
    s_lshl_b32 s64, s69, 13
    s_lshl_b32 s96, s65, 11
    s_add_u32 s64, s64, s96
    s_lshl_b32 s96, s67, 7
    s_add_u32 s64, s64, s96
    v_lshlrev_b32 v{vWQ}, 16, v7
    v_lshl_add_u32 v{vWQ}, v8, 4, v{vWQ}
    v_add_u32 v{vWQ}, s64, v{vWQ}
    v_lshrrev_b32 v{vG}, 4, v1
    v_and_b32 v{vJ}, 15, v1
    s_mov_b32 s38, 2048
    s_mov_b32 s39, 0x20000
    s_mov_b32 s46, {8<<20}
    s_mov_b32 s47, 0x20000
    s_mov_b32 s64, 0
    s_waitcnt lgkmcnt(0)
    s_mov_b32 s36, s4
    s_mov_b32 s37, s5
    buffer_load_dwordx4 {vr(XA,4)}, v6, s[36:39], 0 offen
    buffer_load_dwordx4 {vr(XA+4,4)}, v6, s[36:39], 0 offen offset:1024
    buffer_load_dwordx4 {vr(XS,4)}, v9, s[36:39], s97 offen
    s_load_dword s28, s[26:27], {EPOCH}
    s_mov_b32 s44, s10
    s_mov_b32 s45, s11
    {"" if nobar else "s_barrier"}
    """)
    for t in range(8):
        a(f"    buffer_load_dwordx4 {vr(WQ+4*t,4)}, v{vWQ}, s[44:47], s64 offen{wq_flags}")
        if t < 7: a(f"    s_add_u32 s64, s64, 8192")
    a(f"""
    v_bfe_u32 v{T}, v0, 1, 2
    v_and_b32 v{T+1}, 1, v0
    v_lshlrev_b32 v{T+1}, 4, v{T+1}
    v_mov_b32 v9, 0xffff
    v_lshlrev_b32 v9, v{T+1}, v9
    v_cmp_eq_u32 vcc, 0, v{T}
    v_cmp_eq_u32 s[96:97], 1, v{T}
    v_cmp_eq_u32 s[98:99], 2, v{T}
    v_cmp_eq_u32 s[100:101], 3, v{T}
    v_cndmask_b32 v2, 0, v9, vcc
    v_cndmask_b32 v3, 0, v9, s[96:97]
    v_cndmask_b32 v4, 0, v9, s[98:99]
    v_cndmask_b32 v5, 0, v9, s[100:101]
    s_lshl_b32 s63, s65, 23
    s_lshl_b32 s96, s66, {8 if kvs else 14}
    s_add_u32 s63, s63, s96
    s_lshl_b32 s96, s3, {18 if kvs else 12}
    s_add_u32 s63, s63, s96
    s_add_u32 s63, s63, {28672*256}
    s_lshl_b32 s96, s3, 12
    s_add_u32 s96, s96, {L_V}
    s_mov_b32 m0, s96
    v_lshlrev_b32 v{vK}, {14 if kvs else 8}, v{vJ}
    v_lshl_add_u32 v{vK}, v{vG}, 4, v{vK}
    v_lshlrev_b32 v{vV}, {14 if kvs else 8}, v{vG}
    v_lshl_add_u32 v{vV}, v{vJ}, 4, v{vV}
    """)
    srd(48, 6, 32 << 20)
    srd(52, 8, 32 << 20)
    srd(40, 26, WS_SIZE)

    def allreduce2(x, y, t1, t2):
        for s_ in (8, 4, 2, 1):
            a(f"""
    s_nop 0
    v_add_f32_dpp v{x}, v{x}, v{x} row_ror:{s_} row_mask:0xf bank_mask:0xf
    v_add_f32_dpp v{y}, v{y}, v{y} row_ror:{s_} row_mask:0xf bank_mask:0xf
    """)
        for sw in ("v_permlane16_swap_b32", "v_permlane32_swap_b32"):
            a(f"""
    v_mov_b32 v{t1}, v{x}
    v_mov_b32 v{t2}, v{y}
    s_nop 0
    {sw} v{t1}, v{x}
    {sw} v{t2}, v{y}
    v_add_f32 v{x}, v{x}, v{t1}
    v_add_f32 v{y}, v{y}, v{t2}
    """)
    def allreduce1(x, t1, op="v_add_f32", steps=(8, 4, 2, 1)):
        for s_ in steps:
            a(f"""
    s_nop 1
    {op}_dpp v{x}, v{x}, v{x} row_ror:{s_} row_mask:0xf bank_mask:0xf
    """)
        for sw in ("v_permlane16_swap_b32", "v_permlane32_swap_b32"):
            a(f"""
    v_mov_b32 v{t1}, v{x}
    s_nop 1
    {sw} v{t1}, v{x}
    {op} v{x}, v{x}, v{t1}
    """)
    def rbf16(d, s_):
        a(f"""
    v_cvt_pk_bf16_f32 v{d}, v{s_}, v{s_}
    v_and_b32 v{d}, 0xffff0000, v{d}
    """)
    a(f"""
    v_lshrrev_b32 v{vred}, 2, v1
    v_xor_b32 v{vred}, v{vred}, v1
    v_and_b32 v{vred}, 8, v{vred}
    v_cmp_eq_u32 vcc, 0, v{vred}
    v_lshlrev_b32 v{vred}, 5, v8
    v_bfe_u32 v9, v1, 4, 1
    v_lshl_add_u32 v{vred}, v9, 4, v{vred}
    v_lshrrev_b32 v9, 5, v1
    v_lshl_add_u32 v{vred}, v9, 8, v{vred}
    s_lshl_b32 s64, s3, 9
    v_add_u32 v{vred}, s64, v{vred}
    v_add_u32 v9, {L_TRASH}, v6
    v_cndmask_b32 v{vred}, v9, v{vred}, vcc
    v_lshlrev_b32 v{vtid4}, 2, v0
    v_and_b32 v{vG4}, 3, v1
    v_lshlrev_b32 v{vtagP}, 3, v{vG4}
    s_lshl_b32 s44, s65, 14
    s_add_u32 s44, s44, {QP}
    s_lshl_b32 s45, s68, 12
    s_add_u32 s45, s45, s44
    s_lshl_b32 s96, s67, 8
    s_add_u32 s45, s45, s96
    """)
    def tags_block():
        a(f"""
    s_waitcnt lgkmcnt(0)
    s_and_b32 s28, s28, 0x7f
    s_cmp_eq_u32 s28, 127
    s_cselect_b32 s28, 0, s28
    s_add_u32 s35, s28, 1
    s_add_u32 s29, s28, 33
    s_sub_u32 s64, s29, 127
    s_cmp_gt_u32 s29, 127
    s_cselect_b32 s29, s64, s29
    s_add_u32 s30, s28, 65
    s_sub_u32 s64, s30, 127
    s_cmp_gt_u32 s30, 127
    s_cselect_b32 s30, s64, s30
    s_add_u32 s31, s28, 97
    s_sub_u32 s64, s31, 127
    s_cmp_gt_u32 s31, 127
    s_cselect_b32 s31, s64, s31
    s_add_u32 s28, s28, 1
    s_lshl_b32 s32, s29, 8
    s_or_b32 s32, s32, s28
    s_lshl_b32 s64, s30, 16
    s_or_b32 s32, s32, s64
    s_lshl_b32 s64, s31, 24
    s_or_b32 s32, s32, s64
    s_movk_i32 s70, 0xff
    v_bfe_u32 v{vtagP}, s32, v{vtagP}, 8
    v_sub_u32 v{vaddP}, 0x80, v{vtagP}
    s_and_b32 s46, s32, 0xffff
    """)
    if not late_tags: tags_block()
    a(f"""
    """)
    def kv_issue(i):
        if i < 4: a(f"    buffer_load_dwordx4 {vr(KK+4*i,4)}, v{vK}, s[48:51], s63 offen offset:{64*i}{NT}")
        else:
            so = "s63"
            if kvs and i > 4:
                a(f"    s_add_u32 s99, s63, {(i-4)*(65536-1024)}"); so = "s99"
            a(f"    buffer_load_dwordx4 v{vV}, s[52:55], {so} offen offset:{1024*(i-4)}{NT} lds")
    a(f"    s_waitcnt vmcnt(9)")
    stamp(1)
    for i in range(k0): kv_issue(i)
    for k in range(8):
        a(f"""
    v_lshlrev_b32 v{T+2*k}, 16, v{XA+k}
    v_and_b32 v{T+2*k+1}, 0xffff0000, v{XA+k}
    """)
    a(f"""
    v_readfirstlane_b32 s64, v{T}
    s_nop 1
    """)
    for k in range(16): a(f"    v_subrev_f32 v{T+k}, s64, v{T+k}")
    a(f"""
    v_pk_add_f32 {vr(T+16,2)}, {vr(T,2)}, {vr(T+2,2)}
    v_pk_mul_f32 {vr(T+18,2)}, {vr(T,2)}, {vr(T,2)}
    """)
    for k in range(1, 8):
        a(f"    v_pk_fma_f32 {vr(T+18,2)}, {vr(T+2*k,2)}, {vr(T+2*k,2)}, {vr(T+18,2)}")
        if k >= 2: a(f"    v_pk_add_f32 {vr(T+16,2)}, {vr(T+16,2)}, {vr(T+2*k,2)}")
    S1, S2, t1, t2 = T + 16, T + 18, T + 17, T + 19
    a(f"""
    v_add_f32 v{S1}, v{S1}, v{t1}
    v_add_f32 v{S2}, v{S2}, v{t2}
    s_nop 0
    """)
    allreduce2(S1, S2, t1, t2)
    mean, var, rs, sd = T, T + 1, T + 2, T + 3
    a(f"""
    v_mul_f32 v{S1}, 0x3a800000, v{S1}
    v_mul_f32 v{S2}, 0x3a800000, v{S2}
    v_add_f32 v{mean}, s64, v{S1}
    v_fma_f32 v{var}, -v{S1}, v{S1}, v{S2}
    v_max_f32 v{var}, 0, v{var}
    """)
    rbf16(mean, mean); rbf16(var, var)
    a(f"    v_add_f32 v{var}, 0x3727c5ac, v{var}")
    rbf16(var, var)
    a(f"""
    v_sqrt_f32 v{sd}, v{var}
    s_waitcnt vmcnt({8+k0})
    """)
    for i in range(k0, k0 + k1): kv_issue(i)
    rbf16(sd, sd)
    a(f"    v_rcp_f32 v{rs}, v{sd}")
    Dd = T + 4; Q = T + 12
    for k in range(4):
        a(f"""
    v_lshlrev_b32 v{Dd+2*k}, 16, v{XS+k}
    v_and_b32 v{Dd+2*k+1}, 0xffff0000, v{XS+k}
    """)
    for k in range(8): a(f"    v_sub_f32 v{Dd+k}, v{Dd+k}, v{mean}")
    for k in range(4): a(f"    v_cvt_pk_bf16_f32 v{XS+k}, v{Dd+2*k}, v{Dd+2*k+1}")
    for k in range(4):
        a(f"""
    v_lshlrev_b32 v{Dd+2*k}, 16, v{XS+k}
    v_and_b32 v{Dd+2*k+1}, 0xffff0000, v{XS+k}
    """)
    for k in range(8): a(f"    v_mul_f32 v{Q+k}, v{Dd+k}, v{rs}")
    for k in range(8): a(f"    v_fma_f32 v{Dd+k}, -v{Q+k}, v{sd}, v{Dd+k}")
    for k in range(8): a(f"    v_fmac_f32 v{Q+k}, v{Dd+k}, v{rs}")
    for k in range(8): a(f"    v_cvt_pk_bf16_f32 v{Q+k}, v{Q+k}, v{Q+k}")
    for k in range(8):
        for m_ in range(4): a(f"    v_and_b32 v{A+4*k+m_}, v{Q+k}, v{2+m_}")
    stamp(2)
    for i in range(k0 + k1, k0 + k1 + k2): kv_issue(i)
    srd(56, 12, 8 << 20)
    srd(4, 16, 7 << 20)
    srd(8, 18, 7 << 20)
    srd(12, 20, 7 << 20)
    srd(16, 22, 2048)
    a(f"""
    s_add_u32 s64, s67, 4
    s_lshr_b32 s64, s64, 3
    s_mul_i32 s60, s65, 14
    s_add_u32 s60, s60, s67
    s_sub_u32 s60, s60, s64
    s_add_u32 s61, s60, {28 if mixU else 0}
    s_sub_u32 s64, s61, 56
    s_cmp_ge_u32 s61, 56
    s_cselect_b32 s61, s64, s61
    s_add_u32 s64, s34, 4
    s_lshr_b32 s64, s64, 3
    s_sub_u32 s62, s34, s64
    s_mul_i32 s64, s69, 7168
    v_mul_u32_u24 v{vGU}, {8*7168}, v7
    v_lshl_add_u32 v{vGU}, v8, 4, v{vGU}
    s_lshl_b32 s96, s61, 7
    s_add_u32 s96, s96, s64
    v_add_u32 v{vGU2}, s96, v{vGU}
    s_lshl_b32 s96, s60, 7
    s_add_u32 s96, s96, s64
    v_add_u32 v{vGU}, s96, v{vGU}
    s_lshl_b32 s60, s60, 11
    s_lshl_b32 s61, s61, 11
    s_add_u32 s61, s61, 1024
    s_cmp_eq_u32 s3, 0
    s_cselect_b32 s60, s60, s61
    s_lshl_b32 s64, s68, 8
    s_add_u32 s60, s60, s64
    s_add_u32 s60, s60, {GU}
    s_lshl_b32 s61, s62, 12
    s_lshr_b32 s64, s3, 1
    s_lshl_b32 s64, s64, 11
    s_add_u32 s61, s61, s64
    s_and_b32 s64, s3, 1
    s_lshl_b32 s64, s64, 7
    s_add_u32 s61, s61, s64
    s_add_u32 s61, s61, {GU}
    v_bfe_u32 v9, v1, 3, 1
    v_lshlrev_b32 v{vPH}, 8, v9
    v_lshl_add_u32 v{vPH}, v{vG}, 5, v{vPH}
    v_lshl_add_u32 v{vPH}, v8, 2, v{vPH}
    ; wd voffset = (128j + 32w + 8G)*2048 + 256x + 16jj
    s_lshl_b32 s64, s62, 18
    s_lshl_b32 s96, s3, 16
    s_add_u32 s64, s64, s96
    s_lshl_b32 s96, s33, 8
    s_add_u32 s64, s64, s96
    v_lshlrev_b32 v{vWD}, 14, v{vG}
    v_lshl_add_u32 v{vWD}, v{vJ}, 4, v{vWD}
    v_add_u32 v{vWD}, s64, v{vWD}
    s_lshl_b32 s62, s33, 5
    s_add_u32 s62, s62, s34
    s_lshl_b32 s62, s62, 10
    s_add_u32 s62, s62, {PL}
    v_and_b32 v{vt7}, 511, v{vtid4}
    s_lshr_b32 s64, s3, 1
    s_lshl_b32 s64, s64, 11
    v_add_u32 v{vt7}, s64, v{vt7}
    v_lshlrev_b32 v{vl4}, 2, v1
    v_mul_u32_u24 v{vSW}, 144, v8
    v_lshl_add_u32 v{vSR}, v{vG}, 4, v{vSW}
    v_lshl_add_u32 v{vSR}, v9, 6, v{vSR}
    v_bfe_u32 v9, v1, 4, 1
    v_lshlrev_b32 v{vOT}, 5, v{vJ}
    v_lshl_add_u32 v{vOT}, v9, 4, v{vOT}
    s_lshl_b32 s64, s3, 9
    v_add_u32 v{vOT}, s64, v{vOT}
    s_lshl_b32 s67, s34, 2
    s_add_u32 s67, s67, s3
    s_lshr_b32 s64, s67, 5
    s_lshl_b32 s64, s64, 10
    s_bfe_u32 s96, s67, 0x20003
    s_lshl_b32 s96, s96, 5
    s_add_u32 s64, s64, s96
    s_and_b32 s96, s67, 1
    s_lshl_b32 s96, s96, 4
    s_add_u32 s64, s64, s96
    s_bfe_u32 s96, s67, 0x20001
    s_lshl_b32 s96, s96, 2
    s_add_u32 s64, s64, s96
    s_lshl_b32 s64, s64, 11
    s_lshl_b32 s96, s33, 8
    s_add_u32 s64, s64, s96
    v_lshlrev_b32 v{vWO}, 11, v{vG}
    v_lshl_add_u32 v{vWO}, v{vJ}, 4, v{vWO}
    v_add_u32 v{vWO}, s64, v{vWO}
    s_lshl_b32 s69, s67, 7
    s_add_u32 s69, s69, {OF}
    v_lshlrev_b32 v{vOT2}, 5, v{vG}
    v_lshl_add_u32 v{vOT2}, v8, 2, v{vOT2}   ; vOF = (8G + (l&7))*4
    v_mul_u32_u24 v{vQR}, 272, v8
    v_lshl_add_u32 v{vQR}, v{vG}, 4, v{vQR}
    v_lshl_add_u32 v{vSW}, v{vG}, 3, v{vSW}
    s_lshl_b32 s96, s3, 5
    v_add_u32 v{vSW}, s96, v{vSW}
    v_bfe_u32 v9, v1, 2, 2
    v_lshl_add_u32 v{vTR}, v{vG}, 3, v9
    v_lshlrev_b32 v{vTR}, 8, v{vTR}
    v_lshlrev_b32 v9, 3, v{vG4}
    s_lshl_b32 s64, s3, 6
    v_add3_u32 v{vTR}, v{vTR}, v9, s64
    v_lshrrev_b32 v{vQW}, 5, v0
    v_and_b32 v9, 31, v0
    v_mul_u32_u24 v{vQW}, 272, v{vQW}
    v_lshl_add_u32 v{vQW}, v9, 3, v{vQW}
    s_lshl_b32 s97, s3, 10
    s_add_u32 s20, s44, s97
    s_lshl_b32 s22, s65, 18
    s_add_u32 s22, s22, {OP}
    s_lshl_b32 s96, s66, 12
    s_add_u32 s23, s22, s96
    s_add_u32 s23, s23, s97
    s_mov_b32 s47, 0x03020302
    s_mov_b32 s24, {SCALE}
    s_mov_b32 s25, {LOG2E}
    """)
    if late_tags: tags_block()
    a(f"""
    s_mov_b32 s26, 0x07060500
    s_mov_b32 s27, 0x07060501
    s_mov_b32 s66, 0x07060502
    s_mov_b32 s67, 0x07060503
    s_mov_b32 s68, 0x0c04000c
    s_lshl_b32 s21, s3, 11
    v_add_u32 v{vt7+0 if False else XS}, s21, v{vl4}
    """)
    vGR = XS; vOF = vOT2
    PSEL = (26, 27, 66, 67)
    def red8(Rr, vaddr, o):
        a(f"""
    ds_read2st64_b32 {vr(Rr,2)}, v{vaddr} offset0:{o} offset1:{o+1}
    ds_read2st64_b32 {vr(Rr+2,2)}, v{vaddr} offset0:{o+2} offset1:{o+3}
    ds_read2st64_b32 {vr(Rr+4,2)}, v{vaddr} offset0:{o+4} offset1:{o+5}
    ds_read2st64_b32 {vr(Rr+6,2)}, v{vaddr} offset0:{o+6} offset1:{o+7}
    s_waitcnt lgkmcnt(0)
    v_add_f32 v{Rr}, v{Rr}, v{Rr+1}
    v_add_f32 v{Rr+2}, v{Rr+2}, v{Rr+3}
    v_add_f32 v{Rr+4}, v{Rr+4}, v{Rr+5}
    v_add_f32 v{Rr+6}, v{Rr+6}, v{Rr+7}
    v_add_f32 v{Rr}, v{Rr}, v{Rr+2}
    v_add_f32 v{Rr+4}, v{Rr+4}, v{Rr+6}
    v_add_f32 v{Rr}, v{Rr}, v{Rr+4}
    v_add_u32 v{Rr}, v{Rr}, v{vaddP}
    v_bfi_b32 v{Rr}, s70, v{vtagP}, v{Rr}
    """)
    nk = k0 + k1 + k2
    for t in range(8):
        a(f"    s_waitcnt vmcnt({7 - t + nk})")
        srcc = "0" if t == 0 else vr(D1, 4)
        a(f"    v_mfma_f32_16x16x32_bf16 {vr(D1,4)}, {vr(A+4*t,4)}, {vr(WQ+4*t,4)}, {srcc}")
        while nk < 8 and t < 7 and (7 - t) + nk < Dt:
            kv_issue(nk); nk += 1
    kpre = nk
    a(f"""
    s_nop 7
    ds_write_b128 v{vred}, {vr(D1,4)} offset:{L_RED}
    s_waitcnt lgkmcnt(0)
    s_barrier
    s_cmp_lg_u32 s3, 0
    s_cbranch_scc1 L_nored
    """)
    red8(T, vl4, L_RED // 256)
    a(f"""
    buffer_store_dword v{T}, v{vl4}, s[40:43], s45 offen sc1
L_nored:
    """)
    stamp(3)
    a("""
    s_and_b32 s64, s34, 7
    s_cmp_eq_u32 s64, 3
    s_cbranch_scc1 L_light
    """)

    def merge2(X, Y, steps=(8, 4)):
        a(f"""
    v_mov_b32 v{Y+1}, v{Y}
    s_nop 0
    v_permlane32_swap_b32 v{X}, v{X+2}
    v_permlane32_swap_b32 v{X+1}, v{X+3}
    v_permlane32_swap_b32 v{Y+1}, v{Y}
    v_add_f32 v{X}, v{X}, v{X+2}
    v_add_f32 v{X+1}, v{X+1}, v{X+3}
    v_add_f32 v{Y}, v{Y}, v{Y+1}
    s_nop 0
    v_mov_b32 v{Y+1}, v{Y}
    v_permlane16_swap_b32 v{X}, v{X+1}
    s_nop 0
    v_permlane16_swap_b32 v{Y+1}, v{Y}
    v_add_f32 v{X}, v{X}, v{X+1}
    v_add_f32 v{Y}, v{Y}, v{Y+1}
    """)
        for s_ in steps:
            a(f"""
    s_nop 0
    v_add_f32_dpp v{X}, v{X}, v{X} row_ror:{s_} row_mask:0xf bank_mask:0xf
    v_add_f32_dpp v{Y}, v{Y}, v{Y} row_ror:{s_} row_mask:0xf bank_mask:0xf
    """)

    vA, vB, vkeep, vX, vO, vF = XA, XA + 1, XA + 2, XA + 3, XA + 4, XA + 5
    RA = G0; RB = G0 + 8; ac = T + 6
    def red_pre():
        if red1: return red_pre1()
        a(f"""
    s_lshl_b32 s54, s65, 6
    v_lshlrev_b32 v{vO}, 1, v1
    v_add_u32 v{vO}, s54, v{vO}
    buffer_load_ushort v{vX}, v{vO}, s[36:39], 0 offen
    v_lshlrev_b32 v{vA}, 10, v7
    v_lshl_add_u32 v{vA}, v8, 4, v{vA}
    v_cmp_ne_u32 vcc, 3, v7
    v_add_u32 v{vB}, 512, v{vA}
    v_lshlrev_b32 v{vF}, 2, v{vG}
    v_cndmask_b32 v{vB}, v{vA}, v{vB}, vcc
    v_cndmask_b32 v{vkeep}, 0, 1.0, vcc
    v_lshl_add_u32 v{vF}, v8, 4, v{vF}
    s_lshl_b32 s96, s3, 8
    v_add_u32 v{vF}, s96, v{vF}
    s_lshl_b32 s55, s33, 15
    s_lshl_b32 s96, s3, 13
    s_add_u32 s55, s55, s96
    s_lshr_b32 s64, s34, 3
    s_lshl_b32 s64, s64, 7
    s_add_u32 s55, s55, s64
    s_add_u32 s54, s55, {PG}
    s_add_u32 s55, s55, {PL if local else PG}
    """)

    def red_pre1():
        a(f"""
    s_lshl_b32 s54, s65, 5
    s_lshl_b32 s96, s3, 3
    s_add_u32 s54, s54, s96
    v_and_b32 v{vF}, 1, v1
    v_lshl_add_u32 v{vO}, v{vF}, 2, v{vG}
    v_add_u32 v{vO}, s54, v{vO}
    v_lshlrev_b32 v{vO}, 1, v{vO}
    buffer_load_ushort v{vX}, v{vO}, s[36:39], 0 offen
    v_lshrrev_b32 v{vA}, 1, v1
    v_and_b32 v{vB}, 7, v{vA}
    v_cmp_ne_u32 vcc, 3, v{vB}
    v_lshlrev_b32 v{vA}, 10, v{vA}
    v_lshl_add_u32 v{vA}, v{vF}, 4, v{vA}
    v_add_u32 v{vB}, 512, v{vA}
    v_cndmask_b32 v{vB}, v{vA}, v{vB}, vcc
    v_cndmask_b32 v{vkeep}, 0, 1.0, vcc
    v_and_b32 v{vF}, 14, v1
    v_cmp_eq_u32 s[56:57], 0, v{vF}
    s_lshl_b32 s55, s33, 15
    s_lshr_b32 s64, s34, 3
    s_lshl_b32 s64, s64, 7
    s_add_u32 s55, s55, s64
    s_lshl_b32 s96, s3, 5
    s_add_u32 s55, s55, s96
    s_add_u32 s54, s55, {PG}
    s_add_u32 s55, s55, {PL if local else PG}
    """)

    def path(ffn, P):
        S = Sched(a)
        def seg_end():
            if warm: a(f"    s_cbranch_execz {P}W_ret")
        def gsprk(n):
            with guard(): S.sprk(n)
        def gwait(name, sub=0):
            with guard(): S.wait(name, sub)
        for t in range(8):
            S.items.append((f"wq{t}", None, 1)); S.nops += 1; S.pos[f"wq{t}"] = S.nops; S.issued += 1
        base = []
        for i in range(8): base.append((f"kv{i}", (lambda i=i: kv_issue(i)), 1))
        def mk_gu(i):
            t, mat = i // 2, i % 2
            def f():
                so = "0"
                if t: a(f"    s_mov_b32 s99, {t*7168}"); so = "s99"
                a(f"    buffer_load_dwordx4 {ar(GW+4*i,4)}, v{vGU2 if mat else vGU}, s[{4+4*mat}:{7+4*mat}], {so} offen{NT}")
            return f
        def mk_wo(k):
            def f():
                so = "0"
                if k: a(f"    s_mov_b32 s99, {k*0x40000}"); so = "s99"
                a(f"    buffer_load_dwordx4 {vr(WO+4*k,4)}, v{vWO}, s[56:59], {so} offen{NT}")
            return f
        def mk_wd(k):
            def f():
                so = "0"
                if k >= 2: a(f"    s_movk_i32 s99, {(k & ~1)*2048}"); so = "s99"
                a(f"    buffer_load_dwordx4 {ar(WD+4*k,4)}, v{vWD}, s[12:15], {so} offen offset:{(k&1)*2048}{NT}")
            return f
        def pollq():
            if oracle_q:
                for k in range(4): a(f"    buffer_load_dwordx4 {vr(G0+4*k,4)}, v6, s[36:39], 0 offen")
                return
            a(f"    buffer_load_dwordx4 {vr(G0,4)}, v6, s[40:43], s20 offen sc1")
            for k in range(1, 4):
                a(f"    s_add_u32 s99, s20, {4096*k}")
                a(f"    buffer_load_dwordx4 {vr(G0+4*k,4)}, v6, s[40:43], s99 offen sc1")
        def pollf():
            a(f"    buffer_load_dword v{G0}, v{vOF}, s[40:43], s69 offen sc1")
        def pollf0():
            a(f"    buffer_load_dword v{G0+1}, v{vOF}, s[40:43], s69 offen sc1")
        def pollh():
            for k in range(4): a(f"    buffer_load_dword v{HG+k}, v{vPH}, s[40:43], s61 offen offset:{512*k} sc1")
        if ffn:
            for i in range(16): base.append((f"gu{i}", mk_gu(i), 1))
        for k in range(8): base.append((f"wo{k}", mk_wo(k), 1))
        if ffn:
            for k in range(8): base.append((f"wd{k}", mk_wd(k), 1))
        Pl = [] if pure else [(pq, ("pq", pollq, 4)), (ph, ("ph", pollh, 4))] + ([(pf0, ("pf0", pollf0, 1))] if pf0 else []) + [(pf, ("pf", pollf, 1))] if ffn else [(lq, ("pq", pollq, 4)), (98, ("comb", lambda: None, 0)), (99, ("pf", pollf, 1))]
        for i, it in enumerate(base):
            for p, pit in Pl:
                if p == i + 8: S.add(*pit)
            S.add(*it)
        for p, pit in Pl:
            if p >= len(base) + 8: S.add(*pit)
        for i in range(kpre):
            name = S.items[S.issued][0]; assert name == f"kv{i}"
            S.nops += 1; S.pos[name] = S.nops; S.issued += 1
        names = [it[0] for it in S.items]
        S.blocked |= {"ph"} | (set() if (ffn and not pf_late) else {"pf"})
        def retry(lab, fn, check):
            if oracle_q and lab.endswith("rq"): return
            if cnt:
                bit = {"rq": 100, "rf": 1000, "rh": 10000}[lab[-2:]]
                a(f"""
    s_nop 1
    s_cbranch_vccz {lab}_c
    s_add_u32 s94, s94, {bit}
    s_addc_u32 s95, s95, 0
{lab}_c:
    """)
            a(f"""
    s_nop 1
    s_cbranch_vccz {lab}_ok
    s_mov_b32 s71, {spin_max}
{lab}:
    """)
            fn()
            a("    s_waitcnt vmcnt(0)")
            check(True)
            a(f"""
    s_sub_u32 s71, s71, 1
    s_cmp_eq_u32 s71, 0
    s_cbranch_scc1 {lab}_ok
    s_cbranch_vccnz {lab}
{lab}_ok:
    """)
        if pure:
            for name in names:
                if name.startswith("wq"): continue
                S.wait(name); S.topup(name, D if ffn else Dl)
                if name == "kv7": stamp(4)
                if name == "gu7": stamp(5)
                if name == "gu15": stamp(8)
                if name == "wo7": stamp(7)
                if name == "wd7": stamp(10)
            if not ffn:
                stamp(9); store_stamps(); a("    s_endpgm\nLtW_ret:")
                red_pre()
            return
        if lnat and not ffn: S.blocked |= {f"wo{k}" for k in range(lpre, 8)}
        S.blocked.add("pq"); S.sprk(warm_extra)
        if not (lnat and not ffn): S.blocked.discard("pq")
        if warm:
            a(f"""
    s_mov_b64 exec, 0
    s_cmp_eq_u32 s3, 0
    s_cbranch_scc1 {P}SEG0
    s_cmp_eq_u32 s3, 1
    s_cbranch_scc1 {P}SEG1
    s_cmp_eq_u32 s3, 2
    s_cbranch_scc1 {P}SEG2
    s_branch {P}SEG3
{P}W_ret:
    s_mov_b64 exec, -1
    """)
        if cnt: a('    s_waitcnt lgkmcnt(0)\n    s_mov_b64 s[94:95], s[72:73]')
        else: stamp(11)
        have_o = False; have_h = False; st_b = [False]
        DD = D if ffn else Dl
        def tr_reads():
            for s_ in range(2):
                for c in range(2):
                    for h in range(2):
                        a(f"    ds_read_b64_tr_b16 {vr(VO+(s_*2+c)*4+2*h,2)}, v{vTR} offset:{L_V + s_*8192 + h*1024 + c*32}")
        def mf_wo(k):
            srcc = "0" if k == 0 else vr(PD, 4)
            a(f"    v_mfma_f32_16x16x32_bf16 {vr(PD,4)}, {vr(A3+4*k,4)}, {vr(WO+4*k,4)}, {srcc}")
        def mf_wd(k):
            srcc = "0" if k == 0 else vr(DG, 4)
            a(f"    v_mfma_f32_16x16x32_bf16 {vr(DG,4)}, {vr(A2+4*k,4)}, {ar(WD+4*k,4)}, {srcc}")
        for name in names:
            depth = DD
            if lnat and not ffn and name.startswith("wo"): depth = Dlw
            if dmap and ffn:
                for k_, v_ in dmap:
                    if names.index(name) >= k_: depth = v_
            def std():
                with guard():
                    S.wait(name)
                    if ffn and pf_at == name: S.blocked -= {"pf"}
                    if lnat and not ffn and name == lq_at: S.blocked.discard("pq")
                    S.topup(name, depth)
            if name.startswith("wq"):
                pass
            elif name.startswith("kv"):
                std()
                if name == "kv7" and not trlate:
                    a("    s_barrier")
                    tr_reads()
            elif name.startswith("gu"):
                i = int(name[2:]); t, mat = i // 2, i % 2
                with guard(): S.wait(name)
                srcc = "0" if t == 0 else vr(DG + 4 * mat, 4)
                a(f"    v_mfma_f32_16x16x32_bf16 {vr(DG+4*mat,4)}, {vr(A+4*t,4)}, {ar(GW+4*i,4)}, {srcc}")
                with guard(): S.topup(name, depth + (sprg if i == 15 else 0))
                if i == 15:
                    a(f"""
    s_nop 6
{P}SEG3:
    ds_write_b128 v{vred}, {vr(DG,4)} offset:{L_G}
    ds_write_b128 v{vred}, {vr(DG+4,4)} offset:{L_G+2048}
    s_waitcnt lgkmcnt(0)
    """)
                    with guard():
                        a(f"""
    s_barrier
    s_cmp_ge_u32 s3, 2
    s_cbranch_scc1 {P}nogu
    """)
                    red8(T, vGR, L_G // 256)
                    if warm: a(f"    s_cbranch_execz {P}SEG3b")
                    a(f"""
    buffer_store_dword v{T}, v{vl4}, s[40:43], s60 offen sc1
{P}nogu:
    """)
                    stamp(8)
                    S.blocked -= {"ph"}
            elif name == "pq":
                acc = T
                def chk(re):
                    a(f"""
    v_mov_b32 v{acc}, 0
    v_mov_b32 v{acc+1}, 0
    """)
                    for k in range(4):
                        if not re: gwait("pq", 3 - k)
                        for e in range(4): a(f"    v_msad_u8 v{acc+(e&1)}, v{G0+4*k+e}, s{28+e}, v{acc+(e&1)}")
                    a(f"""
    v_or_b32 v{acc}, v{acc}, v{acc+1}
    v_cmp_ne_u32 vcc, 0, v{acc}
    """)
                while "pq" not in S.pos: S.issue()
                a(f"{P}SEG0:")
                chk(False)
                retry(f"{P}rq", pollq, chk)
                with guard(): stamp(4)
                QS = T + 4
                a(f"""
    v_pk_add_f32 {vr(QS,2)}, {vr(G0,2)}, {vr(G0+4,2)}
    v_pk_add_f32 {vr(QS+2,2)}, {vr(G0+2,2)}, {vr(G0+6,2)}
    v_pk_add_f32 {vr(QS+4,2)}, {vr(G0+8,2)}, {vr(G0+12,2)}
    v_pk_add_f32 {vr(QS+6,2)}, {vr(G0+10,2)}, {vr(G0+14,2)}
    v_pk_add_f32 {vr(QS,2)}, {vr(QS,2)}, {vr(QS+4,2)}
    v_pk_add_f32 {vr(QS+2,2)}, {vr(QS+2,2)}, {vr(QS+6,2)}
    v_cvt_pk_bf16_f32 v{QS}, v{QS}, v{QS+1}
    v_cvt_pk_bf16_f32 v{QS+1}, v{QS+2}, v{QS+3}
    ds_write_b64 v{vQW}, {vr(QS,2)} offset:{L_Q}
    """)
                with guard(): S.topup(name, depth)
                a("    s_waitcnt lgkmcnt(0)")
                barrier()
                a(f"""
    ds_read_b128 {vr(QB,4)}, v{vQR} offset:{L_Q}
    ds_read_b128 {vr(QB+4,4)}, v{vQR} offset:{L_Q+64}
    ds_read_b128 {vr(QB+8,4)}, v{vQR} offset:{L_Q+128}
    ds_read_b128 {vr(QB+12,4)}, v{vQR} offset:{L_Q+192}
    """)
                with guard():
                    if trlate: tr_reads()
                    S.sprk(sprinkle[0])
                for t in range(4):
                    srcc = "0" if t == 0 else vr(D1, 4)
                    a(f"    s_waitcnt lgkmcnt({3-t+(8 if trlate else 0)})")
                    a(f"    v_mfma_f32_16x16x32_bf16 {vr(D1,4)}, {vr(KK+4*t,4)}, {vr(QB+4*t,4)}, {srcc}")
                Sx = T + 4
                a(f"""
    s_nop 7
    v_cvt_pk_bf16_f32 v{T}, v{D1}, v{D1+1}
    v_cvt_pk_bf16_f32 v{T+1}, v{D1+2}, v{D1+3}
    v_lshlrev_b32 v{Sx}, 16, v{T}
    v_and_b32 v{Sx+1}, 0xffff0000, v{T}
    v_lshlrev_b32 v{Sx+2}, 16, v{T+1}
    v_and_b32 v{Sx+3}, 0xffff0000, v{T+1}
    v_mul_f32 v{Sx}, s24, v{Sx}
    v_mul_f32 v{Sx+1}, s24, v{Sx+1}
    v_mul_f32 v{Sx+2}, s24, v{Sx+2}
    v_mul_f32 v{Sx+3}, s24, v{Sx+3}
    v_cvt_pk_bf16_f32 v{T}, v{Sx}, v{Sx+1}
    v_cvt_pk_bf16_f32 v{T+1}, v{Sx+2}, v{Sx+3}
    ds_write_b64 v{vSW}, {vr(T,2)} offset:{L_S}
    s_waitcnt lgkmcnt(0)
    """)
                seg_end()
                mx, tmp, lsum, wv, rl = T + 12, T + 13, T + 14, T + 15, T + 16
                Pp = T + 20
                a(f"""
    s_barrier
{P}SEG1:
    ds_read_b128 {vr(T,4)}, v{vSR} offset:{L_S}
    """)
                gsprk(sprinkle[1])
                a("    s_waitcnt lgkmcnt(0)")
                for k in range(4):
                    a(f"""
    v_lshlrev_b32 v{Sx+2*k}, 16, v{T+k}
    v_and_b32 v{Sx+2*k+1}, 0xffff0000, v{T+k}
    """)
                a(f"""
    v_max3_f32 v{mx}, v{Sx}, v{Sx+1}, v{Sx+2}
    v_max3_f32 v{tmp}, v{Sx+3}, v{Sx+4}, v{Sx+5}
    v_max3_f32 v{mx}, v{Sx+6}, v{Sx+7}, v{mx}
    v_max_f32 v{mx}, v{mx}, v{tmp}
    """)
                allreduce1(mx, tmp, op="v_max_f32", steps=(8,))
                a(f"    v_mul_f32 v{mx}, s25, v{mx}")
                for k in range(8): a(f"    v_fma_f32 v{Sx+k}, v{Sx+k}, s25, -v{mx}")
                for k in range(8): a(f"    v_exp_f32 v{Sx+k}, v{Sx+k}")
                for k in range(4): a(f"    v_cvt_pk_bf16_f32 v{Pp+k}, v{Sx+2*k}, v{Sx+2*k+1}")
                a(f"""
    v_pk_add_f32 {vr(T,2)}, {vr(Sx,2)}, {vr(Sx+2,2)}
    v_pk_add_f32 {vr(T+2,2)}, {vr(Sx+4,2)}, {vr(Sx+6,2)}
    """)
                for sc in (0, 2, 1, 3):
                    a(f"    v_mfma_f32_16x16x32_bf16 {vr(PD+4*sc,4)}, {vr(VO+4*sc,4)}, {vr(Pp,4)}, 0")
                gsprk(sprinkle[2])
                a(f"""
    v_pk_add_f32 {vr(T,2)}, {vr(T,2)}, {vr(T+2,2)}
    v_add_f32 v{lsum}, v{T}, v{T+1}
    """)
                allreduce1(lsum, tmp, steps=(8,))
                X = D1
                a(f"""
    v_log_f32 v{wv}, v{lsum}
    v_rcp_f32 v{rl}, v{lsum}
    """)
                for e in range(4): a(f"    v_add_f32_dpp v{X+e}, v{PD+8+e}, v{PD+e} row_ror:8 row_mask:0xf bank_mask:0x3")
                a(f"    v_add_f32 v{wv}, v{wv}, v{mx}")
                for e in range(4): a(f"    v_add_f32_dpp v{X+e}, v{PD+4+e}, v{PD+12+e} row_ror:8 row_mask:0xf bank_mask:0xc")
                a(f"""
    v_add_u32 v{wv}, 0x80, v{wv}
    v_bfi_b32 v{wv}, s70, v{vtagP}, v{wv}
    """)
                for e in range(4): a(f"    v_mul_f32 v{X+e}, v{X+e}, v{rl}")
                for e in range(4): a(f"    v_perm_b32 v{X+e}, v{X+e}, v{wv}, s{PSEL[e]}")
                seg_end()
                a(f"    buffer_store_dwordx4 {vr(X,4)}, v6, s[40:43], s23 offen sc1")
                S.extra(1)
                stamp(5)
                if lnat and not ffn:
                    S.blocked -= {f"wo{k}" for k in range(8)}
                    S.sprk(Dlw)
                else: S.sprk(sprinkle[3])
            elif name == "comb":
                a(f"""
    v_lshlrev_b32 v{vPO}, 12, v7
    v_lshl_add_u32 v{vPO}, v8, 4, v{vPO}
    s_lshr_b32 s64, s34, 3
    s_lshl_b32 s65, s33, 2
    s_add_u32 s65, s65, s64           ; lam
    s_lshl_b32 s64, s65, 2
    s_add_u32 s64, s64, s3
    s_lshl_b32 s60, s64, 7
    s_add_u32 s60, s60, {OF}
    s_and_b32 s64, s64, 31
    s_lshl_b32 s64, s64, 7
    s_add_u32 s22, s22, s64
    s_mov_b32 s71, {spin_max}
    s_mov_b32 s52, 0x01010101
    s_mov_b32 s53, 0x01010101
    """)
                MS = [4, 6, 8, 10, 12, 14, 48, 50]
                for t in range(8): a(f"    s_mov_b64 s[{MS[t]}:{MS[t]+1}], -1")
                red_pre()
                a(f"""
    s_waitcnt vmcnt(0)
    {f"s_sleep {lo_sleep}" if lo_sleep else ""}
C_poll:
    """)
                for t in range(8):
                    a(f"""
    s_mov_b64 exec, s[{MS[t]}:{MS[t]+1}]
    s_cbranch_execz C_i{t}
    s_add_u32 s99, s22, {t*32768}
    buffer_load_dwordx4 {vr(OG+4*t,4)}, v{vPO}, s[40:43], s99 offen sc1
C_i{t}:
    """)
                a("    s_mov_b64 exec, -1\n    s_waitcnt vmcnt(0)")
                a(f"{P}SEG2:")
                for t in range(8):
                    a(f"""
    v_msad_u8 v{T+t}, v{OG+4*t}, v{vtagP}, 0
    v_perm_b32 v{FF+t}, v{OG+4*t+2}, v{OG+4*t+1}, s68
    v_lshl_or_b32 v{FF+t}, v{OG+4*t+3}, 24, v{FF+t}
    """)
                a(f"""
    v_or3_b32 v{T+8}, v{T}, v{T+1}, v{T+2}
    v_or3_b32 v{T+9}, v{T+3}, v{T+4}, v{T+5}
    v_or3_b32 v{T+8}, v{T+6}, v{T+7}, v{T+8}
    v_or_b32 v{T+8}, v{T+8}, v{T+9}
    v_cmp_ne_u32 vcc, 0, v{T+8}
    v_max3_f32 v{T+10}, v{FF}, v{FF+1}, v{FF+2}
    v_max3_f32 v{T+11}, v{FF+3}, v{FF+4}, v{FF+5}
    s_cbranch_vccz C_ok
    """)
                for t in range(8): a(f"    v_cmp_ne_u32 s[{MS[t]}:{MS[t]+1}], 0, v{T+t}")
                a("    s_nop 1")
                for t in range(8):
                    m = f"s[{MS[t]}:{MS[t]+1}]"
                    if masked:
                        a(f"""
    s_lshr_b64 s[96:97], {m}, 4
    s_or_b64 {m}, {m}, s[96:97]
    s_lshr_b64 s[96:97], {m}, 2
    s_or_b64 {m}, {m}, s[96:97]
    s_lshr_b64 s[96:97], {m}, 1
    s_or_b64 {m}, {m}, s[96:97]
    s_and_b64 {m}, {m}, s[52:53]
    s_mul_i32 s{MS[t]}, s{MS[t]}, 0xff
    s_mul_i32 s{MS[t]+1}, s{MS[t]+1}, 0xff
    """)
                    else:
                        a(f"""
    s_cmp_lg_u64 {m}, 0
    s_cselect_b64 {m}, -1, 0
    """)
                if c_bet: a(f"    s_sleep {c_bet}")
                if cnt: a("    s_add_u32 s94, s94, 1000\n    s_addc_u32 s95, s95, 0")
                a(f"""
    s_sub_u32 s71, s71, 1
    s_cmp_lg_u32 s71, 0
    s_cbranch_scc1 C_poll
C_ok:
    """)
                with guard(): stamp(6)
                M_ = T + 10
                a(f"""
    v_max3_f32 v{M_}, v{FF+6}, v{FF+7}, v{M_}
    v_max_f32 v{M_}, v{M_}, v{T+11}
    """)
                allreduce1(M_, T + 11, op="v_max_f32", steps=(8,))
                for t in range(8): a(f"    v_sub_f32 v{FF+t}, v{FF+t}, v{M_}")
                for t in range(8): a(f"    v_exp_f32 v{FF+t}, v{FF+t}")
                for e in range(4): a(f"    v_mul_f32 v{OG+e}, v{OG+e}, v{FF}")
                for e in range(4): a(f"    v_mul_f32 v{OG+4+e}, v{OG+4+e}, v{FF+1}")
                for t in range(2, 8):
                    for e in range(4): a(f"    v_fmac_f32 v{OG+4*(t&1)+e}, v{OG+4*t+e}, v{FF+t}")
                L_ = T + 6
                a(f"""
    v_pk_add_f32 {vr(FF,2)}, {vr(FF,2)}, {vr(FF+2,2)}
    v_pk_add_f32 {vr(FF+4,2)}, {vr(FF+4,2)}, {vr(FF+6,2)}
    v_pk_add_f32 {vr(OG,2)}, {vr(OG,2)}, {vr(OG+4,2)}
    v_pk_add_f32 {vr(OG+2,2)}, {vr(OG+2,2)}, {vr(OG+6,2)}
    v_pk_add_f32 {vr(FF,2)}, {vr(FF,2)}, {vr(FF+4,2)}
    v_add_f32 v{L_}, v{FF}, v{FF+1}
    """)
                merge2(OG, L_, steps=(8,))
                a(f"""
    v_rcp_f32 v{L_}, v{L_}
    s_nop 0
    v_mul_f32 v{OG}, v{OG}, v{L_}
    v_cvt_pk_bf16_f32 v{OG}, v{OG}, v{OG}
    v_and_b32 v{OG}, 0xffff0000, v{OG}
    v_or_b32 v{OG}, s46, v{OG}
    """)
                with guard():
                    a(f"    buffer_store_dword v{OG}, v{vOF}, s[40:43], s60 offen sc1")
                    stamp(8)
                    if lf_sleep: a(f"    s_sleep {lf_sleep}")
                S.extra(1)
                S.blocked -= {"pf"}
            elif name == "pf":
                def chk(re):
                    if not re: gwait("pf")
                    a(f"""
    v_msad_u8 v{T+3}, v{G0}, s46, 0
    v_cmp_ne_u32 vcc, 0, v{T+3}
    """)
                with guard():
                    if ffn and hf_sleep: a(f"    s_sleep {hf_sleep}")
                    while "pf" not in S.pos: S.issue()
                if ffn: a(f"{P}SEG2:")
                early = ffn and pf0
                if early:
                    gwait("pf0")
                    a(f"""
    v_msad_u8 v{T+3}, v{G0+1}, s46, 0
    v_cmp_ne_u32 vcc, 0, v{T+3}
    v_perm_b32 v{G0+2}, v{G0+1}, v{G0+1}, s47
    s_nop 0
    s_cbranch_vccz {P}f_go
    """)
                chk(False)
                retry(f"{P}rf", pollf, chk)
                a(f"""
    v_perm_b32 v{G0+2}, v{G0}, v{G0}, s47
    s_nop 1
{P}f_go:
    """)
                with guard():
                    stamp(7); S.topup(name, depth + 2)
                have_o = True
                ready = [k for k in range(8) if names.index(f"wo{k}") < names.index("pf")]
                for u in range(8):
                    for m_ in range(4):
                        a(f"    v_and_b32_dpp v{A3+4*u+m_}, v{G0+2}, v{2+m_} row_newbcast:{u} row_mask:0xf bank_mask:0xf")
                    if u >= 1 and (u - 1) in ready: mf_wo(u - 1)
                a("    s_nop 1")
                if 7 in ready: mf_wo(7)
            elif name.startswith("wo"):
                std()
                if have_o: mf_wo(int(name[2:]))
            elif name == "ph":
                def chk(re):
                    if not re: gwait("ph")
                    a(f"""
    v_msad_u8 v{T+8}, v{HG}, v{vtagP}, 0
    v_msad_u8 v{T+9}, v{HG+1}, v{vtagP}, 0
    v_msad_u8 v{T+8}, v{HG+2}, v{vtagP}, v{T+8}
    v_msad_u8 v{T+9}, v{HG+3}, v{vtagP}, v{T+9}
    v_or_b32 v{T+8}, v{T+8}, v{T+9}
    v_cmp_ne_u32 vcc, 0, v{T+8}
    """)
                while "ph" not in S.pos: S.issue()
                a(f"{P}SEG3b:")
                chk(False)
                retry(f"{P}rh", pollh, chk)
                with guard():
                    stamp(9)
                    if pf_at == "ph": S.blocked -= {"pf"}
                    S.topup(name, depth + 4)
                G_, U_ = HG, HG + 2
                a(f"""
    v_add_f32 v{G_}, v{HG}, v{HG+1}
    v_add_f32 v{U_}, v{HG+2}, v{HG+3}
    s_nop 0
    v_add_f32_dpp v{G_}, v{G_}, v{G_} row_ror:8 row_mask:0xf bank_mask:0xf
    v_add_f32_dpp v{U_}, v{U_}, v{U_} row_ror:8 row_mask:0xf bank_mask:0xf
    """)
                rbf16(G_, G_)
                a(f"""
    v_mul_f32 v{T+4}, {0x80000000 | LOG2E}, v{G_}
    v_exp_f32 v{T+4}, v{T+4}
    """)
                rbf16(U_, U_)
                a(f"""
    v_add_f32 v{T+4}, 1.0, v{T+4}
    v_rcp_f32 v{T+4}, v{T+4}
    s_nop 0
    v_mul_f32 v{G_}, v{G_}, v{T+4}
    """)
                rbf16(G_, G_)
                a(f"""
    v_mul_f32 v{G_}, v{G_}, v{U_}
    v_cvt_pk_bf16_f32 v{G_}, v{G_}, v{G_}
    s_nop 1
    """)
                have_h = True
                ready = [k for k in range(8) if names.index(f"wd{k}") < names.index("ph")]
                for u in range(8):
                    for m_ in range(4):
                        a(f"    v_and_b32_dpp v{A2+4*u+m_}, v{G_}, v{2+m_} row_newbcast:{u} row_mask:0xf bank_mask:0xf")
                    if u >= 1 and (u - 1) in ready: mf_wd(u - 1)
                a("    s_nop 1")
                if 7 in ready: mf_wd(7)
                seg_end()
            elif name.startswith("wd"):
                std()
                if have_h: mf_wd(int(name[2:]))
            if ffn and name == max(("ph", "wd7"), key=names.index) and name != names[-1]:
                a(f"""
    s_nop 7
    ds_write_b128 v{vOT}, {vr(DG,4)} offset:{L_OUT+2048}
    """)
                st_b[0] = True
        o1 = L_OUT // 256
        a(f"""
    s_add_u32 s99, s62, {PG-PL}
    s_nop 6
    ds_write_b128 v{vOT}, {vr(PD,4)} offset:{L_OUT}
    """)
        if ffn and not st_b[0]: a(f"    ds_write_b128 v{vOT}, {vr(DG,4)} offset:{L_OUT+2048}")
        a("    s_waitcnt lgkmcnt(0)")
        barrier()
        a(f"""
    ds_read2st64_b32 {vr(T,2)}, v{vt7} offset0:{o1} offset1:{o1+2}
    ds_read2st64_b32 {vr(T+2,2)}, v{vt7} offset0:{o1+4} offset1:{o1+6}
    s_cmp_ge_u32 s3, 2
    s_waitcnt lgkmcnt(0)
    v_add_f32 v{T}, v{T}, v{T+1}
    v_add_f32 v{T+2}, v{T+2}, v{T+3}
    v_add_f32 v{T}, v{T}, v{T+2}
    v_add_u32 v{T}, v{T}, v{vaddP}
    v_bfi_b32 v{T}, s70, v{vtagP}, v{T}
    """)
        seg_end()
        if ffn or not lazyg:
            if not ffn: a("    s_cbranch_scc1 Lt_nopub")
            a(f"""
    buffer_store_dword v{T}, v{vtid4}, s[40:43], s62 offen
    buffer_store_dword v{T}, v{vtid4}, s[40:43], s99 offen sc1
    """)
            if not ffn: a("Lt_nopub:")
        else:
            a(f"""
    s_mov_b32 s71, 1
    s_cbranch_scc1 R_p
    buffer_store_dword v{T}, v{vtid4}, s[40:43], s62 offen
    buffer_load_dwordx4 {vr(RA,4)}, v{vA}, s[40:43], s55 offen sc1
    buffer_load_dwordx4 {vr(RB,4)}, v{vB}, s[40:43], s55 offen sc1
    buffer_store_dword v{T}, v{vtid4}, s[40:43], s99 offen sc1
    """)
            stamp(10)
            a("""
    s_waitcnt vmcnt(1)
    s_branch R_c
    """)
            return
        stamp(10)

    path(True, "H")
    store_stamps()
    a("    s_endpgm")
    a("L_light:")
    path(False, "Lt")
    a(f"""
LtSEG3:
    s_mov_b32 s71, 0
R_p:
    s_add_u32 s71, s71, 1
    s_and_b32 s96, s71, {gper}
    s_cmp_eq_u32 s96, 0
    s_cselect_b32 s96, s54, s55
    """)
    with guard():
        a(f"""
    buffer_load_dwordx4 {vr(RA,4)}, v{vA}, s[40:43], s96 offen sc1
    buffer_load_dwordx4 {vr(RB,4)}, v{vB}, s[40:43], s96 offen sc1
    s_waitcnt vmcnt(0)
    """)
    a(f"""
R_c:
    v_msad_u8 v{ac}, v{RA}, s28, 0
    v_msad_u8 v{ac+1}, v{RA+1}, s29, 0
    v_msad_u8 v{ac}, v{RA+2}, s30, v{ac}
    v_msad_u8 v{ac+1}, v{RA+3}, s31, v{ac+1}
    v_msad_u8 v{ac}, v{RB}, s28, v{ac}
    v_msad_u8 v{ac+1}, v{RB+1}, s29, v{ac+1}
    v_msad_u8 v{ac}, v{RB+2}, s30, v{ac}
    v_msad_u8 v{ac+1}, v{RB+3}, s31, v{ac+1}
    v_or_b32 v{ac}, v{ac}, v{ac+1}
    v_cmp_ne_u32 vcc, 0, v{ac}
    s_cmp_eq_u32 s71, {spin_max}
    s_cbranch_scc1 R_ok
    s_cbranch_vccnz R_p
R_ok:
    """)
    for e in range(4): a(f"    v_mul_f32 v{RB+e}, v{RB+e}, v{vkeep}")
    a(f"""
    v_permlane32_swap_b32 v{RA}, v{RA+2}
    v_permlane32_swap_b32 v{RA+1}, v{RA+3}
    v_permlane32_swap_b32 v{RB}, v{RB+2}
    v_permlane32_swap_b32 v{RB+1}, v{RB+3}
    v_add_f32 v{RA}, v{RA}, v{RA+2}
    v_add_f32 v{RA+1}, v{RA+1}, v{RA+3}
    v_add_f32 v{RB}, v{RB}, v{RB+2}
    v_add_f32 v{RB+1}, v{RB+1}, v{RB+3}
    v_lshlrev_b32 v{vX}, 16, v{vX}
    v_permlane16_swap_b32 v{RA}, v{RA+1}
    v_permlane16_swap_b32 v{RB}, v{RB+1}
    v_add_f32 v{RA}, v{RA}, v{RA+1}
    v_add_f32 v{RB}, v{RB}, v{RB+1}
    s_nop 0
    v_add_f32_dpp v{RA}, v{RA}, v{RA} row_ror:8 row_mask:0xf bank_mask:0xf
    v_add_f32_dpp v{RB}, v{RB}, v{RB} row_ror:8 row_mask:0xf bank_mask:0xf
    """)
    if red1:
        a(f"""
    s_nop 0
    v_add_f32_dpp v{RA}, v{RA}, v{RA} row_ror:4 row_mask:0xf bank_mask:0xf
    v_add_f32_dpp v{RB}, v{RB}, v{RB} row_ror:4 row_mask:0xf bank_mask:0xf
    s_nop 0
    v_add_f32_dpp v{RA}, v{RA}, v{RA} row_ror:2 row_mask:0xf bank_mask:0xf
    v_add_f32_dpp v{RB}, v{RB}, v{RB} row_ror:2 row_mask:0xf bank_mask:0xf
    v_cvt_pk_bf16_f32 v{RA}, v{RA}, v{RB}
    v_lshlrev_b32 v{RB}, 16, v{RA}
    v_and_b32 v{RA}, 0xffff0000, v{RA}
    v_add_f32 v{RB}, v{RB}, v{vX}
    v_cvt_pk_bf16_f32 v{RB}, v{RB}, v{RB}
    v_and_b32 v{RB}, 0xffff0000, v{RB}
    v_add_f32 v{RA}, v{RA}, v{RB}
    v_cvt_pk_bf16_f32 v{RA}, v{RA}, v{RA}
    """)
        if warm: a("    s_cbranch_execz LtW_ret")
        a(f"""
    s_mov_b64 exec, s[56:57]
    buffer_store_short v{RA}, v{vO}, s[16:19], 0 offen
    s_or_b32 s96, s65, s3
    s_cmp_lg_u32 s96, 0
    s_cbranch_scc1 R_done
    v_mov_b32 v{RB}, s35
    v_mov_b32 v{RB+1}, 0
    s_mov_b64 exec, 1
    buffer_store_dword v{RB}, v{RB+1}, s[40:43], 0 offen offset:{EPOCH}
    """)
    else:
        raise NotImplementedError
    a(f"""
R_done:
    s_mov_b64 exec, -1
    """)
    stamp(9)
    store_stamps()
    a("""
L_end:
    s_endpgm
L_code_end:
    """)
    print(out, "vgprs", nv, "agprs", nagpr, "lds", LDS_BYTES)
    open(out, "w").write(wrap(a.text(), 256, 256, LDS_BYTES, vgpr=accum + nagpr, accum=accum))

if __name__ == "__main__":
    gen("k12.s", stamps=True)
    gen("k12_ns.s", stamps=False)
```

```python
import gen12
cfg = dict(gper=63, pf_late=True, pf_at="ph", pq=22, dmap=[(28,4),(38,6)], lq=16, lo_sleep=0, lf_sleep=0, lnat=True, Dlw=8)
gen12.gen("fin2.s", stamps=False, **cfg)
s = open('fin2.s').read()
doc = '''.amdgcn_target "amdgcn-amd-amdhsa--gfx950"
; ---------------------------------------------------------------------------------------------
; ---------------------------------------------------------------------------------------------
'''
s = s.replace('.amdgcn_target "amdgcn-amd-amdhsa--gfx950"\n', doc, 1)
out = []
for l in s.split("\n"):
    if l.strip() == "" and out and out[-1].strip() == "": continue
    out.append(l)
open('fin2.s', 'w').write("\n".join(out))
```
